```python
import torch

def _softmax(x, axis=-1):
    return torch.softmax(x, dim=axis)

def _gelu(x):
    return torch.nn.functional.gelu(x, approximate='tanh')

def _silu(x):
    return torch.nn.functional.silu(x)

def _sigmoid(x):
    return torch.sigmoid(x)

def _layernorm(x, axis=-1, eps=1e-05):
    m = x.mean(dim=axis, keepdim=True)
    v = x.var(dim=axis, keepdim=True, unbiased=False)
    return (x - m) / torch.sqrt(v + eps)

def _scatter_add(tgt, idx, src, axis=0):
    return tgt.clone().index_add_(axis, idx, src)

def _segment_sum(src, seg, n):
    out = torch.zeros((n,) + src.shape[1:], dtype=src.dtype)
    return out.index_add_(0, seg, src)

def _pad(x, pw):
    flat = tuple((v for pair in reversed(pw) for v in pair))
    return torch.nn.functional.pad(x, flat)
kernel_name = 'interleave_layers__memory_aug_recurrent_mem_tr__swiglu_ffn__prompt'

def setup_inputs():

    _w = lambda a: (lambda t: t.to(torch.bfloat16) if t.is_floating_point() else t)(torch.as_tensor(a))

    def _A_setup():
        B, S, Dm = (1, 2048, 512)
        H, Dh = (32, 128)
        M, seg = (8, 32)
        seg = min(seg, S)
        S = S // seg * seg
        return {'x': _w((lambda *s: torch.randn(*s, dtype=torch.bfloat16) * 0.05)(B, S, Dm)), 'mem0': _w((lambda *s: torch.randn(*s, dtype=torch.bfloat16) * 0.8)(B, M, Dm)), 'Wq': _w((lambda *s: torch.randn(*s, dtype=torch.bfloat16) * 0.8)(Dm, H, Dh) * Dm ** (-0.5)), 'Wk': _w((lambda *s: torch.randn(*s, dtype=torch.bfloat16) * 0.8)(Dm, H, Dh) * Dm ** (-0.5)), 'Wv': _w((lambda *s: torch.randn(*s, dtype=torch.bfloat16) * 0.8)(Dm, H, Dh) * Dm ** (-0.5)), 'Wo': _w((lambda *s: torch.randn(*s, dtype=torch.bfloat16) * 0.8)(H, Dh, Dm) * (H * Dh) ** (-0.5)), 'seg_len': seg}
    _A_in = _A_setup()

    def _B_setup():
        B, S, D, F = (1, 2048, 512, 1792)
        return {'x': _w((lambda *s: torch.randn(*s, dtype=torch.bfloat16) * 0.05)(B, S, D)), 'w_gate': _w((lambda *s: torch.randn(*s, dtype=torch.bfloat16) * 0.05)(D, F)), 'w_up': _w((lambda *s: torch.randn(*s, dtype=torch.bfloat16) * 0.05)(D, F)), 'w_down': _w((lambda *s: torch.randn(*s, dtype=torch.bfloat16) * 0.05)(F, D))}
    _B_in = _B_setup()
    return {'A_x': _A_in['x'], 'A_mem0': _A_in['mem0'], 'A_Wq': _A_in['Wq'], 'A_Wk': _A_in['Wk'], 'A_Wv': _A_in['Wv'], 'A_Wo': _A_in['Wo'], 'A_seg_len': _A_in['seg_len'], 'B_x': _B_in['x'], 'B_w_gate': _B_in['w_gate'], 'B_w_up': _B_in['w_up'], 'B_w_down': _B_in['w_down']}

def reference(A_x, A_mem0, A_Wq, A_Wk, A_Wv, A_Wo, A_seg_len, B_x, B_w_gate, B_w_up, B_w_down):

    def _A_ref(x, mem0, Wq, Wk, Wv, Wo, seg_len):
        B, S, Dm = x.shape
        H, Dh = (Wq.shape[1], Wq.shape[2])
        M = mem0.shape[1]
        scale = Dh ** (-0.5)
        n_seg = S // seg_len
        L = M + seg_len
        idx = torch.arange(L)
        mask = (idx[:, None] < M) | (idx[:, None] >= idx[None, :])
        mem = mem0
        outs = []
        for s in range(n_seg):
            xs = x[:, s * seg_len:(s + 1) * seg_len, :].clone()
            h = torch.concatenate([mem, xs], axis=1)
            q = torch.einsum('btd,dhe->bhte', h, Wq)
            k = torch.einsum('btd,dhe->bhte', h, Wk)
            v = torch.einsum('btd,dhe->bhte', h, Wv)
            scores = torch.einsum('bhqe,bhke->bhqk', q, k) * scale
            scores = torch.where(mask[None, None], scores, -1000000000.0)
            p = _softmax(scores, axis=-1)
            o = torch.einsum('bhqk,bhke->bhqe', p, v)
            o = torch.einsum('bhte,hed->btd', o, Wo)
            mem = o[:, :M, :].clone()
            outs.append(o[:, M:, :])
        return torch.concatenate(outs, axis=1)

    def _B_ref(x, w_gate, w_up, w_down):
        g = _silu(x @ w_gate)
        u = x @ w_up
        return g * u @ w_down
    x = A_x
    x = x + _A_ref(_layernorm(x, axis=-1), A_mem0, A_Wq, A_Wk, A_Wv, A_Wo, A_seg_len)
    x = x + _B_ref(_layernorm(x, axis=-1), B_w_gate, B_w_up, B_w_down)
    x = x + _A_ref(_layernorm(x, axis=-1), A_mem0, A_Wq, A_Wk, A_Wv, A_Wo, A_seg_len)
    x = x + _B_ref(_layernorm(x, axis=-1), B_w_gate, B_w_up, B_w_down)
    return x
```

```python
import re

def R(i):
    return ("v%d" % i) if i < 256 else ("a%d" % (i - 256))
def RR(i, n):
    if n == 1: return R(i)
    if i < 256:
        assert i + n <= 256, (i, n)
        return "v[%d:%d]" % (i, i + n - 1)
    return "a[%d:%d]" % (i - 256, i - 256 + n - 1)
def S(i): return "s%d" % i
def SR(i, n):
    if n == 1: return S(i)
    return "s[%d:%d]" % (i, i + n - 1)

_reg_re = re.compile(r'^(v|a|s)(\d+)$')
_rng_re = re.compile(r'^(v|a|s)\[(\d+):(\d+)\]$')
def parse_regs(op):
    op = op.strip()
    if op.startswith('-'): op = op[1:]
    if op.startswith('abs(') : op = op[4:-1]
    if op.startswith('|'): op = op.strip('|')
    m = _reg_re.match(op)
    if m:
        k, i = m.group(1), int(m.group(2))
        if k == 's': return {('s', i)}
        return {('v', i + (256 if k == 'a' else 0))}
    m = _rng_re.match(op)
    if m:
        k, a, b = m.group(1), int(m.group(2)), int(m.group(3))
        if k == 's': return {('s', i) for i in range(a, b + 1)}
        o = 256 if k == 'a' else 0
        return {('v', i + o) for i in range(a, b + 1)}
    if op == 'vcc': return {('s', 106), ('s', 107)}
    if op == 'vcc_lo': return {('s', 106)}
    if op == 'vcc_hi': return {('s', 107)}
    if op == 'exec': return {('s', 126), ('s', 127)}
    if op == 'm0': return {('s', 124)}
    return set()

TRANS = ('v_exp_f32', 'v_log_f32', 'v_rcp_f32', 'v_rsq_f32', 'v_sqrt_f32', 'v_sin_f32', 'v_cos_f32', 'v_rcp_iflag_f32')

class Ins:
    __slots__ = ('text', 'op', 'ops', 'mods', 'kind', 'wr', 'rd', 'passes', 'srcC', 'dpp', 'sdwa')
    def __init__(self, text):
        self.text = text
        t = text.split(';')[0].strip()
        parts = t.split(None, 1)
        self.op = parts[0]
        rest = parts[1] if len(parts) > 1 else ''
        ops, cur, depth = [], '', 0
        for ch in rest:
            if ch in '[(': depth += 1
            if ch in '])': depth -= 1
            if ch == ',' and depth == 0:
                ops.append(cur.strip()); cur = ''
            else: cur += ch
        if cur.strip(): ops.append(cur.strip())
        mods = []
        if ops:
            toks = ops[-1].split()
            ops[-1] = toks[0]
            mods = toks[1:]
        self.ops, self.mods = ops, mods
        self.dpp = any(m.startswith(('quad_perm', 'row_shr', 'row_shl', 'row_ror', 'row_bcast', 'row_mirror', 'row_half_mirror', 'wave_', 'row_newbcast')) for m in mods) or self.op.endswith('_dpp')
        self.sdwa = self.op.endswith('_sdwa')
        self.passes = 0; self.srcC = set()
        op = self.op
        P = [parse_regs(o) for o in ops]
        wr, rd = set(), set()
        if op.startswith('v_mfma') or op.startswith('v_smfmac'):
            self.kind = 'mfma'
            self.passes = 8 if '32x32' in op else 4
            wr = P[0]
            if op.startswith('v_smfmac'):
                rd = P[0] | P[1] | P[2] | P[3]; self.srcC = P[0]
            else:
                rd = P[1] | P[2] | P[3]; self.srcC = P[3]
        elif op.startswith('v_'):
            self.kind = 'valu'
            if op.startswith('v_cmp'):
                wr = P[0]; rd = set().union(*P[1:])
                if op.startswith('v_cmpx'): wr = wr | {('s',126),('s',127)}
            elif op.startswith('v_permlane') and 'swap' in op:
                wr = P[0] | P[1]; rd = P[0] | P[1]
            elif op.startswith(('v_readfirstlane', 'v_readlane')):
                wr = P[0]; rd = set().union(*P[1:])
            elif op.startswith('v_writelane'):
                wr = P[0]; rd = set().union(*P)
            else:
                wr = P[0]; rd = set().union(*P[1:]) if len(P) > 1 else set()
                if op.startswith(('v_fmac', 'v_pk_fmac', 'v_mac', 'v_dot2c')) or self.dpp or self.sdwa or 'd16' in op:
                    rd = rd | P[0]
                if op.startswith('v_cndmask') and len(ops) == 3: rd = rd | {('s',106),('s',107)}
                if op.startswith('v_cndmask') and op.endswith('_dpp'): rd = rd | {('s',106),('s',107)}
                if op.startswith(('v_add_co', 'v_sub_co', 'v_addc_co', 'v_subb_co')):
                    wr = P[0] | P[1]; rd = set().union(*P[2:])
        elif op.startswith('ds_'):
            self.kind = 'ds'
            if op.startswith(('ds_read', 'ds_bpermute', 'ds_permute', 'ds_swizzle')):
                wr = P[0]; rd = set().union(*P[1:])
                if 'd16' in op: rd |= P[0]
            else:
                rd = set().union(*P)
        elif op.startswith(('buffer_', 'global_')):
            self.kind = 'vmem'
            islds = ('lds' in mods) or ('load_lds' in op)
            if op in ('buffer_inv', 'buffer_wbl2'):
                pass
            elif 'load' in op and not islds:
                wr = P[0]; rd = set().union(*P[1:])
            elif 'load' in op and islds:
                rd = set().union(*P) | {('s',124)}
            elif 'atomic' in op:
                rd = set().union(*P)
                if 'sc0' in mods: wr = P[0]
            else:
                rd = set().union(*P)
        elif op.startswith('s_'):
            self.kind = 'salu'
            if op.startswith(('s_cmp', 's_bitcmp', 's_waitcnt', 's_nop', 's_barrier', 's_branch', 's_cbranch', 's_endpgm', 's_sleep', 's_setprio', 's_setpc')):
                rd = set().union(*P) if P else set()
            elif op.startswith(('s_load', 's_buffer_load', 's_memtime', 's_memrealtime', 's_getreg', 's_getpc')):
                wr = P[0]; rd = set().union(*P[1:]) if len(P) > 1 else set()
            else:
                wr = P[0] if P else set(); rd = set().union(*P[1:]) if len(P) > 1 else set()
                if 'saveexec' in op: wr = wr | {('s',126),('s',127)}; rd = rd | {('s',126),('s',127)}
        else:
            self.kind = 'other'
        self.wr, self.rd = wr, rd
    def states(self):
        if self.op == 's_nop': return int(self.ops[0], 0) + 1
        return 1

def vset(x): return {r for r in x if r[0] == 'v'}
def sset(x): return {r for r in x if r[0] == 's'}

def need(prod, cons):
    n = 0
    pv, ps = vset(prod.wr), sset(prod.wr)
    cr, cw = cons.rd, cons.wr
    if prod.kind == 'valu':
        if cons.kind == 'mfma' and (pv & cr): n = max(n, 2)
        if cons.kind == 'valu':
            if cons.dpp and (pv & cr): n = max(n, 2)
            if cons.op.startswith('v_permlane') and (pv & cr): n = max(n, 2)
            if cons.op.startswith(('v_readlane', 'v_readfirstlane')) and (pv & cr): n = max(n, 1)
            if prod.op.split('_e')[0] in TRANS or prod.op in TRANS:
                if (pv & cr) and not (cons.op in TRANS): n = max(n, 1)
            if (prod.sdwa or 'op_sel' in ' '.join(prod.mods)) and (pv & (cr | cw)): n = max(n, 1)
            if ps & cr: n = max(n, 2)
            if ps & {('s',126),('s',127)}:
                if cons.dpp: n = max(n, 5)
                if cons.op.startswith(('v_readlane','v_readfirstlane','v_writelane','v_permlane')): n = max(n, 4)
            if cons.op.startswith(('v_readlane','v_writelane')) and (ps & cr): n = max(n, 4)
        if cons.kind in ('vmem',) and (ps & cr): n = max(n, 5)
        if cons.kind == 'mfma' and (ps & {('s',126),('s',127)}): n = max(n, 4)
        if cons.kind == 'salu' and (ps & cr): n = max(n, 4)
    if prod.kind == 'salu':
        if (('s',124) in ps) and cons.kind == 'vmem' and (('s',124) in cr): n = max(n, 1)
    if prod.kind == 'mfma':
        p = prod.passes
        big = {4: 8, 8: 12}[p]
        if cons.kind == 'mfma':
            ab = cr - cons.srcC
            abset = set()
            for o in cons.ops[1:3]: abset |= parse_regs(o)
            if cons.op.startswith('v_smfmac'): abset |= parse_regs(cons.ops[3])
            if pv & abset: n = max(n, big)
            if pv & cons.srcC:
                if not (cons.srcC == pv and cons.passes == p):
                    n = max(n, {4: 6, 8: 10}[p])
            elif pv & cw:
                n = max(n, {4: 6, 8: 10}[p])
        elif cons.kind in ('valu', 'ds', 'vmem'):
            if pv & (cr | cw): n = max(n, big)
        if cons.kind == 'valu' and (prod.srcC & cw): n = max(n, {4: 3, 8: 7}[p])
    if prod.kind == 'vmem' and ('store' in prod.op or 'atomic' in prod.op) and ('x4' in prod.op or 'x3' in prod.op):
        if cons.kind == 'valu' and (vset(prod.rd) & cw): n = max(n, 2)
        if cons.kind in ('ds','vmem','mfma') and (vset(prod.rd) & cw): n = max(n, 1)
    if prod.kind == 'ds' and prod.op.startswith('ds_write') and ('b128' in prod.op or 'b96' in prod.op or 'write2_b64' in prod.op):
        if cons.kind == 'valu' and (vset(prod.rd) & cw): n = max(n, 2)
    return n

class Asm:
    def __init__(self):
        self.items = []
        self.uid = 0
    filt = None
    def __call__(self, text):
        for line in text.strip().split('\n'):
            line = line.strip()
            if self.filt is not None:
                line = self.filt(line)
                if line is None: continue
            if not line or line.startswith(';'):
                continue
            if line.endswith(':') and ' ' not in line: self.items.append(('l', line[:-1]))
            elif line.startswith('.'): self.items.append(('r', line))
            else: self.items.append(('i', line))
    def label(self, name): self.items.append(('l', name))
    def newlabel(self, base='L'):
        self.uid += 1
        return "%s_%d" % (base, self.uid)
    def comment(self, c): self.items.append(('c', c))
    def render(self, pad=True):
        out = []
        hist = []
        W = 20
        nn = 0
        def flush_all():
            m = 0
            for ins, d in hist:
                if ins.kind == 'mfma': req = {4: 8, 8: 12}[ins.passes]
                elif ins.kind == 'valu':
                    req = 2
                    if sset(ins.wr): req = 5
                elif ins.kind == 'vmem' and ('store' in ins.op) and ('x4' in ins.op): req = 2
                elif ins.kind == 'salu' and ('s',124) in ins.wr: req = 1
                else: req = 0
                m = max(m, req - d)
            return m
        for kind, t in self.items:
            if kind == 'c':
                out.append('    ; ' + t); continue
            if kind == 'r':
                out.append(t); continue
            if kind == 'l':
                if pad:
                    m = flush_all()
                    if m > 0:
                        out.append('    s_nop %d' % (m - 1)); nn += 1
                hist = []
                out.append(t + ':'); continue
            ins = Ins(t)
            if pad:
                m = 0
                isbr = ins.op.startswith(('s_branch', 's_cbranch', 's_setpc'))
                if isbr:
                    m = flush_all() - 1
                for p, d in hist:
                    m = max(m, need(p, ins) - d)
                while m > 0:
                    k = min(m, 16)
                    out.append('    s_nop %d' % (k - 1)); nn += 1
                    hist = [(p, d + k) for p, d in hist]
                    m -= k
            out.append('    ' + t)
            st = ins.states()
            hist = [(p, d + st) for p, d in hist if d + st < W]
            hist.append((ins, 0))
        self.nnops = nn
        return '\n'.join(out) + '\n'
```

```python
from common import *
import struct
def f32(x): return struct.unpack('<I', struct.pack('<f', x))[0]

sREP, sAUX, sC0, sC1, sJL, sJS, sN, sD0 = 32, 33, 34, 35, 36, 37, 38, 39
sT0, sT1, sT2, sT3, sT4 = 40, 41, 42, 43, 44
sAUX2, sAUX3 = 45, 46
sFLJ = 47
sIN, sOUT = 48, 49
sK = 50
sLDSW = 51
sX0, sX1, sX2, sX3 = 52, 53, 54, 55

def sched_init(a, nrep, d0, rep_sgpr):
    a("s_mov_b32 %s, %s" % (S(sREP), S(rep_sgpr)))
    a("s_mov_b32 %s, 0" % S(sC0)); a("s_mov_b32 %s, 0" % S(sC1))
    if 64 % nrep == 0:
        a("s_mov_b32 %s, %d" % (S(sN), 64 // nrep))
    else:
        assert nrep == 3
        a("s_cmp_eq_u32 %s, 0" % S(sREP))
        a("s_cselect_b32 %s, 22, 21" % S(sN))
    a("s_mov_b32 %s, %d" % (S(sD0), d0))

def sched_next(a, nrep, Ldone):
    L0 = a.newlabel('j0'); L1 = a.newlabel('j1'); Le = a.newlabel('je')
    a("s_cmp_lt_u32 %s, %s" % (S(sC0), S(sN)))
    a("s_cbranch_scc0 %s" % L1)
    a("s_cmp_lt_u32 %s, %s" % (S(sC0), S(sD0)))
    a("s_cbranch_scc1 %s" % L0)
    a("s_sub_u32 %s, %s, %s" % (S(sT0), S(sC0), S(sD0)))
    a("s_cmp_le_u32 %s, %s" % (S(sC1), S(sT0)))
    a("s_cbranch_scc1 %s" % L1)
    a.label(L0)
    a("s_mov_b32 %s, 0" % S(sJL))
    a("s_mul_i32 %s, %s, %d" % (S(sJS), S(sC0), nrep))
    a("s_add_u32 %s, %s, 1" % (S(sC0), S(sC0)))
    a("s_branch %s" % Le)
    a.label(L1)
    a("s_cmp_lt_u32 %s, %s" % (S(sC1), S(sN)))
    a("s_cbranch_scc0 %s" % Ldone)
    a("s_mov_b32 %s, 1" % S(sJL))
    a("s_mul_i32 %s, %s, %d" % (S(sJS), S(sC1), nrep))
    a("s_add_u32 %s, %s, 1" % (S(sC1), S(sC1)))
    a.label(Le)
    a("s_add_u32 %s, %s, %s" % (S(sJS), S(sJS), S(sREP)))
    a("s_lshl_b32 %s, %s, 6" % (S(sT0), S(sJL)))
    a("s_add_u32 %s, %s, %s" % (S(sT0), S(sT0), S(sJS)))
    a("s_lshl_b32 %s, %s, 11" % (S(sFLJ), S(sT0)))

def job_off(a, sdst, base, lstride, job, extra_sgpr=None):
    a("s_mul_i32 %s, %s, %d" % (S(sdst), S(sJS), job))
    if lstride:
        a("s_mul_i32 %s, %s, %d" % (S(sT4), S(sJL), lstride))
        a("s_add_u32 %s, %s, %s" % (S(sdst), S(sdst), S(sT4)))
    a("s_add_u32 %s, %s, %d" % (S(sdst), S(sdst), base))
    if extra_sgpr is not None:
        a("s_add_u32 %s, %s, %s" % (S(sdst), S(sdst), S(extra_sgpr)))

def flag_store(a, vt0, vt1, soff):
    a("v_mov_b32 %s, 1" % R(vt0))
    a("v_mov_b32 %s, 0" % R(vt1))
    a("s_mov_b64 exec, 1")
    a("buffer_store_dword %s, %s, %s, %s offen sc1" % (R(vt0), R(vt1), SR(sWS, 4), soff))
    a("s_mov_b64 exec, -1")

def load_frags32(a, frags, vrow, vtr, ringslots=32):
    n = len(frags)
    def issue(c):
        srd, soff, _ = frags[c]
        soff(a, sK)
        a("s_add_u32 m0, %s, %d" % (S(sLDSW), (c % ringslots) * 1024))
        a("buffer_load_dwordx4 %s, %s, %s offen lds" % (R(vrow), SR(srd, 4), S(sK)))
    a("s_waitcnt vmcnt(0)")
    for c in range(min(ringslots, n)): issue(c)
    G = 4
    for c0 in range(0, n, G):
        cs = list(range(c0, min(c0 + G, n)))
        issued = min(c0 + ringslots, n)
        a("s_waitcnt vmcnt(%d)" % (issued - cs[-1] - 1))
        for c in cs:
            d = frags[c][2]
            off = (c % ringslots) * 1024
            a("ds_read_b64_tr_b16 %s, %s offset:%d" % (RR(d, 2), R(vtr), off))
            a("ds_read_b64_tr_b16 %s, %s offset:%d" % (RR(d + 2, 2), R(vtr), off + 256))
        a("s_waitcnt lgkmcnt(0)")
        for c in cs:
            if c + ringslots < n: issue(c + ringslots)

def setup_tr32(a, lane, vtr, t1, t2):
    a("s_lshl_b32 %s, %s, 15" % (S(sLDSW), S(sW)))
    a("v_lshrrev_b32 %s, 5, %s" % (R(t1), R(lane)))
    a("v_lshlrev_b32 %s, 3, %s" % (R(t1), R(t1)))
    a("v_bfe_u32 %s, %s, 2, 2" % (R(t2), R(lane)))
    a("v_add_u32 %s, %s, %s" % (R(t1), R(t1), R(t2)))
    a("v_lshlrev_b32 %s, 6, %s" % (R(t1), R(t1)))
    a("v_bfe_u32 %s, %s, 4, 1" % (R(t2), R(lane)))
    a("v_lshl_add_u32 %s, %s, 5, %s" % (R(t1), R(t2), R(t1)))
    a("v_and_b32 %s, 3, %s" % (R(t2), R(lane)))
    a("v_lshl_add_u32 %s, %s, 3, %s" % (R(t1), R(t2), R(t1)))
    a("v_add_u32 %s, %s, %s" % (R(vtr), S(sLDSW), R(t1)))

def setup_rowtile(a, lane, AF, VD, t1, t2, t3):
    a("v_and_b32 %s, 31, %s" % (R(t1), R(lane)))
    a("v_lshrrev_b32 %s, 5, %s" % (R(t2), R(lane)))
    a("v_and_b32 %s, 15, %s" % (R(t3), R(lane)))
    for j in range(8):
        a("v_add_u32 %s, %d, %s" % (R(AF + j), 2 * j, R(t2)))
        a("v_xor_b32 %s, %s, %s" % (R(AF + j), R(AF + j), R(t3)))
        a("v_lshlrev_b32 %s, 4, %s" % (R(AF + j), R(AF + j)))
        a("v_lshl_add_u32 %s, %s, 8, %s" % (R(AF + j), R(t1), R(AF + j)))
    for t in range(2):
        a("v_lshrrev_b32 %s, 4, %s" % (R(t1), R(lane)))
        a("v_add_u32 %s, %d, %s" % (R(t1), 4 * t, R(t1)))
        a("s_lshl_b32 %s, %s, 3" % (S(sT0), S(sW)))
        a("v_add_u32 %s, %s, %s" % (R(t2), S(sT0), R(t1)))
        a("v_and_b32 %s, 15, %s" % (R(t2), R(t2)))
        a("v_xor_b32 %s, %s, %s" % (R(t2), R(t2), R(t3)))
        a("v_lshlrev_b32 %s, 4, %s" % (R(t2), R(t2)))
        a("v_lshl_add_u32 %s, %s, 10, %s" % (R(VD + t), R(t1), R(t2)))

def rowtile_dma(a, VD, s_src, buf):
    a("s_lshl_b32 %s, %s, 13" % (S(sT0), S(sW)))
    a("s_add_u32 %s, %s, %s" % (S(sT0), S(sT0), S(s_src)))
    a("s_lshl_b32 %s, %s, 11" % (S(sT1), S(sW)))
    for b in range(4):
        for t in range(2):
            a("s_add_u32 m0, %s, %d" % (S(sT1), buf + b * 8192 + t * 1024))
            a("buffer_load_dwordx4 %s, %s, %s offen sc1 lds" % (R(VD + t), SR(sWS, 4), S(sT0)))
        if b < 3: a("s_add_u32 %s, %s, 256" % (S(sT0), S(sT0)))

def mf32x(a, d, aa, b, c):
    a("v_mfma_f32_32x32x16_bf16 %s, %s, %s, %s" % (RR(d, 16), RR(aa, 4), RR(b, 4), '0' if c is None else RR(c, 16)))

def s1_role(a, init_target):
    a.comment("==== S1 role ====")
    lane, T1, T2, T3 = 0, 13, 14, 15
    AF, VD, VST, VSV, VFL = 2, 10, 12, 1, 104
    ACC = {'q': 16, 'k': 32, 'v': 48}
    XF = [64 + 4 * i for i in range(4)]
    PKD = 80
    def W(x, ks): return {'q': 256, 'k': 384, 'v': 128}[x] + 4 * ks
    a("s_sub_u32 %s, %s, 2" % (S(sT0), S(sXCC)))
    sched_init(a, 3, 7, sT0)
    a("s_mov_b32 %s, %s" % (S(sAUX), S(sTICK)))
    load_srd(a, sA, 'Wq'); load_srd(a, sB, 'Wk'); load_srd(a, sC, 'Wv')
    signal_init(a, T1, T2)
    a("s_waitcnt lgkmcnt(0)")
    finish_srd(a, sA, 'Wq'); finish_srd(a, sB, 'Wk'); finish_srd(a, sC, 'Wv')
    VROW, VTR = 20, 21
    setup_tr32(a, lane, VTR, T1, T2)
    a("v_lshrrev_b32 %s, 2, %s" % (R(T1), R(lane)))
    a("v_and_b32 %s, 3, %s" % (R(T2), R(lane)))
    a("v_lshlrev_b32 %s, 4, %s" % (R(T2), R(T2)))
    a("v_lshl_add_u32 %s, %s, 13, %s" % (R(VROW), R(T1), R(T2)))
    a("s_lshl_b32 %s, %s, 8" % (S(sX0), S(sAUX)))
    a("s_lshl_b32 %s, %s, 6" % (S(sT0), S(sW)))
    a("s_add_u32 %s, %s, %s" % (S(sX0), S(sX0), S(sT0)))
    frags = []
    for x, srd in (('k', sB), ('v', sC), ('q', sA)):
        for ks in range(32):
            frags.append((srd, (lambda a_, d, ks=ks: a_("s_add_u32 %s, %s, %d" % (S(d), S(sX0), ks * 16 * 8192))), W(x, ks)))
    load_frags32(a, frags, VROW, VTR)
    setup_rowtile(a, lane, AF, VD, T1, T2, T3)
    a("v_bfe_u32 %s, %s, 4, 1" % (R(T1), R(lane)))
    a("v_lshrrev_b32 %s, 5, %s" % (R(T2), R(lane)))
    a("v_and_b32 %s, 15, %s" % (R(T3), R(lane)))
    a("v_lshlrev_b32 %s, 4, %s" % (R(T3), R(T3)))
    a("v_lshl_add_u32 %s, %s, 8, %s" % (R(T3), R(T2), R(T3)))
    a("v_lshl_add_u32 %s, %s, 12, %s" % (R(VST), R(T1), R(T3)))
    a("v_lshl_add_u32 %s, %s, 10, %s" % (R(VSV), R(T1), R(T3)))
    a("v_and_b32 %s, 31, %s" % (R(VFL), R(lane)))
    a("v_lshlrev_b32 %s, 2, %s" % (R(VFL), R(VFL)))
    wait_init(a, T1, T2, init_target)
    a("s_barrier")
    Lj = a.newlabel('s1job'); Ld = a.newlabel('s1done')
    a.label(Lj)
    sched_next(a, 3, Ld)
    a("s_add_u32 %s, %s, %d" % (S(sT2), S(sFLJ), WS_FLAGS + FL_H * 4))
    poll(a, T1, VFL, S(sT2), sleep=2)
    job_off(a, sIN, WS_HN, HN_L, HN_JOB)
    rowtile_dma(a, VD, sIN, 0)
    a("s_waitcnt vmcnt(0)")
    a("s_barrier")
    def rd(ks): return "ds_read_b128 %s, %s offset:%d" % (RR(XF[ks % 4], 4), R(AF + (ks & 7)), (ks >> 3) * 8192)
    for ks in range(3): a(rd(ks))
    for ks in range(32):
        a("s_waitcnt lgkmcnt(%d)" % min(2, 31 - ks))
        x = XF[ks % 4]
        mf32x(a, ACC['q'], W('q', ks), x, None if ks == 0 else ACC['q'])
        if ks + 3 < 32: a(rd(ks + 3))
        mf32x(a, ACC['k'], W('k', ks), x, None if ks == 0 else ACC['k'])
        mf32x(a, ACC['v'], x, W('v', ks), None if ks == 0 else ACC['v'])
    a("s_barrier")
    job_off(a, sOUT, WS_QKV, QKV_L, QKV_JOB)
    a("s_mul_i32 %s, %s, %d" % (S(sT0), S(sAUX), 24 * KB))
    a("s_add_u32 %s, %s, %s" % (S(sOUT), S(sOUT), S(sT0)))
    a("s_lshl_b32 %s, %s, 10" % (S(sT0), S(sW)))
    a("s_add_u32 %s, %s, %s" % (S(sX1), S(sOUT), S(sT0)))
    a("s_add_u32 %s, %s, 8192" % (S(sX2), S(sX1)))
    a("s_lshl_b32 %s, %s, 11" % (S(sT0), S(sW)))
    a("s_add_u32 %s, %s, %s" % (S(sX3), S(sOUT), S(sT0)))
    a("s_add_u32 %s, %s, 16384" % (S(sX3), S(sX3)))
    for xi, (x, so) in enumerate((('k', sX2), ('q', sX1))):
        base = PKD + 8 * xi
        for r_ in range(8):
            a("v_cvt_pk_bf16_f32 %s, %s, %s" % (R(base + r_), R(ACC[x] + 2 * r_), R(ACC[x] + 2 * r_ + 1)))
        for p in range(2):
            a("buffer_store_dwordx4 %s, %s, %s, %s offen offset:%d sc1" % (RR(base + 4 * p, 4), R(VST), SR(sWS, 4), S(so), p * 512))
    base = PKD + 16
    for p in range(2):
        for q, b in enumerate((p, p + 2)):
            for hh in range(2):
                a("v_cvt_pk_bf16_f32 %s, %s, %s" % (R(base + 4 * p + 2 * q + hh), R(ACC['v'] + 4 * b + 2 * hh), R(ACC['v'] + 4 * b + 2 * hh + 1)))
        a("buffer_store_dwordx4 %s, %s, %s, %s offen offset:%d sc1" % (RR(base + 4 * p, 4), R(VSV), SR(sWS, 4), S(sX3), p * 512))
    a("s_waitcnt vmcnt(0)")
    a("s_lshl_b32 %s, %s, 4" % (S(sT0), S(sAUX)))
    a("s_lshl_b32 %s, %s, 2" % (S(sT1), S(sW)))
    a("s_add_u32 %s, %s, %s" % (S(sT0), S(sT0), S(sT1)))
    a("s_add_u32 %s, %s, %s" % (S(sT0), S(sT0), S(sFLJ)))
    a("s_add_u32 %s, %s, %d" % (S(sT0), S(sT0), WS_FLAGS + FL_KV * 4))
    flag_store(a, T1, T2, S(sT0))
    a("s_branch %s" % Lj)
    a.label(Ld)
    a("s_waitcnt vmcnt(0)")
    a("s_branch L_exit")

def s35_role(a, which, init_target):
    a.comment("==== S%d role ====" % which)
    tag = 's%d' % which
    NK = 64 if which == 3 else 56
    lane, T1, T2, T3 = 0, 13, 14, 15
    VL16, VTW, VTR_, VST, VFL = 1, 2, 3, 4, 5
    ACC = 16
    XF = [32 + 4 * i for i in range(8)]
    TRN = 64
    def W(ks): return 256 + 4 * ks
    sched_init(a, 2, 8, sX0)
    a("s_mov_b32 %s, %s" % (S(sAUX), S(sX1)))
    a("s_mov_b32 %s, %s" % (S(sAUX2), S(sX2)))
    wname = 'Wo' if which == 3 else 'Wd'
    load_srd(a, sA, wname)
    signal_init(a, T1, T2)
    a("s_waitcnt lgkmcnt(0)")
    finish_srd(a, sA, wname)
    VROW, VTR = 20, 21
    setup_tr32(a, lane, VTR, T1, T2)
    a("v_bfe_u32 %s, %s, 4, 1" % (R(T1), R(lane)))
    a("v_lshlrev_b32 %s, %d, %s" % (R(T1), 4 if which == 3 else 3, R(T1)))
    a("v_bfe_u32 %s, %s, 5, 1" % (R(T2), R(lane)))
    a("v_lshl_add_u32 %s, %s, 2, %s" % (R(T1), R(T2), R(T1)))
    a("v_bfe_u32 %s, %s, 2, 2" % (R(T2), R(lane)))
    a("v_add_u32 %s, %s, %s" % (R(T1), R(T1), R(T2)))
    a("v_and_b32 %s, 3, %s" % (R(T2), R(lane)))
    a("v_lshlrev_b32 %s, 4, %s" % (R(T2), R(T2)))
    a("v_lshl_add_u32 %s, %s, 10, %s" % (R(VROW), R(T1), R(T2)))
    a("s_mul_i32 %s, %s, %d" % (S(sX0), S(sAUX), (1024 if which == 3 else 896) * 1024))
    a("s_lshl_b32 %s, %s, 8" % (S(sT0), S(sAUX2)))
    a("s_add_u32 %s, %s, %s" % (S(sX0), S(sX0), S(sT0)))
    a("s_lshl_b32 %s, %s, 6" % (S(sT0), S(sW)))
    a("s_add_u32 %s, %s, %s" % (S(sX0), S(sX0), S(sT0)))
    frags = []
    for ks in range(NK):
        m = ks & 7
        row = (ks >> 3) * 128 + (32 * (m >> 1) + (8 if which == 3 else 16) * (m & 1))
        frags.append((sA, (lambda a_, d, row=row: a_("s_add_u32 %s, %s, %d" % (S(d), S(sX0), row * 1024))), W(ks)))
    load_frags32(a, frags, VROW, VTR)
    a("v_lshlrev_b32 %s, 4, %s" % (R(VL16), R(lane)))
    TB = 131072
    a("v_and_b32 %s, 31, %s" % (R(T1), R(lane)))
    a("v_lshrrev_b32 %s, 5, %s" % (R(T2), R(lane)))
    a("v_and_b32 %s, 7, %s" % (R(T3), R(lane)))
    a("v_xor_b32 %s, %s, %s" % (R(T2), R(T2), R(T3)))
    a("v_lshlrev_b32 %s, 4, %s" % (R(T2), R(T2)))
    a("v_lshl_add_u32 %s, %s, 7, %s" % (R(VTW), R(T1), R(T2)))
    a("s_lshl_b32 %s, %s, 12" % (S(sT0), S(sW)))
    a("s_add_u32 %s, %s, %d" % (S(sT0), S(sT0), TB))
    a("v_add_u32 %s, %s, %s" % (R(VTW), S(sT0), R(VTW)))
    a("v_lshrrev_b32 %s, 3, %s" % (R(T1), R(lane)))
    a("v_and_b32 %s, 7, %s" % (R(T2), R(lane)))
    a("v_xor_b32 %s, %s, %s" % (R(T3), R(T2), R(T1)))
    a("v_lshlrev_b32 %s, 4, %s" % (R(T3), R(T3)))
    a("v_lshl_add_u32 %s, %s, 7, %s" % (R(VTR_), R(T1), R(T3)))
    a("v_add_u32 %s, %s, %s" % (R(VTR_), S(sT0), R(VTR_)))
    a("v_lshlrev_b32 %s, 4, %s" % (R(T2), R(T2)))
    a("v_lshl_add_u32 %s, %s, 11, %s" % (R(VST), R(T1), R(T2)))
    nfl = 8 if which == 3 else 28
    a("v_min_u32 %s, %d, %s" % (R(VFL), nfl - 1, R(lane)))
    a("v_lshlrev_b32 %s, 2, %s" % (R(VFL), R(VFL)))
    wait_init(a, T1, T2, init_target)
    a("s_barrier")
    Lj = a.newlabel(tag + 'job'); Ld = a.newlabel(tag + 'done')
    a.label(Lj)
    sched_next(a, 2, Ld)
    if which == 3:
        a("s_lshl_b32 %s, %s, 5" % (S(sT2), S(sAUX)))
        a("s_add_u32 %s, %s, %d" % (S(sT2), S(sT2), WS_FLAGS + FL_O * 4))
    else:
        a("s_mul_i32 %s, %s, 112" % (S(sT2), S(sAUX)))
        a("s_add_u32 %s, %s, %d" % (S(sT2), S(sT2), WS_FLAGS + FL_A * 4))
    a("s_add_u32 %s, %s, %s" % (S(sT2), S(sT2), S(sFLJ)))
    poll(a, T1, VFL, S(sT2), sleep=2)
    if which == 3:
        job_off(a, sIN, WS_O, O_L, O_JOB)
        a("s_lshl_b32 %s, %s, 16" % (S(sT0), S(sAUX)))
    else:
        job_off(a, sIN, WS_ACT, ACT_L, ACT_JOB)
        a("s_mul_i32 %s, %s, %d" % (S(sT0), S(sAUX), 7 * 8192))
    a("s_add_u32 %s, %s, %s" % (S(sIN), S(sIN), S(sT0)))
    a("s_lshl_b32 %s, %s, 10" % (S(sT1), S(sW)))
    a("s_add_u32 %s, %s, %s" % (S(sIN), S(sIN), S(sT1)))
    for i in range(NK // 4):
        a("s_add_u32 m0, %s, %d" % (S(sT1), i * 4096))
        a("buffer_load_dwordx4 %s, %s, %s offen sc1 lds" % (R(VL16), SR(sWS, 4), S(sIN)))
        if i + 1 < NK // 4: a("s_add_u32 %s, %s, 4096" % (S(sIN), S(sIN)))
    a("s_waitcnt vmcnt(0)")
    a("s_barrier")
    def rd(ks): return "ds_read_b128 %s, %s offset:%d" % (RR(XF[ks % 8], 4), R(VL16), ks * 1024)
    PF = 6
    for ks in range(PF): a(rd(ks))
    for ks in range(NK):
        a("s_waitcnt lgkmcnt(%d)" % min(PF - 1, NK - 1 - ks))
        mf32x(a, ACC, W(ks), XF[ks % 8], None if ks == 0 else ACC)
        if ks + PF < NK: a(rd(ks + PF))
    a("s_barrier")
    for b in range(4):
        if b == 0:
            a("ds_write_b128 %s, %s" % (R(VTW), RR(ACC, 4)))
        else:
            a("v_xor_b32 %s, %d, %s" % (R(T1), b * 32, R(VTW)))
            a("ds_write_b128 %s, %s" % (R(T1), RR(ACC + 4 * b, 4)))
    a("s_waitcnt lgkmcnt(0)")
    for t in range(4):
        a("ds_read_b128 %s, %s offset:%d" % (RR(TRN + 4 * t, 4), R(VTR_), t * 1024))
    if which == 3:
        job_off(a, sOUT, WS_P3, P3_L, P3_JOB)
    else:
        job_off(a, sOUT, WS_P5, P5_L, P5_JOB)
    a("s_lshl_b32 %s, %s, 16" % (S(sT0), S(sAUX)))
    a("s_add_u32 %s, %s, %s" % (S(sOUT), S(sOUT), S(sT0)))
    a("s_lshl_b32 %s, %s, 9" % (S(sT0), S(sAUX2)))
    a("s_add_u32 %s, %s, %s" % (S(sOUT), S(sOUT), S(sT0)))
    a("s_lshl_b32 %s, %s, 7" % (S(sT0), S(sW)))
    a("s_add_u32 %s, %s, %s" % (S(sOUT), S(sOUT), S(sT0)))
    for t in range(4):
        a("s_waitcnt lgkmcnt(%d)" % (3 - t))
        a("buffer_store_dwordx4 %s, %s, %s, %s offen sc1" % (RR(TRN + 4 * t, 4), R(VST), SR(sWS, 4), S(sOUT)))
        if t < 3: a("s_add_u32 %s, %s, %d" % (S(sOUT), S(sOUT), 8 * 2048))
    a("s_waitcnt vmcnt(0)")
    a("s_lshl_b32 %s, %s, 2" % (S(sT0), S(sAUX)))
    a("s_add_u32 %s, %s, %s" % (S(sT0), S(sT0), S(sAUX2)))
    a("s_lshl_b32 %s, %s, 2" % (S(sT0), S(sT0)))
    a("s_add_u32 %s, %s, %s" % (S(sT0), S(sT0), S(sW)))
    a("s_lshl_b32 %s, %s, 2" % (S(sT0), S(sT0)))
    a("s_add_u32 %s, %s, %s" % (S(sT0), S(sT0), S(sFLJ)))
    a("s_add_u32 %s, %s, %d" % (S(sT0), S(sT0), WS_FLAGS + (FL_P3 if which == 3 else FL_P5) * 4))
    flag_store(a, T1, T2, S(sT0))
    a("s_branch %s" % Lj)
    a.label(Ld)
    a("s_waitcnt vmcnt(0)")
    a("s_branch L_exit")

def s4_role(a, init_target):
    a.comment("==== S4 role ====")
    lane, T1, T2, T3 = 0, 13, 14, 15
    AF, VD, VL16, VFL = 2, 10, 12, 1
    AG, AU = 16, 32
    XF = [48 + 4 * i for i in range(4)]
    G, U, E_, PKD = 64, 80, 96, 112
    def W(x, ks): return 256 + (0 if x == 'g' else 128) + 4 * ks
    sched_init(a, 2, 8, sX0)
    a("s_mov_b32 %s, %s" % (S(sAUX), S(sX1)))
    load_srd(a, sA, 'Wg'); load_srd(a, sB, 'Wu')
    signal_init(a, T1, T2)
    a("s_waitcnt lgkmcnt(0)")
    finish_srd(a, sA, 'Wg'); finish_srd(a, sB, 'Wu')
    VROW, VTR = 20, 21
    setup_tr32(a, lane, VTR, T1, T2)
    a("v_lshrrev_b32 %s, 2, %s" % (R(T1), R(lane)))
    a("s_movk_i32 %s, 3584" % S(sT0))
    a("v_mul_lo_u32 %s, %s, %s" % (R(T1), S(sT0), R(T1)))
    a("v_and_b32 %s, 3, %s" % (R(T2), R(lane)))
    a("v_lshl_add_u32 %s, %s, 4, %s" % (R(VROW), R(T2), R(T1)))
    a("s_lshl_b32 %s, %s, 8" % (S(sX0), S(sAUX)))
    a("s_lshl_b32 %s, %s, 6" % (S(sT0), S(sW)))
    a("s_add_u32 %s, %s, %s" % (S(sX0), S(sX0), S(sT0)))
    frags = []
    for x, srd in (('g', sA), ('u', sB)):
        for ks in range(32):
            frags.append((srd, (lambda a_, d, ks=ks: a_("s_add_u32 %s, %s, %d" % (S(d), S(sX0), ks * 16 * 3584))), W(x, ks)))
    load_frags32(a, frags, VROW, VTR)
    setup_rowtile(a, lane, AF, VD, T1, T2, T3)
    a("v_lshlrev_b32 %s, 4, %s" % (R(VL16), R(lane)))
    a("v_and_b32 %s, 31, %s" % (R(VFL), R(lane)))
    a("v_lshlrev_b32 %s, 2, %s" % (R(VFL), R(VFL)))
    a("s_mov_b32 %s, 0x%x" % (S(sX3), f32(-1.4426950408889634)))
    wait_init(a, T1, T2, init_target)
    a("s_barrier")
    Lj = a.newlabel('s4job'); Ld = a.newlabel('s4done')
    a.label(Lj)
    sched_next(a, 2, Ld)
    a("s_add_u32 %s, %s, %d" % (S(sT2), S(sFLJ), WS_FLAGS + FL_H2 * 4))
    poll(a, T1, VFL, S(sT2), sleep=2)
    job_off(a, sIN, WS_H2, H2_L, H2_JOB)
    rowtile_dma(a, VD, sIN, 0)
    a("s_waitcnt vmcnt(0)")
    a("s_barrier")
    def rd(ks): return "ds_read_b128 %s, %s offset:%d" % (RR(XF[ks % 4], 4), R(AF + (ks & 7)), (ks >> 3) * 8192)
    for ks in range(3): a(rd(ks))
    for ks in range(32):
        a("s_waitcnt lgkmcnt(%d)" % min(2, 31 - ks))
        x = XF[ks % 4]
        mf32x(a, AG, W('g', ks), x, None if ks == 0 else AG)
        if ks + 3 < 32: a(rd(ks + 3))
        mf32x(a, AU, W('u', ks), x, None if ks == 0 else AU)
    a("s_barrier")
    for r_ in range(8):
        g0, g1, u0, u1 = AG + 2 * r_, AG + 2 * r_ + 1, AU + 2 * r_, AU + 2 * r_ + 1
        t = G + (r_ % 2) * 8
        a("v_cvt_pk_bf16_f32 %s, %s, %s" % (R(t), R(g0), R(g1)))
        a("v_cvt_pk_bf16_f32 %s, %s, %s" % (R(t + 1), R(u0), R(u1)))
        a("v_lshlrev_b32 %s, 16, %s" % (R(g0), R(t)))
        a("v_and_b32 %s, 0xffff0000, %s" % (R(g1), R(t)))
        a("v_lshlrev_b32 %s, 16, %s" % (R(u0), R(t + 1)))
        a("v_and_b32 %s, 0xffff0000, %s" % (R(u1), R(t + 1)))
        a("v_mul_f32 %s, %s, %s" % (R(t + 2), S(sX3), R(g0)))
        a("v_mul_f32 %s, %s, %s" % (R(t + 3), S(sX3), R(g1)))
        a("v_exp_f32 %s, %s" % (R(t + 2), R(t + 2)))
        a("v_exp_f32 %s, %s" % (R(t + 3), R(t + 3)))
        a("v_add_f32 %s, 1.0, %s" % (R(t + 2), R(t + 2)))
        a("v_add_f32 %s, 1.0, %s" % (R(t + 3), R(t + 3)))
        a("v_rcp_f32 %s, %s" % (R(t + 2), R(t + 2)))
        a("v_rcp_f32 %s, %s" % (R(t + 3), R(t + 3)))
        a("v_mul_f32 %s, %s, %s" % (R(g0), R(g0), R(t + 2)))
        a("v_mul_f32 %s, %s, %s" % (R(g1), R(g1), R(t + 3)))
        a("v_cvt_pk_bf16_f32 %s, %s, %s" % (R(t), R(g0), R(g1)))
        a("v_lshlrev_b32 %s, 16, %s" % (R(g0), R(t)))
        a("v_and_b32 %s, 0xffff0000, %s" % (R(g1), R(t)))
        a("v_mul_f32 %s, %s, %s" % (R(g0), R(g0), R(u0)))
        a("v_mul_f32 %s, %s, %s" % (R(g1), R(g1), R(u1)))
        a("v_cvt_pk_bf16_f32 %s, %s, %s" % (R(PKD + r_), R(g0), R(g1)))
    job_off(a, sOUT, WS_ACT, ACT_L, ACT_JOB)
    a("s_lshl_b32 %s, %s, 13" % (S(sT0), S(sAUX)))
    a("s_add_u32 %s, %s, %s" % (S(sOUT), S(sOUT), S(sT0)))
    a("s_lshl_b32 %s, %s, 11" % (S(sT0), S(sW)))
    a("s_add_u32 %s, %s, %s" % (S(sOUT), S(sOUT), S(sT0)))
    for p in range(2):
        a("buffer_store_dwordx4 %s, %s, %s, %s offen offset:%d sc1" % (RR(PKD + 4 * p, 4), R(VL16), SR(sWS, 4), S(sOUT), p * 1024))
    a("s_waitcnt vmcnt(0)")
    a("s_lshl_b32 %s, %s, 2" % (S(sT0), S(sAUX)))
    a("s_add_u32 %s, %s, %s" % (S(sT0), S(sT0), S(sW)))
    a("s_lshl_b32 %s, %s, 2" % (S(sT0), S(sT0)))
    a("s_add_u32 %s, %s, %s" % (S(sT0), S(sT0), S(sFLJ)))
    a("s_add_u32 %s, %s, %d" % (S(sT0), S(sT0), WS_FLAGS + FL_A * 4))
    flag_store(a, T1, T2, S(sT0))
    a("s_branch %s" % Lj)
    a.label(Ld)
    a("s_waitcnt vmcnt(0)")
    a("s_branch L_exit")
```

```python
from common import *
import struct

UB = 131072
KV_OFF = 0
MX_OFF = 16384
OX_OFF = MX_OFF + 4096
QI_OFF = 24576
TB_OFF = 28672
SEL_OFF = 29696
PART_CU = 8192
PART_SLOT = 32 * PART_CU
MEM_SLOT = 8192
IDX, MXR, UL, QWQ, QWK, QR, OW, OR_, WLB, FLG, T0, T1, T2 = 0, 1, 5, 6, 7, 8, 9, 10, 11, 12, 13, 14, 15
MA = [16 + 4 * i for i in range(8)]
AQ = [48, 52]; AK = [56, 60]; AV = [64, 68]
KX = [72 + 4 * f for f in range(8)]
QF = [104 + 4 * k for k in range(4)]
VX = [120, 124]
KMF = [48 + 4 * k for k in range(4)]
def WQ(t, i): return 256 + (2 * i + t) * 8
def WK(t, i): return 256 + 128 + (2 * i + t) * 8
def WV(t, i): return 128 + (2 * i + t) * 8
def WO(nt, j): return 192 + (2 * nt + j) * 8
SX = [16, 20]; SM = 88; PX = 92; PM = 96; MXV, ZX, AL, RZ, TA, TB_ = 98, 99, 100, 101, 102, 103
OXA = [104, 108]; OMA = [112, 116]; OC = 92; OA = [120, 124]
WA = [16 + 4 * n for n in range(8)]
TBL = 104
SEL = 108
RD = 48
RS = 56
PK = 112
sL, sH, sSTEP, sCHB = 32, 33, 34, 35
sMEMRD, sMEMST, sPARTST, sPARTLD = 36, 37, 38, 39
sKVSRC, sKMJOB, sFLKV, sFLKM = 40, 41, 42, 43
sRDY, sSLOT = 44, 45
sT0, sT1, sT2, sT3 = 46, 47, 48, 49
sCEXP, sKVLDS = 50, 51
sM2, sEX = 52, 56
sMEMPZ, sPARTPZ = 54, 55
sTK = 58
sFLKMN = 59
sMEMRD0, sMEMST0, sPARTST0, sPARTLD0 = 60, 61, 62, 63

def smf(a, d, aa, b):
    a("v_smfmac_f32_16x16x64_bf16 %s, %s, %s, %s" % (RR(d, 4), RR(aa, 4), RR(b, 8), R(IDX)))
def S_smf(d, aa, b):
    return "v_smfmac_f32_16x16x64_bf16 %s, %s, %s, %s" % (RR(d, 4), RR(aa, 4), RR(b, 8), R(IDX))
def S_mf32(d, aa, b, c=None):
    return "v_mfma_f32_16x16x32_bf16 %s, %s, %s, %s" % (RR(d, 4), RR(aa, 4), RR(b, 4), '0' if c is None else RR(c, 4))
def mf32(a, d, aa, b, c=None): a(S_mf32(d, aa, b, c))
def mf16(a, d, aa, b, c=None):
    a("v_mfma_f32_16x16x16_bf16 %s, %s, %s, %s" % (RR(d, 4), RR(aa, 2), RR(b, 2), '0' if c is None else RR(c, 4)))

def weave(a, mf, fill):
    for i, m in enumerate(mf):
        a(m)
        if i < len(fill):
            for f in fill[i]: a(f)
    for rest in fill[len(mf):]:
        for f in rest: a(f)

def chain_setup(a):
    a.comment("==== chain setup ====")
    a("s_mov_b32 %s, %s" % (S(sL), S(sXCC)))
    a("s_mov_b32 %s, %s" % (S(sH), S(sTICK)))
    load_srd(a, sA, 'Wq'); load_srd(a, sB, 'Wk'); load_srd(a, sC, 'Wv'); load_srd(a, sD, 'Wo')
    a("s_load_dwordx2 s[68:69], s[0:1], %d" % KA['mem0'])
    lane = T0
    a("v_mov_b32 %s, v0" % R(lane))
    a("v_lshlrev_b32 %s, 4, %s" % (R(UL), R(lane)))
    a("v_add_u32 %s, 0x%x, %s" % (R(UL), UB, R(UL)))
    a("v_and_b32 %s, 2, %s" % (R(T1), R(lane)))
    a("v_cmp_eq_u32 vcc, 0, %s" % R(T1))
    a("v_mov_b32 %s, 0xeeee" % R(T2))
    a("v_mov_b32 %s, 0x4444" % R(IDX))
    a("v_cndmask_b32 %s, %s, %s, vcc" % (R(IDX), R(T2), R(IDX)))
    for k in range(4):
        a("s_add_u32 %s, %s, %d" % (S(sT0), S(sW), k))
        a("s_and_b32 %s, %s, 3" % (S(sT0), S(sT0)))
        a("s_lshl_b32 %s, %s, 11" % (S(sT0), S(sT0)))
        a("v_add_u32 %s, %s, %s" % (R(MXR + k), S(sT0), R(UL)))
    a("v_and_b32 %s, 15, %s" % (R(T1), R(lane)))
    a("s_lshl_b32 %s, %s, 5" % (S(sT0), S(sW)))
    a("v_add_u32 %s, %s, %s" % (R(T1), S(sT0), R(T1)))
    a("v_lshlrev_b32 %s, 5, %s" % (R(T1), R(T1)))
    a("v_lshrrev_b32 %s, 4, %s" % (R(T2), R(lane)))
    a("v_lshl_add_u32 %s, %s, 2, %s" % (R(QWQ), R(T2), R(T1)))
    a("v_add_u32 %s, 0x%x, %s" % (R(QWQ), UB + QI_OFF, R(QWQ)))
    a("v_lshl_add_u32 %s, %s, 3, %s" % (R(QWK), R(T2), R(T1)))
    a("v_add_u32 %s, 0x%x, %s" % (R(QWK), UB + MX_OFF, R(QWK)))
    a("v_lshrrev_b32 %s, 5, %s" % (R(T1), R(lane)))
    a("v_lshlrev_b32 %s, 4, %s" % (R(T1), R(T1)))
    a("v_bfe_u32 %s, %s, 4, 1" % (R(T2), R(lane)))
    a("v_lshl_add_u32 %s, %s, 2, %s" % (R(T1), R(T2), R(T1)))
    a("v_bfe_u32 %s, %s, 2, 2" % (R(T2), R(lane)))
    a("v_add_u32 %s, %s, %s" % (R(T1), R(T1), R(T2)))
    a("v_lshlrev_b32 %s, 5, %s" % (R(QR), R(T1)))
    a("v_and_b32 %s, 3, %s" % (R(T2), R(lane)))
    a("v_lshl_add_u32 %s, %s, 3, %s" % (R(QR), R(T2), R(QR)))
    a("v_add_u32 %s, 0x%x, %s" % (R(QR), UB, R(QR)))
    a("v_and_b32 %s, 15, %s" % (R(T1), R(lane)))
    a("v_lshrrev_b32 %s, 4, %s" % (R(T2), R(lane)))
    a("s_lshl_b32 %s, %s, 2" % (S(sT0), S(sW)))
    a("v_add_u32 %s, %s, %s" % (R(T2), S(sT0), R(T2)))
    a("v_and_b32 %s, 7, %s" % (R(OW), R(lane)))
    a("v_xor_b32 %s, %s, %s" % (R(T2), R(T2), R(OW)))
    a("v_lshlrev_b32 %s, 4, %s" % (R(T2), R(T2)))
    a("v_lshl_add_u32 %s, %s, 8, %s" % (R(OW), R(T1), R(T2)))
    a("v_add_u32 %s, 0x%x, %s" % (R(OW), UB, R(OW)))
    a("v_bfe_u32 %s, %s, 2, 2" % (R(T1), R(lane)))
    a("v_lshlrev_b32 %s, 1, %s" % (R(T1), R(T1)))
    a("v_and_b32 %s, 1, %s" % (R(T2), R(lane)))
    a("v_add_u32 %s, %s, %s" % (R(T1), R(T1), R(T2)))
    a("v_bfe_u32 %s, %s, 1, 1" % (R(T2), R(lane)))
    a("v_lshlrev_b32 %s, 2, %s" % (R(T2), R(T2)))
    a("v_lshrrev_b32 %s, 4, %s" % (R(OR_), R(lane)))
    a("v_add_u32 %s, %s, %s" % (R(T2), R(T2), R(OR_)))
    a("v_xor_b32 %s, %s, %s" % (R(T2), R(T2), R(T1)))
    a("v_lshlrev_b32 %s, 4, %s" % (R(T2), R(T2)))
    a("v_lshl_add_u32 %s, %s, 8, %s" % (R(OR_), R(T1), R(T2)))
    a("v_add_u32 %s, 0x%x, %s" % (R(OR_), UB, R(OR_)))
    a("v_lshlrev_b32 %s, 4, %s" % (R(WLB), R(lane)))
    a("s_lshl_b32 %s, %s, 15" % (S(sT0), S(sW)))
    a("v_add_u32 %s, %s, %s" % (R(WLB), S(sT0), R(WLB)))
    P, Q_, M2, Fo = TBL, TBL + 1, TBL + 2, TBL + 3
    a("v_mov_b32 %s, 0" % R(P))
    a("v_lshrrev_b32 %s, 2, %s" % (R(T1), R(lane)))
    a("v_lshlrev_b32 %s, 13, %s" % (R(Q_), R(T1)))
    a("v_and_b32 %s, 3, %s" % (R(T2), R(lane)))
    a("v_lshl_add_u32 %s, %s, 4, %s" % (R(Q_), R(T2), R(Q_)))
    a("v_lshlrev_b32 %s, 2, %s" % (R(M2), R(T2)))
    a("v_bfe_u32 %s, %s, 2, 1" % (R(T1), R(lane)))
    a("v_lshl_add_u32 %s, %s, 4, %s" % (R(M2), R(T1), R(M2)))
    a("v_bfe_u32 %s, %s, 4, 1" % (R(T1), R(lane)))
    a("v_lshl_add_u32 %s, %s, 5, %s" % (R(M2), R(T1), R(M2)))
    a("v_lshlrev_b32 %s, 2, %s" % (R(Fo), R(T2)))
    a("ds_write_b128 %s, %s offset:%d" % (R(UL), RR(TBL, 4), TB_OFF))
    a("v_and_b32 %s, 15, %s" % (R(T1), R(lane)))
    for d in range(4):
        a("v_cmp_eq_u32 vcc, %d, %s" % (2 * d, R(T1)))
        a("v_mov_b32 %s, 0x3f80" % R(T2))
        a("v_cndmask_b32 %s, 0, %s, vcc" % (R(SEL + d), R(T2)))
        a("v_cmp_eq_u32 vcc, %d, %s" % (2 * d + 1, R(T1)))
        a("v_mov_b32 %s, 0x3f800000" % R(T2))
        a("v_cndmask_b32 %s, %s, %s, vcc" % (R(SEL + d), R(SEL + d), R(T2)))
    a("ds_write_b128 %s, %s offset:%d" % (R(UL), RR(SEL, 4), SEL_OFF))
    a("s_waitcnt lgkmcnt(0)")
    for r_, n in ((sA, 'Wq'), (sB, 'Wk'), (sC, 'Wv'), (sD, 'Wo')): finish_srd(a, r_, n)
    a("s_mov_b32 s70, %d" % SIZES['mem0']); a("s_mov_b32 s71, 0x%x" % SRD3)
    a("s_mul_i32 %s, %s, %d" % (S(sCHB), S(sL), CH_STRIDE))
    a("s_add_u32 %s, %s, %d" % (S(sCHB), S(sCHB), WS_CH))
    cexp = struct.unpack('<I', struct.pack('<f', (128 ** -0.5) * 1.4426950408889634))[0]
    a("s_mov_b32 %s, 0x%x" % (S(sCEXP), cexp))
    a("s_mov_b32 %s, 0xf0f0f0f0\ns_mov_b32 %s, 0xf0f0f0f0" % (S(sM2), S(sM2 + 1)))
    a("s_mov_b32 %s, 0x00ff00ff\ns_mov_b32 %s, 0" % (S(sEX), S(sEX + 1)))
    a("s_add_u32 %s, %s, %d" % (S(sT0), S(sCHB), CH_MEM))
    a("s_lshl_b32 %s, %s, 11" % (S(sT1), S(sW)))
    a("s_add_u32 %s, %s, %s" % (S(sMEMRD0), S(sT0), S(sT1)))
    a("s_sub_u32 %s, %s, %d" % (S(sMEMRD0), S(sMEMRD0), UB))
    a("s_lshr_b32 %s, %s, 2" % (S(sT1), S(sH)))
    a("s_lshl_b32 %s, %s, 10" % (S(sT1), S(sT1)))
    a("s_add_u32 %s, %s, %s" % (S(sMEMST0), S(sT0), S(sT1)))
    a("s_lshl_b32 %s, %s, 8" % (S(sT1), S(sW)))
    a("s_add_u32 %s, %s, %s" % (S(sMEMST0), S(sMEMST0), S(sT1)))
    a("s_and_b32 %s, %s, 3" % (S(sT1), S(sH)))
    a("s_lshl_b32 %s, %s, 6" % (S(sT1), S(sT1)))
    a("s_add_u32 %s, %s, %s" % (S(sMEMST0), S(sMEMST0), S(sT1)))
    a("s_lshl_b32 %s, %s, 13" % (S(sT1), S(sH)))
    a("s_add_u32 %s, %s, %s" % (S(sPARTST0), S(sCHB), S(sT1)))
    a("s_lshl_b32 %s, %s, 11" % (S(sT1), S(sW)))
    a("s_add_u32 %s, %s, %s" % (S(sPARTST0), S(sPARTST0), S(sT1)))
    a("s_sub_u32 %s, %s, %d" % (S(sPARTST0), S(sPARTST0), UB))
    a("s_lshl_b32 %s, %s, 8" % (S(sT1), S(sH)))
    a("s_add_u32 %s, %s, %s" % (S(sPARTLD0), S(sCHB), S(sT1)))
    a("s_lshl_b32 %s, %s, 6" % (S(sT1), S(sW)))
    a("s_add_u32 %s, %s, %s" % (S(sPARTLD0), S(sPARTLD0), S(sT1)))
    a("s_mul_i32 %s, %s, %d" % (S(sKVSRC), S(sL), QKV_L))
    a("s_mul_i32 %s, %s, %d" % (S(sT1), S(sH), 24 * KB))
    a("s_add_u32 %s, %s, %s" % (S(sKVSRC), S(sKVSRC), S(sT1)))
    a("s_lshl_b32 %s, %s, 11" % (S(sT1), S(sW)))
    a("s_add_u32 %s, %s, %s" % (S(sKVSRC), S(sKVSRC), S(sT1)))
    a("s_add_u32 %s, %s, %d" % (S(sKVSRC), S(sKVSRC), WS_QKV + 8 * KB - UB))
    a("s_add_u32 %s, %s, %d" % (S(sKVLDS), S(sT1), UB + KV_OFF))
    a("s_mul_i32 %s, %s, %d" % (S(sKMJOB), S(sL), KM_L))
    a("s_lshl_b32 %s, %s, 13" % (S(sT1), S(sH)))
    a("s_add_u32 %s, %s, %s" % (S(sKMJOB), S(sKMJOB), S(sT1)))
    a("s_lshl_b32 %s, %s, 10" % (S(sT1), S(sW)))
    a("s_add_u32 %s, %s, %s" % (S(sKMJOB), S(sKMJOB), S(sT1)))
    a("s_add_u32 %s, %s, %d" % (S(sKMJOB), S(sKMJOB), WS_KM - UB))
    a("s_lshl_b32 %s, %s, 17" % (S(sT0), S(sL)))
    a("s_lshl_b32 %s, %s, 4" % (S(sT1), S(sH)))
    a("s_add_u32 %s, %s, %s" % (S(sT0), S(sT0), S(sT1)))
    a("s_add_u32 %s, %s, %d" % (S(sFLKV), S(sT0), WS_FLAGS + FL_KV * 4))
    a("s_lshl_b32 %s, %s, 2" % (S(sT1), S(sW)))
    a("s_add_u32 %s, %s, %s" % (S(sT0), S(sT0), S(sT1)))
    a("s_add_u32 %s, %s, %d" % (S(sFLKMN), S(sT0), WS_FLAGS + FL_KM * 4))
    a("s_add_u32 %s, %s, %d" % (S(sFLKM), S(sCHB), CH_MEM + 4 * MEM_SLOT))
    for i in range(4): a("v_mov_b32 %s, -1" % R(KX[0] + i))
    for sl in range(2):
        a("s_add_u32 %s, %s, %d" % (S(sT0), S(sPARTST0), sl * PART_SLOT))
        for p in range(2):
            a("buffer_store_dwordx4 %s, %s, %s, %s offen offset:%d" % (RR(KX[0], 4), R(UL), SR(sWS, 4), S(sT0), p * 1024))
    a("v_bfe_u32 %s, %s, 2, 1" % (R(T1), R(lane)))
    a("v_lshlrev_b32 %s, 10, %s" % (R(T1), R(T1)))
    a("v_bfe_u32 %s, %s, 4, 1" % (R(T2), R(lane)))
    a("v_lshl_add_u32 %s, %s, 6, %s" % (R(T1), R(T2), R(T1)))
    a("v_and_b32 %s, 3, %s" % (R(T2), R(lane)))
    a("v_lshl_add_u32 %s, %s, 1, %s" % (R(T1), R(T2), R(T1)))
    a("s_and_b32 %s, %s, 3" % (S(sT0), S(sH)))
    a("s_lshl_b32 %s, %s, 11" % (S(sT0), S(sT0)))
    a("s_lshr_b32 %s, %s, 2" % (S(sT1), S(sH)))
    a("s_lshl_b32 %s, %s, 7" % (S(sT1), S(sT1)))
    a("s_add_u32 %s, %s, %s" % (S(sT0), S(sT0), S(sT1)))
    a("s_lshl_b32 %s, %s, 3" % (S(sT1), S(sW)))
    a("s_add_u32 %s, %s, %s" % (S(sT0), S(sT0), S(sT1)))
    a("buffer_load_ushort %s, %s, s[68:71], %s offen" % (R(T2), R(T1), S(sT0)))
    a("buffer_load_ushort %s, %s, s[68:71], %s offen offset:32" % (R(KX[1]), R(T1), S(sT0)))
    a("s_waitcnt vmcnt(0)")
    a("v_lshl_or_b32 %s, %s, 16, %s" % (R(T2), R(KX[1]), R(T2)))
    a("s_add_u32 %s, %s, %d" % (S(sT0), S(sMEMST0), MEM_SLOT))
    a("s_mov_b64 exec, %s" % SR(sEX, 2))
    a("buffer_store_dword %s, %s, %s, %s offen" % (R(T2), R(TBL + 2), SR(sWS, 4), S(sMEMST0)))
    a("buffer_store_dword %s, %s, %s, %s offen" % (R(KX[0]), R(TBL + 2), SR(sWS, 4), S(sT0)))
    a("s_mov_b64 exec, -1")

def chain_load_weights(a):
    a.comment("==== chain weight load ====")
    VQ, VO, TR0, TR1 = 16, 17, 18, 19
    lane = T0
    a("v_and_b32 %s, 3, %s" % (R(T2), R(lane)))
    a("v_bfe_u32 v20, %s, 5, 1" % R(lane))
    a("v_lshlrev_b32 v20, 1, v20")
    a("v_xor_b32 %s, %s, v20" % (R(T2), R(T2)))
    a("v_lshlrev_b32 %s, 4, %s" % (R(T2), R(T2)))
    a("v_bfe_u32 v20, %s, 3, 1" % R(lane))
    a("v_lshlrev_b32 v20, 5, v20")
    a("v_bfe_u32 v21, %s, 2, 1" % R(lane))
    a("v_lshl_add_u32 v20, v21, 4, v20")
    a("v_bfe_u32 v21, %s, 4, 2" % R(lane))
    a("v_add_u32 v20, v20, v21")
    a("v_lshl_add_u32 %s, v20, 13, %s" % (R(VQ), R(T2)))
    a("v_bfe_u32 v20, %s, 3, 1" % R(lane))
    a("v_lshlrev_b32 v20, 5, v20")
    a("v_bfe_u32 v21, %s, 5, 1" % R(lane))
    a("v_lshl_add_u32 v20, v21, 4, v20")
    a("v_bfe_u32 v21, %s, 4, 1" % R(lane))
    a("v_lshl_add_u32 v20, v21, 1, v20")
    a("v_bfe_u32 v21, %s, 2, 1" % R(lane))
    a("v_add_u32 v20, v20, v21")
    a("v_lshl_add_u32 %s, v20, 10, %s" % (R(VO), R(T2)))
    a("v_lshrrev_b32 v20, 4, %s" % R(lane))
    a("v_lshlrev_b32 v21, 3, v20")
    a("v_bfe_u32 v22, %s, 2, 2" % R(lane))
    a("v_add_u32 v21, v21, v22")
    a("v_lshlrev_b32 v21, 6, v21")
    a("v_and_b32 v22, 3, %s" % R(lane))
    a("v_lshl_add_u32 v21, v22, 3, v21")
    a("s_lshl_b32 %s, %s, 15" % (S(sT0), S(sW)))
    a("v_add_u32 v21, %s, v21" % S(sT0))
    a("v_and_b32 v20, 1, v20")
    a("v_lshl_add_u32 %s, v20, 5, v21" % R(TR0))
    a("v_xor_b32 %s, 32, %s" % (R(TR1), R(TR0)))
    chunks = []
    for i in range(8): chunks.append(('q', i))
    for i in range(8): chunks.append(('k', i))
    for i in range(4): chunks.append(('v', i))
    for ntp in range(2):
        for j in range(2): chunks.append(('o', (ntp, j)))
    for i in range(4, 8): chunks.append(('v', i))
    for ntp in range(2, 4):
        for j in range(2): chunks.append(('o', (ntp, j)))
    sCOLQ, sCOLO, sLDSW = sT1, sT2, sT3
    a("s_lshl_b32 %s, %s, 8" % (S(sCOLQ), S(sH)))
    a("s_lshl_b32 %s, %s, 6" % (S(sT0), S(sW)))
    a("s_add_u32 %s, %s, %s" % (S(sCOLQ), S(sCOLQ), S(sT0)))
    a("s_lshl_b32 %s, %s, 17" % (S(sCOLO), S(sH)))
    a("s_lshl_b32 %s, %s, 8" % (S(sT0), S(sW)))
    a("s_add_u32 %s, %s, %s" % (S(sCOLO), S(sCOLO), S(sT0)))
    a("s_lshl_b32 %s, %s, 15" % (S(sLDSW), S(sW)))
    sK = sTK
    def issue(c):
        kind, arg = chunks[c]
        slot = c % 8
        if kind in 'qkv':
            i = arg
            a("s_add_u32 s%d, %s, %d" % (sK, S(sW), i >> 1))
            a("s_and_b32 s%d, s%d, 3" % (sK, sK))
            a("s_lshl_b32 s%d, s%d, 1" % (sK, sK))
            if i & 1: a("s_add_u32 s%d, s%d, 1" % (sK, sK))
            a("s_lshl_b32 s%d, s%d, 19" % (sK, sK))
            a("s_add_u32 s%d, s%d, %s" % (sK, sK, S(sCOLQ)))
            srd = {'q': sA, 'k': sB, 'v': sC}[kind]
            vo, rowstep = VQ, 4 * 8192
        else:
            ntp, j = arg
            a("s_add_u32 s%d, %s, %d" % (sK, S(sCOLO), j * 64 * 1024 + ntp * 64))
            srd = sD; vo, rowstep = VO, 4 * 1024
        for u in range(4):
            a("s_add_u32 m0, %s, %d" % (S(sLDSW), slot * 4096 + u * 1024))
            a("buffer_load_dwordx4 %s, %s, s%d offen lds" % (R(vo), SR(srd, 4), sK))
            if u < 3: a("s_add_u32 s%d, s%d, %d" % (sK, sK, rowstep))
    def dest(c, t):
        kind, arg = chunks[c]
        if c >= 24: return 32 + 8 * t
        if kind == 'q': return WQ(t, arg)
        if kind == 'k': return WK(t, arg)
        if kind == 'v': return WV(t, arg)
        ntp, j = arg
        return WO(2 * ntp + t, j)
    a("s_waitcnt vmcnt(0)")
    for c in range(8): issue(c)
    n = len(chunks)
    for c in range(n):
        inflight = min(c + 8, n) - c - 1
        a("s_waitcnt vmcnt(%d)" % (inflight * 4))
        slot = c % 8
        for t in range(2):
            d = dest(c, t)
            base = TR0 if t == 0 else TR1
            for k, off in enumerate((0, 256, 2048, 2304)):
                a("ds_read_b64_tr_b16 %s, %s offset:%d" % (RR(d + 2 * k, 2), R(base), slot * 4096 + off))
        a("s_waitcnt lgkmcnt(0)")
        if c >= 24:
            for t in range(2):
                d = dest(c, t)
                a("ds_write_b128 %s, %s offset:%d" % (R(WLB), RR(d, 4), slot * 4096 + t * 2048))
                a("ds_write_b128 %s, %s offset:%d" % (R(WLB), RR(d + 4, 4), slot * 4096 + t * 2048 + 1024))
            a("s_waitcnt lgkmcnt(0)")
        if c + 8 < n: issue(c + 8)

def wv_lds(i, t): return (i - 4) * 4096 + t * 2048
def wo_lds(nt, j): return (4 + 2 * ((nt >> 1) - 2) + j) * 4096 + (nt & 1) * 2048
def S_rdfrag(dst, off):
    return ["ds_read_b128 %s, %s offset:%d" % (RR(dst, 4), R(WLB), off), "ds_read_b128 %s, %s offset:%d" % (RR(dst + 4, 4), R(WLB), off + 1024)]
def rdfrag(a, dst, off):
    for t in S_rdfrag(dst, off): a(t)

def S_kv_dma():
    return ["s_mov_b32 m0, %s" % S(sKVLDS),
            "s_add_u32 %s, %s, 8192" % (S(sT1), S(sKVSRC)),
            "buffer_load_dwordx4 %s, %s, %s offen sc1 lds" % (R(UL), SR(sWS, 4), S(sKVSRC)),
            "buffer_load_dwordx4 %s, %s, %s offen offset:1024 sc1 lds" % (R(UL), SR(sWS, 4), S(sKVSRC)),
            "s_add_u32 m0, %s, 8192" % S(sKVLDS),
            "s_nop 0",
            "buffer_load_dwordx4 %s, %s, %s offen sc1 lds" % (R(UL), SR(sWS, 4), S(sT1)),
            "buffer_load_dwordx4 %s, %s, %s offen offset:1024 sc1 lds" % (R(UL), SR(sWS, 4), S(sT1))]

def tstamp(a, k, on):
    if on == 2:
        a("s_memtime s[%d:%d]" % (72 + 2 * k, 73 + 2 * k))

def poison_check(a, regs, Lretry, Lgiveup):
    a("v_max3_u32 %s, %s, %s, %s" % (R(T0), R(regs[0]), R(regs[1]), R(regs[2])))
    a("v_max3_u32 %s, %s, %s, %s" % (R(T1), R(regs[3]), R(regs[4]), R(regs[5])))
    a("v_max3_u32 %s, %s, %s, %s" % (R(T0), R(T0), R(regs[6]), R(regs[7])))
    a("v_max_u32 %s, %s, %s" % (R(T0), R(T0), R(T1)))
    a("v_cmp_eq_u32 vcc, -1, %s" % R(T0))
    a("s_cbranch_vccnz %s" % Lretry)

def retry_stub(a, Lretry, Lloop, Ldone):
    a.label(Lretry)
    a("s_add_u32 %s, %s, 1" % (S(sTMO), S(sTMO)))
    a("s_cmp_gt_u32 %s, %d" % (S(sTMO), TIMEOUT))
    a("s_cbranch_scc0 %s" % Lloop)
    a("s_branch %s" % Ldone)

def kv_reads():
    r = [("ds_read_b128 %s, %s offset:%d" % (RR(KX[f], 4), R(UL), KV_OFF + f * 1024)) for f in range(8)]
    r += ["ds_read_b128 %s, %s offset:%d" % (RR(VX[0], 4), R(MXR), KV_OFF + 8192), "ds_read_b128 %s, %s offset:%d" % (RR(VX[1], 4), R(MXR), KV_OFF + 8192 + 1024)]
    return r

def chain_loop(a, timing=0, opt=None):
    opt = opt or {}
    stubs = []
    a("s_mov_b32 %s, 0" % S(sSTEP))
    a("s_mov_b32 %s, 0" % S(sSLOT))
    a("s_mov_b32 %s, %s" % (S(sMEMRD), S(sMEMRD0)))
    a("s_add_u32 %s, %s, %d" % (S(sMEMST), S(sMEMST0), MEM_SLOT))
    a("s_mov_b32 %s, %s" % (S(sPARTST), S(sPARTST0)))
    a("s_mov_b32 %s, %s" % (S(sPARTLD), S(sPARTLD0)))
    a("ds_read_b128 %s, %s offset:%d" % (RR(TBL, 4), R(UL), TB_OFF))
    a("s_waitcnt lgkmcnt(0)")
    poll(a, T1, TBL + 3, S(sFLKV))
    for t in S_kv_dma(): a(t)
    a("s_add_u32 %s, %s, %d" % (S(sKVSRC), S(sKVSRC), QKV_JOB))
    a("s_add_u32 %s, %s, %d" % (S(sFLKV), S(sFLKV), JOBFLAG_BYTES))
    a("buffer_load_dword %s, %s, %s, %s offen sc1" % (R(FLG), R(TBL + 3), SR(sWS, 4), S(sFLKV)))
    for r_ in range(48, 72, 2): a("v_mov_b64 %s, 0" % RR(r_, 2))
    a("s_waitcnt vmcnt(0)")
    a("s_barrier")
    for t in kv_reads(): a(t)
    if opt.get('dry'):
        dry = opt['dry']
        def filt(line):
            if line.startswith('buffer_'):
                if dry == 1: return None
            if line.startswith('v_cmp_eq_u32 vcc, -1'): return 's_mov_b64 vcc, 0'
            return line
        a.filt = filt
    a.label("L_step")
    Lp = a.newlabel('mpoll'); Ld = a.newlabel('mpolld'); Lr = a.newlabel('mretry')
    a.label(Lp)
    a("buffer_load_dwordx4 %s, %s, %s, %s offen sc1" % (RR(MA[0], 4), R(UL), SR(sWS, 4), S(sMEMRD)))
    a("buffer_load_dwordx4 %s, %s, %s, %s offen offset:1024 sc1" % (RR(MA[1], 4), R(UL), SR(sWS, 4), S(sMEMRD)))
    a("s_waitcnt vmcnt(0)")
    poison_check(a, list(range(MA[0], MA[0] + 8)), Lr, Ld)
    stubs.append((Lr, Lp, Ld))
    a.label(Ld)
    tstamp(a, 0, timing)
    a("ds_write_b128 %s, %s offset:%d" % (R(MXR), RR(MA[0], 4), MX_OFF))
    a("ds_write_b128 %s, %s offset:%d" % (R(MXR), RR(MA[1], 4), MX_OFF + 1024))
    weave(a, [S_smf(AQ[0], MA[0], WQ(0, 0)), S_smf(AQ[1], MA[0], WQ(1, 0)), S_smf(AK[0], MA[0], WK(0, 0)),
              S_smf(AK[1], MA[0], WK(1, 0)), S_smf(AQ[0], MA[1], WQ(0, 1)), S_smf(AQ[1], MA[1], WQ(1, 1))],
          [["v_cmp_ne_u32 vcc, 0, %s" % R(FLG)],
           ["v_mov_b32 %s, 1" % R(T0)],
           ["v_mov_b32 %s, 0" % R(T1), "s_cmp_eq_u64 vcc, -1"],
           ["s_cselect_b32 %s, 1, 0" % S(sRDY), "s_mov_b64 exec, 1",
            "buffer_store_dword %s, %s, %s, %s offen sc1" % (R(T0), R(T1), SR(sWS, 4), S(sFLKM)), "s_mov_b64 exec, -1"],
           ["s_add_u32 %s, %s, %d" % (S(sT2), S(sFLKV), JOBFLAG_BYTES)],
           []])
    a("s_waitcnt lgkmcnt(0)")
    a("s_barrier")
    mr = ["ds_read_b128 %s, %s offset:%d" % (RR(MA[i], 4), R(MXR + (i >> 1)), MX_OFF + (i & 1) * 1024) for i in range(2, 8)]
    a(mr[0]); a(mr[1])
    weave(a, [S_smf(AK[0], MA[1], WK(0, 1)), S_smf(AK[1], MA[1], WK(1, 1)), S_smf(AV[0], MA[0], WV(0, 0)),
              S_smf(AV[1], MA[0], WV(1, 0)), S_smf(AV[0], MA[1], WV(0, 1)), S_smf(AV[1], MA[1], WV(1, 1))],
          [[mr[2]], [mr[3]], [mr[4]], [mr[5]],
           ["buffer_load_dword %s, %s, %s, %s offen sc1" % (R(FLG), R(TBL + 3), SR(sWS, 4), S(sT2))],
           ["s_mov_b32 %s, %s" % (S(sFLKM), S(sFLKMN)), "s_add_u32 %s, %s, %d" % (S(sFLKMN), S(sFLKMN), JOBFLAG_BYTES)]])
    Lnd = a.newlabel('nodma')
    a("s_cmp_eq_u32 %s, 0" % S(sRDY))
    a("s_cbranch_scc1 %s" % Lnd)
    for t in S_kv_dma(): a(t)
    a.label(Lnd)
    for i in range(2, 8):
        a("s_waitcnt lgkmcnt(%d)" % (7 - i))
        smf(a, AQ[0], MA[i], WQ(0, i)); smf(a, AQ[1], MA[i], WQ(1, i))
    tstamp(a, 1, timing)
    qpost = ["v_add_f32 %s, %s, %s" % (R(AQ[0]), R(AQ[0]), R(AQ[0] + 2)),
             "v_add_f32 %s, %s, %s" % (R(AQ[0] + 1), R(AQ[0] + 1), R(AQ[0] + 3)),
             "v_add_f32 %s, %s, %s" % (R(AQ[1]), R(AQ[1]), R(AQ[1] + 2)),
             "v_add_f32 %s, %s, %s" % (R(AQ[1] + 1), R(AQ[1] + 1), R(AQ[1] + 3)),
             "v_cvt_pk_bf16_f32 %s, %s, %s" % (R(AQ[0]), R(AQ[0]), R(AQ[0] + 1)),
             "v_cvt_pk_bf16_f32 %s, %s, %s" % (R(AQ[1]), R(AQ[1]), R(AQ[1] + 1)),
             "ds_write2_b32 %s, %s, %s offset0:0 offset1:128" % (R(QWQ), R(AQ[0]), R(AQ[1]))]
    km = []
    for i in range(2, 8): km += [S_smf(AK[0], MA[i], WK(0, i)), S_smf(AK[1], MA[i], WK(1, i))]
    qtr = []
    for ks in range(4):
        qtr += ["ds_read_b64_tr_b16 %s, %s offset:%d" % (RR(QF[ks], 2), R(QR), QI_OFF + ks * 1024),
                "ds_read_b64_tr_b16 %s, %s offset:%d" % (RR(QF[ks] + 2, 2), R(QR), QI_OFF + ks * 1024 + 256)]
    weave(a, km[:9], [["s_nop 1"], ["s_nop 1"], [qpost[0]], [qpost[1]], [qpost[2]], [qpost[3]], [qpost[4]], [qpost[5]], [qpost[6]]])
    a(km[9])
    a("s_waitcnt lgkmcnt(0)")
    a("s_barrier")
    for t in qtr[:4]: a(t)
    a(km[10])
    for t in qtr[4:]: a(t)
    a(km[11])
    tstamp(a, 2, timing)
    smf(a, AV[0], MA[2], WV(0, 2)); smf(a, AV[1], MA[2], WV(1, 2))
    B0, B1 = 72, 80
    kpost = ["v_add_f32 %s, %s, %s" % (R(AK[0]), R(AK[0]), R(AK[0] + 2)),
             "v_add_f32 %s, %s, %s" % (R(AK[0] + 1), R(AK[0] + 1), R(AK[0] + 3)),
             "v_add_f32 %s, %s, %s" % (R(AK[1]), R(AK[1]), R(AK[1] + 2)),
             "v_add_f32 %s, %s, %s" % (R(AK[1] + 1), R(AK[1] + 1), R(AK[1] + 3)),
             "v_cvt_pk_bf16_f32 %s, %s, %s" % (R(AK[0]), R(AK[0]), R(AK[0] + 1)),
             "v_cvt_pk_bf16_f32 %s, %s, %s" % (R(AK[1]), R(AK[1]), R(AK[1] + 1)),
             "ds_write2_b32 %s, %s, %s offset0:0 offset1:1" % (R(QWK), R(AK[0]), R(AK[0])),
             "ds_write2_b32 %s, %s, %s offset0:128 offset1:129" % (R(QWK), R(AK[1]), R(AK[1]))]
    a("s_waitcnt lgkmcnt(0)")
    sx = []
    for ks in range(4):
        sx += [S_mf32(SX[0], KX[ks], QF[ks], None if ks == 0 else SX[0]), S_mf32(SX[1], KX[4 + ks], QF[ks], None if ks == 0 else SX[1])]
    weave(a, sx[:4], [["s_nop 0"], kpost[0:2], kpost[2:4], kpost[4:6]])
    a(kpost[6]); a(kpost[7])
    weave(a, sx[4:], [["s_lshl_b32 %s, %s, 10" % (S(sT0), S(sW))], ["v_add_u32 %s, %s, %s" % (R(T2), S(sT0), R(QR))], [], []])
    smf(a, AV[0], MA[3], WV(0, 3))
    a("s_waitcnt lgkmcnt(0)")
    a("s_barrier")
    ktr = []
    for k2 in range(4):
        ktr += ["ds_read_b64_tr_b16 %s, %s offset:%d" % (RR(KMF[k2], 2), R(QR), MX_OFF + k2 * 1024),
                "ds_read_b64_tr_b16 %s, %s offset:%d" % (RR(KMF[k2] + 2, 2), R(QR), MX_OFF + k2 * 1024 + 256)]
    for t in ktr: a(t)
    smf(a, AV[1], MA[3], WV(1, 3))
    a("ds_read_b64_tr_b16 %s, %s offset:%d" % (RR(PX, 2), R(T2), MX_OFF))
    a("ds_read_b64_tr_b16 %s, %s offset:%d" % (RR(PX + 2, 2), R(T2), MX_OFF + 256))
    rdfrag(a, B0, wv_lds(4, 0)); rdfrag(a, B1, wv_lds(4, 1))
    a("v_max3_f32 %s, %s, %s, %s" % (R(MXV), R(SX[0]), R(SX[0] + 1), R(SX[0] + 2)))
    a("v_max3_f32 %s, %s, %s, %s" % (R(TA), R(SX[0] + 3), R(SX[1]), R(SX[1] + 1)))
    a("v_max3_f32 %s, %s, %s, %s" % (R(MXV), R(MXV), R(SX[1] + 2), R(SX[1] + 3)))
    a("v_max_f32 %s, %s, %s" % (R(MXV), R(MXV), R(TA)))
    a("s_waitcnt lgkmcnt(6)")
    weave(a, [S_mf32(SM, KMF[0], QF[0]), S_mf32(SM, KMF[1], QF[1], SM), S_mf32(SM, KMF[2], QF[2], SM), S_mf32(SM, KMF[3], QF[3], SM)],
          [["v_mov_b32 %s, %s" % (R(TA), R(MXV))],
           ["v_permlane16_swap_b32 %s, %s" % (R(MXV), R(TA))],
           ["v_max_f32 %s, %s, %s" % (R(MXV), R(MXV), R(TA)), "v_mov_b32 %s, %s" % (R(TA), R(MXV))],
           ["s_waitcnt lgkmcnt(4)", "buffer_store_dwordx4 %s, %s, %s, %s offen sc1" % (RR(PX, 4), R(UL), SR(sWS, 4), S(sKMJOB))]])
    a("v_permlane32_swap_b32 %s, %s" % (R(MXV), R(TA)))
    a("s_waitcnt lgkmcnt(2)")
    smf(a, AV[0], MA[4], B0)
    a("v_max_f32 %s, %s, %s" % (R(MXV), R(MXV), R(TA)))
    a("s_waitcnt lgkmcnt(0)")
    smf(a, AV[1], MA[4], B1)
    a("v_mul_f32 %s, %s, %s" % (R(TA), S(sCEXP), R(MXV)))
    tstamp(a, 3, timing)
    rdfrag(a, B0, wv_lds(5, 0))
    a("v_max3_f32 %s, %s, %s, %s" % (R(TB_), R(SM), R(SM + 1), R(MXV)))
    rdfrag(a, B1, wv_lds(5, 1))
    a("v_fma_f32 %s, %s, %s, -%s" % (R(SX[0]), R(SX[0]), S(sCEXP), R(TA)))
    a("v_mov_b32 %s, %s" % (R(RZ), R(TB_)))
    a("v_fma_f32 %s, %s, %s, -%s" % (R(SX[0] + 1), R(SX[0] + 1), S(sCEXP), R(TA)))
    a("v_fma_f32 %s, %s, %s, -%s" % (R(SX[0] + 2), R(SX[0] + 2), S(sCEXP), R(TA)))
    a("v_permlane16_swap_b32 %s, %s" % (R(TB_), R(RZ)))
    a("v_fma_f32 %s, %s, %s, -%s" % (R(SX[0] + 3), R(SX[0] + 3), S(sCEXP), R(TA)))
    a("v_max_f32 %s, %s, %s" % (R(TB_), R(TB_), R(RZ)))
    a("s_waitcnt lgkmcnt(2)")
    smf(a, AV[0], MA[5], B0)
    a("v_mov_b32 %s, %s" % (R(RZ), R(TB_)))
    a("v_fma_f32 %s, %s, %s, -%s" % (R(SX[1]), R(SX[1]), S(sCEXP), R(TA)))
    a("v_fma_f32 %s, %s, %s, -%s" % (R(SX[1] + 1), R(SX[1] + 1), S(sCEXP), R(TA)))
    a("v_permlane32_swap_b32 %s, %s" % (R(TB_), R(RZ)))
    a("s_waitcnt lgkmcnt(0)")
    smf(a, AV[1], MA[5], B1)
    a("v_max_f32 %s, %s, %s" % (R(TB_), R(TB_), R(RZ)))
    rdfrag(a, B0, wv_lds(6, 0))
    a("v_fma_f32 %s, %s, %s, -%s" % (R(SX[1] + 2), R(SX[1] + 2), S(sCEXP), R(TA)))
    a("v_fma_f32 %s, %s, %s, -%s" % (R(SX[1] + 3), R(SX[1] + 3), S(sCEXP), R(TA)))
    rdfrag(a, B1, wv_lds(6, 1))
    a("v_sub_f32 %s, %s, %s" % (R(AL), R(MXV), R(TB_)))
    a("v_mul_f32 %s, %s, %s" % (R(TB_), S(sCEXP), R(TB_)))
    a("v_mul_f32 %s, %s, %s" % (R(AL), S(sCEXP), R(AL)))
    a("v_fma_f32 %s, %s, %s, -%s" % (R(SM), R(SM), S(sCEXP), R(TB_)))
    a("v_fma_f32 %s, %s, %s, -%s" % (R(SM + 1), R(SM + 1), S(sCEXP), R(TB_)))
    a("s_waitcnt lgkmcnt(2)")
    smf(a, AV[0], MA[6], B0)
    a("v_exp_f32 %s, %s" % (R(SM), R(SM)))
    a("v_exp_f32 %s, %s" % (R(SM + 1), R(SM + 1)))
    a("s_waitcnt lgkmcnt(0)")
    smf(a, AV[1], MA[6], B1)
    a("v_exp_f32 %s, %s" % (R(AL), R(AL)))
    rdfrag(a, B0, wv_lds(7, 0)); rdfrag(a, B1, wv_lds(7, 1))
    for i in range(4): a("v_exp_f32 %s, %s" % (R(SX[0] + i), R(SX[0] + i)))
    a("v_cvt_pk_bf16_f32 %s, %s, %s" % (R(PM), R(SM), R(SM + 1)))
    a("v_cvt_pk_bf16_f32 %s, %s, %s" % (R(PM + 1), R(SM), R(SM + 1)))
    a("s_waitcnt lgkmcnt(2)")
    smf(a, AV[0], MA[7], B0)
    for i in range(2): a("v_exp_f32 %s, %s" % (R(SX[1] + i), R(SX[1] + i)))
    a("s_waitcnt lgkmcnt(0)")
    smf(a, AV[1], MA[7], B1)
    for i in range(2, 4): a("v_exp_f32 %s, %s" % (R(SX[1] + i), R(SX[1] + i)))
    a("v_cvt_pk_bf16_f32 %s, %s, %s" % (R(PX), R(SX[0]), R(SX[0] + 1)))
    a("v_cvt_pk_bf16_f32 %s, %s, %s" % (R(PX + 1), R(SX[0] + 2), R(SX[0] + 3)))
    rdfrag(a, B0, wo_lds(4, 0))
    a("v_cvt_pk_bf16_f32 %s, %s, %s" % (R(PX + 2), R(SX[1]), R(SX[1] + 1)))
    a("v_cvt_pk_bf16_f32 %s, %s, %s" % (R(PX + 3), R(SX[1] + 2), R(SX[1] + 3)))
    rdfrag(a, B1, wo_lds(4, 1))
    a("v_add_f32 %s, %s, %s" % (R(ZX), R(SX[0]), R(SX[0] + 1)))
    a("v_add_f32 %s, %s, %s" % (R(TA), R(SX[0] + 2), R(SX[0] + 3)))
    mf32(a, OXA[0], VX[0], PX)
    a("v_add_f32 %s, %s, %s" % (R(ZX), R(ZX), R(TA)))
    a("v_add_f32 %s, %s, %s" % (R(TA), R(SX[1]), R(SX[1] + 1)))
    mf32(a, OXA[1], VX[1], PX)
    a("v_add_f32 %s, %s, %s" % (R(ZX), R(ZX), R(TA)))
    a("v_add_f32 %s, %s, %s" % (R(TA), R(SX[1] + 2), R(SX[1] + 3)))
    a("v_cvt_pk_bf16_f32 %s, %s, %s" % (R(64), R(64), R(65)))
    a("v_cvt_pk_bf16_f32 %s, %s, %s" % (R(65), R(66), R(67)))
    a("v_add_f32 %s, %s, %s" % (R(ZX), R(ZX), R(TA)))
    a("v_add_f32 %s, %s, %s" % (R(TA), R(SM), R(SM + 1)))
    a("v_cvt_pk_bf16_f32 %s, %s, %s" % (R(66), R(68), R(69)))
    a("v_cvt_pk_bf16_f32 %s, %s, %s" % (R(67), R(70), R(71)))
    a("v_fma_f32 %s, %s, %s, %s" % (R(ZX), R(ZX), R(AL), R(TA)))
    mf16(a, OMA[0], 64, PM)
    a("v_mov_b32 %s, %s" % (R(TA), R(ZX)))
    mf16(a, OMA[1], 66, PM)
    a("s_add_u32 %s, %s, 4096" % (S(sT0), S(sKMJOB)))
    a("v_permlane16_swap_b32 %s, %s" % (R(ZX), R(TA)))
    a("buffer_store_dwordx4 %s, %s, %s, %s offen sc1" % (RR(64, 4), R(UL), SR(sWS, 4), S(sT0)))
    a("v_add_f32 %s, %s, %s" % (R(ZX), R(ZX), R(TA)))
    a("v_mov_b32 %s, %s" % (R(TA), R(ZX)))
    a("s_cmp_eq_u32 %s, 63" % S(sSTEP))
    a("s_cbranch_scc1 L_chain_end")
    a("v_permlane32_swap_b32 %s, %s" % (R(ZX), R(TA)))
    a("v_add_f32 %s, %s, %s" % (R(ZX), R(ZX), R(TA)))
    a("v_rcp_f32 %s, %s" % (R(RZ), R(ZX)))
    rdfrag(a, 48, wo_lds(5, 0))
    a("v_mul_f32 %s, %s, %s" % (R(AL), R(AL), R(RZ)))
    for t in range(2):
        for i in range(4):
            a("v_mul_f32 %s, %s, %s" % (R(OMA[t] + i), R(OMA[t] + i), R(RZ)))
    for t in range(2):
        for i in range(4):
            a("v_fmac_f32 %s, %s, %s" % (R(OMA[t] + i), R(OXA[t] + i), R(AL)))
    a("v_cvt_pk_bf16_f32 %s, %s, %s" % (R(OC), R(OMA[0]), R(OMA[0] + 1)))
    a("v_cvt_pk_bf16_f32 %s, %s, %s" % (R(OC + 1), R(OMA[0] + 2), R(OMA[0] + 3)))
    a("v_cvt_pk_bf16_f32 %s, %s, %s" % (R(OC + 2), R(OMA[1]), R(OMA[1] + 1)))
    a("v_cvt_pk_bf16_f32 %s, %s, %s" % (R(OC + 3), R(OMA[1] + 2), R(OMA[1] + 3)))
    a("ds_write_b128 %s, %s offset:%d" % (R(OW), RR(OC, 4), OX_OFF))
    tstamp(a, 4, timing)
    rdfrag(a, 56, wo_lds(5, 1))
    for r_ in range(16, 32, 2): a("v_mov_b64 %s, 0" % RR(r_, 2))
    a("s_waitcnt lgkmcnt(2)")
    a("s_barrier")
    a("ds_read_b128 %s, %s offset:%d" % (RR(OA[0], 4), R(OR_), OX_OFF))
    a("ds_read_b128 %s, %s offset:%d" % (RR(OA[1], 4), R(OR_), OX_OFF + 128))
    rdfrag(a, 88, wo_lds(6, 0)); rdfrag(a, 96, wo_lds(6, 1))
    for r_ in range(32, 48, 2): a("v_mov_b64 %s, 0" % RR(r_, 2))
    a("s_waitcnt lgkmcnt(4)")
    def wpost(nt, d):
        x = WA[nt]
        return ["v_add_f32 %s, %s, %s" % (R(x), R(x), R(x + 2)), "v_add_f32 %s, %s, %s" % (R(x + 1), R(x + 1), R(x + 3)),
                "v_cvt_pk_bf16_f32 %s, %s, %s" % (R(d), R(x), R(x + 1))]
    wm = [S_smf(WA[nt], OA[0], WO(nt, 0)) for nt in range(4)] + [S_smf(WA[nt], OA[1], WO(nt, 1)) for nt in range(4)]
    weave(a, wm, [["ds_read_b128 %s, %s offset:%d" % (RR(TBL, 4), R(UL), TB_OFF)], ["ds_read_b128 %s, %s offset:%d" % (RR(SEL, 4), R(UL), SEL_OFF)]])
    smf(a, WA[4], OA[0], B0); smf(a, WA[4], OA[1], B1)
    rdfrag(a, B0, wo_lds(7, 0)); rdfrag(a, B1, wo_lds(7, 1))
    p0, p1, p2, p3 = wpost(0, PK), wpost(1, PK + 1), wpost(2, PK + 2), wpost(3, PK + 3)
    weave(a, [S_smf(WA[5], OA[0], 48), S_smf(WA[5], OA[1], 56)], [p0[:2], [p0[2], p1[0]]])
    a("s_waitcnt lgkmcnt(4)")
    weave(a, [S_smf(WA[6], OA[0], 88), S_smf(WA[6], OA[1], 96)], [p1[1:], p2[:2]])
    a("s_waitcnt lgkmcnt(0)")
    weave(a, [S_smf(WA[7], OA[0], B0), S_smf(WA[7], OA[1], B1)], [[p2[2], p3[0]], p3[1:]])
    a("buffer_store_dwordx4 %s, %s, %s, %s offen" % (RR(PK, 4), R(UL), SR(sWS, 4), S(sPARTST)))
    for nt in range(4, 8):
        for t in wpost(nt, PK + nt): a(t)
    a("buffer_store_dwordx4 %s, %s, %s, %s offen offset:1024" % (RR(PK + 4, 4), R(UL), SR(sWS, 4), S(sPARTST)))
    tstamp(a, 5, timing)
    for r_ in range(60, 72, 2): a("v_mov_b64 %s, 0" % RR(r_, 2))
    a("s_add_u32 %s, %s, 0x20000" % (S(sT1), S(sPARTLD)))
    dly = opt.get('pdelay', 0)
    if dly: a("s_sleep %d" % dly)
    Lp = a.newlabel('ppoll'); Ld = a.newlabel('ppolld'); Lr = a.newlabel('pretry')
    a.label(Lp)
    a("buffer_load_dwordx4 %s, %s, %s, %s offen sc1" % (RR(RD, 4), R(TBL + 1), SR(sWS, 4), S(sPARTLD)))
    a("buffer_load_dwordx4 %s, %s, %s, %s offen sc1" % (RR(RD + 4, 4), R(TBL + 1), SR(sWS, 4), S(sT1)))
    a("s_waitcnt vmcnt(0)")
    poison_check(a, list(range(RD, RD + 8)), Lr, Ld)
    stubs.append((Lr, Lp, Ld))
    a.label(Ld)
    tstamp(a, 6, timing)
    mf32(a, RS, SEL, RD); mf32(a, RS, SEL, RD + 4, RS)
    a("s_add_u32 %s, %s, 1" % (S(sSLOT), S(sSLOT)))
    a("s_cmp_eq_u32 %s, 3" % S(sSLOT))
    a("s_cselect_b32 %s, 0, %s" % (S(sSLOT), S(sSLOT)))
    a("s_lshl_b32 %s, %s, 13" % (S(sT0), S(sSLOT)))
    a("s_add_u32 %s, %s, %s" % (S(sMEMRD), S(sMEMRD0), S(sT0)))
    a("s_lshl_b32 %s, %s, 18" % (S(sT1), S(sSLOT)))
    for i in range(4):
        a("v_add_f32_dpp %s, %s, %s row_ror:8 row_mask:0xf bank_mask:0xf" % (R(RS + i), R(RS + i), R(RS + i)))
    for i in range(4):
        a("v_add_f32_dpp %s, %s, %s row_ror:4 row_mask:0xf bank_mask:0xf" % (R(RS + i), R(RS + i), R(RS + i)))
    a("v_cndmask_b32 %s, %s, %s, %s" % (R(RS), R(RS), R(RS + 1), SR(sM2, 2)))
    a("v_cndmask_b32 %s, %s, %s, %s" % (R(RS + 2), R(RS + 2), R(RS + 3), SR(sM2, 2)))
    a("v_cvt_pk_bf16_f32 %s, %s, %s" % (R(RS), R(RS), R(RS + 2)))
    a("s_mov_b64 exec, %s" % SR(sEX, 2))
    a("buffer_store_dword %s, %s, %s, %s offen" % (R(RS), R(TBL + 2), SR(sWS, 4), S(sMEMST)))
    a("s_mov_b64 exec, -1")
    tstamp(a, 7, timing)
    a("s_add_u32 %s, %s, %s" % (S(sPARTST), S(sPARTST0), S(sT1)))
    a("s_add_u32 %s, %s, %s" % (S(sPARTLD), S(sPARTLD0), S(sT1)))
    a("s_add_u32 %s, %s, 1" % (S(sT2), S(sSLOT)))
    a("s_cmp_eq_u32 %s, 3" % S(sT2))
    a("s_cselect_b32 %s, 0, %s" % (S(sT2), S(sT2)))
    a("s_lshl_b32 %s, %s, 13" % (S(sT0), S(sT2)))
    a("s_add_u32 %s, %s, %s" % (S(sMEMST), S(sMEMST0), S(sT0)))
    a("s_lshl_b32 %s, %s, 18" % (S(sT0), S(sT2)))
    a("s_add_u32 %s, %s, %s" % (S(sT0), S(sPARTST0), S(sT0)))
    a("v_mov_b64 %s, -1" % RR(RD, 2))
    a("v_mov_b64 %s, -1" % RR(RD + 2, 2))
    a("buffer_store_dwordx4 %s, %s, %s, %s offen" % (RR(RD, 4), R(UL), SR(sWS, 4), S(sT0)))
    a("buffer_store_dwordx4 %s, %s, %s, %s offen offset:1024" % (RR(RD, 4), R(UL), SR(sWS, 4), S(sT0)))
    a("s_mov_b64 exec, %s" % SR(sEX, 2))
    a("buffer_store_dword %s, %s, %s, %s offen" % (R(RD), R(TBL + 2), SR(sWS, 4), S(sMEMST)))
    a("s_mov_b64 exec, -1")
    Lok = a.newlabel('kvok')
    a("s_cmp_ge_u32 %s, 62" % S(sSTEP))
    a("s_cbranch_scc1 %s" % Lok)
    a("s_cmp_eq_u32 %s, 1" % S(sRDY))
    a("s_cbranch_scc1 %s" % Lok)
    poll(a, T1, TBL + 3, S(sFLKV))
    for t in S_kv_dma(): a(t)
    a("s_waitcnt vmcnt(0)")
    a.label(Lok)
    a("s_barrier")
    for t in kv_reads(): a(t)
    for r_ in range(48, 60, 2): a("v_mov_b64 %s, 0" % RR(r_, 2))
    a("s_add_u32 %s, %s, 1" % (S(sSTEP), S(sSTEP)))
    a("s_add_u32 %s, %s, %d" % (S(sKVSRC), S(sKVSRC), QKV_JOB))
    a("s_add_u32 %s, %s, %d" % (S(sKMJOB), S(sKMJOB), KM_JOB))
    a("s_add_u32 %s, %s, %d" % (S(sFLKV), S(sFLKV), JOBFLAG_BYTES))
    if opt.get('mdelay', 0): a("s_sleep %d" % opt['mdelay'])
    if timing == 2:
        a("s_waitcnt lgkmcnt(0)")
        for k in range(7):
            a("s_sub_u32 %s, s%d, s%d" % (S(sT0), 74 + 2 * k, 72 + 2 * k))
            a("s_add_u32 s%d, s%d, %s" % (88 + k, 88 + k, S(sT0)))
    a("s_branch L_step")
    a.filt = None
    for st in stubs: retry_stub(a, *st)
    a.label("L_chain_end")
    a("s_waitcnt vmcnt(0)")
    a("v_mov_b32 %s, 1" % R(T0))
    a("v_mov_b32 %s, 0" % R(T1))
    a("s_mov_b64 exec, 1")
    a("buffer_store_dword %s, %s, %s, %s offen sc1" % (R(T0), R(T1), SR(sWS, 4), S(sFLKM)))
    a("s_mov_b64 exec, -1")

def chain_role(a, init_target, timing=0, opt=None):
    chain_setup(a)
    signal_init(a, T1, T2)
    if timing:
        for k in range(88, 96): a("s_mov_b32 s%d, 0" % k)
        a("s_memtime s[96:97]")
    chain_load_weights(a)
    wait_init(a, T1, T2, init_target)
    a("s_barrier")
    if timing:
        a("s_memtime s[98:99]")
    chain_loop(a, timing, opt)
    if timing:
        a("s_memtime s[100:101]")
        a("s_waitcnt lgkmcnt(0)")
        a("s_sub_u32 s95, s98, s96")
        a("s_sub_u32 s96, s100, s98")
        a("s_mov_b32 s97, %s" % S(sTMO))
        Lx = a.newlabel('tw')
        a("s_cmp_eq_u32 %s, 0" % S(sH)); a("s_cbranch_scc0 %s" % Lx)
        a("s_cmp_eq_u32 %s, 0" % S(sW)); a("s_cbranch_scc0 %s" % Lx)
        a("s_mov_b64 exec, 1")
        a("s_lshl_b32 %s, %s, 6" % (S(sT0), S(sL)))
        a("v_mov_b32 %s, %s" % (R(T1), S(sT0)))
        for k in range(10):
            a("v_mov_b32 %s, s%d" % (R(T0), 88 + k))
            a("buffer_store_dword %s, %s, %s, 0 offen offset:%d" % (R(T0), R(T1), SR(sDBG, 4), 128 + 4 * k))
        a("s_mov_b64 exec, -1")
        a.label(Lx)
    a("s_waitcnt vmcnt(0)")
    a("s_branch L_exit")
```

```python
from asmgen import *
from layout import *

sWS = 4
sDBG = 8
sA, sB, sC, sD = 12, 16, 20, 24
sXCC, sTICK, sW, sTMO = 28, 29, 30, 31
SRD3 = 0x00020000
TIMEOUT = 300000
KA = dict(x=0, mem0=8, Wq=16, Wk=24, Wv=32, Wo=40, seg=48, bx=56, Wg=64, Wu=72, Wd=80, out=88, dbg=96, ws=104)
SIZES = dict(x=S_*D_*2, mem0=M_*D_*2, Wq=D_*H_*E_*2, Wk=D_*H_*E_*2, Wv=D_*H_*E_*2, Wo=D_*H_*E_*2, Wg=D_*F_*2, Wu=D_*F_*2, Wd=D_*F_*2, out=S_*D_*2)
DBG_TICKET = 0
DBG_INIT = 16 * 4

def load_srd(a, sreg, name):
    a("s_load_dwordx2 %s, s[0:1], %d" % (SR(sreg, 2), KA[name]))
def finish_srd(a, sreg, name):
    a("s_mov_b32 %s, 0x%x" % (S(sreg + 2), SIZES[name]))
    a("s_mov_b32 %s, 0x%x" % (S(sreg + 3), SRD3))

def poll(a, vtmp, voff, soff, srd=sWS, imm=0, sleep=1, label=None):
    L = a.newlabel('poll'); Dn = a.newlabel('polld')
    a.label(L)
    a("buffer_load_dword %s, %s, %s, %s offen offset:%d sc1" % (R(vtmp), R(voff), SR(srd, 4), soff, imm))
    a("s_waitcnt vmcnt(0)")
    a("v_cmp_ne_u32 vcc, 0, %s" % R(vtmp))
    a("s_cmp_eq_u64 vcc, -1")
    a("s_cbranch_scc1 %s" % Dn)
    a("s_add_u32 %s, %s, 1" % (S(sTMO), S(sTMO)))
    a("s_cmp_gt_u32 %s, %d" % (S(sTMO), TIMEOUT))
    a("s_cbranch_scc1 %s" % Dn)
    if sleep: a("s_sleep %d" % sleep)
    a("s_branch %s" % L)
    a.label(Dn)

def wait_init(a, vtmp, vzero_off, target):
    L = a.newlabel('winit'); Dn = a.newlabel('winitd')
    a("v_mov_b32 %s, %d" % (R(vzero_off), DBG_INIT))
    a.label(L)
    a("buffer_load_dword %s, %s, %s, 0 offen sc1" % (R(vtmp), R(vzero_off), SR(sDBG, 4)))
    a("s_waitcnt vmcnt(0)")
    a("v_cmp_le_u32 vcc, %d, %s" % (target, R(vtmp)) if target <= 64 else "v_cmp_le_u32 vcc, 0x%x, %s" % (target, R(vtmp)))
    a("s_cmp_eq_u64 vcc, -1")
    a("s_cbranch_scc1 %s" % Dn)
    a("s_add_u32 %s, %s, 1" % (S(sTMO), S(sTMO)))
    a("s_cmp_gt_u32 %s, %d" % (S(sTMO), TIMEOUT))
    a("s_cbranch_scc1 %s" % Dn)
    a("s_sleep 2")
    a("s_branch %s" % L)
    a.label(Dn)

def signal_init(a, vt0, vt1):
    Dn = a.newlabel('sinit')
    a("s_waitcnt vmcnt(0)")
    a("s_barrier")
    a("s_cmp_eq_u32 %s, 0" % S(sW))
    a("s_cbranch_scc0 %s" % Dn)
    a("s_mov_b64 exec, 1")
    a("v_mov_b32 %s, 1" % R(vt0))
    a("v_mov_b32 %s, %d" % (R(vt1), DBG_INIT))
    a("buffer_atomic_add %s, %s, %s, 0 offen" % (R(vt0), R(vt1), SR(sDBG, 4)))
    a("s_mov_b64 exec, -1")
    a.label(Dn)

def prologue(a, zero_flags=True):
    a("s_cmp_ge_u32 s2, 256")
    a("s_cbranch_scc1 L_exit")
    a("s_load_dwordx2 %s, s[0:1], %d" % (SR(sWS, 2), KA['ws']))
    a("s_load_dwordx2 %s, s[0:1], %d" % (SR(sDBG, 2), KA['dbg']))
    a("s_getreg_b32 %s, hwreg(HW_REG_XCC_ID, 0, 3)" % S(sXCC))
    a("v_lshrrev_b32 v1, 6, v0")
    a("v_and_b32 v0, 63, v0")
    a("v_readfirstlane_b32 %s, v1" % S(sW))
    a("s_mov_b32 %s, 0" % S(sTMO))
    a("s_waitcnt lgkmcnt(0)")
    a("s_mov_b32 %s, 0x10000000" % S(sWS + 2))
    a("s_mov_b32 %s, 0x%x" % (S(sWS + 3), SRD3))
    a("s_mov_b32 %s, 256" % S(sDBG + 2))
    a("s_mov_b32 %s, 0x%x" % (S(sDBG + 3), SRD3))
    a("s_cmp_eq_u32 %s, 0" % S(sW))
    a("s_cbranch_scc0 L_tick1")
    a("s_mov_b64 exec, 1")
    a("v_mov_b32 v1, 1")
    a("s_lshl_b32 s3, %s, 2" % S(sXCC))
    a("v_mov_b32 v2, s3")
    a("buffer_atomic_add v1, v2, %s, 0 offen sc0" % SR(sDBG, 4))
    a("s_waitcnt vmcnt(0)")
    a("v_mov_b32 v2, 0")
    a("ds_write_b32 v2, v1")
    a("s_waitcnt lgkmcnt(0)")
    a("s_mov_b64 exec, -1")
    a.label("L_tick1")
    a("s_barrier")
    a("v_mov_b32 v2, 0")
    a("ds_read_b32 v1, v2")
    a("s_waitcnt lgkmcnt(0)")
    a("v_readfirstlane_b32 %s, v1" % S(sTICK))
    a("s_barrier")
    a("s_cmp_ge_u32 %s, 32" % S(sTICK))
    a("s_cbranch_scc1 L_exit")
    if zero_flags:
        a("s_cmp_eq_u32 %s, 0" % S(sW))
        a("s_cbranch_scc0 L_zf")
        a("s_lshl_b32 s3, %s, 5" % S(sXCC))
        a("s_add_u32 s3, s3, %s" % S(sTICK))
        a("s_lshl_b32 s3, s3, 10")
        a("v_lshlrev_b32 v1, 4, v0")
        a("v_mov_b32 v4, 0\nv_mov_b32 v5, 0\nv_mov_b32 v6, 0\nv_mov_b32 v7, 0")
        a("buffer_store_dwordx4 v[4:7], v1, %s, s3 offen sc1" % SR(sWS, 4))
        a.label("L_zf")

HEADER = """; @launch grid=(256,1,1) block=(256,1,1) lds=163840
.amdgcn_target "amdgcn-amd-amdhsa--gfx950"
.text
.globl {name}
.p2align 8
.type {name},@function
{name}:
"""
FOOTER = """
.section .rodata,"a"
.p2align 6
.amdhsa_kernel {name}
  .amdhsa_next_free_vgpr 512
  .amdhsa_next_free_sgpr 102
  .amdhsa_accum_offset 256
  .amdhsa_group_segment_fixed_size 0
  .amdhsa_kernarg_size 112
  .amdhsa_user_sgpr_count 2
  .amdhsa_user_sgpr_kernarg_segment_ptr 1
  .amdhsa_system_sgpr_workgroup_id_x 1
.end_amdhsa_kernel
"""
KNAME = "interleave_layers__memory_aug_recurrent_mem_tr__swiglu_ffn__prompt_kernel"
```

```python
S_, D_, H_, E_, M_, SEG, NSEG, F_ = 2048, 512, 32, 128, 8, 32, 64, 1792
KB = 1024; MB = 1024 * 1024

SHARE = False

FL_KV = 0
FL_KM = 128
FL_O  = 256
FL_P3 = 288
FL_H2 = 352
FL_A  = 384
FL_P5 = 448
FL_H  = 480
JOBFLAG_WORDS = 512
JOBFLAG_BYTES = JOBFLAG_WORDS * 4
WS_FLAGS = 0
FLAGS_BYTES = 2 * NSEG * JOBFLAG_BYTES
def flag_off(l, s, w): return WS_FLAGS + (l * NSEG + s) * JOBFLAG_BYTES + w * 4

WS_CH = 1 * MB
CH_PART = 0
CH_MEM = 1 * MB
CH_BYTES = 1 * MB + 64 * KB
CH_STRIDE = 2 * MB
def chain_base(l): return WS_CH + l * CH_STRIDE

cur = 6 * MB
def _alloc(per_job, shared_ok=True):
    global cur
    base = cur
    n = (1 if (SHARE and shared_ok) else 2) * NSEG * per_job
    cur += n
    lstride = 0 if (SHARE and shared_ok) else NSEG * per_job
    return base, lstride
QKV_JOB = 32 * 24 * KB
WS_QKV, QKV_L = _alloc(QKV_JOB)
KM_JOB = 32 * 8 * KB
WS_KM, KM_L = _alloc(KM_JOB)
O_JOB = 32 * 8 * KB
WS_O, O_L = _alloc(O_JOB)
P3_JOB = 4 * 64 * KB
WS_P3, P3_L = _alloc(P3_JOB)
X1_JOB = 32 * KB
WS_X1, X1_L = _alloc(X1_JOB)
H2_JOB = 32 * KB
WS_H2, H2_L = _alloc(H2_JOB)
ACT_JOB = 14 * 8 * KB
WS_ACT, ACT_L = _alloc(ACT_JOB)
P5_JOB = 2 * 64 * KB
WS_P5, P5_L = _alloc(P5_JOB)
HN_JOB = 32 * KB
WS_HN, HN_L = _alloc(HN_JOB)
X2_JOB = 32 * KB
WS_X2 = cur; cur += NSEG * X2_JOB
WS_END = cur
assert WS_END <= 256 * MB, WS_END / MB
if __name__ == "__main__":
    for k, v in list(globals().items()):
        if k.startswith('WS_'): print(k, v, v / MB)
```

```python
from bulk import *

def wave_allsum(a, x, t):
    for rr in (8, 4, 2, 1):
        a("v_add_f32_dpp %s, %s, %s row_ror:%d row_mask:0xf bank_mask:0xf" % (R(x), R(x), R(x), rr))
    a("v_mov_b32 %s, %s" % (R(t), R(x)))
    a("v_permlane16_swap_b32 %s, %s" % (R(x), R(t)))
    a("v_add_f32 %s, %s, %s" % (R(x), R(x), R(t)))
    a("v_mov_b32 %s, %s" % (R(t), R(x)))
    a("v_permlane32_swap_b32 %s, %s" % (R(x), R(t)))
    a("v_add_f32 %s, %s, %s" % (R(x), R(x), R(t)))

def rnd_bf(a, x, t=None):
    a("v_cvt_pk_bf16_f32 %s, %s, %s" % (R(x), R(x), R(x)))
    a("v_and_b32 %s, 0xffff0000, %s" % (R(x), R(x)))

def unpack4(a, dst, src):
    a("v_lshlrev_b32 %s, 16, %s" % (R(dst), R(src)))
    a("v_and_b32 %s, 0xffff0000, %s" % (R(dst + 1), R(src)))
    a("v_lshlrev_b32 %s, 16, %s" % (R(dst + 2), R(src + 1)))
    a("v_and_b32 %s, 0xffff0000, %s" % (R(dst + 3), R(src + 1)))

def ln_row(a, X, PKH, M, V_, T):
    a("v_add_f32 %s, %s, %s" % (R(M), R(X), R(X + 1)))
    a("v_add_f32 %s, %s, %s" % (R(T), R(X + 2), R(X + 3)))
    a("v_add_f32 %s, %s, %s" % (R(V_), R(X + 4), R(X + 5)))
    a("v_add_f32 %s, %s, %s" % (R(M), R(M), R(T)))
    a("v_add_f32 %s, %s, %s" % (R(T), R(X + 6), R(X + 7)))
    a("v_add_f32 %s, %s, %s" % (R(V_), R(V_), R(T)))
    a("v_add_f32 %s, %s, %s" % (R(M), R(M), R(V_)))
    wave_allsum(a, M, T)
    a("v_mul_f32 %s, 0x%x, %s" % (R(M), f32(1.0 / 512), R(M)))
    D = PKH + 4
    for i in range(8): a("v_sub_f32 %s, %s, %s" % (R(D + i), R(X + i), R(M)))
    a("v_mul_f32 %s, %s, %s" % (R(V_), R(D), R(D)))
    for i in range(1, 8): a("v_fmac_f32 %s, %s, %s" % (R(V_), R(D + i), R(D + i)))
    wave_allsum(a, V_, T)
    a("v_mul_f32 %s, 0x%x, %s" % (R(V_), f32(1.0 / 512), R(V_)))
    rnd_bf(a, M); rnd_bf(a, V_)
    a("v_add_f32 %s, 0x%x, %s" % (R(V_), f32(1e-5), R(V_)))
    rnd_bf(a, V_)
    a("v_sqrt_f32 %s, %s" % (R(V_), R(V_)))
    rnd_bf(a, V_)
    a("v_rcp_f32 %s, %s" % (R(V_), R(V_)))
    for i in range(8): a("v_sub_f32 %s, %s, %s" % (R(D + i), R(X + i), R(M)))
    for i in range(0, 8, 2):
        a("v_cvt_pk_bf16_f32 %s, %s, %s" % (R(T), R(D + i), R(D + i + 1)))
        a("v_lshlrev_b32 %s, 16, %s" % (R(D + i), R(T)))
        a("v_and_b32 %s, 0xffff0000, %s" % (R(D + i + 1), R(T)))
    for i in range(8): a("v_mul_f32 %s, %s, %s" % (R(D + i), R(D + i), R(V_)))
    for i in range(4): a("v_cvt_pk_bf16_f32 %s, %s, %s" % (R(PKH + i), R(D + 2 * i), R(D + 2 * i + 1)))

RL, RV8, RV16, RT1, RT2, RFL = 0, 1, 2, 13, 14, 3
RP = 16
RX = 48
RXF = 52
RPK = 64
RM, RVv, RT = 80, 81, 82

def row_setup(a):
    a("v_lshlrev_b32 %s, 3, %s" % (R(RV8), R(RL)))
    a("v_lshlrev_b32 %s, 4, %s" % (R(RV16), R(RL)))

def r0_phase(a, nwaves, s_wid):
    Lj = a.newlabel('r0'); Ld = a.newlabel('r0d')
    a("s_mov_b32 %s, %s" % (S(sX0), S(s_wid)))
    a.label(Lj)
    a("s_cmp_ge_u32 %s, 2048" % S(sX0))
    a("s_cbranch_scc1 %s" % Ld)
    a("s_lshl_b32 %s, %s, 10" % (S(sT0), S(sX0)))
    a("buffer_load_dwordx2 %s, %s, %s, %s offen" % (RR(RX, 2), R(RV8), SR(sB, 4), S(sT0)))
    a("buffer_load_dwordx2 %s, %s, %s, %s offen offset:512" % (RR(RX + 2, 2), R(RV8), SR(sB, 4), S(sT0)))
    a("s_waitcnt vmcnt(0)")
    unpack4(a, RXF, RX); unpack4(a, RXF + 4, RX + 2)
    ln_row(a, RXF, RPK, RM, RVv, RT)
    a("s_add_u32 %s, %s, %d" % (S(sT0), S(sT0), WS_HN))
    a("buffer_store_dwordx2 %s, %s, %s, %s offen sc1" % (RR(RPK, 2), R(RV8), SR(sWS, 4), S(sT0)))
    a("buffer_store_dwordx2 %s, %s, %s, %s offen offset:512 sc1" % (RR(RPK + 2, 2), R(RV8), SR(sWS, 4), S(sT0)))
    a("s_lshr_b32 %s, %s, 5" % (S(sT1), S(sX0)))
    a("s_lshl_b32 %s, %s, 11" % (S(sT1), S(sT1)))
    a("s_and_b32 %s, %s, 31" % (S(sT2), S(sX0)))
    a("s_lshl_b32 %s, %s, 2" % (S(sT2), S(sT2)))
    a("s_add_u32 %s, %s, %s" % (S(sT1), S(sT1), S(sT2)))
    a("s_add_u32 %s, %s, %d" % (S(sT1), S(sT1), WS_FLAGS + FL_H * 4))
    a("s_waitcnt vmcnt(0)")
    flag_store(a, RT1, RT2, S(sT1))
    a("s_add_u32 %s, %s, %d" % (S(sX0), S(sX0), nwaves))
    a("s_branch %s" % Lj)
    a.label(Ld)

def r_role(a, which):
    tag = 'r%d' % which
    NP = 4 if which == 3 else 2
    nfl = 64 if which == 3 else 32
    a("s_mov_b32 %s, 0" % S(sX0))
    sched_init(a, 1, 16, sX0)
    a("v_min_u32 %s, %d, %s" % (R(RFL), nfl - 1, R(RL)))
    a("v_lshlrev_b32 %s, 2, %s" % (R(RFL), R(RFL)))
    Lj = a.newlabel(tag + 'job'); Ld = a.newlabel(tag + 'done')
    a.label(Lj)
    sched_next(a, 1, Ld)
    a("s_add_u32 %s, %s, %d" % (S(sT2), S(sFLJ), WS_FLAGS + (FL_P3 if which == 3 else FL_P5) * 4))
    poll(a, RT1, RFL, S(sT2), sleep=2)
    for rr in range(2):
        a("s_lshl_b32 %s, %s, 1" % (S(sX1), S(sAUX)))
        if rr: a("s_add_u32 %s, %s, 1" % (S(sX1), S(sX1)))
        if which == 3: job_off(a, sIN, WS_P3, P3_L, P3_JOB)
        else: job_off(a, sIN, WS_P5, P5_L, P5_JOB)
        a("s_lshl_b32 %s, %s, 11" % (S(sT0), S(sX1)))
        a("s_add_u32 %s, %s, %s" % (S(sIN), S(sIN), S(sT0)))
        for p in range(NP):
            a("buffer_load_dwordx4 %s, %s, %s, %s offen sc1" % (RR(RP + 8 * p, 4), R(RV16), SR(sWS, 4), S(sIN)))
            a("buffer_load_dwordx4 %s, %s, %s, %s offen offset:1024 sc1" % (RR(RP + 8 * p + 4, 4), R(RV16), SR(sWS, 4), S(sIN)))
            if p + 1 < NP: a("s_add_u32 %s, %s, 65536" % (S(sIN), S(sIN)))
        a("s_lshl_b32 %s, %s, 5" % (S(sX2), S(sJS)))
        a("s_add_u32 %s, %s, %s" % (S(sX2), S(sX2), S(sX1)))
        a("s_lshl_b32 %s, %s, 10" % (S(sX2), S(sX2)))
        if which == 3:
            La = a.newlabel('rin'); Lb = a.newlabel('rin')
            a("s_cmp_eq_u32 %s, 0" % S(sJL))
            a("s_cbranch_scc0 %s" % La)
            a("buffer_load_dwordx2 %s, %s, %s, %s offen" % (RR(RX, 2), R(RV8), SR(sB, 4), S(sX2)))
            a("buffer_load_dwordx2 %s, %s, %s, %s offen offset:512" % (RR(RX + 2, 2), R(RV8), SR(sB, 4), S(sX2)))
            a("s_branch %s" % Lb)
            a.label(La)
            a("s_add_u32 %s, %s, %d" % (S(sT0), S(sX2), WS_X2))
            a("buffer_load_dwordx2 %s, %s, %s, %s offen sc1" % (RR(RX, 2), R(RV8), SR(sWS, 4), S(sT0)))
            a("buffer_load_dwordx2 %s, %s, %s, %s offen offset:512 sc1" % (RR(RX + 2, 2), R(RV8), SR(sWS, 4), S(sT0)))
            a.label(Lb)
        else:
            a("s_mul_i32 %s, %s, %d" % (S(sT0), S(sJL), X1_L))
            a("s_add_u32 %s, %s, %s" % (S(sT0), S(sT0), S(sX2)))
            a("s_add_u32 %s, %s, %d" % (S(sT0), S(sT0), WS_X1))
            a("buffer_load_dwordx2 %s, %s, %s, %s offen sc1" % (RR(RX, 2), R(RV8), SR(sWS, 4), S(sT0)))
            a("buffer_load_dwordx2 %s, %s, %s, %s offen offset:512 sc1" % (RR(RX + 2, 2), R(RV8), SR(sWS, 4), S(sT0)))
        a("s_waitcnt vmcnt(0)")
        for p in range(1, NP):
            for i in range(8): a("v_add_f32 %s, %s, %s" % (R(RP + i), R(RP + i), R(RP + 8 * p + i)))
        unpack4(a, RXF, RX); unpack4(a, RXF + 4, RX + 2)
        for i in range(0, 8, 2):
            a("v_cvt_pk_bf16_f32 %s, %s, %s" % (R(RT), R(RP + i), R(RP + i + 1)))
            a("v_lshlrev_b32 %s, 16, %s" % (R(RP + i), R(RT)))
            a("v_and_b32 %s, 0xffff0000, %s" % (R(RP + i + 1), R(RT)))
        for i in range(8): a("v_add_f32 %s, %s, %s" % (R(RXF + i), R(RXF + i), R(RP + i)))
        for i in range(4): a("v_cvt_pk_bf16_f32 %s, %s, %s" % (R(RX + i), R(RXF + 2 * i), R(RXF + 2 * i + 1)))
        Lfin = a.newlabel('rfin')
        if which == 3:
            a("s_mul_i32 %s, %s, %d" % (S(sT0), S(sJL), X1_L))
            a("s_add_u32 %s, %s, %s" % (S(sT0), S(sT0), S(sX2)))
            a("s_add_u32 %s, %s, %d" % (S(sT0), S(sT0), WS_X1))
            a("buffer_store_dwordx2 %s, %s, %s, %s offen sc1" % (RR(RX, 2), R(RV8), SR(sWS, 4), S(sT0)))
            a("buffer_store_dwordx2 %s, %s, %s, %s offen offset:512 sc1" % (RR(RX + 2, 2), R(RV8), SR(sWS, 4), S(sT0)))
        else:
            L1 = a.newlabel('r5l1')
            a("s_cmp_eq_u32 %s, 0" % S(sJL))
            a("s_cbranch_scc1 %s" % L1)
            a("buffer_store_dwordx2 %s, %s, %s, %s offen" % (RR(RX, 2), R(RV8), SR(sC, 4), S(sX2)))
            a("buffer_store_dwordx2 %s, %s, %s, %s offen offset:512" % (RR(RX + 2, 2), R(RV8), SR(sC, 4), S(sX2)))
            a("s_branch %s" % Lfin)
            a.label(L1)
            a("s_add_u32 %s, %s, %d" % (S(sT0), S(sX2), WS_X2))
            a("buffer_store_dwordx2 %s, %s, %s, %s offen sc1" % (RR(RX, 2), R(RV8), SR(sWS, 4), S(sT0)))
            a("buffer_store_dwordx2 %s, %s, %s, %s offen offset:512 sc1" % (RR(RX + 2, 2), R(RV8), SR(sWS, 4), S(sT0)))
        unpack4(a, RXF, RX); unpack4(a, RXF + 4, RX + 2)
        ln_row(a, RXF, RPK, RM, RVv, RT)
        if which == 3:
            a("s_mul_i32 %s, %s, %d" % (S(sT0), S(sJL), H2_L))
            a("s_add_u32 %s, %s, %s" % (S(sT0), S(sT0), S(sX2)))
            a("s_add_u32 %s, %s, %d" % (S(sT0), S(sT0), WS_H2))
        else:
            a("s_add_u32 %s, %s, %d" % (S(sT0), S(sX2), WS_HN + (HN_L if HN_L else 0)))
        a("buffer_store_dwordx2 %s, %s, %s, %s offen sc1" % (RR(RPK, 2), R(RV8), SR(sWS, 4), S(sT0)))
        a("buffer_store_dwordx2 %s, %s, %s, %s offen offset:512 sc1" % (RR(RPK + 2, 2), R(RV8), SR(sWS, 4), S(sT0)))
        a("s_lshl_b32 %s, %s, 2" % (S(sT1), S(sX1)))
        a("s_add_u32 %s, %s, %s" % (S(sT1), S(sT1), S(sFLJ)))
        if which == 3:
            a("s_add_u32 %s, %s, %d" % (S(sT1), S(sT1), WS_FLAGS + FL_H2 * 4))
        else:
            a("s_add_u32 %s, %s, %d" % (S(sT1), S(sT1), WS_FLAGS + NSEG * JOBFLAG_BYTES + FL_H * 4))
        a("s_waitcnt vmcnt(0)")
        flag_store(a, RT1, RT2, S(sT1))
        a.label(Lfin)
    a("s_branch %s" % Lj)
    a.label(Ld)
    a("s_waitcnt vmcnt(0)")
    a("s_branch L_exit")

def s2_role(a, nwaves):
    lane, T1, T2, T3 = 0, 13, 14, 15
    VL16, VFL, VO = 1, 2, 3
    QFr = lambda qt, ks: 16 + 16 * qt + 4 * ks
    KFr = lambda kt, ks: 48 + 16 * kt + 4 * ks
    VFr = lambda et: 80 + 4 * et
    KMr = lambda ks: 112 + 4 * ks
    VMr = lambda w: 128 + 4 * w
    SM_ = lambda qt: 144 + 4 * qt
    SXr = lambda qt, kt: 152 + 8 * qt + 4 * kt
    PXr = lambda qt: 168 + 4 * qt
    PMr = lambda qt: 176 + 2 * qt
    OAc = lambda qt, et: 180 + 32 * qt + 4 * et
    MX_, Z_, TT = 244, 245, 246
    sMSK = 56
    sSCALE, sL2E = 64, 65
    a("v_lshlrev_b32 %s, 4, %s" % (R(VL16), R(lane)))
    a("v_and_b32 %s, 7, %s" % (R(VFL), R(lane)))
    a("v_lshlrev_b32 %s, 2, %s" % (R(VFL), R(VFL)))
    a("v_and_b32 %s, 3, %s" % (R(VFL), R(lane)))
    a("v_lshlrev_b32 %s, 2, %s" % (R(VFL), R(VFL)))
    a("v_lshrrev_b32 %s, 4, %s" % (R(T1), R(lane)))
    a("v_and_b32 %s, 15, %s" % (R(T2), R(lane)))
    a("v_lshlrev_b32 %s, 4, %s" % (R(VO), R(T2)))
    a("v_lshl_add_u32 %s, %s, 9, %s" % (R(VO), R(T1), R(VO)))
    a("v_lshlrev_b32 %s, 2, %s" % (R(T1), R(T1)))
    for i in range(4):
        a("v_add_u32 %s, %d, %s" % (R(T3), i, R(T1)))
        a("v_cmp_le_u32 %s, %s, %s" % (SR(sMSK + 2 * i, 2), R(T3), R(T2)))
    a("s_mov_b32 %s, 0x%x" % (S(sSCALE), f32(128 ** -0.5)))
    a("s_mov_b32 %s, 0x%x" % (S(sL2E), f32(1.4426950408889634)))
    a("s_mov_b32 %s, %s" % (S(sX0), S(sAUX)))
    Lj = a.newlabel('s2job'); Ld = a.newlabel('s2done')
    LAM = 16
    a.label(Lj)
    a("s_cmp_ge_u32 %s, 4096" % S(sX0))
    a("s_cbranch_scc1 %s" % Ld)
    a("s_lshr_b32 %s, %s, 5" % (S(sT0), S(sX0)))
    a("s_and_b32 %s, %s, 31" % (S(sX1), S(sX0)))
    La = a.newlabel('s2a'); Lb = a.newlabel('s2b'); Lc = a.newlabel('s2c')
    a("s_cmp_lt_u32 %s, %d" % (S(sT0), LAM))
    a("s_cbranch_scc0 %s" % La)
    a("s_mov_b32 %s, 0" % S(sJL)); a("s_mov_b32 %s, %s" % (S(sJS), S(sT0)))
    a("s_branch %s" % Lc)
    a.label(La)
    a("s_sub_u32 %s, %s, %d" % (S(sT0), S(sT0), LAM))
    a("s_cmp_lt_u32 %s, %d" % (S(sT0), 2 * (64 - LAM)))
    a("s_cbranch_scc0 %s" % Lb)
    a("s_and_b32 %s, %s, 1" % (S(sT1), S(sT0)))
    a("s_xor_b32 %s, %s, 1" % (S(sJL), S(sT1)))
    a("s_lshr_b32 %s, %s, 1" % (S(sJS), S(sT0)))
    a("s_mul_i32 %s, %s, %d" % (S(sT1), S(sT1), LAM))
    a("s_add_u32 %s, %s, %s" % (S(sJS), S(sJS), S(sT1)))
    a("s_branch %s" % Lc)
    a.label(Lb)
    a("s_mov_b32 %s, 1" % S(sJL))
    a("s_sub_u32 %s, %s, %d" % (S(sJS), S(sT0), 64 - LAM))
    a.label(Lc)
    a("s_lshl_b32 %s, %s, 6" % (S(sT0), S(sJL)))
    a("s_add_u32 %s, %s, %s" % (S(sT0), S(sT0), S(sJS)))
    a("s_lshl_b32 %s, %s, 11" % (S(sFLJ), S(sT0)))
    a("s_lshl_b32 %s, %s, 4" % (S(sT0), S(sX1)))
    a("s_add_u32 %s, %s, %s" % (S(sT0), S(sT0), S(sFLJ)))
    a("s_add_u32 %s, %s, %d" % (S(sT2), S(sT0), WS_FLAGS + FL_KV * 4))
    a("s_add_u32 %s, %s, %d" % (S(sX3), S(sT0), WS_FLAGS + FL_KM * 4))
    poll(a, T1, VFL, S(sT2), sleep=2)
    job_off(a, sIN, WS_QKV, QKV_L, QKV_JOB)
    a("s_mul_i32 %s, %s, %d" % (S(sT0), S(sX1), 24 * KB))
    a("s_add_u32 %s, %s, %s" % (S(sIN), S(sIN), S(sT0)))
    def ldlin(dst, n):
        for i in range(n):
            a("buffer_load_dwordx4 %s, %s, %s, %s offen offset:%d sc1" % (RR(dst(i), 4), R(VL16), SR(sWS, 4), S(sIN), (i % 4) * 1024))
            if i % 4 == 3: a("s_add_u32 %s, %s, 4096" % (S(sIN), S(sIN)))
    ldlin(lambda i: QFr(i >> 2, i & 3), 8)
    ldlin(lambda i: KFr(i >> 2, i & 3), 8)
    ldlin(lambda i: VFr(i), 8)
    poll(a, T1, VFL, S(sX3), sleep=2)
    job_off(a, sIN, WS_KM, KM_L, KM_JOB)
    a("s_lshl_b32 %s, %s, 13" % (S(sT0), S(sX1)))
    a("s_add_u32 %s, %s, %s" % (S(sIN), S(sIN), S(sT0)))
    ldlin(lambda i: KMr(i), 4)
    ldlin(lambda i: VMr(i), 4)
    a("s_waitcnt vmcnt(0)")
    def mf(d, aa, b, c): a("v_mfma_f32_16x16x32_bf16 %s, %s, %s, %s" % (RR(d, 4), RR(aa, 4), RR(b, 4), '0' if c is None else RR(c, 4)))
    for ks in range(4):
        for qt in range(2):
            mf(SM_(qt), KMr(ks), QFr(qt, ks), None if ks == 0 else SM_(qt))
        mf(SXr(0, 0), KFr(0, ks), QFr(0, ks), None if ks == 0 else SXr(0, 0))
        mf(SXr(1, 0), KFr(0, ks), QFr(1, ks), None if ks == 0 else SXr(1, 0))
        mf(SXr(1, 1), KFr(1, ks), QFr(1, ks), None if ks == 0 else SXr(1, 1))
    for qt in range(2):
        tiles = [SM_(qt), SXr(qt, 0)] + ([SXr(1, 1)] if qt == 1 else [])
        vals = [t + i for t in tiles for i in range(4)]
        for k in range(0, len(vals), 2):
            x, y = vals[k], vals[k + 1]
            a("v_cvt_pk_bf16_f32 %s, %s, %s" % (R(TT), R(x), R(y)))
            a("v_lshlrev_b32 %s, 16, %s" % (R(x), R(TT)))
            a("v_and_b32 %s, 0xffff0000, %s" % (R(y), R(TT)))
            a("v_mul_f32 %s, %s, %s" % (R(x), S(sSCALE), R(x)))
            a("v_mul_f32 %s, %s, %s" % (R(y), S(sSCALE), R(y)))
            a("v_cvt_pk_bf16_f32 %s, %s, %s" % (R(TT), R(x), R(y)))
            a("v_lshlrev_b32 %s, 16, %s" % (R(x), R(TT)))
            a("v_and_b32 %s, 0xffff0000, %s" % (R(y), R(TT)))
        dg = SXr(qt, qt)
        a("v_mov_b32 %s, 0x%x" % (R(TT), f32(-1e9)))
        for i in range(4):
            a("v_cndmask_b32 %s, %s, %s, %s" % (R(dg + i), R(TT), R(dg + i), SR(sMSK + 2 * i, 2)))
        a("v_max_f32 %s, %s, %s" % (R(MX_), R(vals[0]), R(vals[1])))
        for k in range(2, len(vals), 2):
            a("v_max3_f32 %s, %s, %s, %s" % (R(MX_), R(MX_), R(vals[k]), R(vals[k + 1])))
        for sw in (16, 32):
            a("v_mov_b32 %s, %s" % (R(TT), R(MX_)))
            a("v_permlane%d_swap_b32 %s, %s" % (sw, R(MX_), R(TT)))
            a("v_max_f32 %s, %s, %s" % (R(MX_), R(MX_), R(TT)))
        for v_ in vals:
            a("v_sub_f32 %s, %s, %s" % (R(v_), R(v_), R(MX_)))
            a("v_mul_f32 %s, %s, %s" % (R(v_), S(sL2E), R(v_)))
            a("v_exp_f32 %s, %s" % (R(v_), R(v_)))
        a("v_add_f32 %s, %s, %s" % (R(Z_), R(vals[0]), R(vals[1])))
        a("v_add_f32 %s, %s, %s" % (R(Z_), R(Z_), R(vals[2])))
        a("v_add_f32 %s, %s, %s" % (R(Z_), R(Z_), R(vals[3])))
        a("v_mul_f32 %s, 0.5, %s" % (R(Z_), R(Z_)))
        for v_ in vals[4:]: a("v_add_f32 %s, %s, %s" % (R(Z_), R(Z_), R(v_)))
        for sw in (16, 32):
            a("v_mov_b32 %s, %s" % (R(TT), R(Z_)))
            a("v_permlane%d_swap_b32 %s, %s" % (sw, R(Z_), R(TT)))
            a("v_add_f32 %s, %s, %s" % (R(Z_), R(Z_), R(TT)))
        a("v_rcp_f32 %s, %s" % (R(Z_), R(Z_)))
        for v_ in vals: a("v_mul_f32 %s, %s, %s" % (R(v_), R(v_), R(Z_)))
        a("v_cvt_pk_bf16_f32 %s, %s, %s" % (R(PMr(qt)), R(vals[0]), R(vals[1])))
        a("v_cvt_pk_bf16_f32 %s, %s, %s" % (R(PMr(qt) + 1), R(vals[2]), R(vals[3])))
        a("v_cvt_pk_bf16_f32 %s, %s, %s" % (R(PXr(qt)), R(vals[4]), R(vals[5])))
        a("v_cvt_pk_bf16_f32 %s, %s, %s" % (R(PXr(qt) + 1), R(vals[6]), R(vals[7])))
        if qt == 1:
            a("v_cvt_pk_bf16_f32 %s, %s, %s" % (R(PXr(qt) + 2), R(vals[8]), R(vals[9])))
            a("v_cvt_pk_bf16_f32 %s, %s, %s" % (R(PXr(qt) + 3), R(vals[10]), R(vals[11])))
        else:
            a("v_mov_b32 %s, 0" % R(PXr(qt) + 2)); a("v_mov_b32 %s, 0" % R(PXr(qt) + 3))
    for qt in range(2):
        for et in range(8):
            mf(OAc(qt, et), VFr(et), PXr(qt), None)
        for et in range(8):
            a("v_mfma_f32_16x16x16_bf16 %s, %s, %s, %s" % (RR(OAc(qt, et), 4), RR(VMr(et >> 1) + 2 * (et & 1), 2), RR(PMr(qt), 2), RR(OAc(qt, et), 4)))
    job_off(a, sOUT, WS_O, O_L, O_JOB)
    a("s_lshl_b32 %s, %s, 13" % (S(sT0), S(sX1)))
    a("s_add_u32 %s, %s, %s" % (S(sOUT), S(sOUT), S(sT0)))
    PK = 16
    for tp in range(4):
        for qt in range(2):
            d = PK + 8 * (tp & 1) + 4 * qt
            for t in range(2):
                o = OAc(qt, 2 * tp + t)
                a("v_cvt_pk_bf16_f32 %s, %s, %s" % (R(d + 2 * t), R(o), R(o + 1)))
                a("v_cvt_pk_bf16_f32 %s, %s, %s" % (R(d + 2 * t + 1), R(o + 2), R(o + 3)))
            a("buffer_store_dwordx4 %s, %s, %s, %s offen offset:%d sc1" % (RR(d, 4), R(VO), SR(sWS, 4), S(sOUT), qt * 256))
        if tp < 3: a("s_add_u32 %s, %s, 2048" % (S(sOUT), S(sOUT)))
    a("s_waitcnt vmcnt(0)")
    a("s_lshl_b32 %s, %s, 2" % (S(sT0), S(sX1)))
    a("s_add_u32 %s, %s, %s" % (S(sT0), S(sT0), S(sFLJ)))
    a("s_add_u32 %s, %s, %d" % (S(sT0), S(sT0), WS_FLAGS + FL_O * 4))
    flag_store(a, T1, T2, S(sT0))
    a("s_add_u32 %s, %s, %d" % (S(sX0), S(sX0), nwaves))
    a("s_branch %s" % Lj)
    a.label(Ld)
    a("s_waitcnt vmcnt(0)")
    a("s_branch L_exit")

def misc_role(a, init_target):
    a.comment("==== misc role ====")
    a("s_mov_b32 %s, %s" % (S(sAUX3), S(sX0)))
    load_srd(a, sB, 'x'); load_srd(a, sC, 'out')
    signal_init(a, RT1, RT2)
    a("s_waitcnt lgkmcnt(0)")
    finish_srd(a, sB, 'x'); finish_srd(a, sC, 'out')
    row_setup(a)
    wait_init(a, RT1, RT2, init_target)
    a("s_lshl_b32 %s, %s, 2" % (S(sAUX2), S(sAUX3)))
    a("s_add_u32 %s, %s, %s" % (S(sAUX2), S(sAUX2), S(sW)))
    r0_phase(a, 80, sAUX2)
    a("s_cmp_lt_u32 %s, 48" % S(sAUX2))
    a("s_cbranch_scc1 L_s2")
    a("s_cmp_lt_u32 %s, 64" % S(sAUX2))
    a("s_cbranch_scc1 L_r3")
    a("s_sub_u32 %s, %s, 64" % (S(sAUX), S(sAUX2)))
    r_role(a, 5)
    a.label("L_r3")
    a("s_sub_u32 %s, %s, 48" % (S(sAUX), S(sAUX2)))
    r_role(a, 3)
    a.label("L_s2")
    a("s_mov_b32 %s, %s" % (S(sAUX), S(sAUX2)))
    s2_role(a, 48)
```

```python
import sys
from common import *
import chain, bulk, misc
from bulk import sX0, sX1, sX2, sT0
def build(timing=0, opt=None, zero_flags=True):
    a = Asm()
    prologue(a, zero_flags=zero_flags)
    INIT = 256
    a("s_cmp_lt_u32 %s, 2" % S(sXCC)); a("s_cbranch_scc1 L_chain")
    a("s_cmp_lt_u32 %s, 5" % S(sXCC)); a("s_cbranch_scc1 L_s1j")
    a("s_cmp_lt_u32 %s, 7" % S(sXCC)); a("s_cbranch_scc0 L_x7")
    a("s_sub_u32 %s, %s, 5" % (S(sX0), S(sXCC)))
    a("s_cmp_lt_u32 %s, 16" % S(sTICK)); a("s_cbranch_scc0 L_x56b")
    a("s_lshr_b32 %s, %s, 2" % (S(sX1), S(sTICK))); a("s_and_b32 %s, %s, 3" % (S(sX2), S(sTICK)))
    a("s_branch L_s3j")
    a.label("L_x56b")
    a("s_cmp_lt_u32 %s, 30" % S(sTICK)); a("s_cbranch_scc0 L_x56c")
    a("s_sub_u32 %s, %s, 16" % (S(sX1), S(sTICK)))
    a("s_branch L_s4j")
    a.label("L_x56c")
    a("s_lshl_b32 %s, %s, 1" % (S(sX0), S(sX0)))
    a("s_add_u32 %s, %s, %s" % (S(sX0), S(sX0), S(sTICK)))
    a("s_sub_u32 %s, %s, 30" % (S(sX0), S(sX0)))
    a("s_branch L_miscj")
    a.label("L_x7")
    a("s_cmp_lt_u32 %s, 16" % S(sTICK)); a("s_cbranch_scc0 L_x7b")
    a("s_lshr_b32 %s, %s, 3" % (S(sX0), S(sTICK)))
    a("s_bfe_u32 %s, %s, 0x10002" % (S(sX1), S(sTICK)))
    a("s_and_b32 %s, %s, 3" % (S(sX2), S(sTICK)))
    a("s_branch L_s5j")
    a.label("L_x7b")
    a("s_sub_u32 %s, %s, 12" % (S(sX0), S(sTICK)))
    a("s_branch L_miscj")
    a.label("L_chain"); chain.chain_role(a, INIT, timing, opt)
    a.label("L_s1j"); bulk.s1_role(a, INIT)
    a.label("L_s3j"); bulk.s35_role(a, 3, INIT)
    a.label("L_s5j"); bulk.s35_role(a, 5, INIT)
    a.label("L_s4j"); bulk.s4_role(a, INIT)
    a.label("L_miscj"); misc.misc_role(a, INIT)
    a.label("L_exit")
    a("s_endpgm")
    body = a.render()
    return HEADER.format(name=KNAME) + body + FOOTER.format(name=KNAME), a.nnops
if __name__ == "__main__":
    src, n = build()
    hdr = open("cdna_kernels/" + KNAME[:-7] + ".s.ref").read().split("; Override launch")[0]
    out = sys.argv[1] if len(sys.argv) > 1 else "full.s"
    open(out, "w").write(hdr + src)
    print("nops", n, "lines", src.count("\n"), "bytes", len(src))
```

```python
import re

def R(i):
    return ("v%d" % i) if i < 256 else ("a%d" % (i - 256))
def RR(i, n):
    if n == 1: return R(i)
    if i < 256:
        assert i + n <= 256, (i, n)
        return "v[%d:%d]" % (i, i + n - 1)
    return "a[%d:%d]" % (i - 256, i - 256 + n - 1)
def S(i): return "s%d" % i
def SR(i, n):
    if n == 1: return S(i)
    return "s[%d:%d]" % (i, i + n - 1)

_reg_re = re.compile(r'^(v|a|s)(\d+)$')
_rng_re = re.compile(r'^(v|a|s)\[(\d+):(\d+)\]$')
def parse_regs(op):
    op = op.strip()
    if op.startswith('-'): op = op[1:]
    if op.startswith('abs(') : op = op[4:-1]
    if op.startswith('|'): op = op.strip('|')
    m = _reg_re.match(op)
    if m:
        k, i = m.group(1), int(m.group(2))
        if k == 's': return {('s', i)}
        return {('v', i + (256 if k == 'a' else 0))}
    m = _rng_re.match(op)
    if m:
        k, a, b = m.group(1), int(m.group(2)), int(m.group(3))
        if k == 's': return {('s', i) for i in range(a, b + 1)}
        o = 256 if k == 'a' else 0
        return {('v', i + o) for i in range(a, b + 1)}
    if op == 'vcc': return {('s', 106), ('s', 107)}
    if op == 'vcc_lo': return {('s', 106)}
    if op == 'vcc_hi': return {('s', 107)}
    if op == 'exec': return {('s', 126), ('s', 127)}
    if op == 'm0': return {('s', 124)}
    return set()

TRANS = ('v_exp_f32', 'v_log_f32', 'v_rcp_f32', 'v_rsq_f32', 'v_sqrt_f32', 'v_sin_f32', 'v_cos_f32', 'v_rcp_iflag_f32')

class Ins:
    __slots__ = ('text', 'op', 'ops', 'mods', 'kind', 'wr', 'rd', 'passes', 'srcC', 'dpp', 'sdwa')
    def __init__(self, text):
        self.text = text
        t = text.split(';')[0].strip()
        parts = t.split(None, 1)
        self.op = parts[0]
        rest = parts[1] if len(parts) > 1 else ''
        ops, cur, depth = [], '', 0
        for ch in rest:
            if ch in '[(': depth += 1
            if ch in '])': depth -= 1
            if ch == ',' and depth == 0:
                ops.append(cur.strip()); cur = ''
            else: cur += ch
        if cur.strip(): ops.append(cur.strip())
        mods = []
        if ops:
            toks = ops[-1].split()
            ops[-1] = toks[0]
            mods = toks[1:]
        self.ops, self.mods = ops, mods
        self.dpp = any(m.startswith(('quad_perm', 'row_shr', 'row_shl', 'row_ror', 'row_bcast', 'row_mirror', 'row_half_mirror', 'wave_', 'row_newbcast')) for m in mods) or self.op.endswith('_dpp')
        self.sdwa = self.op.endswith('_sdwa')
        self.passes = 0; self.srcC = set()
        op = self.op
        P = [parse_regs(o) for o in ops]
        wr, rd = set(), set()
        if op.startswith('v_mfma') or op.startswith('v_smfmac'):
            self.kind = 'mfma'
            self.passes = 8 if '32x32' in op else 4
            wr = P[0]
            if op.startswith('v_smfmac'):
                rd = P[0] | P[1] | P[2] | P[3]; self.srcC = P[0]
            else:
                rd = P[1] | P[2] | P[3]; self.srcC = P[3]
        elif op.startswith('v_'):
            self.kind = 'valu'
            if op.startswith('v_cmp'):
                wr = P[0]; rd = set().union(*P[1:])
                if op.startswith('v_cmpx'): wr = wr | {('s',126),('s',127)}
            elif op.startswith('v_permlane') and 'swap' in op:
                wr = P[0] | P[1]; rd = P[0] | P[1]
            elif op.startswith(('v_readfirstlane', 'v_readlane')):
                wr = P[0]; rd = set().union(*P[1:])
            elif op.startswith('v_writelane'):
                wr = P[0]; rd = set().union(*P)
            else:
                wr = P[0]; rd = set().union(*P[1:]) if len(P) > 1 else set()
                if op.startswith(('v_fmac', 'v_pk_fmac', 'v_mac', 'v_dot2c')) or self.dpp or self.sdwa or 'd16' in op:
                    rd = rd | P[0]
                if op.startswith('v_cndmask') and len(ops) == 3: rd = rd | {('s',106),('s',107)}
                if op.startswith('v_cndmask') and op.endswith('_dpp'): rd = rd | {('s',106),('s',107)}
                if op.startswith(('v_add_co', 'v_sub_co', 'v_addc_co', 'v_subb_co')):
                    wr = P[0] | P[1]; rd = set().union(*P[2:])
        elif op.startswith('ds_'):
            self.kind = 'ds'
            if op.startswith(('ds_read', 'ds_bpermute', 'ds_permute', 'ds_swizzle')):
                wr = P[0]; rd = set().union(*P[1:])
                if 'd16' in op: rd |= P[0]
            else:
                rd = set().union(*P)
        elif op.startswith(('buffer_', 'global_')):
            self.kind = 'vmem'
            islds = ('lds' in mods) or ('load_lds' in op)
            if op in ('buffer_inv', 'buffer_wbl2'):
                pass
            elif 'load' in op and not islds:
                wr = P[0]; rd = set().union(*P[1:])
            elif 'load' in op and islds:
                rd = set().union(*P) | {('s',124)}
            elif 'atomic' in op:
                rd = set().union(*P)
                if 'sc0' in mods: wr = P[0]
            else:
                rd = set().union(*P)
        elif op.startswith('s_'):
            self.kind = 'salu'
            if op.startswith(('s_cmp', 's_bitcmp', 's_waitcnt', 's_nop', 's_barrier', 's_branch', 's_cbranch', 's_endpgm', 's_sleep', 's_setprio', 's_setpc')):
                rd = set().union(*P) if P else set()
            elif op.startswith(('s_load', 's_buffer_load', 's_memtime', 's_memrealtime', 's_getreg', 's_getpc')):
                wr = P[0]; rd = set().union(*P[1:]) if len(P) > 1 else set()
            else:
                wr = P[0] if P else set(); rd = set().union(*P[1:]) if len(P) > 1 else set()
                if 'saveexec' in op: wr = wr | {('s',126),('s',127)}; rd = rd | {('s',126),('s',127)}
        else:
            self.kind = 'other'
        self.wr, self.rd = wr, rd
    def states(self):
        if self.op == 's_nop': return int(self.ops[0], 0) + 1
        return 1

def vset(x): return {r for r in x if r[0] == 'v'}
def sset(x): return {r for r in x if r[0] == 's'}

def need(prod, cons):
    n = 0
    pv, ps = vset(prod.wr), sset(prod.wr)
    cr, cw = cons.rd, cons.wr
    if prod.kind == 'valu':
        if cons.kind == 'mfma' and (pv & cr): n = max(n, 2)
        if cons.kind == 'valu':
            if cons.dpp and (pv & cr): n = max(n, 2)
            if cons.op.startswith('v_permlane') and (pv & cr): n = max(n, 2)
            if cons.op.startswith(('v_readlane', 'v_readfirstlane')) and (pv & cr): n = max(n, 1)
            if prod.op.split('_e')[0] in TRANS or prod.op in TRANS:
                if (pv & cr) and not (cons.op in TRANS): n = max(n, 1)
            if (prod.sdwa or 'op_sel' in ' '.join(prod.mods)) and (pv & (cr | cw)): n = max(n, 1)
            if ps & cr: n = max(n, 2)
            if ps & {('s',126),('s',127)}:
                if cons.dpp: n = max(n, 5)
                if cons.op.startswith(('v_readlane','v_readfirstlane','v_writelane','v_permlane')): n = max(n, 4)
            if cons.op.startswith(('v_readlane','v_writelane')) and (ps & cr): n = max(n, 4)
        if cons.kind in ('vmem',) and (ps & cr): n = max(n, 5)
        if cons.kind == 'mfma' and (ps & {('s',126),('s',127)}): n = max(n, 4)
        if cons.kind == 'salu' and (ps & cr): n = max(n, 4)
    if prod.kind == 'salu':
        if (('s',124) in ps) and cons.kind == 'vmem' and (('s',124) in cr): n = max(n, 1)
    if prod.kind == 'mfma':
        p = prod.passes
        big = {4: 8, 8: 12}[p]
        if cons.kind == 'mfma':
            ab = cr - cons.srcC
            abset = set()
            for o in cons.ops[1:3]: abset |= parse_regs(o)
            if cons.op.startswith('v_smfmac'): abset |= parse_regs(cons.ops[3])
            if pv & abset: n = max(n, big)
            if pv & cons.srcC:
                if not (cons.srcC == pv and cons.passes == p):
                    n = max(n, {4: 6, 8: 10}[p])
            elif pv & cw:
                n = max(n, {4: 6, 8: 10}[p])
        elif cons.kind in ('valu', 'ds', 'vmem'):
            if pv & (cr | cw): n = max(n, big)
        if cons.kind == 'valu' and (prod.srcC & cw): n = max(n, {4: 3, 8: 7}[p])
    if prod.kind == 'vmem' and ('store' in prod.op or 'atomic' in prod.op) and ('x4' in prod.op or 'x3' in prod.op):
        if cons.kind == 'valu' and (vset(prod.rd) & cw): n = max(n, 2)
        if cons.kind in ('ds','vmem','mfma') and (vset(prod.rd) & cw): n = max(n, 1)
    if prod.kind == 'ds' and prod.op.startswith('ds_write') and ('b128' in prod.op or 'b96' in prod.op or 'write2_b64' in prod.op):
        if cons.kind == 'valu' and (vset(prod.rd) & cw): n = max(n, 2)
    return n

class Asm:
    def __init__(self):
        self.items = []
        self.uid = 0
    filt = None
    def __call__(self, text):
        for line in text.strip().split('\n'):
            line = line.strip()
            if self.filt is not None:
                line = self.filt(line)
                if line is None: continue
            if not line or line.startswith(';'):
                continue
            if line.endswith(':') and ' ' not in line: self.items.append(('l', line[:-1]))
            elif line.startswith('.'): self.items.append(('r', line))
            else: self.items.append(('i', line))
    def label(self, name): self.items.append(('l', name))
    def newlabel(self, base='L'):
        self.uid += 1
        return "%s_%d" % (base, self.uid)
    def comment(self, c): self.items.append(('c', c))
    def render(self, pad=True):
        out = []
        hist = []
        W = 20
        nn = 0
        def flush_all():
            m = 0
            for ins, d in hist:
                if ins.kind == 'mfma': req = {4: 8, 8: 12}[ins.passes]
                elif ins.kind == 'valu':
                    req = 2
                    if sset(ins.wr): req = 5
                elif ins.kind == 'vmem' and ('store' in ins.op) and ('x4' in ins.op): req = 2
                elif ins.kind == 'salu' and ('s',124) in ins.wr: req = 1
                else: req = 0
                m = max(m, req - d)
            return m
        for kind, t in self.items:
            if kind == 'c':
                out.append('    ; ' + t); continue
            if kind == 'r':
                out.append(t); continue
            if kind == 'l':
                if pad:
                    m = flush_all()
                    if m > 0:
                        out.append('    s_nop %d' % (m - 1)); nn += 1
                hist = []
                out.append(t + ':'); continue
            ins = Ins(t)
            if pad:
                m = 0
                isbr = ins.op.startswith(('s_branch', 's_cbranch', 's_setpc'))
                if isbr:
                    m = flush_all() - 1
                for p, d in hist:
                    m = max(m, need(p, ins) - d)
                while m > 0:
                    k = min(m, 16)
                    out.append('    s_nop %d' % (k - 1)); nn += 1
                    hist = [(p, d + k) for p, d in hist]
                    m -= k
            out.append('    ' + t)
            st = ins.states()
            hist = [(p, d + st) for p, d in hist if d + st < W]
            hist.append((ins, 0))
        self.nnops = nn
        return '\n'.join(out) + '\n'


class LdsT:
    def __init__(self, a):
        self.a = a; self.n = 0
    def ds(self, text):
        self.a(text); self.n += 1
        return self.n
    def wait(self, op_id):
        k = self.n - op_id
        self.a("s_waitcnt lgkmcnt(%d)" % min(k, 15))
    def reset(self):
        self.a("s_waitcnt lgkmcnt(0)")
```

```python
from common import *
import struct
def f32(x): return struct.unpack('<I', struct.pack('<f', x))[0]

GATEB = 8
DEDICATED = False
CYC = ['s1']
D_S1 = 14
D_POST = 13
GATES1 = 0
sREP, sAUX, sC0, sC1, sJL, sJS, sN, sD0 = 32, 33, 34, 35, 36, 37, 38, 39
sT0, sT1, sT2, sT3, sT4 = 40, 41, 42, 43, 44
sAUX2, sAUX3 = 45, 46
sFLJ = 47
sIN, sOUT = 48, 49
sK = 50
sLDSW = 51
sX0, sX1, sX2, sX3 = 52, 53, 54, 55

def sched_init(a, nrep, d0, rep_sgpr):
    a("s_mov_b32 %s, %s" % (S(sREP), S(rep_sgpr)))
    a("s_mov_b32 %s, 0" % S(sC0)); a("s_mov_b32 %s, 0" % S(sC1))
    if 64 % nrep == 0:
        a("s_mov_b32 %s, %d" % (S(sN), 64 // nrep))
    else:
        assert nrep == 3
        a("s_cmp_eq_u32 %s, 0" % S(sREP))
        a("s_cselect_b32 %s, 22, 21" % S(sN))
    a("s_mov_b32 %s, %d" % (S(sD0), d0))

def sched_layer(a, s_layer):
    a("s_mov_b32 %s, 0" % S(sREP))
    a("s_mov_b32 %s, 64" % S(sN))
    a("s_cmp_eq_u32 %s, 0" % S(s_layer))
    a("s_cselect_b32 %s, 0, 64" % S(sC0))
    a("s_cselect_b32 %s, 64, 0" % S(sC1))

def sched_next(a, nrep, Ldone):
    L0 = a.newlabel('j0'); L1 = a.newlabel('j1'); Le = a.newlabel('je')
    a("s_cmp_lt_u32 %s, %s" % (S(sC0), S(sN)))
    a("s_cbranch_scc0 %s" % L1)
    a("s_cmp_lt_u32 %s, %s" % (S(sC0), S(sD0)))
    a("s_cbranch_scc1 %s" % L0)
    a("s_sub_u32 %s, %s, %s" % (S(sT0), S(sC0), S(sD0)))
    a("s_cmp_le_u32 %s, %s" % (S(sC1), S(sT0)))
    a("s_cbranch_scc1 %s" % L1)
    a.label(L0)
    a("s_mov_b32 %s, 0" % S(sJL))
    a("s_mul_i32 %s, %s, %d" % (S(sJS), S(sC0), nrep))
    a("s_add_u32 %s, %s, 1" % (S(sC0), S(sC0)))
    a("s_branch %s" % Le)
    a.label(L1)
    a("s_cmp_lt_u32 %s, %s" % (S(sC1), S(sN)))
    a("s_cbranch_scc0 %s" % Ldone)
    a("s_mov_b32 %s, 1" % S(sJL))
    a("s_mul_i32 %s, %s, %d" % (S(sJS), S(sC1), nrep))
    a("s_add_u32 %s, %s, 1" % (S(sC1), S(sC1)))
    a.label(Le)
    a("s_add_u32 %s, %s, %s" % (S(sJS), S(sJS), S(sREP)))
    a("s_lshl_b32 %s, %s, 6" % (S(sT0), S(sJL)))
    a("s_add_u32 %s, %s, %s" % (S(sT0), S(sT0), S(sJS)))
    a("s_mul_i32 %s, %s, %d" % (S(sFLJ), S(sT0), JOBFLAG_BYTES))

def job_off(a, sdst, base, lstride, job, extra_sgpr=None):
    a("s_mul_i32 %s, %s, %d" % (S(sdst), S(sJS), job))
    if lstride:
        a("s_mul_i32 %s, %s, %d" % (S(sT4), S(sJL), lstride))
        a("s_add_u32 %s, %s, %s" % (S(sdst), S(sdst), S(sT4)))
    a("s_add_u32 %s, %s, %d" % (S(sdst), S(sdst), base))
    if extra_sgpr is not None:
        a("s_add_u32 %s, %s, %s" % (S(sdst), S(sdst), S(extra_sgpr)))

def flag_store(a, vt0, vt1, soff):
    a("v_mov_b32 %s, 1" % R(vt0))
    a("v_mov_b32 %s, 0" % R(vt1))
    a("s_mov_b64 exec, 1")
    a("buffer_store_dword %s, %s, %s, %s offen sc1" % (R(vt0), R(vt1), SR(sWS, 4), soff))
    a("s_mov_b64 exec, -1")

def load_frags32(a, frags, vrow, vtr, ringslots=32):
    n = len(frags)
    def issue(c):
        srd, soff, _ = frags[c]
        soff(a, sK)
        a("s_add_u32 m0, %s, %d" % (S(sLDSW), (c % ringslots) * 1024))
        a("buffer_load_dwordx4 %s, %s, %s offen lds" % (R(vrow), SR(srd, 4), S(sK)))
    a("s_waitcnt vmcnt(0)")
    for c in range(min(ringslots, n)): issue(c)
    G = 4
    for c0 in range(0, n, G):
        cs = list(range(c0, min(c0 + G, n)))
        issued = min(c0 + ringslots, n)
        a("s_waitcnt vmcnt(%d)" % (issued - cs[-1] - 1))
        for c in cs:
            d = frags[c][2]
            off = (c % ringslots) * 1024
            a("ds_read_b64_tr_b16 %s, %s offset:%d" % (RR(d, 2), R(vtr), off))
            a("ds_read_b64_tr_b16 %s, %s offset:%d" % (RR(d + 2, 2), R(vtr), off + 256))
        a("s_waitcnt lgkmcnt(0)")
        for c in cs:
            if c + ringslots < n: issue(c + ringslots)

def setup_tr32(a, lane, vtr, t1, t2):
    a("s_lshl_b32 %s, %s, 15" % (S(sLDSW), S(sW)))
    a("v_lshrrev_b32 %s, 5, %s" % (R(t1), R(lane)))
    a("v_lshlrev_b32 %s, 3, %s" % (R(t1), R(t1)))
    a("v_bfe_u32 %s, %s, 2, 2" % (R(t2), R(lane)))
    a("v_add_u32 %s, %s, %s" % (R(t1), R(t1), R(t2)))
    a("v_lshlrev_b32 %s, 6, %s" % (R(t1), R(t1)))
    a("v_bfe_u32 %s, %s, 4, 1" % (R(t2), R(lane)))
    a("v_lshl_add_u32 %s, %s, 5, %s" % (R(t1), R(t2), R(t1)))
    a("v_and_b32 %s, 3, %s" % (R(t2), R(lane)))
    a("v_lshl_add_u32 %s, %s, 3, %s" % (R(t1), R(t2), R(t1)))
    a("v_add_u32 %s, %s, %s" % (R(vtr), S(sLDSW), R(t1)))

def setup_rowtile(a, lane, AF, VD, t1, t2, t3):
    a("v_and_b32 %s, 31, %s" % (R(t1), R(lane)))
    a("v_lshrrev_b32 %s, 5, %s" % (R(t2), R(lane)))
    a("v_and_b32 %s, 15, %s" % (R(t3), R(lane)))
    for j in range(8):
        a("v_add_u32 %s, %d, %s" % (R(AF + j), 2 * j, R(t2)))
        a("v_xor_b32 %s, %s, %s" % (R(AF + j), R(AF + j), R(t3)))
        a("v_lshlrev_b32 %s, 4, %s" % (R(AF + j), R(AF + j)))
        a("v_lshl_add_u32 %s, %s, 8, %s" % (R(AF + j), R(t1), R(AF + j)))
    for t in range(2):
        a("v_lshrrev_b32 %s, 4, %s" % (R(t1), R(lane)))
        a("v_add_u32 %s, %d, %s" % (R(t1), 4 * t, R(t1)))
        a("s_lshl_b32 %s, %s, 3" % (S(sT0), S(sW)))
        a("v_add_u32 %s, %s, %s" % (R(t2), S(sT0), R(t1)))
        a("v_and_b32 %s, 15, %s" % (R(t2), R(t2)))
        a("v_xor_b32 %s, %s, %s" % (R(t2), R(t2), R(t3)))
        a("v_lshlrev_b32 %s, 4, %s" % (R(t2), R(t2)))
        a("v_lshl_add_u32 %s, %s, 10, %s" % (R(VD + t), R(t1), R(t2)))

def rowtile_dma(a, VD, s_src, buf):
    a("s_lshl_b32 %s, %s, 13" % (S(sT0), S(sW)))
    a("s_add_u32 %s, %s, %s" % (S(sT0), S(sT0), S(s_src)))
    a("s_lshl_b32 %s, %s, 11" % (S(sT1), S(sW)))
    for b in range(4):
        for t in range(2):
            a("s_add_u32 m0, %s, %d" % (S(sT1), buf + b * 8192 + t * 1024))
            a("buffer_load_dwordx4 %s, %s, %s offen sc1 lds" % (R(VD + t), SR(sWS, 4), S(sT0)))
        if b < 3: a("s_add_u32 %s, %s, 256" % (S(sT0), S(sT0)))

def S_mf32x(d, aa, b, c):
    return "v_mfma_f32_32x32x16_bf16 %s, %s, %s, %s" % (RR(d, 16), RR(aa, 4), RR(b, 4), '0' if c is None else RR(c, 16))
def rowtile_items(VD, ssrc, sbuf):
    out = [["s_lshl_b32 s77, %s, 13" % S(sW), "s_add_u32 s77, s77, %s" % S(ssrc), "s_lshl_b32 s76, %s, 11" % S(sW), "s_add_u32 s76, s76, %s" % S(sbuf)]]
    for b in range(4):
        for t in range(2):
            g = ["s_add_u32 m0, s76, %d" % (b * 8192 + t * 1024),
                 "buffer_load_dwordx4 %s, %s, s77 offen sc1 lds" % (R(VD + t), SR(sWS, 4))]
            if t == 1 and b < 3: g += ["s_add_u32 s77, s77, 256"]
            out.append(g)
    return out
def mf32x(a, d, aa, b, c):
    a("v_mfma_f32_32x32x16_bf16 %s, %s, %s, %s" % (RR(d, 16), RR(aa, 4), RR(b, 4), '0' if c is None else RR(c, 16)))


sNL, sNS, sNFL, sNV = 56, 57, 58, 59
sPEND, sBUF, sRDYN, sDUM = 60, 61, 62, 63
sCIN = 64
def next_job(a, nrep, tag):
    Ln = a.newlabel(tag + 'nn'); Le = a.newlabel(tag + 'ne')
    a("s_mov_b32 s65, %s\ns_mov_b32 s66, %s\ns_mov_b32 s67, %s" % (S(sJL), S(sJS), S(sFLJ)))
    sched_next(a, nrep, Ln)
    a("s_mov_b32 %s, %s\ns_mov_b32 %s, %s\ns_mov_b32 %s, %s\ns_mov_b32 %s, 1" % (S(sNL), S(sJL), S(sNS), S(sJS), S(sNFL), S(sFLJ), S(sNV)))
    a("s_branch %s" % Le)
    a.label(Ln)
    a("s_mov_b32 %s, 0" % S(sNV))
    a("s_mov_b32 %s, %s" % (S(sNFL), S(sFLJ)))
    a.label(Le)
    a("s_mov_b32 %s, s65\ns_mov_b32 %s, s66\ns_mov_b32 %s, s67" % (S(sJL), S(sJS), S(sFLJ)))

LDS_DEC = LDS_CNT + 16
sF0, sF1, sDEC = 65, 66, 67
def cand_addrs(a, nrep, in_flag_off):
    for c, f, lay in ((sC0, sF0, 0), (sC1, sF1, 1)):
        a("s_mul_i32 %s, %s, %d" % (S(sT0), S(c), nrep))
        a("s_add_u32 %s, %s, %s" % (S(sT0), S(sT0), S(sREP)))
        a("s_min_u32 %s, %s, 63" % (S(sT0), S(sT0)))
        if lay: a("s_add_u32 %s, %s, 64" % (S(sT0), S(sT0)))
        a("s_mul_i32 %s, %s, %d" % (S(sT0), S(sT0), JOBFLAG_BYTES))
        in_flag_off(a, f, sT0)

def decide(a, V0, V1, target, prio):
    a("v_readfirstlane_b32 %s, %s" % (S(sT0), R(V0)))
    a("v_readfirstlane_b32 %s, %s" % (S(sT1), R(V1)))
    a("s_cmp_ge_u32 %s, %d" % (S(sT0), target)); a("s_cselect_b32 %s, 1, 0" % S(sT0))
    a("s_cmp_lt_u32 %s, %s" % (S(sC0), S(sN))); a("s_cselect_b32 %s, %s, 0" % (S(sT0), S(sT0)))
    a("s_cmp_ge_u32 %s, %d" % (S(sT1), target)); a("s_cselect_b32 %s, 2, 0" % S(sT1))
    a("s_cmp_lt_u32 %s, %s" % (S(sC1), S(sN))); a("s_cselect_b32 %s, %s, 0" % (S(sT1), S(sT1)))
    first, second = (sT0, sT1) if prio == 0 else (sT1, sT0)
    a("s_cmp_lg_u32 %s, 0" % S(first))
    a("s_cselect_b32 %s, %s, %s" % (S(sDEC), S(first), S(second)))
    a("s_add_u32 %s, %s, %s" % (S(sT2), S(sC0), S(sC1)))
    a("s_lshl_b32 %s, %s, 1" % (S(sT3), S(sN)))
    a("s_cmp_ge_u32 %s, %s" % (S(sT2), S(sT3)))
    a("s_cselect_b32 %s, 3, %s" % (S(sDEC), S(sDEC)))

def take_job(a, nrep, sl, ss, sfl):
    a("s_sub_u32 %s, %s, 1" % (S(sl), S(sDEC)))
    a("s_cmp_eq_u32 %s, 0" % S(sl))
    a("s_cselect_b32 %s, %s, %s" % (S(sT0), S(sC0), S(sC1)))
    a("s_mul_i32 %s, %s, %d" % (S(ss), S(sT0), nrep))
    a("s_add_u32 %s, %s, %s" % (S(ss), S(ss), S(sREP)))
    a("s_xor_b32 %s, %s, 1" % (S(sT0), S(sl)))
    a("s_add_u32 %s, %s, %s" % (S(sC0), S(sC0), S(sT0)))
    a("s_add_u32 %s, %s, %s" % (S(sC1), S(sC1), S(sl)))
    a("s_lshl_b32 %s, %s, 6" % (S(sT0), S(sl)))
    a("s_add_u32 %s, %s, %s" % (S(sT0), S(sT0), S(ss)))
    a("s_mul_i32 %s, %s, %d" % (S(sfl), S(sT0), JOBFLAG_BYTES))

def bcast_write(a, T1, T2):
    a("v_mov_b32 %s, %d" % (R(T1), LDS_DEC))
    a("v_mov_b32 %s, %s" % (R(T2), S(sDEC)))
    a("ds_write_b32 %s, %s" % (R(T1), R(T2)))
    a("s_waitcnt lgkmcnt(0)")
def bcast_read(a, T1, T2):
    a("v_mov_b32 %s, %d" % (R(T1), LDS_DEC))
    a("ds_read_b32 %s, %s" % (R(T2), R(T1)))
    a("s_waitcnt lgkmcnt(0)")
    a("v_readfirstlane_b32 %s, %s" % (S(sDEC), R(T2)))

def blocking_pick(a, tag, nrep, VZ, V0, V1, T1, T2, in_flag_off, target, prio):
    Lb = a.newlabel(tag + 'bp'); Lp = a.newlabel(tag + 'bpl'); Ld = a.newlabel(tag + 'bpd')
    a("s_cmp_eq_u32 %s, 0" % S(sW)); a("s_cbranch_scc0 %s" % Lb)
    cand_addrs(a, nrep, in_flag_off)
    a.label(Lp)
    a("buffer_load_dword %s, %s, %s, %s offen sc1" % (R(V0), R(VZ), SR(sWS, 4), S(sF0)))
    a("buffer_load_dword %s, %s, %s, %s offen sc1" % (R(V1), R(VZ), SR(sWS, 4), S(sF1)))
    a("s_waitcnt vmcnt(0)")
    decide(a, V0, V1, target, prio)
    a("s_cmp_lg_u32 %s, 0" % S(sDEC)); a("s_cbranch_scc1 %s" % Ld)
    a("s_add_u32 %s, %s, 1" % (S(sTMO), S(sTMO)))
    a("s_cmp_gt_u32 %s, %d" % (S(sTMO), TIMEOUT))
    a("s_cselect_b32 %s, 3, 0" % S(sDEC))
    a("s_cbranch_scc1 %s" % Ld)
    a("s_sleep 1")
    a("s_branch %s" % Lp)
    a.label(Ld)
    bcast_write(a, T1, T2)
    a.label(Lb)
    a("s_barrier")
    bcast_read(a, T1, T2)

def wave0_signal(a, T1, T2, s_addr):
    L = a.newlabel('w0s')
    a("s_cmp_eq_u32 %s, 0" % S(sW)); a("s_cbranch_scc0 %s" % L)
    a("s_mov_b64 exec, 1")
    a("v_mov_b32 %s, 1" % R(T1))
    a("v_mov_b32 %s, 0" % R(T2))
    a("buffer_atomic_add %s, %s, %s, %s offen" % (R(T1), R(T2), SR(sWS, 4), s_addr))
    a("s_mov_b64 exec, -1")
    a.label(L)

def run_stream(a, L, steps, fill):
    names = {}
    slot = 0
    for need, mfs, pre in steps:
        if need is not None: L.wait(need())
        for k, m in enumerate(mfs):
            a(m)
            if k == 0 and pre is not None: pre()
            for it in fill.get(slot, []):
                if isinstance(it, str): a(it)
                elif it[0] == 'ds': names[it[2]] = L.ds(it[1])
                elif it[0] == 'wait': L.wait(names[it[1]])
            slot += 1
    return slot

sMODE = 83
sEOUT, sCOUT, sPEND2 = 78, 80, 81
def emit_items(a, L, items, names=None):
    names = {} if names is None else names
    for it in items:
        if isinstance(it, str): a(it)
        elif it[0] == 'ds': names[it[2]] = L.ds(it[1])
        elif it[0] == 'wait': L.wait(names[it[1]])

def gemm_loop(a, tag, nrep, VZ, VFV, T1, T2, in_flag_off, in_target, src_addr, dma_items, toggle, mk_steps, n_slots,
              out_addr, shadow, epi_items, epi_slots, out_flag, bufstride, nst=0, trc=None, prio=0, sig_at=None, defer_layer=1, defer_epi=True):
    if not defer_epi: assert sig_at is not None
    Lj = a.newlabel(tag + 'job'); Lw = a.newlabel(tag + 'w'); Lw2 = a.newlabel(tag + 'w2')
    Lnx = a.newlabel(tag + 'nx'); Lfin = a.newlabel(tag + 'fin')
    V0, V1 = VFV, VFV + 1
    sSRC, sCSRC, sOB, sEXM = 64, 71, 68, 72
    sW0M = 74
    def lines(fn, *args):
        out = []
        class C:
            def __call__(self, t):
                for x in t.strip().split('\n'): out.append(x.strip())
        fn(C(), *args)
        return out
    def sig(saddr):
        return ["s_cmp_lg_u32 %s, 0" % S(saddr), "s_cselect_b32 %s, %s, 0" % (S(sEXM), S(sW0M)), "v_mov_b32 %s, 1" % R(T2),
                "s_mov_b64 exec, %s" % SR(sEXM, 2),
                "buffer_atomic_add %s, %s, %s, %s offen" % (R(T2), R(VZ), SR(sWS, 4), S(saddr)),
                "s_mov_b64 exec, -1", "s_mov_b32 %s, 0" % S(saddr)]
    def samples(a):
        cand_addrs(a, nrep, in_flag_off)
        a("buffer_load_dword %s, %s, %s, %s offen sc1" % (R(V0), R(VZ), SR(sWS, 4), S(sF0)))
        a("buffer_load_dword %s, %s, %s, %s offen sc1" % (R(V1), R(VZ), SR(sWS, 4), S(sF1)))
    a("s_mov_b32 %s, 0" % S(sPEND)); a("s_mov_b32 %s, 0" % S(sPEND2))
    a("s_mov_b32 %s, %d" % (S(sEOUT), WS_SCRATCH))
    a("s_mov_b64 s[86:87], 0")
    a("s_mov_b32 %s, 0" % S(sBUF))
    a("s_cmp_eq_u32 %s, 0" % S(sW)); a("s_cselect_b32 %s, 1, 0" % S(sW0M))
    a("s_mov_b32 %s, 0" % S(sEXM + 1))
    blocking_pick(a, tag, nrep, VZ, V0, V1, T1, T2, in_flag_off, in_target, prio)
    a("s_cmp_eq_u32 %s, 3" % S(sDEC)); a("s_cbranch_scc1 %s" % Lfin)
    take_job(a, nrep, sJL, sJS, sFLJ)
    src_addr(a, sCSRC, sJL, sJS)
    for g in dma_items(sCSRC, sBUF):
        for x in g: a(x)
    samples(a)
    a("s_mov_b32 %s, 0" % S(sMODE))
    a.label(Lj)
    a("s_cmp_eq_u32 %s, 2" % S(sMODE))
    a("s_cbranch_scc1 %s" % Lw2)
    a("s_cmp_eq_u32 %s, 0" % S(sMODE))
    a("s_cbranch_scc1 %s" % Lw)
    a("s_waitcnt vmcnt(%d)" % ((2 if sig_at is None else TOPW[tag]) + (0 if defer_epi else nst)))
    a("s_branch %s" % Lw2)
    a.label(Lw)
    a("s_waitcnt vmcnt(0)")
    a.label(Lw2)
    a("s_barrier")
    if sig_at is None:
        for x in sig(sPEND2): a(x)
    if trc: trace(a, trc[0], sJL, sJS, trc[2], T1, T2, sT0)
    if trc and tag in CYC: trace(a, 12, sJL, sJS, trc[2], T1, T2, sT0, cyc=True)
    L = LdsT(a)
    steps = mk_steps(L)
    def scc_groups(ls, maxlen=4):
        out, cur = [], []
        k = 0
        while k < len(ls):
            unit = [ls[k]]
            if ls[k].startswith('s_cmp'):
                k += 1
                while k < len(ls) and ls[k].startswith(('s_cselect', 's_cbranch')):
                    unit.append(ls[k]); k += 1
            else: k += 1
            if cur and len(cur) + len(unit) > maxlen:
                out.append(cur); cur = []
            cur += unit
        if cur: out.append(cur)
        return out
    def masked(g, m):
        out = []
        vm = [k for k, it in enumerate(g) if isinstance(it, str) and it.startswith('buffer_')]
        if not vm: return list(g)
        for k, it in enumerate(g):
            if k == vm[0]: out.append("s_mov_b64 exec, %s" % SR(m, 2))
            out.append(it)
            if k == vm[-1]: out.append("s_mov_b64 exec, -1")
        return out
    Lhs = a.newlabel(tag + 'hs')
    dec = lines(decide, V0, V1, in_target, prio)
    tj = ["s_sub_u32 %s, %s, 1" % (S(sT0), S(sDEC)),
          "s_cmp_lt_u32 %s, 2" % S(sT0),
          "s_cselect_b32 %s, 1, 0" % S(sRDYN),
          "s_cselect_b32 %s, %s, 0" % (S(sNL), S(sT0)),
          "s_cmp_eq_u32 %s, 0" % S(sNL),
          "s_cselect_b32 %s, %s, %s" % (S(sT0), S(sC0), S(sC1)),
          "s_mul_i32 %s, %s, %d" % (S(sNS), S(sT0), nrep),
          "s_add_u32 %s, %s, %s" % (S(sNS), S(sNS), S(sREP)),
          "s_min_u32 %s, %s, 63" % (S(sNS), S(sNS)),
          "s_xor_b32 %s, %s, 1" % (S(sT0), S(sNL)),
          "s_and_b32 %s, %s, %s" % (S(sT0), S(sT0), S(sRDYN)),
          "s_add_u32 %s, %s, %s" % (S(sC0), S(sC0), S(sT0)),
          "s_and_b32 %s, %s, %s" % (S(sT0), S(sNL), S(sRDYN)),
          "s_add_u32 %s, %s, %s" % (S(sC1), S(sC1), S(sT0)),
          "s_lshl_b32 %s, %s, 6" % (S(sT0), S(sNL)),
          "s_add_u32 %s, %s, %s" % (S(sT0), S(sT0), S(sNS)),
          "s_mul_i32 %s, %s, %d" % (S(sNFL), S(sT0), JOBFLAG_BYTES),
          "s_xor_b32 %s, %s, %d" % (S(sOB), S(sBUF), bufstride)]
    sa = lines(src_addr, sSRC, sNL, sNS) + ["s_cmp_eq_u32 %s, 1" % S(sRDYN), "s_cselect_b32 %s, %s, %s" % (S(sSRC), S(sSRC), S(sCSRC)),
                                            "s_cselect_b64 %s, -1, 0" % SR(84, 2), "s_mov_b32 %s, %s" % (S(75), S(sSRC))]
    di = dma_items(sSRC, sOB)
    ndma = sum(1 for g in di for it in g if isinstance(it, str) and it.startswith('buffer_'))
    A = [(["s_cmp_eq_u32 %s, 2" % S(sMODE), "s_cbranch_scc1 %s" % Lhs, "s_waitcnt vmcnt(%d)" % ((1 if sig_at is None else 0) + (0 if defer_epi else nst)), Lhs + ":", dec[0], dec[1]], 1)]
    A += [(g, 0) for g in scc_groups(dec[2:])]
    A += [(["s_lshl_b32 %s, %s, 2" % (S(sT0), S(sW)), "s_add_u32 %s, %s, %d" % (S(sT0), S(sT0), LDS_DEC),
            "v_mov_b32 %s, %s" % (R(T1), S(sT0)), "v_mov_b32 %s, %s" % (R(T2), S(sDEC))], 0),
          ([('ds', "ds_write_b32 %s, %s" % (R(T1), R(T2)), 'dw')], 0),
          ([('wait', 'dw'), "s_barrier", "v_mov_b32 %s, %d" % (R(T1), LDS_DEC)], 2),
          ([('ds', "ds_read_b32 %s, %s" % (R(V0), R(T1)), 'dr')], 0),
          ([('wait', 'dr'), "v_readfirstlane_b32 %s, %s" % (S(sDEC), R(V0))], 2)]
    A += [(g, (1 if k == 0 else 0)) for k, g in enumerate(scc_groups(tj))]
    A += [(g, 0) for g in scc_groups(sa)]
    A += [(masked(g, 84), 0) for g in di]
    E = [(masked(g, 86), 0) for g in epi_items(sEOUT)] if defer_epi else []
    Zl = scc_groups(lines(out_addr, sCOUT)) + scc_groups(lines(cand_addrs, nrep, in_flag_off))
    Zl += [["buffer_load_dword %s, %s, %s, %s offen sc1" % (R(V0), R(VZ), SR(sWS, 4), S(sF0)),
            "buffer_load_dword %s, %s, %s, %s offen sc1" % (R(V1), R(VZ), SR(sWS, 4), S(sF1))]]
    fill = {}
    load = [0] * n_slots
    def place(thread, first, quota):
        sl = first
        pos = []
        for g, gap in thread:
            sl = sl + gap
            while sl < n_slots and load[sl] + len(g) > quota and load[sl] > 0: sl += 1
            assert sl < n_slots, (tag, 'thread overflow')
            fill.setdefault(sl, []).extend(g); load[sl] += len(g); pos.append(sl)
        return pos
    z0 = n_slots - 1 - len(Zl)
    for k, g in enumerate(Zl):
        fill.setdefault(z0 + k, []).extend(g); load[z0 + k] += len(g)
    if sig_at is not None:
        pe = place(E, 0, QUOTA)
        pa = place(A, 0, QUOTA)
        first_dma = pa[len(A) - len(di)]
        if pe: assert pe[-1] < first_dma, (tag, pe[-1], first_dma)
        ps = max(pa[-1] + 1, sig_at)
        ps_g = [(["s_waitcnt vmcnt(%d)" % ndma, "s_barrier"] + sig(sPEND)[:3], 0), (sig(sPEND)[3:], 0)]
        pp = place(ps_g, ps, QUOTA + 2)
        assert pp[-1] < z0, (tag, pp, z0)
    else:
        pa = place(A, 0, QUOTA)
        pe = place(E, 0, QUOTA)
        assert pe[-1] < z0 and pa[-1] < z0, (tag, pe[-1], pa[-1], z0)
    n = run_stream(a, L, steps, fill)
    assert n == n_slots, (n, n_slots)
    shadow(a)
    if trc: trace(a, trc[1], sJL, sJS, trc[2], T1, T2, sT0)
    if trc and tag in CYC: trace(a, 13, sJL, sJS, trc[2], T1, T2, sT0, cyc=True)
    if sig_at is None: a("s_mov_b32 %s, %s" % (S(sPEND2), S(sPEND)))
    out_flag(a, sT3)
    a("s_mov_b32 %s, %s" % (S(sPEND), S(sT3)))
    a("s_mov_b32 %s, %s" % (S(sEOUT), S(sCOUT)))
    a("s_mov_b64 s[86:87], -1")
    if defer_epi:
        a("s_cmp_eq_u32 %s, %d" % (S(sJL), defer_layer))
        a("s_cselect_b32 %s, %s, 0" % (S(sT0), S(sRDYN)))
        a("s_mov_b32 %s, 1" % S(sMODE))
        a("s_cmp_eq_u32 %s, 0" % S(sT0))
        a("s_cbranch_scc0 %s" % Lnx)
    else:
        L3 = LdsT(a); nm3 = {}
        for g in epi_items(sEOUT): emit_items(a, L3, g, nm3)
        a("s_mov_b32 %s, 1" % S(sMODE))
        a("s_cmp_eq_u32 %s, 0" % S(sRDYN))
        a("s_cbranch_scc0 %s" % Lnx)
    if defer_epi:
        L2 = LdsT(a); nm = {}
        for g in epi_items(sEOUT): emit_items(a, L2, g, nm)
    a("s_waitcnt vmcnt(0)")
    a("s_barrier")
    if sig_at is None:
        for x in sig(sPEND2): a(x)
    for x in sig(sPEND): a(x)
    a("s_mov_b32 %s, %d" % (S(sEOUT), WS_SCRATCH))
    a("s_mov_b64 s[86:87], 0")
    a("s_mov_b32 %s, 2" % S(sMODE))
    a("s_cmp_eq_u32 %s, 0" % S(sRDYN))
    a("s_cbranch_scc0 %s" % Lnx)
    a("s_mov_b32 %s, 0" % S(sMODE))
    blocking_pick(a, tag, nrep, VZ, V0, V1, T1, T2, in_flag_off, in_target, prio)
    a("s_cmp_eq_u32 %s, 3" % S(sDEC)); a("s_cbranch_scc1 %s" % Lfin)
    take_job(a, nrep, sNL, sNS, sNFL)
    a("s_xor_b32 %s, %s, %d" % (S(sOB), S(sBUF), bufstride))
    src_addr(a, 75, sNL, sNS)
    a("s_mov_b32 %s, %s" % (S(sSRC), S(75)))
    for g in dma_items(sSRC, sOB):
        for x in g: a(x)
    samples(a)
    a.label(Lnx)
    a("s_mov_b32 %s, %s\ns_mov_b32 %s, %s\ns_mov_b32 %s, %s" % (S(sJL), S(sNL), S(sJS), S(sNS), S(sFLJ), S(sNFL)))
    a("s_mov_b32 %s, %s" % (S(sBUF), S(sOB)))
    a("s_mov_b32 %s, %s" % (S(sCSRC), S(75)))
    toggle(a)
    a("s_branch %s" % Lj)
    a.label(Lfin)
    a("s_waitcnt vmcnt(0)")
    a("s_branch L_exit")
QUOTA = 4
TOPW = {'s1': 3, 's3': 3, 's5': 3, 's4': 3}

def job_off2(a, sdst, base, lstride, job, sl, ss):
    a("s_mul_i32 %s, %s, %d" % (S(sdst), S(ss), job))
    if lstride:
        a("s_mul_i32 %s, %s, %d" % (S(sT4), S(sl), lstride))
        a("s_add_u32 %s, %s, %s" % (S(sdst), S(sdst), S(sT4)))
    a("s_add_u32 %s, %s, %d" % (S(sdst), S(sdst), base))

def rowtile_dma2(a, VD, s_src, sbuf):
    a("s_lshl_b32 %s, %s, 13" % (S(sT0), S(sW)))
    a("s_add_u32 %s, %s, %s" % (S(sT0), S(sT0), S(s_src)))
    a("s_lshl_b32 %s, %s, 11" % (S(sT1), S(sW)))
    a("s_add_u32 %s, %s, %s" % (S(sT1), S(sT1), S(sbuf)))
    for b in range(4):
        for t in range(2):
            a("s_add_u32 m0, %s, %d" % (S(sT1), b * 8192 + t * 1024))
            a("buffer_load_dwordx4 %s, %s, %s offen sc1 lds" % (R(VD + t), SR(sWS, 4), S(sT0)))
        if b < 3: a("s_add_u32 %s, %s, 256" % (S(sT0), S(sT0)))

def s1_role(a, init_target):
    a.comment("==== S1 role ====")
    lane, T1, T2, T3 = 0, 13, 14, 15
    AF, VD, VST, VSV, VFL, VFV = 2, 10, 12, 1, 104, 105
    ACC = {'q': 16, 'k': 32, 'v': 48}
    XF = [64 + 4 * i for i in range(4)]
    PKD = 80
    def W(x, ks): return {'q': 256, 'k': 384, 'v': 128}[x] + 4 * ks
    a("s_sub_u32 %s, %s, 2" % (S(sT0), S(sXCC)))
    sched_init(a, 2, D_S1, sT0)
    a("s_mov_b32 %s, %s" % (S(sAUX), S(sTICK)))
    load_srd(a, sA, 'Wq'); load_srd(a, sB, 'Wk'); load_srd(a, sC, 'Wv')
    signal_init(a, T1, T2)
    a("s_waitcnt lgkmcnt(0)")
    finish_srd(a, sA, 'Wq'); finish_srd(a, sB, 'Wk'); finish_srd(a, sC, 'Wv')
    if GATES1: gate_wait(a, T1, T2, GATES1)
    VROW, VTR = 20, 21
    setup_tr32(a, lane, VTR, T1, T2)
    a("v_lshrrev_b32 %s, 2, %s" % (R(T1), R(lane)))
    a("v_and_b32 %s, 3, %s" % (R(T2), R(lane)))
    a("v_lshlrev_b32 %s, 4, %s" % (R(T2), R(T2)))
    a("v_lshl_add_u32 %s, %s, 13, %s" % (R(VROW), R(T1), R(T2)))
    a("s_lshl_b32 %s, %s, 8" % (S(sX0), S(sAUX)))
    a("s_lshl_b32 %s, %s, 6" % (S(sT0), S(sW)))
    a("s_add_u32 %s, %s, %s" % (S(sX0), S(sX0), S(sT0)))
    frags = []
    for x, srd in (('k', sB), ('v', sC), ('q', sA)):
        for ks in range(32):
            frags.append((srd, (lambda a_, d, ks=ks: a_("s_add_u32 %s, %s, %d" % (S(d), S(sX0), ks * 16 * 8192))), W(x, ks)))
    load_frags32(a, frags, VROW, VTR)
    setup_rowtile(a, lane, AF, VD, T1, T2, T3)
    a("v_bfe_u32 %s, %s, 4, 1" % (R(T1), R(lane)))
    a("v_lshrrev_b32 %s, 5, %s" % (R(T2), R(lane)))
    a("v_and_b32 %s, 15, %s" % (R(T3), R(lane)))
    a("v_lshlrev_b32 %s, 4, %s" % (R(T3), R(T3)))
    a("v_lshl_add_u32 %s, %s, 8, %s" % (R(T3), R(T2), R(T3)))
    a("v_lshl_add_u32 %s, %s, 12, %s" % (R(VST), R(T1), R(T3)))
    a("v_lshl_add_u32 %s, %s, 10, %s" % (R(VSV), R(T1), R(T3)))
    a("v_mov_b32 %s, 0" % R(VFL))
    wait_init(a, T1, T2, init_target)
    a("s_barrier")
    def in_flag(a, sd, sf): a("s_add_u32 %s, %s, %d" % (S(sd), S(sf), WS_FLAGS + FL_H))
    def src_addr(a, sd, sl, ss): job_off2(a, sd, WS_HN, HN_L, HN_JOB, sl, ss)
    def dma_items(ssrc, sbuf): return rowtile_items(VD, ssrc, sbuf)
    def toggle(a):
        for j in range(8): a("v_xor_b32 %s, 0x8000, %s" % (R(AF + j), R(AF + j)))
    def rd(ks): return "ds_read_b128 %s, %s offset:%d" % (RR(XF[ks % 4], 4), R(AF + (ks & 7)), (ks >> 3) * 8192)
    def mk_steps(L):
        ids = {}
        for ks in range(3): ids[ks] = L.ds(rd(ks))
        steps = []
        for ks in range(32):
            x = XF[ks % 4]
            mfs = [S_mf32x(ACC['k'], W('k', ks), x, None if ks == 0 else ACC['k']),
                   S_mf32x(ACC['v'], x, W('v', ks), None if ks == 0 else ACC['v']),
                   S_mf32x(ACC['q'], W('q', ks), x, None if ks == 0 else ACC['q'])]
            def pre(ks=ks):
                if ks + 3 < 32: ids[ks + 3] = L.ds(rd(ks + 3))
            steps.append(((lambda ks=ks: ids[ks]), mfs, pre))
        return steps
    def out_addr(a, sd):
        job_off(a, sd, WS_QKV, QKV_L, QKV_JOB)
        a("s_mul_i32 %s, %s, %d" % (S(sT4), S(sAUX), 24 * KB))
        a("s_add_u32 %s, %s, %s" % (S(sd), S(sd), S(sT4)))
    def shadow(a):
        for xi, x in ((0, 'k'), (1, 'q')):
            base = PKD + 8 * xi
            for r_ in range(8):
                a("v_cvt_pk_bf16_f32 %s, %s, %s" % (R(base + r_), R(ACC[x] + 2 * r_), R(ACC[x] + 2 * r_ + 1)))
        base = PKD + 16
        for p in range(2):
            for q, b in enumerate((p, p + 2)):
                for hh in range(2):
                    a("v_cvt_pk_bf16_f32 %s, %s, %s" % (R(base + 4 * p + 2 * q + hh), R(ACC['v'] + 4 * b + 2 * hh), R(ACC['v'] + 4 * b + 2 * hh + 1)))
    def epi_items(so):
        st = lambda r_, v, off: "buffer_store_dwordx4 %s, %s, %s, s79 offen offset:%d sc1" % (RR(r_, 4), R(v), SR(sWS, 4), off)
        return [["s_lshl_b32 s82, %s, 10" % S(sW), "s_add_u32 s79, %s, s82" % S(so), "s_add_u32 s79, s79, 8192", st(PKD, VST, 0)],
                [st(PKD + 4, VST, 512)],
                ["s_add_u32 s79, s79, s82", "s_add_u32 s79, s79, 8192", st(PKD + 16, VSV, 0)],
                [st(PKD + 20, VSV, 512)],
                ["s_add_u32 s79, %s, s82" % S(so), st(PKD + 8, VST, 0)],
                [st(PKD + 12, VST, 512)]]
    def oflag(a, sd):
        a("s_lshl_b32 %s, %s, 7" % (S(sd), S(sAUX)))
        a("s_add_u32 %s, %s, %s" % (S(sd), S(sd), S(sFLJ)))
        a("s_add_u32 %s, %s, %d" % (S(sd), S(sd), WS_FLAGS + FL_KV))
    gemm_loop(a, 's1', 2, VFL, VFV, T1, T2, in_flag, 8, src_addr, dma_items, toggle, mk_steps, 96, out_addr, shadow, epi_items, (2, 2), oflag, 0x8000, trc=(0, 1, [(sAUX, 0), (sW, 0)]), prio=1, sig_at=36, defer_layer=0)

def s35_role(a, which, init_target):
    a.comment("==== S%d role ====" % which)
    tag = 's%d' % which
    NK = 64 if which == 3 else 56
    lane, T1, T2, T3 = 0, 13, 14, 15
    VL16, VTW, VTR_, VST, VFL, VFV, VRD = 1, 2, 3, 4, 5, 8, 7
    ACC = 16
    XF = [32 + 4 * i for i in range(8)]
    TRN = 64
    def W(ks): return 256 + 4 * ks
    if DEDICATED: sched_layer(a, sX0)
    else: sched_init(a, 2, 0, sX0)
    a("s_mov_b32 %s, %s" % (S(sAUX), S(sX1)))
    a("s_mov_b32 %s, %s" % (S(sAUX2), S(sX2)))
    wname = 'Wo' if which == 3 else 'Wd'
    load_srd(a, sA, wname)
    signal_init(a, T1, T2)
    a("s_waitcnt lgkmcnt(0)")
    finish_srd(a, sA, wname)
    if GATEB: gate_wait(a, T1, T2, GATEB)
    VROW, VTR = 20, 21
    setup_tr32(a, lane, VTR, T1, T2)
    a("v_bfe_u32 %s, %s, 4, 1" % (R(T1), R(lane)))
    a("v_lshlrev_b32 %s, %d, %s" % (R(T1), 4 if which == 3 else 3, R(T1)))
    a("v_bfe_u32 %s, %s, 5, 1" % (R(T2), R(lane)))
    a("v_lshl_add_u32 %s, %s, 2, %s" % (R(T1), R(T2), R(T1)))
    a("v_bfe_u32 %s, %s, 2, 2" % (R(T2), R(lane)))
    a("v_add_u32 %s, %s, %s" % (R(T1), R(T1), R(T2)))
    a("v_and_b32 %s, 3, %s" % (R(T2), R(lane)))
    a("v_lshlrev_b32 %s, 4, %s" % (R(T2), R(T2)))
    a("v_lshl_add_u32 %s, %s, 10, %s" % (R(VROW), R(T1), R(T2)))
    a("s_mul_i32 %s, %s, %d" % (S(sX0), S(sAUX), (1024 if which == 3 else 896) * 1024))
    a("s_lshl_b32 %s, %s, 8" % (S(sT0), S(sAUX2)))
    a("s_add_u32 %s, %s, %s" % (S(sX0), S(sX0), S(sT0)))
    a("s_lshl_b32 %s, %s, 6" % (S(sT0), S(sW)))
    a("s_add_u32 %s, %s, %s" % (S(sX0), S(sX0), S(sT0)))
    frags = []
    for ks in range(NK):
        m = ks & 7
        row = (ks >> 3) * 128 + (32 * (m >> 1) + (8 if which == 3 else 16) * (m & 1))
        frags.append((sA, (lambda a_, d, row=row: a_("s_add_u32 %s, %s, %d" % (S(d), S(sX0), row * 1024))), W(ks)))
    load_frags32(a, frags, VROW, VTR)
    a("v_lshlrev_b32 %s, 4, %s" % (R(VL16), R(lane)))
    a("v_mov_b32 %s, %s" % (R(VRD), R(VL16)))
    TB = 131072
    a("v_and_b32 %s, 31, %s" % (R(T1), R(lane)))
    a("v_lshrrev_b32 %s, 5, %s" % (R(T2), R(lane)))
    a("v_and_b32 %s, 7, %s" % (R(T3), R(lane)))
    a("v_xor_b32 %s, %s, %s" % (R(T2), R(T2), R(T3)))
    a("v_lshlrev_b32 %s, 4, %s" % (R(T2), R(T2)))
    a("v_lshl_add_u32 %s, %s, 7, %s" % (R(VTW), R(T1), R(T2)))
    a("s_lshl_b32 %s, %s, 12" % (S(sT0), S(sW)))
    a("s_add_u32 %s, %s, %d" % (S(sT0), S(sT0), TB))
    a("v_add_u32 %s, %s, %s" % (R(VTW), S(sT0), R(VTW)))
    a("v_lshrrev_b32 %s, 3, %s" % (R(T1), R(lane)))
    a("v_and_b32 %s, 7, %s" % (R(T2), R(lane)))
    a("v_xor_b32 %s, %s, %s" % (R(T3), R(T2), R(T1)))
    a("v_lshlrev_b32 %s, 4, %s" % (R(T3), R(T3)))
    a("v_lshl_add_u32 %s, %s, 7, %s" % (R(VTR_), R(T1), R(T3)))
    a("v_add_u32 %s, %s, %s" % (R(VTR_), S(sT0), R(VTR_)))
    a("v_lshlrev_b32 %s, 4, %s" % (R(T2), R(T2)))
    a("v_lshl_add_u32 %s, %s, 11, %s" % (R(VST), R(T1), R(T2)))
    a("v_mov_b32 %s, 0" % R(VFL))
    if which == 3:
        a("s_lshl_b32 %s, %s, 7" % (S(sX1), S(sAUX)))
        a("s_add_u32 %s, %s, %d" % (S(sX1), S(sX1), WS_FLAGS + FL_O))
        a("s_lshl_b32 %s, %s, 16" % (S(sX2), S(sAUX)))
    else:
        a("s_lshl_b32 %s, %s, 7" % (S(sX1), S(sAUX)))
        a("s_add_u32 %s, %s, %d" % (S(sX1), S(sX1), WS_FLAGS + FL_A))
        a("s_mul_i32 %s, %s, %d" % (S(sX2), S(sAUX), 7 * 8192))
    wait_init(a, T1, T2, init_target)
    a("s_barrier")
    def in_flag(a, sd, sf): a("s_add_u32 %s, %s, %s" % (S(sd), S(sf), S(sX1)))
    def src_addr(a, sd, sl, ss):
        if which == 3: job_off2(a, sd, WS_O, O_L, O_JOB, sl, ss)
        else: job_off2(a, sd, WS_ACT, ACT_L, ACT_JOB, sl, ss)
        a("s_add_u32 %s, %s, %s" % (S(sd), S(sd), S(sX2)))
    def dma_items(ssrc, sbuf):
        out = []
        per = NK // 4
        for i in range(0, per, 1):
            g = []
            if i == 0:
                g += ["s_mul_i32 s76, %s, %d" % (S(sW), per * 1024), "s_add_u32 s77, %s, s76" % S(ssrc), "s_add_u32 s76, s76, %s" % S(sbuf)]
                out.append(g); g = []
            if i % 4 == 0:
                g += ["s_add_u32 m0, s76, %d" % (i * 1024)]
                if i: g += ["s_add_u32 s77, s77, 4096"]
            for k in (i,):
                if k < per: g += ["buffer_load_dwordx4 %s, %s, s77 offen offset:%d sc1 lds" % (R(VL16), SR(sWS, 4), (k % 4) * 1024)]
            out.append(g)
        return out
    def toggle(a): a("v_xor_b32 %s, 0x10000, %s" % (R(VRD), R(VRD)))
    PF = 6
    def rd(ks): return "ds_read_b128 %s, %s offset:%d" % (RR(XF[ks % 8], 4), R(VRD), ks * 1024)
    def mk_steps(L):
        ids = {}
        for ks in range(PF): ids[ks] = L.ds(rd(ks))
        steps = []
        for ks in range(NK):
            mfs = [S_mf32x(ACC, W(ks), XF[ks % 8], None if ks == 0 else ACC)]
            def pre(ks=ks):
                if ks + PF < NK: ids[ks + PF] = L.ds(rd(ks + PF))
            steps.append(((lambda ks=ks: ids[ks]), mfs, pre))
        return steps
    SH = 80
    TX = 10
    def out_addr(a, sd):
        if which == 3: job_off(a, sd, WS_P3, P3_L, P3_JOB)
        else: job_off(a, sd, WS_P5, P5_L, P5_JOB)
        a("s_lshl_b32 %s, %s, 16" % (S(sT4), S(sAUX)))
        a("s_add_u32 %s, %s, %s" % (S(sd), S(sd), S(sT4)))
        a("s_lshl_b32 %s, %s, 9" % (S(sT4), S(sAUX2)))
        a("s_add_u32 %s, %s, %s" % (S(sd), S(sd), S(sT4)))
        a("s_lshl_b32 %s, %s, 7" % (S(sT4), S(sW)))
        a("s_add_u32 %s, %s, %s" % (S(sd), S(sd), S(sT4)))
    def shadow(a):
        for r_ in range(0, 16, 2): a("v_mov_b64 %s, %s" % (RR(SH + r_, 2), RR(ACC + r_, 2)))
    def epi_items(so):
        g = [[('ds', "ds_write_b128 %s, %s" % (R(VTW), RR(SH, 4)), 'w0'), "v_xor_b32 %s, 32, %s" % (R(TX), R(VTW))],
             [('ds', "ds_write_b128 %s, %s" % (R(TX), RR(SH + 4, 4)), 'w1')],
             ["v_xor_b32 %s, 64, %s" % (R(TX), R(VTW)), ('ds', "ds_write_b128 %s, %s" % (R(TX), RR(SH + 8, 4)), 'w2')],
             ["v_xor_b32 %s, 96, %s" % (R(TX), R(VTW)), ('ds', "ds_write_b128 %s, %s" % (R(TX), RR(SH + 12, 4)), 'w3')],
             [],
             [('wait', 'w3')] + [('ds', "ds_read_b128 %s, %s offset:%d" % (RR(TRN + 4 * t, 4), R(VTR_), t * 1024), 'r%d' % t) for t in range(4)],
             [],
             ["s_mov_b32 s79, %s" % S(so)]]
        for t in range(4):
            g.append([('wait', 'r%d' % t), "buffer_store_dwordx4 %s, %s, %s, s79 offen sc1" % (RR(TRN + 4 * t, 4), R(VST), SR(sWS, 4)), "s_add_u32 s79, s79, %d" % (8 * 2048)])
        return g
    def oflag(a, sd):
        a("s_add_u32 %s, %s, %d" % (S(sd), S(sFLJ), WS_FLAGS + (FL_P3 if which == 3 else FL_P5)))
    gemm_loop(a, tag, (1 if DEDICATED else 2), VFL, VFV, T1, T2, in_flag, (2 if which == 3 else 7), src_addr, dma_items, toggle, mk_steps, NK, out_addr, shadow, epi_items, (0, 1), oflag, 0x10000, nst=4, sig_at=26, defer_epi=False, trc=((4, 5, [(sAUX, 0), (sAUX2, 0), (sW, 0)]) if which == 3 else (9, 10, [(sAUX, 0), (sAUX2, 0), (sW, 0)])))

def s4_role(a, init_target):
    a.comment("==== S4 role ====")
    lane, T1, T2, T3 = 0, 13, 14, 15
    AF, VD, VL16, VFL, VFV = 2, 10, 12, 1, 124
    AG, AU = 16, 32
    XF = [48 + 4 * i for i in range(4)]
    G, PKD = 64, 112
    def W(x, ks): return 256 + (0 if x == 'g' else 128) + 4 * ks
    if DEDICATED: sched_layer(a, sX0)
    else: sched_init(a, 2, 0, sX0)
    a("s_mov_b32 %s, %s" % (S(sAUX), S(sX1)))
    load_srd(a, sA, 'Wg'); load_srd(a, sB, 'Wu')
    signal_init(a, T1, T2)
    a("s_waitcnt lgkmcnt(0)")
    finish_srd(a, sA, 'Wg'); finish_srd(a, sB, 'Wu')
    if GATEB: gate_wait(a, T1, T2, GATEB)
    VROW, VTR = 20, 21
    setup_tr32(a, lane, VTR, T1, T2)
    a("v_lshrrev_b32 %s, 2, %s" % (R(T1), R(lane)))
    a("s_movk_i32 %s, 3584" % S(sT0))
    a("v_mul_lo_u32 %s, %s, %s" % (R(T1), S(sT0), R(T1)))
    a("v_and_b32 %s, 3, %s" % (R(T2), R(lane)))
    a("v_lshl_add_u32 %s, %s, 4, %s" % (R(VROW), R(T2), R(T1)))
    a("s_lshl_b32 %s, %s, 8" % (S(sX0), S(sAUX)))
    a("s_lshl_b32 %s, %s, 6" % (S(sT0), S(sW)))
    a("s_add_u32 %s, %s, %s" % (S(sX0), S(sX0), S(sT0)))
    frags = []
    for x, srd in (('g', sA), ('u', sB)):
        for ks in range(32):
            frags.append((srd, (lambda a_, d, ks=ks: a_("s_add_u32 %s, %s, %d" % (S(d), S(sX0), ks * 16 * 3584))), W(x, ks)))
    load_frags32(a, frags, VROW, VTR)
    setup_rowtile(a, lane, AF, VD, T1, T2, T3)
    a("v_lshlrev_b32 %s, 4, %s" % (R(VL16), R(lane)))
    a("v_mov_b32 %s, 0" % R(VFL))
    a("s_mov_b32 %s, 0x%x" % (S(sX3), f32(-1.4426950408889634)))
    wait_init(a, T1, T2, init_target)
    a("s_barrier")
    def in_flag(a, sd, sf): a("s_add_u32 %s, %s, %d" % (S(sd), S(sf), WS_FLAGS + FL_H2))
    def src_addr(a, sd, sl, ss): job_off2(a, sd, WS_H2, H2_L, H2_JOB, sl, ss)
    def dma_items(ssrc, sbuf): return rowtile_items(VD, ssrc, sbuf)
    def toggle(a):
        for j in range(8): a("v_xor_b32 %s, 0x8000, %s" % (R(AF + j), R(AF + j)))
    def rd(ks): return "ds_read_b128 %s, %s offset:%d" % (RR(XF[ks % 4], 4), R(AF + (ks & 7)), (ks >> 3) * 8192)
    def mk_steps(L):
        ids = {}
        for ks in range(3): ids[ks] = L.ds(rd(ks))
        steps = []
        for ks in range(32):
            x = XF[ks % 4]
            mfs = [S_mf32x(AG, W('g', ks), x, None if ks == 0 else AG), S_mf32x(AU, W('u', ks), x, None if ks == 0 else AU)]
            def pre(ks=ks):
                if ks + 3 < 32: ids[ks + 3] = L.ds(rd(ks + 3))
            steps.append(((lambda ks=ks: ids[ks]), mfs, pre))
        return steps
    SG, SU, WK_ = 64, 72, 80
    def out_addr(a, sd):
        job_off(a, sd, WS_ACT, ACT_L, ACT_JOB)
        a("s_lshl_b32 %s, %s, 13" % (S(sT4), S(sAUX)))
        a("s_add_u32 %s, %s, %s" % (S(sd), S(sd), S(sT4)))
        a("s_lshl_b32 %s, %s, 11" % (S(sT4), S(sW)))
        a("s_add_u32 %s, %s, %s" % (S(sd), S(sd), S(sT4)))
    def shadow(a):
        for r_ in range(8):
            a("v_cvt_pk_bf16_f32 %s, %s, %s" % (R(SG + r_), R(AG + 2 * r_), R(AG + 2 * r_ + 1)))
            a("v_cvt_pk_bf16_f32 %s, %s, %s" % (R(SU + r_), R(AU + 2 * r_), R(AU + 2 * r_ + 1)))
    def epi_items(so):
        ins = []
        for r_ in range(8):
            t = WK_ + (r_ % 2) * 8
            g0, g1, u0, u1, e0, e1, p = t, t + 1, t + 2, t + 3, t + 4, t + 5, t + 6
            ins += ["v_lshlrev_b32 %s, 16, %s" % (R(g0), R(SG + r_)),
                    "v_and_b32 %s, 0xffff0000, %s" % (R(g1), R(SG + r_)),
                    "v_mul_f32 %s, %s, %s" % (R(e0), S(sX3), R(g0)),
                    "v_mul_f32 %s, %s, %s" % (R(e1), S(sX3), R(g1)),
                    "v_exp_f32 %s, %s" % (R(e0), R(e0)),
                    "v_exp_f32 %s, %s" % (R(e1), R(e1)),
                    "v_lshlrev_b32 %s, 16, %s" % (R(u0), R(SU + r_)),
                    "v_and_b32 %s, 0xffff0000, %s" % (R(u1), R(SU + r_)),
                    "v_add_f32 %s, 1.0, %s" % (R(e0), R(e0)),
                    "v_add_f32 %s, 1.0, %s" % (R(e1), R(e1)),
                    "v_rcp_f32 %s, %s" % (R(e0), R(e0)),
                    "v_rcp_f32 %s, %s" % (R(e1), R(e1)),
                    "s_nop 0",
                    "v_mul_f32 %s, %s, %s" % (R(g0), R(g0), R(e0)),
                    "v_mul_f32 %s, %s, %s" % (R(g1), R(g1), R(e1)),
                    "v_cvt_pk_bf16_f32 %s, %s, %s" % (R(p), R(g0), R(g1)),
                    "v_lshlrev_b32 %s, 16, %s" % (R(g0), R(p)),
                    "v_and_b32 %s, 0xffff0000, %s" % (R(g1), R(p)),
                    "v_mul_f32 %s, %s, %s" % (R(g0), R(g0), R(u0)),
                    "v_mul_f32 %s, %s, %s" % (R(g1), R(g1), R(u1)),
                    "v_cvt_pk_bf16_f32 %s, %s, %s" % (R(PKD + r_), R(g0), R(g1))]
            if r_ in (3, 7):
                ins.append("buffer_store_dwordx4 %s, %s, %s, %s offen offset:%d sc1" % (RR(PKD + 4 * (r_ // 4), 4), R(VL16), SR(sWS, 4), S(so), (r_ // 4) * 1024))
        ins = [x for x in ins if x != "s_nop 0"]
        per = 3
        return [ins[k:k + per] for k in range(0, len(ins), per)]
    def oflag(a, sd):
        a("s_cmp_ge_u32 %s, 7" % S(sAUX))
        a("s_cselect_b32 %s, 128, 0" % S(sd))
        a("s_add_u32 %s, %s, %s" % (S(sd), S(sd), S(sFLJ)))
        a("s_add_u32 %s, %s, %d" % (S(sd), S(sd), WS_FLAGS + FL_A))
    gemm_loop(a, 's4', (1 if DEDICATED else 2), VFL, VFV, T1, T2, in_flag, 8, src_addr, dma_items, toggle, mk_steps, 64, out_addr, shadow, epi_items, (0, 1), oflag, 0x8000, nst=2, sig_at=26, defer_epi=False, trc=(7, 8, [(sAUX, 0), (sW, 0)]))
```

```python
from common import *
import struct

UB = 131072
KV_OFF = 0
MX_OFF = 16384
OX_OFF = MX_OFF + 5120
QI_OFF = 24576
TB_OFF = 29696
SEL_OFF = 30720
GATE = 24
IST = 40
PART_CU = 8192
PART_SLOT = 32 * PART_CU
MEM_SLOT = 8192
IDX, MXR, UL, QWQ, QWK, QR, OW, OR_, WLB, FLG, T0, T1, T2 = 0, 1, 5, 6, 7, 8, 9, 10, 11, 12, 13, 14, 15
MA = [16 + 4 * i for i in range(8)]
AQ = [48, 52]; AK = [56, 60]; AV = [64, 68]
KX = [72 + 4 * f for f in range(8)]
QF = [104 + 4 * k for k in range(4)]
VX = [120, 124]
KMF = [48 + 4 * k for k in range(4)]
def WQ(t, i): return 256 + (2 * i + t) * 8
def WK(t, i): return 256 + 128 + (2 * i + t) * 8
def WV(t, i): return 128 + (2 * i + t) * 8
def WO(nt, j): return 192 + (2 * nt + j) * 8
SX = [16, 20]; SM = 88; PX = 92; PM = 96; MXV, ZX, AL, RZ, TA, TB_ = 98, 99, 100, 101, 102, 103
OXA = [104, 108]; OMA = [112, 116]; OC = 92; OA = [120, 124]
WA = [16 + 4 * n for n in range(8)]
TBL = 104
SEL = 108
RD = 48
RS = 56
PK = 112
sL, sH, sSTEP, sCHB = 32, 33, 34, 35
sMEMRD, sMEMST, sPARTST, sPARTLD = 36, 37, 38, 39
sKVSRC, sKMJOB, sFLKV, sFLKM = 40, 41, 42, 43
sRDY, sSLOT = 44, 45
sT0, sT1, sT2, sT3 = 46, 47, 48, 49
sCEXP, sKVLDS = 50, 51
sM2, sEX = 52, 56
sMEMPZ, sPARTPZ = 54, 55
sTK = 58
sFLKMN = 59
sKVDUM = 66
sO8 = 68
sW0 = 64
sMEMRD0, sMEMST0, sPARTST0, sPARTLD0 = 60, 61, 62, 63

def smf(a, d, aa, b):
    a("v_smfmac_f32_16x16x64_bf16 %s, %s, %s, %s" % (RR(d, 4), RR(aa, 4), RR(b, 8), R(IDX)))
def S_smf(d, aa, b):
    return "v_smfmac_f32_16x16x64_bf16 %s, %s, %s, %s" % (RR(d, 4), RR(aa, 4), RR(b, 8), R(IDX))
def S_mf32(d, aa, b, c=None):
    return "v_mfma_f32_16x16x32_bf16 %s, %s, %s, %s" % (RR(d, 4), RR(aa, 4), RR(b, 4), '0' if c is None else RR(c, 4))
def mf32(a, d, aa, b, c=None): a(S_mf32(d, aa, b, c))
def mf16(a, d, aa, b, c=None):
    a("v_mfma_f32_16x16x16_bf16 %s, %s, %s, %s" % (RR(d, 4), RR(aa, 2), RR(b, 2), '0' if c is None else RR(c, 4)))

def weave(a, mf, fill):
    for i, m in enumerate(mf):
        a(m)
        if i < len(fill):
            for f in fill[i]: a(f)
    for rest in fill[len(mf):]:
        for f in rest: a(f)

def chain_pre(a):
    a.comment("==== chain pre ====")
    a("s_mov_b32 %s, %s" % (S(sL), S(sXCC)))
    a("s_mov_b32 %s, %s" % (S(sH), S(sTICK)))
    load_srd(a, sA, 'Wq'); load_srd(a, sB, 'Wk'); load_srd(a, sC, 'Wv'); load_srd(a, sD, 'Wo')
    a("s_load_dwordx2 s[68:69], s[0:1], %d" % KA['mem0'])
    lane = T0
    a("v_mov_b32 %s, v0" % R(lane))
    a("s_waitcnt lgkmcnt(0)")
    for r_, n in ((sA, 'Wq'), (sB, 'Wk'), (sC, 'Wv'), (sD, 'Wo')): finish_srd(a, r_, n)
    a("s_mov_b32 s70, %d" % SIZES['mem0']); a("s_mov_b32 s71, 0x%x" % SRD3)
    a("v_bfe_u32 %s, %s, 2, 1" % (R(T1), R(lane)))
    a("v_lshlrev_b32 %s, 10, %s" % (R(T1), R(T1)))
    a("v_bfe_u32 %s, %s, 4, 1" % (R(T2), R(lane)))
    a("v_lshl_add_u32 %s, %s, 6, %s" % (R(T1), R(T2), R(T1)))
    a("v_and_b32 %s, 3, %s" % (R(T2), R(lane)))
    a("v_lshl_add_u32 %s, %s, 1, %s" % (R(T1), R(T2), R(T1)))
    a("s_and_b32 %s, %s, 3" % (S(sT0), S(sH)))
    a("s_lshl_b32 %s, %s, 11" % (S(sT0), S(sT0)))
    a("s_lshr_b32 %s, %s, 2" % (S(sT1), S(sH)))
    a("s_lshl_b32 %s, %s, 7" % (S(sT1), S(sT1)))
    a("s_add_u32 %s, %s, %s" % (S(sT0), S(sT0), S(sT1)))
    a("s_lshl_b32 %s, %s, 3" % (S(sT1), S(sW)))
    a("s_add_u32 %s, %s, %s" % (S(sT0), S(sT0), S(sT1)))
    a("buffer_load_ushort %s, %s, s[68:71], %s offen" % (R(124), R(T1), S(sT0)))
    a("buffer_load_ushort %s, %s, s[68:71], %s offen offset:32" % (R(125), R(T1), S(sT0)))

def chain_setup(a):
    a.comment("==== chain setup ====")
    lane = T0
    a("v_lshlrev_b32 %s, 4, %s" % (R(UL), R(lane)))
    a("v_add_u32 %s, 0x%x, %s" % (R(UL), UB, R(UL)))
    a("v_and_b32 %s, 2, %s" % (R(T1), R(lane)))
    a("v_cmp_eq_u32 vcc, 0, %s" % R(T1))
    a("v_mov_b32 %s, 0xeeee" % R(T2))
    a("v_mov_b32 %s, 0x4444" % R(IDX))
    a("v_cndmask_b32 %s, %s, %s, vcc" % (R(IDX), R(T2), R(IDX)))
    for k in range(4):
        a("s_add_u32 %s, %s, %d" % (S(sT0), S(sW), k))
        a("s_and_b32 %s, %s, 3" % (S(sT0), S(sT0)))
        a("s_lshl_b32 %s, %s, 11" % (S(sT0), S(sT0)))
        a("v_add_u32 %s, %s, %s" % (R(MXR + k), S(sT0), R(UL)))
    a("v_and_b32 %s, 15, %s" % (R(T1), R(lane)))
    a("s_lshl_b32 %s, %s, 5" % (S(sT0), S(sW)))
    a("v_add_u32 %s, %s, %s" % (R(T1), S(sT0), R(T1)))
    a("v_mul_u32_u24 %s, %d, %s" % (R(T1), IST, R(T1)))
    a("v_lshrrev_b32 %s, 4, %s" % (R(T2), R(lane)))
    a("v_lshl_add_u32 %s, %s, 2, %s" % (R(QWQ), R(T2), R(T1)))
    a("v_add_u32 %s, 0x%x, %s" % (R(QWQ), UB + QI_OFF, R(QWQ)))
    a("v_lshl_add_u32 %s, %s, 3, %s" % (R(QWK), R(T2), R(T1)))
    a("v_add_u32 %s, 0x%x, %s" % (R(QWK), UB + MX_OFF, R(QWK)))
    a("v_lshrrev_b32 %s, 5, %s" % (R(T1), R(lane)))
    a("v_lshlrev_b32 %s, 4, %s" % (R(T1), R(T1)))
    a("v_bfe_u32 %s, %s, 4, 1" % (R(T2), R(lane)))
    a("v_lshl_add_u32 %s, %s, 2, %s" % (R(T1), R(T2), R(T1)))
    a("v_bfe_u32 %s, %s, 2, 2" % (R(T2), R(lane)))
    a("v_add_u32 %s, %s, %s" % (R(T1), R(T1), R(T2)))
    a("v_mul_u32_u24 %s, %d, %s" % (R(QR), IST, R(T1)))
    a("v_and_b32 %s, 3, %s" % (R(T2), R(lane)))
    a("v_lshl_add_u32 %s, %s, 3, %s" % (R(QR), R(T2), R(QR)))
    a("v_add_u32 %s, 0x%x, %s" % (R(QR), UB, R(QR)))
    a("v_and_b32 %s, 15, %s" % (R(T1), R(lane)))
    a("v_lshrrev_b32 %s, 4, %s" % (R(T2), R(lane)))
    a("s_lshl_b32 %s, %s, 2" % (S(sT0), S(sW)))
    a("v_add_u32 %s, %s, %s" % (R(T2), S(sT0), R(T2)))
    a("v_and_b32 %s, 7, %s" % (R(OW), R(lane)))
    a("v_xor_b32 %s, %s, %s" % (R(T2), R(T2), R(OW)))
    a("v_lshlrev_b32 %s, 4, %s" % (R(T2), R(T2)))
    a("v_and_b32 %s, 7, %s" % (R(T1), R(T1)))
    a("v_lshl_add_u32 %s, %s, 8, %s" % (R(OW), R(T1), R(T2)))
    a("v_add_u32 %s, 0x%x, %s" % (R(OW), UB, R(OW)))
    a("v_bfe_u32 %s, %s, 2, 2" % (R(T1), R(lane)))
    a("v_lshlrev_b32 %s, 1, %s" % (R(T1), R(T1)))
    a("v_and_b32 %s, 1, %s" % (R(T2), R(lane)))
    a("v_add_u32 %s, %s, %s" % (R(T1), R(T1), R(T2)))
    a("v_bfe_u32 %s, %s, 1, 1" % (R(T2), R(lane)))
    a("v_lshlrev_b32 %s, 2, %s" % (R(T2), R(T2)))
    a("v_lshrrev_b32 %s, 4, %s" % (R(OR_), R(lane)))
    a("v_add_u32 %s, %s, %s" % (R(T2), R(T2), R(OR_)))
    a("v_xor_b32 %s, %s, %s" % (R(T2), R(T2), R(T1)))
    a("v_lshlrev_b32 %s, 4, %s" % (R(T2), R(T2)))
    a("v_lshl_add_u32 %s, %s, 8, %s" % (R(OR_), R(T1), R(T2)))
    a("v_add_u32 %s, 0x%x, %s" % (R(OR_), UB, R(OR_)))
    a("v_lshlrev_b32 %s, 4, %s" % (R(WLB), R(lane)))
    a("s_lshl_b32 %s, %s, 15" % (S(sT0), S(sW)))
    a("v_add_u32 %s, %s, %s" % (R(WLB), S(sT0), R(WLB)))
    P, Q_, M2, Fo = TBL, TBL + 1, TBL + 2, TBL + 3
    a("v_mov_b32 %s, 0" % R(P))
    a("v_lshrrev_b32 %s, 2, %s" % (R(T1), R(lane)))
    a("v_lshlrev_b32 %s, 13, %s" % (R(Q_), R(T1)))
    a("v_and_b32 %s, 3, %s" % (R(T2), R(lane)))
    a("v_lshl_add_u32 %s, %s, 4, %s" % (R(Q_), R(T2), R(Q_)))
    a("v_lshlrev_b32 %s, 2, %s" % (R(M2), R(T2)))
    a("v_bfe_u32 %s, %s, 2, 1" % (R(T1), R(lane)))
    a("v_lshl_add_u32 %s, %s, 4, %s" % (R(M2), R(T1), R(M2)))
    a("v_bfe_u32 %s, %s, 4, 1" % (R(T1), R(lane)))
    a("v_lshl_add_u32 %s, %s, 5, %s" % (R(M2), R(T1), R(M2)))
    a("v_mov_b32 %s, 0" % R(Fo))
    a("ds_write_b128 %s, %s offset:%d" % (R(UL), RR(TBL, 4), TB_OFF))
    a("v_and_b32 %s, 15, %s" % (R(T1), R(lane)))
    for d in range(4):
        a("v_cmp_eq_u32 vcc, %d, %s" % (2 * d, R(T1)))
        a("v_mov_b32 %s, 0x3f80" % R(T2))
        a("v_cndmask_b32 %s, 0, %s, vcc" % (R(SEL + d), R(T2)))
        a("v_cmp_eq_u32 vcc, %d, %s" % (2 * d + 1, R(T1)))
        a("v_mov_b32 %s, 0x3f800000" % R(T2))
        a("v_cndmask_b32 %s, %s, %s, vcc" % (R(SEL + d), R(SEL + d), R(T2)))
    a("ds_write_b128 %s, %s offset:%d" % (R(UL), RR(SEL, 4), SEL_OFF))
    a("s_waitcnt lgkmcnt(0)")
    a("s_mul_i32 %s, %s, %d" % (S(sCHB), S(sL), CH_STRIDE))
    a("s_add_u32 %s, %s, %d" % (S(sCHB), S(sCHB), WS_CH))
    cexp = struct.unpack('<I', struct.pack('<f', (128 ** -0.5) * 1.4426950408889634))[0]
    a("s_mov_b32 %s, 0x%x" % (S(sCEXP), cexp))
    a("s_mov_b32 %s, 0xf0f0f0f0\ns_mov_b32 %s, 0xf0f0f0f0" % (S(sM2), S(sM2 + 1)))
    a("s_mov_b32 %s, 0x00ff00ff\ns_mov_b32 %s, 0" % (S(sEX), S(sEX + 1)))
    a("s_add_u32 %s, %s, %d" % (S(sT0), S(sCHB), CH_MEM))
    a("s_lshl_b32 %s, %s, 11" % (S(sT1), S(sW)))
    a("s_add_u32 %s, %s, %s" % (S(sMEMRD0), S(sT0), S(sT1)))
    a("s_sub_u32 %s, %s, %d" % (S(sMEMRD0), S(sMEMRD0), UB))
    a("s_lshr_b32 %s, %s, 2" % (S(sT1), S(sH)))
    a("s_lshl_b32 %s, %s, 10" % (S(sT1), S(sT1)))
    a("s_add_u32 %s, %s, %s" % (S(sMEMST0), S(sT0), S(sT1)))
    a("s_lshl_b32 %s, %s, 8" % (S(sT1), S(sW)))
    a("s_add_u32 %s, %s, %s" % (S(sMEMST0), S(sMEMST0), S(sT1)))
    a("s_and_b32 %s, %s, 3" % (S(sT1), S(sH)))
    a("s_lshl_b32 %s, %s, 6" % (S(sT1), S(sT1)))
    a("s_add_u32 %s, %s, %s" % (S(sMEMST0), S(sMEMST0), S(sT1)))
    a("s_lshl_b32 %s, %s, 13" % (S(sT1), S(sH)))
    a("s_add_u32 %s, %s, %s" % (S(sPARTST0), S(sCHB), S(sT1)))
    a("s_lshl_b32 %s, %s, 11" % (S(sT1), S(sW)))
    a("s_add_u32 %s, %s, %s" % (S(sPARTST0), S(sPARTST0), S(sT1)))
    a("s_sub_u32 %s, %s, %d" % (S(sPARTST0), S(sPARTST0), UB))
    a("s_lshl_b32 %s, %s, 8" % (S(sT1), S(sH)))
    a("s_add_u32 %s, %s, %s" % (S(sPARTLD0), S(sCHB), S(sT1)))
    a("s_lshl_b32 %s, %s, 6" % (S(sT1), S(sW)))
    a("s_add_u32 %s, %s, %s" % (S(sPARTLD0), S(sPARTLD0), S(sT1)))
    a("s_mul_i32 %s, %s, %d" % (S(sKVSRC), S(sL), QKV_L))
    a("s_mul_i32 %s, %s, %d" % (S(sT1), S(sH), 24 * KB))
    a("s_add_u32 %s, %s, %s" % (S(sKVSRC), S(sKVSRC), S(sT1)))
    a("s_lshl_b32 %s, %s, 11" % (S(sT1), S(sW)))
    a("s_add_u32 %s, %s, %s" % (S(sKVSRC), S(sKVSRC), S(sT1)))
    a("s_add_u32 %s, %s, %d" % (S(sKVSRC), S(sKVSRC), WS_QKV + 8 * KB - UB))
    a("s_add_u32 %s, %s, %d" % (S(sKVLDS), S(sT1), UB + KV_OFF))
    a("s_mul_i32 %s, %s, %d" % (S(sKMJOB), S(sL), KM_L))
    a("s_lshl_b32 %s, %s, 13" % (S(sT1), S(sH)))
    a("s_add_u32 %s, %s, %s" % (S(sKMJOB), S(sKMJOB), S(sT1)))
    a("s_lshl_b32 %s, %s, 10" % (S(sT1), S(sW)))
    a("s_add_u32 %s, %s, %s" % (S(sKMJOB), S(sKMJOB), S(sT1)))
    a("s_add_u32 %s, %s, %d" % (S(sKMJOB), S(sKMJOB), WS_KM - UB))
    a("s_mul_i32 %s, %s, %d" % (S(sT0), S(sL), NSEG * JOBFLAG_BYTES))
    a("s_lshl_b32 %s, %s, 7" % (S(sT1), S(sH)))
    a("s_add_u32 %s, %s, %s" % (S(sT0), S(sT0), S(sT1)))
    a("s_add_u32 %s, %s, %d" % (S(sFLKV), S(sT0), WS_FLAGS + FL_KV))
    a("s_add_u32 %s, %s, %d" % (S(sFLKMN), S(sT0), WS_FLAGS + FL_KM))
    a("s_add_u32 %s, %s, %d" % (S(sFLKM), S(sCHB), CH_MEM + 4 * MEM_SLOT))
    a("s_sub_u32 %s, %s, %d" % (S(sKVDUM), S(sCHB), UB))
    a("s_cmp_eq_u32 %s, 0" % S(sW))
    a("s_cselect_b32 %s, 1, 0" % S(sW0))
    a("s_mov_b32 %s, 0" % S(sW0 + 1))
    for i in range(4): a("v_mov_b32 %s, -1" % R(KX[0] + i))
    for sl in range(2):
        a("s_add_u32 %s, %s, %d" % (S(sT0), S(sPARTST0), sl * PART_SLOT))
        for p in range(2):
            a("buffer_store_dwordx4 %s, %s, %s, %s offen offset:%d" % (RR(KX[0], 4), R(UL), SR(sWS, 4), S(sT0), p * 1024))
    a("s_waitcnt vmcnt(36)")
    a("v_lshl_or_b32 %s, %s, 16, %s" % (R(T2), R(125), R(124)))
    a("s_add_u32 %s, %s, %d" % (S(sT0), S(sMEMST0), MEM_SLOT))
    a("s_mov_b64 exec, %s" % SR(sEX, 2))
    a("buffer_store_dword %s, %s, %s, %s offen" % (R(T2), R(TBL + 2), SR(sWS, 4), S(sMEMST0)))
    a("buffer_store_dword %s, %s, %s, %s offen" % (R(KX[0]), R(TBL + 2), SR(sWS, 4), S(sT0)))
    a("s_mov_b64 exec, -1")

def chain_load_weights(a, mid=None):
    a.comment("==== chain weight load ====")
    VQ, VO, TR0, TR1 = 16, 17, 18, 19
    lane = T0
    a("v_and_b32 %s, 3, %s" % (R(T2), R(lane)))
    a("v_bfe_u32 v20, %s, 5, 1" % R(lane))
    a("v_lshlrev_b32 v20, 1, v20")
    a("v_xor_b32 %s, %s, v20" % (R(T2), R(T2)))
    a("v_lshlrev_b32 %s, 4, %s" % (R(T2), R(T2)))
    a("v_bfe_u32 v20, %s, 3, 1" % R(lane))
    a("v_lshlrev_b32 v20, 5, v20")
    a("v_bfe_u32 v21, %s, 2, 1" % R(lane))
    a("v_lshl_add_u32 v20, v21, 4, v20")
    a("v_bfe_u32 v21, %s, 4, 2" % R(lane))
    a("v_add_u32 v20, v20, v21")
    a("v_lshl_add_u32 %s, v20, 13, %s" % (R(VQ), R(T2)))
    a("v_bfe_u32 v20, %s, 3, 1" % R(lane))
    a("v_lshlrev_b32 v20, 5, v20")
    a("v_bfe_u32 v21, %s, 5, 1" % R(lane))
    a("v_lshl_add_u32 v20, v21, 4, v20")
    a("v_bfe_u32 v21, %s, 4, 1" % R(lane))
    a("v_lshl_add_u32 v20, v21, 1, v20")
    a("v_bfe_u32 v21, %s, 2, 1" % R(lane))
    a("v_add_u32 v20, v20, v21")
    a("v_lshl_add_u32 %s, v20, 10, %s" % (R(VO), R(T2)))
    a("v_lshrrev_b32 v20, 4, %s" % R(lane))
    a("v_lshlrev_b32 v21, 3, v20")
    a("v_bfe_u32 v22, %s, 2, 2" % R(lane))
    a("v_add_u32 v21, v21, v22")
    a("v_lshlrev_b32 v21, 6, v21")
    a("v_and_b32 v22, 3, %s" % R(lane))
    a("v_lshl_add_u32 v21, v22, 3, v21")
    a("s_lshl_b32 %s, %s, 15" % (S(sT0), S(sW)))
    a("v_add_u32 v21, %s, v21" % S(sT0))
    a("v_and_b32 v20, 1, v20")
    a("v_lshl_add_u32 %s, v20, 5, v21" % R(TR0))
    a("v_xor_b32 %s, 32, %s" % (R(TR1), R(TR0)))
    chunks = []
    for i in range(8): chunks.append(('q', i))
    for i in range(8): chunks.append(('k', i))
    for i in range(4): chunks.append(('v', i))
    for ntp in range(2):
        for j in range(2): chunks.append(('o', (ntp, j)))
    for i in range(4, 8): chunks.append(('v', i))
    for ntp in range(2, 4):
        for j in range(2): chunks.append(('o', (ntp, j)))
    sCOLQ, sCOLO, sLDSW = 72, 73, 74
    a("s_lshl_b32 %s, %s, 8" % (S(sCOLQ), S(sH)))
    a("s_lshl_b32 %s, %s, 6" % (S(sT0), S(sW)))
    a("s_add_u32 %s, %s, %s" % (S(sCOLQ), S(sCOLQ), S(sT0)))
    a("s_lshl_b32 %s, %s, 17" % (S(sCOLO), S(sH)))
    a("s_lshl_b32 %s, %s, 8" % (S(sT0), S(sW)))
    a("s_add_u32 %s, %s, %s" % (S(sCOLO), S(sCOLO), S(sT0)))
    a("s_lshl_b32 %s, %s, 15" % (S(sLDSW), S(sW)))
    sK = sTK
    def issue(c):
        kind, arg = chunks[c]
        slot = c % 8
        if kind in 'qkv':
            i = arg
            a("s_add_u32 s%d, %s, %d" % (sK, S(sW), i >> 1))
            a("s_and_b32 s%d, s%d, 3" % (sK, sK))
            a("s_lshl_b32 s%d, s%d, 1" % (sK, sK))
            if i & 1: a("s_add_u32 s%d, s%d, 1" % (sK, sK))
            a("s_lshl_b32 s%d, s%d, 19" % (sK, sK))
            a("s_add_u32 s%d, s%d, %s" % (sK, sK, S(sCOLQ)))
            srd = {'q': sA, 'k': sB, 'v': sC}[kind]
            vo, rowstep = VQ, 4 * 8192
        else:
            ntp, j = arg
            a("s_add_u32 s%d, %s, %d" % (sK, S(sCOLO), j * 64 * 1024 + ntp * 64))
            srd = sD; vo, rowstep = VO, 4 * 1024
        for u in range(4):
            a("s_add_u32 m0, %s, %d" % (S(sLDSW), slot * 4096 + u * 1024))
            a("buffer_load_dwordx4 %s, %s, s%d offen lds" % (R(vo), SR(srd, 4), sK))
            if u < 3: a("s_add_u32 s%d, s%d, %d" % (sK, sK, rowstep))
    def dest(c, t):
        kind, arg = chunks[c]
        if c >= 24: return 32 + 8 * t
        if kind == 'q': return WQ(t, arg)
        if kind == 'k': return WK(t, arg)
        if kind == 'v': return WV(t, arg)
        ntp, j = arg
        return WO(2 * ntp + t, j)
    for c in range(8): issue(c)
    if mid: mid(a)
    n = len(chunks)
    for c in range(n):
        inflight = min(c + 8, n) - c - 1
        a("s_waitcnt vmcnt(%d)" % (inflight * 4))
        slot = c % 8
        for t in range(2):
            d = dest(c, t)
            base = TR0 if t == 0 else TR1
            for k, off in enumerate((0, 256, 2048, 2304)):
                a("ds_read_b64_tr_b16 %s, %s offset:%d" % (RR(d + 2 * k, 2), R(base), slot * 4096 + off))
        a("s_waitcnt lgkmcnt(0)")
        if c >= 24:
            for t in range(2):
                d = dest(c, t)
                a("ds_write_b128 %s, %s offset:%d" % (R(WLB), RR(d, 4), slot * 4096 + t * 2048))
                a("ds_write_b128 %s, %s offset:%d" % (R(WLB), RR(d + 4, 4), slot * 4096 + t * 2048 + 1024))
            a("s_waitcnt lgkmcnt(0)")
        if c + 8 < n: issue(c + 8)

def wv_lds(i, t): return (i - 4) * 4096 + t * 2048
def wo_lds(nt, j): return (4 + 2 * ((nt >> 1) - 2) + j) * 4096 + (nt & 1) * 2048
def S_rdfrag(dst, off):
    return ["ds_read_b128 %s, %s offset:%d" % (RR(dst, 4), R(WLB), off), "ds_read_b128 %s, %s offset:%d" % (RR(dst + 4, 4), R(WLB), off + 1024)]
def rdfrag(a, dst, off):
    for t in S_rdfrag(dst, off): a(t)

def S_kv_dma(src=None):
    src = sKVSRC if src is None else src
    return ["s_mov_b32 m0, %s" % S(sKVLDS),
            "s_add_u32 %s, %s, 8192" % (S(sT1), S(src)),
            "buffer_load_dwordx4 %s, %s, %s offen sc1 lds" % (R(UL), SR(sWS, 4), S(src)),
            "buffer_load_dwordx4 %s, %s, %s offen offset:1024 sc1 lds" % (R(UL), SR(sWS, 4), S(src)),
            "s_add_u32 m0, %s, 8192" % S(sKVLDS),
            "s_nop 0",
            "buffer_load_dwordx4 %s, %s, %s offen sc1 lds" % (R(UL), SR(sWS, 4), S(sT1)),
            "buffer_load_dwordx4 %s, %s, %s offen offset:1024 sc1 lds" % (R(UL), SR(sWS, 4), S(sT1))]

STAMPS = None
def tstamp(a, k, on):
    if on == 2 and STAMPS is None:
        a("s_memtime s[%d:%d]" % (72 + 2 * k, 73 + 2 * k))
def tp(a, name, on):
    if on == 2 and STAMPS is not None and name in STAMPS:
        k = STAMPS.index(name)
        a("s_memtime s[%d:%d]" % (72 + 2 * k, 73 + 2 * k))

def poison_check(a, regs, Lretry, Lgiveup):
    a("v_max3_u32 %s, %s, %s, %s" % (R(T0), R(regs[0]), R(regs[1]), R(regs[2])))
    a("v_max3_u32 %s, %s, %s, %s" % (R(T1), R(regs[3]), R(regs[4]), R(regs[5])))
    a("v_max3_u32 %s, %s, %s, %s" % (R(T0), R(T0), R(regs[6]), R(regs[7])))
    a("v_max_u32 %s, %s, %s" % (R(T0), R(T0), R(T1)))
    a("v_cmp_eq_u32 vcc, -1, %s" % R(T0))
    a("s_cbranch_vccnz %s" % Lretry)

def retry_stub(a, Lretry, Lloop, Ldone):
    a.label(Lretry)
    a("s_add_u32 %s, %s, 1" % (S(sTMO), S(sTMO)))
    a("s_cmp_gt_u32 %s, %d" % (S(sTMO), TIMEOUT))
    a("s_cbranch_scc0 %s" % Lloop)
    a("s_branch %s" % Ldone)

def kv_reads():
    r = [("ds_read_b128 %s, %s offset:%d" % (RR(KX[f], 4), R(UL), KV_OFF + f * 1024)) for f in range(8)]
    r += ["ds_read_b128 %s, %s offset:%d" % (RR(VX[0], 4), R(MXR), KV_OFF + 8192), "ds_read_b128 %s, %s offset:%d" % (RR(VX[1], 4), R(MXR), KV_OFF + 8192 + 1024)]
    return r

def chain_loop(a, timing=0, opt=None):
    opt = opt or {}
    global STAMPS
    STAMPS = opt.get('stamps')
    stubs = []
    F = {(4, 0): 72, (4, 1): 80, (5, 0): 88, (5, 1): 96, (6, 0): 112, (6, 1): 120, (7, 0): 16, (7, 1): 104}
    SX = [16, 20]; SM = 24; PX = 28; PM = 32; MXV, ZX = 34, 35; OC = 36; PUB = 40; TA, RZ = 44, 45
    OACC = [104, 108]; OA = [120, 124]
    WOB = {(4, 0): 72, (4, 1): 80, (5, 0): 88, (5, 1): 96, (6, 0): 48, (6, 1): 56, (7, 0): 112, (7, 1): 64}
    PK = 72; RD = 80; RS = 88; POI = 44
    def vpref(i, t): return S_rdfrag(F[(i, t)], wv_lds(i, t))
    a("s_mov_b32 %s, 0x00ff00ff\ns_mov_b32 %s, 0x00ff00ff" % (S(sO8), S(sO8 + 1)))
    a("s_mov_b32 %s, 0" % S(sSTEP))
    a("s_mov_b32 %s, 0" % S(sSLOT))
    a("s_mov_b32 %s, %s" % (S(sMEMRD), S(sMEMRD0)))
    a("s_add_u32 %s, %s, %d" % (S(sMEMST), S(sMEMST0), MEM_SLOT))
    a("s_mov_b32 %s, %s" % (S(sPARTST), S(sPARTST0)))
    a("s_mov_b32 %s, %s" % (S(sPARTLD), S(sPARTLD0)))
    a("ds_read_b128 %s, %s offset:%d" % (RR(TBL, 4), R(UL), TB_OFF))
    a("s_waitcnt lgkmcnt(0)")
    poll(a, T1, TBL + 3, S(sFLKV))
    for t in S_kv_dma(): a(t)
    a("s_add_u32 %s, %s, %d" % (S(sKVSRC), S(sKVSRC), QKV_JOB))
    a("s_add_u32 %s, %s, %d" % (S(sFLKV), S(sFLKV), JOBFLAG_BYTES))
    a("buffer_load_dword %s, %s, %s, %s offen sc1" % (R(FLG), R(TBL + 3), SR(sWS, 4), S(sFLKV)))
    for r_ in range(48, 72, 2): a("v_mov_b64 %s, 0" % RR(r_, 2))
    for i in (4, 5, 6):
        for t in range(2):
            for x in vpref(i, t): a(x)
    if opt.get('dry'):
        import re as _re
        drop = opt.get('drop', [])
        def filt(line):
            if line.startswith('buffer_'): return None
            if line.startswith('v_cmp_eq_u32 vcc, -1'): return 's_mov_b64 vcc, 0'
            for pat in drop:
                if _re.search(pat, line): return None
            return line
        a.filt = filt
    a.label("L_step")
    Lp = a.newlabel('mpoll'); Ld = a.newlabel('mpolld'); Lr = a.newlabel('mretry')
    a.label(Lp)
    a("buffer_load_dwordx4 %s, %s, %s, %s offen sc1" % (RR(MA[0], 4), R(UL), SR(sWS, 4), S(sMEMRD)))
    a("buffer_load_dwordx4 %s, %s, %s, %s offen offset:1024 sc1" % (RR(MA[1], 4), R(UL), SR(sWS, 4), S(sMEMRD)))
    a("s_waitcnt vmcnt(0)")
    poison_check(a, list(range(MA[0], MA[0] + 8)), Lr, Ld)
    stubs.append((Lr, Lp, Ld))
    a.label(Ld)
    tstamp(a, 0, timing); tp(a, 'top', timing)
    trace(a, 2, sL, sSTEP, [(sH, 0), (sW, 0)], T0, T1, sT0)
    a("ds_write_b128 %s, %s offset:%d" % (R(MXR), RR(MA[0], 4), MX_OFF))
    a("ds_write_b128 %s, %s offset:%d" % (R(MXR), RR(MA[1], 4), MX_OFF + 1024))
    weave(a, [S_smf(AQ[0], MA[0], WQ(0, 0)), S_smf(AQ[1], MA[0], WQ(1, 0)), S_smf(AK[0], MA[0], WK(0, 0)),
              S_smf(AK[1], MA[0], WK(1, 0)), S_smf(AQ[0], MA[1], WQ(0, 1)), S_smf(AQ[1], MA[1], WQ(1, 1))],
          [["v_cmp_ne_u32 vcc, 0, %s" % R(FLG)],
           ["v_mov_b32 %s, 1" % R(T0)],
           ["s_cmp_eq_u64 vcc, -1"],
           ["s_cselect_b32 %s, 1, 0" % S(sRDY)],
           ["s_add_u32 %s, %s, %d" % (S(sT2), S(sFLKV), JOBFLAG_BYTES)],
           []])
    a("s_waitcnt lgkmcnt(0)")
    a("s_barrier")
    mr = ["ds_read_b128 %s, %s offset:%d" % (RR(MA[i], 4), R(MXR + (i >> 1)), MX_OFF + (i & 1) * 1024) for i in range(2, 8)]
    a(mr[0]); a(mr[1])
    weave(a, [S_smf(AK[0], MA[1], WK(0, 1)), S_smf(AK[1], MA[1], WK(1, 1)), S_smf(AV[0], MA[0], WV(0, 0)),
              S_smf(AV[1], MA[0], WV(1, 0)), S_smf(AV[0], MA[1], WV(0, 1)), S_smf(AV[1], MA[1], WV(1, 1))],
          [[mr[2]], [mr[3]], [mr[4]], [mr[5]],
           ["buffer_load_dword %s, %s, %s, %s offen sc1" % (R(FLG), R(TBL + 3), SR(sWS, 4), S(sT2))],
           ["s_mov_b64 exec, %s" % SR(sW0, 2), "buffer_store_dword %s, %s, %s, %s offen sc1" % (R(T0), R(TBL + 3), SR(sWS, 4), S(sFLKM)), "s_mov_b64 exec, -1",
            "s_mov_b32 %s, %s" % (S(sFLKM), S(sFLKMN)), "s_add_u32 %s, %s, %d" % (S(sFLKMN), S(sFLKMN), JOBFLAG_BYTES)]])
    v70, v71 = vpref(7, 0), vpref(7, 1)
    kr = [("ds_read_b128 %s, %s offset:%d" % (RR(KX[f], 4), R(UL), KV_OFF + f * 1024)) for f in range(8)]
    vr = ["ds_read_b128 %s, %s offset:%d" % (RR(VX[0], 4), R(MXR), KV_OFF + 8192), "ds_read_b128 %s, %s offset:%d" % (RR(VX[1], 4), R(MXR), KV_OFF + 8192 + 1024)]
    a("s_waitcnt lgkmcnt(5)")
    smf(a, AQ[0], MA[2], WQ(0, 2)); smf(a, AQ[1], MA[2], WQ(1, 2))
    a("s_waitcnt lgkmcnt(4)")
    smf(a, AQ[0], MA[3], WQ(0, 3)); smf(a, AQ[1], MA[3], WQ(1, 3))
    a("s_waitcnt lgkmcnt(3)")
    smf(a, AQ[0], MA[4], WQ(0, 4)); smf(a, AQ[1], MA[4], WQ(1, 4))
    smf(a, AV[0], MA[4], F[(4, 0)]); smf(a, AV[1], MA[4], F[(4, 1)])
    a("s_waitcnt lgkmcnt(2)")
    weave(a, [S_smf(AQ[0], MA[5], WQ(0, 5)), S_smf(AQ[1], MA[5], WQ(1, 5)), S_smf(AV[0], MA[5], F[(5, 0)]), S_smf(AV[1], MA[5], F[(5, 1)])],
          [[v70[0]], [v70[1]], [v71[0]], [v71[1], "s_waitcnt lgkmcnt(4)"]])
    weave(a, [S_smf(AQ[0], MA[6], WQ(0, 6)), S_smf(AQ[1], MA[6], WQ(1, 6)), S_smf(AQ[0], MA[7], WQ(0, 7)), S_smf(AQ[1], MA[7], WQ(1, 7))],
          [[kr[0]], [kr[1]], [kr[2]], [kr[3]]])
    tstamp(a, 1, timing)
    qpost = ["v_add_f32 %s, %s, %s" % (R(AQ[0]), R(AQ[0]), R(AQ[0] + 2)),
             "v_add_f32 %s, %s, %s" % (R(AQ[0] + 1), R(AQ[0] + 1), R(AQ[0] + 3)),
             "v_add_f32 %s, %s, %s" % (R(AQ[1]), R(AQ[1]), R(AQ[1] + 2)),
             "v_add_f32 %s, %s, %s" % (R(AQ[1] + 1), R(AQ[1] + 1), R(AQ[1] + 3)),
             "v_cvt_pk_bf16_f32 %s, %s, %s" % (R(AQ[0]), R(AQ[0]), R(AQ[0] + 1)),
             "v_cvt_pk_bf16_f32 %s, %s, %s" % (R(AQ[1]), R(AQ[1]), R(AQ[1] + 1)),
             "ds_write2_b32 %s, %s, %s offset0:0 offset1:%d" % (R(QWQ), R(AQ[0]), R(AQ[1]), 16 * IST // 4)]
    km = []
    for i in range(2, 8): km += [S_smf(AK[0], MA[i], WK(0, i)), S_smf(AK[1], MA[i], WK(1, i))]
    a("s_waitcnt lgkmcnt(4)")
    weave(a, [S_smf(AV[0], MA[6], F[(6, 0)]), S_smf(AV[1], MA[6], F[(6, 1)]), S_smf(AV[0], MA[7], F[(7, 0)]), S_smf(AV[1], MA[7], F[(7, 1)])],
          [[kr[4]], [kr[5]], [kr[6]], [kr[7]]])
    qtr = []
    for ks in range(4):
        qtr += ["ds_read_b64_tr_b16 %s, %s offset:%d" % (RR(QF[ks], 2), R(QR), QI_OFF + ks * 32 * IST),
                "ds_read_b64_tr_b16 %s, %s offset:%d" % (RR(QF[ks] + 2, 2), R(QR), QI_OFF + ks * 32 * IST + 8 * IST)]
    weave(a, km[:8], [[qpost[0]], [qpost[1]], [qpost[2]], [qpost[3]], [qpost[4]], [qpost[5]], [qpost[6]], [vr[0]]])
    a(km[8])
    a("s_waitcnt lgkmcnt(1)")
    a("s_barrier")
    weave(a, km[9:], [qtr[0:3], qtr[3:6], qtr[6:8]])
    tp(a, 'kdone', timing); tstamp(a, 2, timing)
    kpost = ["v_add_f32 %s, %s, %s" % (R(AK[0]), R(AK[0]), R(AK[0] + 2)),
             "v_add_f32 %s, %s, %s" % (R(AK[0] + 1), R(AK[0] + 1), R(AK[0] + 3)),
             "v_add_f32 %s, %s, %s" % (R(AK[1]), R(AK[1]), R(AK[1] + 2)),
             "v_add_f32 %s, %s, %s" % (R(AK[1] + 1), R(AK[1] + 1), R(AK[1] + 3)),
             "v_cvt_pk_bf16_f32 %s, %s, %s" % (R(AK[0]), R(AK[0]), R(AK[0] + 1)),
             "v_cvt_pk_bf16_f32 %s, %s, %s" % (R(AK[1]), R(AK[1]), R(AK[1] + 1)),
             "ds_write2_b32 %s, %s, %s offset0:0 offset1:1" % (R(QWK), R(AK[0]), R(AK[0])),
             "ds_write2_b32 %s, %s, %s offset0:%d offset1:%d" % (R(QWK), R(AK[1]), R(AK[1]), 16 * IST // 4, 16 * IST // 4 + 1)]
    a("s_mul_i32 %s, %s, %d" % (S(sT0), S(sW), 32 * IST))
    weave(a, [S_smf(AV[0], MA[2], WV(0, 2)), S_smf(AV[1], MA[2], WV(1, 2)), S_smf(AV[0], MA[3], WV(0, 3)), S_smf(AV[1], MA[3], WV(1, 3))],
          [[vr[1]], ["v_add_u32 %s, %s, %s" % (R(T2), S(sT0), R(QR))], [], []])
    sx = []
    for ks in range(4):
        sx += [S_mf32(SX[0], KX[ks], QF[ks], None if ks == 0 else SX[0]), S_mf32(SX[1], KX[4 + ks], QF[ks], None if ks == 0 else SX[1])]
    a("s_waitcnt lgkmcnt(0)")
    weave(a, sx[:4], [kpost[0:2], kpost[2:4], kpost[4:6], kpost[6:8]])
    a("s_cmp_eq_u32 %s, 1" % S(sRDY))
    a("s_cselect_b32 %s, %s, %s" % (S(sT3), S(sKVSRC), S(sKVDUM)))
    dm = S_kv_dma(src=sT3)
    weave(a, sx[4:], [dm[0:3], dm[3:5], [dm[6]], [dm[7]]])
    tp(a, 'vdone', timing)
    a("s_waitcnt lgkmcnt(0)")
    tp(a, 'b2w', timing)
    a("s_barrier")
    tp(a, 'b2', timing)
    for k2 in range(4):
        a("ds_read_b64_tr_b16 %s, %s offset:%d" % (RR(KMF[k2], 2), R(QR), MX_OFF + k2 * 32 * IST))
        a("ds_read_b64_tr_b16 %s, %s offset:%d" % (RR(KMF[k2] + 2, 2), R(QR), MX_OFF + k2 * 32 * IST + 8 * IST))
    a("ds_read_b64_tr_b16 %s, %s offset:%d" % (RR(PUB, 2), R(T2), MX_OFF))
    a("ds_read_b64_tr_b16 %s, %s offset:%d" % (RR(PUB + 2, 2), R(T2), MX_OFF + 8 * IST))
    def wpref(nt, j): return S_rdfrag(WOB[(nt, j)], wo_lds(nt, j))
    for x in wpref(4, 0) + wpref(4, 1): a(x)
    tp(a, 'dma', timing)
    a("v_cvt_pk_bf16_f32 %s, %s, %s" % (R(64), R(64), R(65)))
    a("v_cvt_pk_bf16_f32 %s, %s, %s" % (R(65), R(66), R(67)))
    a("v_cvt_pk_bf16_f32 %s, %s, %s" % (R(66), R(68), R(69)))
    a("v_cvt_pk_bf16_f32 %s, %s, %s" % (R(67), R(70), R(71)))
    a("s_add_u32 %s, %s, 4096" % (S(sT0), S(sKMJOB)))
    a("buffer_store_dwordx4 %s, %s, %s, %s offen sc1" % (RR(64, 4), R(UL), SR(sWS, 4), S(sT0)))
    for ks in range(4):
        a("s_waitcnt lgkmcnt(%d)" % (4 + 2 + 2 * (3 - ks)))
        mf32(a, SM, KMF[ks], QF[ks], None if ks == 0 else SM)
    tp(a, 'sissued', timing)
    a("v_max3_f32 %s, %s, %s, %s" % (R(TA), R(SX[0] + 1), R(SX[0] + 2), R(SX[0] + 3)))
    a("v_max3_f32 %s, %s, %s, %s" % (R(MXV), R(SX[0]), R(SX[1]), R(SX[1] + 1)))
    a("s_waitcnt lgkmcnt(4)")
    a("buffer_store_dwordx4 %s, %s, %s, %s offen sc1" % (RR(PUB, 4), R(UL), SR(sWS, 4), S(sKMJOB)))
    a("v_max3_f32 %s, %s, %s, %s" % (R(TA), R(TA), R(SX[1] + 2), R(SX[1] + 3)))
    a("s_cmp_eq_u32 %s, 63" % S(sSTEP))
    a("s_cbranch_scc1 L_chain_end")
    tstamp(a, 3, timing); tp(a, 'p3end', timing)
    a("v_max3_f32 %s, %s, %s, %s" % (R(MXV), R(MXV), R(SM), R(SM + 1)))
    a("v_max_f32 %s, %s, %s" % (R(MXV), R(MXV), R(TA)))
    a("v_mov_b32 %s, %s" % (R(TA), R(MXV)))
    for x in wpref(5, 0): a(x)
    a("v_permlane16_swap_b32 %s, %s" % (R(MXV), R(TA)))
    a("v_max_f32 %s, %s, %s" % (R(MXV), R(MXV), R(TA)))
    a("v_mov_b32 %s, %s" % (R(TA), R(MXV)))
    for x in wpref(5, 1): a(x)
    a("v_permlane32_swap_b32 %s, %s" % (R(MXV), R(TA)))
    a("v_max_f32 %s, %s, %s" % (R(MXV), R(MXV), R(TA)))
    a("v_mul_f32 %s, %s, %s" % (R(TA), S(sCEXP), R(MXV)))
    vals = [SM, SM + 1] + [SX[0] + i for i in range(4)] + [SX[1] + i for i in range(4)]
    for v_ in vals: a("v_fma_f32 %s, %s, %s, -%s" % (R(v_), R(v_), S(sCEXP), R(TA)))
    for x in wpref(6, 0): a(x)
    for v_ in vals[:4]: a("v_exp_f32 %s, %s" % (R(v_), R(v_)))
    for x in wpref(6, 1): a(x)
    for v_ in vals[4:]: a("v_exp_f32 %s, %s" % (R(v_), R(v_)))
    a("v_cvt_pk_bf16_f32 %s, %s, %s" % (R(PM), R(SM), R(SM + 1)))
    a("v_cvt_pk_bf16_f32 %s, %s, %s" % (R(PM + 1), R(SM), R(SM + 1)))
    a("v_cvt_pk_bf16_f32 %s, %s, %s" % (R(PX), R(SX[0]), R(SX[0] + 1)))
    a("v_cvt_pk_bf16_f32 %s, %s, %s" % (R(PX + 1), R(SX[0] + 2), R(SX[0] + 3)))
    mf16(a, OACC[0], 64, PM)
    a("v_cvt_pk_bf16_f32 %s, %s, %s" % (R(PX + 2), R(SX[1]), R(SX[1] + 1)))
    a("v_cvt_pk_bf16_f32 %s, %s, %s" % (R(PX + 3), R(SX[1] + 2), R(SX[1] + 3)))
    mf16(a, OACC[1], 66, PM)
    a("v_add_f32 %s, %s, %s" % (R(ZX), R(SM), R(SM + 1)))
    a("v_add_f32 %s, %s, %s" % (R(TA), R(SX[0]), R(SX[0] + 1)))
    mf32(a, OACC[0], VX[0], PX, OACC[0])
    a("v_add_f32 %s, %s, %s" % (R(RZ), R(SX[0] + 2), R(SX[0] + 3)))
    a("v_add_f32 %s, %s, %s" % (R(ZX), R(ZX), R(TA)))
    mf32(a, OACC[1], VX[1], PX, OACC[1])
    a("v_add_f32 %s, %s, %s" % (R(TA), R(SX[1]), R(SX[1] + 1)))
    a("v_add_f32 %s, %s, %s" % (R(ZX), R(ZX), R(RZ)))
    a("v_add_f32 %s, %s, %s" % (R(RZ), R(SX[1] + 2), R(SX[1] + 3)))
    a("v_add_f32 %s, %s, %s" % (R(ZX), R(ZX), R(TA)))
    a("v_add_f32 %s, %s, %s" % (R(ZX), R(ZX), R(RZ)))
    a("v_mov_b32 %s, %s" % (R(TA), R(ZX)))
    for x in wpref(7, 0): a(x)
    a("v_permlane16_swap_b32 %s, %s" % (R(ZX), R(TA)))
    a("v_add_f32 %s, %s, %s" % (R(ZX), R(ZX), R(TA)))
    a("v_mov_b32 %s, %s" % (R(TA), R(ZX)))
    for x in wpref(7, 1): a(x)
    a("v_permlane32_swap_b32 %s, %s" % (R(ZX), R(TA)))
    a("v_add_f32 %s, %s, %s" % (R(ZX), R(ZX), R(TA)))
    a("v_rcp_f32 %s, %s" % (R(RZ), R(ZX)))
    a("v_mov_b64 %s, 0" % RR(16, 2))
    for t in range(2):
        for i in range(4):
            a("v_mul_f32 %s, %s, %s" % (R(OACC[t] + i), R(OACC[t] + i), R(RZ)))
    a("v_cvt_pk_bf16_f32 %s, %s, %s" % (R(OC), R(OACC[0]), R(OACC[0] + 1)))
    a("v_cvt_pk_bf16_f32 %s, %s, %s" % (R(OC + 1), R(OACC[0] + 2), R(OACC[0] + 3)))
    a("v_cvt_pk_bf16_f32 %s, %s, %s" % (R(OC + 2), R(OACC[1]), R(OACC[1] + 1)))
    a("v_cvt_pk_bf16_f32 %s, %s, %s" % (R(OC + 3), R(OACC[1] + 2), R(OACC[1] + 3)))
    a("s_mov_b64 exec, %s" % SR(sO8, 2))
    a("ds_write_b128 %s, %s offset:%d" % (R(OW), RR(OC, 4), OX_OFF))
    a("s_mov_b64 exec, -1")
    tstamp(a, 4, timing)
    for r_ in range(18, 36, 2): a("v_mov_b64 %s, 0" % RR(r_, 2))
    a("s_waitcnt lgkmcnt(0)")
    a("s_barrier")
    a("ds_read_b128 %s, %s offset:%d" % (RR(OA[0], 4), R(OR_), OX_OFF))
    a("ds_read_b128 %s, %s offset:%d" % (RR(OA[1], 4), R(OR_), OX_OFF + 128))
    a("ds_read_b128 %s, %s offset:%d" % (RR(TBL, 4), R(UL), TB_OFF))
    a("ds_read_b128 %s, %s offset:%d" % (RR(SEL, 4), R(UL), SEL_OFF))
    for r_ in range(36, 48, 2): a("v_mov_b64 %s, 0" % RR(r_, 2))
    a("s_waitcnt lgkmcnt(2)")
    def wpost(nt, d):
        x = WA[nt]
        return ["v_add_f32 %s, %s, %s" % (R(x), R(x), R(x + 2)), "v_add_f32 %s, %s, %s" % (R(x + 1), R(x + 1), R(x + 3)),
                "v_cvt_pk_bf16_f32 %s, %s, %s" % (R(d), R(x), R(x + 1))]
    def WB(nt, j): return WO(nt, j) if nt < 4 else WOB[(nt, j)]
    order = [(0, 0), (1, 0), (2, 0), (3, 0), (0, 1), (1, 1), (2, 1), (3, 1), (4, 0), (5, 0), (4, 1), (5, 1), (6, 0), (7, 0), (6, 1), (7, 1)]
    wm = [S_smf(WA[nt], OA[j], WB(nt, j)) for nt, j in order]
    p = [wpost(nt, PK + nt) for nt in range(8)]
    weave(a, wm, [[], [], [], [], [], [], [], [], [], [], [], [p[0][0]], [p[0][1], p[0][2]], [p[1][0], p[1][1]], [p[1][2], p[2][0]], [p[2][1], p[2][2]]])
    for x in p[3]: a(x)
    a("buffer_store_dwordx4 %s, %s, %s, %s offen" % (RR(PK, 4), R(UL), SR(sWS, 4), S(sPARTST)))
    for nt in range(4, 8):
        for x in p[nt]: a(x)
    a("buffer_store_dwordx4 %s, %s, %s, %s offen offset:1024" % (RR(PK + 4, 4), R(UL), SR(sWS, 4), S(sPARTST)))
    tstamp(a, 5, timing)
    for r_ in range(48, 72, 2): a("v_mov_b64 %s, 0" % RR(r_, 2))
    a("s_add_u32 %s, %s, 0x20000" % (S(sT1), S(sPARTLD)))
    dly = opt.get('pdelay', 6)
    if dly: a("s_sleep %d" % dly)
    Lp = a.newlabel('ppoll'); Ld = a.newlabel('ppolld'); Lr = a.newlabel('pretry')
    a.label(Lp)
    a("buffer_load_dwordx4 %s, %s, %s, %s offen sc1" % (RR(RD, 4), R(TBL + 1), SR(sWS, 4), S(sPARTLD)))
    a("buffer_load_dwordx4 %s, %s, %s, %s offen sc1" % (RR(RD + 4, 4), R(TBL + 1), SR(sWS, 4), S(sT1)))
    a("s_waitcnt vmcnt(0)")
    poison_check(a, list(range(RD, RD + 8)), Lr, Ld)
    stubs.append((Lr, Lp, Ld))
    a.label(Ld)
    tstamp(a, 6, timing)
    mf32(a, RS, SEL, RD); mf32(a, RS, SEL, RD + 4, RS)
    a("s_add_u32 %s, %s, 1" % (S(sSLOT), S(sSLOT)))
    a("s_cmp_eq_u32 %s, 3" % S(sSLOT))
    a("s_cselect_b32 %s, 0, %s" % (S(sSLOT), S(sSLOT)))
    a("s_lshl_b32 %s, %s, 13" % (S(sT0), S(sSLOT)))
    a("s_add_u32 %s, %s, %s" % (S(sMEMRD), S(sMEMRD0), S(sT0)))
    a("s_lshl_b32 %s, %s, 18" % (S(sT1), S(sSLOT)))
    a("v_mov_b64 %s, -1" % RR(POI, 2))
    a("v_mov_b64 %s, -1" % RR(POI + 2, 2))
    for i in range(4):
        a("v_add_f32_dpp %s, %s, %s row_ror:8 row_mask:0xf bank_mask:0xf" % (R(RS + i), R(RS + i), R(RS + i)))
    for i in range(4):
        a("v_add_f32_dpp %s, %s, %s row_ror:4 row_mask:0xf bank_mask:0xf" % (R(RS + i), R(RS + i), R(RS + i)))
    a("v_cndmask_b32 %s, %s, %s, %s" % (R(RS), R(RS), R(RS + 1), SR(sM2, 2)))
    a("v_cndmask_b32 %s, %s, %s, %s" % (R(RS + 2), R(RS + 2), R(RS + 3), SR(sM2, 2)))
    a("v_cvt_pk_bf16_f32 %s, %s, %s" % (R(RS), R(RS), R(RS + 2)))
    a("s_mov_b64 exec, %s" % SR(sEX, 2))
    a("buffer_store_dword %s, %s, %s, %s offen" % (R(RS), R(TBL + 2), SR(sWS, 4), S(sMEMST)))
    a("s_mov_b64 exec, -1")
    tstamp(a, 7, timing)
    a("s_add_u32 %s, %s, %s" % (S(sPARTST), S(sPARTST0), S(sT1)))
    a("s_add_u32 %s, %s, %s" % (S(sPARTLD), S(sPARTLD0), S(sT1)))
    a("s_add_u32 %s, %s, 1" % (S(sT2), S(sSLOT)))
    a("s_cmp_eq_u32 %s, 3" % S(sT2))
    a("s_cselect_b32 %s, 0, %s" % (S(sT2), S(sT2)))
    a("s_lshl_b32 %s, %s, 13" % (S(sT0), S(sT2)))
    a("s_add_u32 %s, %s, %s" % (S(sMEMST), S(sMEMST0), S(sT0)))
    a("s_lshl_b32 %s, %s, 18" % (S(sT0), S(sT2)))
    a("s_add_u32 %s, %s, %s" % (S(sT0), S(sPARTST0), S(sT0)))
    a("buffer_store_dwordx4 %s, %s, %s, %s offen" % (RR(POI, 4), R(UL), SR(sWS, 4), S(sT0)))
    a("buffer_store_dwordx4 %s, %s, %s, %s offen offset:1024" % (RR(POI, 4), R(UL), SR(sWS, 4), S(sT0)))
    a("s_mov_b64 exec, %s" % SR(sEX, 2))
    a("buffer_store_dword %s, %s, %s, %s offen" % (R(POI), R(TBL + 2), SR(sWS, 4), S(sMEMST)))
    a("s_mov_b64 exec, -1")
    for i in (4, 5, 6):
        for t in range(2):
            for x in vpref(i, t): a(x)
    Lok = a.newlabel('kvok')
    a("s_cmp_ge_u32 %s, 62" % S(sSTEP))
    a("s_cbranch_scc1 %s" % Lok)
    a("s_cmp_eq_u32 %s, 1" % S(sRDY))
    a("s_cbranch_scc1 %s" % Lok)
    poll(a, T1, TBL + 3, S(sFLKV))
    for t in S_kv_dma(): a(t)
    a.label(Lok)
    a("s_add_u32 %s, %s, 1" % (S(sSTEP), S(sSTEP)))
    a("s_add_u32 %s, %s, %d" % (S(sKVSRC), S(sKVSRC), QKV_JOB))
    a("s_add_u32 %s, %s, %d" % (S(sKMJOB), S(sKMJOB), KM_JOB))
    a("s_add_u32 %s, %s, %d" % (S(sFLKV), S(sFLKV), JOBFLAG_BYTES))
    if opt.get('mdelay', 2): a("s_sleep %d" % opt.get('mdelay', 2))
    if timing == 2:
        a("s_waitcnt lgkmcnt(0)")
        for k in range(7):
            a("s_sub_u32 %s, s%d, s%d" % (S(sT0), 74 + 2 * k, 72 + 2 * k))
            a("s_add_u32 s%d, s%d, %s" % (88 + k, 88 + k, S(sT0)))
    a("s_branch L_step")
    a.filt = None
    for st in stubs: retry_stub(a, *st)
    a.label("L_chain_end")
    a("s_waitcnt vmcnt(0)")
    a("s_barrier")
    a("v_mov_b32 %s, 1" % R(T0))
    a("v_mov_b32 %s, 0" % R(T1))
    a("s_mov_b64 exec, %s" % SR(sW0, 2))
    a("buffer_store_dword %s, %s, %s, %s offen sc1" % (R(T0), R(T1), SR(sWS, 4), S(sFLKM)))
    a("s_mov_b64 exec, -1")

def chain_role(a, init_target, timing=0, opt=None):
    signal_init(a, T1, T2)
    a("s_mov_b32 %s, %s" % (S(sL), S(sXCC)))
    Lg = a.newlabel('go')
    a("s_cmp_eq_u32 %s, 0" % S(sL)); a("s_cbranch_scc1 %s" % Lg)
    if GATE: gate_wait(a, T1, T2, GATE)
    a.label(Lg)
    chain_pre(a)
    if timing:
        for k in range(88, 96): a("s_mov_b32 s%d, 0" % k)
        a("s_memtime s[96:97]")
    chain_load_weights(a, mid=chain_setup)
    trace_cu(a, 3, T1, T2, 3)
    a("s_waitcnt vmcnt(0)")
    a("s_barrier")
    a("s_lshl_b32 %s, %s, 2" % (S(sT0), S(sL)))
    a("s_add_u32 %s, %s, %d" % (S(sT0), S(sT0), DBG_W0))
    Lb = a.newlabel('cb')
    a("s_cmp_eq_u32 %s, 0" % S(sW)); a("s_cbranch_scc0 %s" % Lb)
    a("s_mov_b64 exec, 1")
    a("v_mov_b32 %s, 1" % R(T1))
    a("v_mov_b32 %s, %s" % (R(T2), S(sT0)))
    a("buffer_atomic_add %s, %s, %s, 0 offen" % (R(T1), R(T2), SR(sDBG, 4)))
    a("s_mov_b64 exec, -1")
    Lw = a.newlabel('cw'); Lwd = a.newlabel('cwd')
    a.label(Lw)
    a("buffer_load_dword %s, %s, %s, 0 offen sc1" % (R(T1), R(T2), SR(sDBG, 4)))
    a("s_waitcnt vmcnt(0)")
    a("v_readfirstlane_b32 %s, %s" % (S(sT1), R(T1)))
    a("s_cmp_ge_u32 %s, 32" % S(sT1))
    a("s_cbranch_scc1 %s" % Lwd)
    a("s_add_u32 %s, %s, 1" % (S(sTMO), S(sTMO)))
    a("s_cmp_gt_u32 %s, %d" % (S(sTMO), TIMEOUT))
    a("s_cbranch_scc1 %s" % Lwd)
    a("s_sleep 2")
    a("s_branch %s" % Lw)
    a.label(Lwd)
    a.label(Lb)
    wait_init(a, T1, T2, init_target)
    if timing:
        a("s_memtime s[98:99]")
    chain_loop(a, timing, opt)
    if timing:
        a("s_memtime s[100:101]")
        a("s_waitcnt lgkmcnt(0)")
        a("s_sub_u32 s95, s98, s96")
        a("s_sub_u32 s96, s100, s98")
        a("s_mov_b32 s97, %s" % S(sTMO))
        Lx = a.newlabel('tw')
        a("s_cmp_eq_u32 %s, 0" % S(sH)); a("s_cbranch_scc0 %s" % Lx)
        a("s_cmp_eq_u32 %s, 0" % S(sW)); a("s_cbranch_scc0 %s" % Lx)
        a("s_mov_b64 exec, 1")
        a("s_lshl_b32 %s, %s, 6" % (S(sT0), S(sL)))
        a("v_mov_b32 %s, %s" % (R(T1), S(sT0)))
        for k in range(10):
            a("v_mov_b32 %s, s%d" % (R(T0), 88 + k))
            a("s_mov_b32 %s, %d" % (S(sT1), WS_TRACE + 16384))
            a("buffer_store_dword %s, %s, %s, %s offen offset:%d" % (R(T0), R(T1), SR(sWS, 4), S(sT1), 4 * k))
        a("s_mov_b64 exec, -1")
        a.label(Lx)
    a("s_waitcnt vmcnt(0)")
    a("s_branch L_exit")
```

```python
from asmgen import *
from layout import *

sWS = 4
sDBG = 8
sA, sB, sC, sD = 12, 16, 20, 24
sXCC, sTICK, sW, sTMO = 28, 29, 30, 31
SRD3 = 0x00020000
TIMEOUT = 300000
KA = dict(x=0, mem0=8, Wq=16, Wk=24, Wv=32, Wo=40, seg=48, bx=56, Wg=64, Wu=72, Wd=80, out=88, dbg=96, ws=104)
SIZES = dict(x=S_*D_*2, mem0=M_*D_*2, Wq=D_*H_*E_*2, Wk=D_*H_*E_*2, Wv=D_*H_*E_*2, Wo=D_*H_*E_*2, Wg=D_*F_*2, Wu=D_*F_*2, Wd=D_*F_*2, out=S_*D_*2)
DBG_TICKET = 0
DBG_INIT = 16 * 4
DBG_W0 = 48 * 4

LDS_CNT = 163776
def pollge(a, vtmp, vzero, soff, target, sleep=2):
    L = a.newlabel('pg'); Dn = a.newlabel('pgd')
    a.label(L)
    a("buffer_load_dword %s, %s, %s, %s offen sc1" % (R(vtmp), R(vzero), SR(sWS, 4), soff))
    a("s_waitcnt vmcnt(0)")
    a("v_cmp_le_u32 vcc, %d, %s" % (target, R(vtmp)))
    a("s_cbranch_vccnz %s" % Dn)
    a("s_add_u32 %s, %s, 1" % (S(sTMO), S(sTMO)))
    a("s_cmp_gt_u32 %s, %d" % (S(sTMO), TIMEOUT))
    a("s_cbranch_scc1 %s" % Dn)
    if sleep: a("s_sleep %d" % sleep)
    a("s_branch %s" % L)
    a.label(Dn)

def cu_signal(a, vt0, vt1, s_addr, s_par, st):
    L = a.newlabel('sg')
    a("s_add_u32 %s, %s, %d" % (S(st), S(s_par), LDS_CNT))
    a("v_mov_b32 %s, %s" % (R(vt1), S(st)))
    a("v_mov_b32 %s, 1" % R(vt0))
    a("s_mov_b64 exec, 1")
    a("ds_add_rtn_u32 %s, %s, %s" % (R(vt1), R(vt1), R(vt0)))
    a("s_waitcnt lgkmcnt(0)")
    a("v_readfirstlane_b32 %s, %s" % (S(st), R(vt1)))
    a("s_and_b32 %s, %s, 3" % (S(st), S(st)))
    a("s_cmp_eq_u32 %s, 3" % S(st))
    a("s_cbranch_scc0 %s" % L)
    a("v_mov_b32 %s, 0" % R(vt1))
    a("buffer_atomic_add %s, %s, %s, %s offen" % (R(vt0), R(vt1), SR(sWS, 4), s_addr))
    a.label(L)
    a("s_mov_b64 exec, -1")

def load_srd(a, sreg, name):
    a("s_load_dwordx2 %s, s[0:1], %d" % (SR(sreg, 2), KA[name]))
def finish_srd(a, sreg, name):
    a("s_mov_b32 %s, 0x%x" % (S(sreg + 2), SIZES[name]))
    a("s_mov_b32 %s, 0x%x" % (S(sreg + 3), SRD3))

def poll(a, vtmp, voff, soff, srd=sWS, imm=0, sleep=1, label=None):
    L = a.newlabel('poll'); Dn = a.newlabel('polld')
    a.label(L)
    a("buffer_load_dword %s, %s, %s, %s offen offset:%d sc1" % (R(vtmp), R(voff), SR(srd, 4), soff, imm))
    a("s_waitcnt vmcnt(0)")
    a("v_cmp_ne_u32 vcc, 0, %s" % R(vtmp))
    a("s_cmp_eq_u64 vcc, -1")
    a("s_cbranch_scc1 %s" % Dn)
    a("s_add_u32 %s, %s, 1" % (S(sTMO), S(sTMO)))
    a("s_cmp_gt_u32 %s, %d" % (S(sTMO), TIMEOUT))
    a("s_cbranch_scc1 %s" % Dn)
    if sleep: a("s_sleep %d" % sleep)
    a("s_branch %s" % L)
    a.label(Dn)

def wait_init(a, vtmp, vzero_off, target):
    trace_cu(a, 1, vtmp, vzero_off, 3)
    Lb = a.newlabel('winitb')
    a("s_cmp_eq_u32 %s, 0" % S(sW)); a("s_cbranch_scc0 %s" % Lb)
    wait_dbg(a, vtmp, vzero_off, DBG_INIT, target, sleep=6)
    a.label(Lb)
    a("s_barrier")
    trace_cu(a, 2, vtmp, vzero_off, 3)

def signal_init(a, vt0, vt1):
    trace_cu(a, 0, vt0, vt1, 3)
    Dn = a.newlabel('sinit')
    a("s_waitcnt vmcnt(0)")
    a("s_barrier")
    a("s_cmp_eq_u32 %s, 0" % S(sW))
    a("s_cbranch_scc0 %s" % Dn)
    a("s_mov_b64 exec, 1")
    a("v_mov_b32 %s, 1" % R(vt0))
    a("v_mov_b32 %s, %d" % (R(vt1), DBG_INIT))
    a("buffer_atomic_add %s, %s, %s, 0 offen" % (R(vt0), R(vt1), SR(sDBG, 4)))
    a("s_mov_b64 exec, -1")
    a.label(Dn)

def prologue(a, zero_flags=True):
    a("s_cmp_ge_u32 s2, 256")
    a("s_cbranch_scc1 L_exit")
    a("s_load_dwordx2 %s, s[0:1], %d" % (SR(sWS, 2), KA['ws']))
    a("s_load_dwordx2 %s, s[0:1], %d" % (SR(sDBG, 2), KA['dbg']))
    a("s_getreg_b32 %s, hwreg(HW_REG_XCC_ID, 0, 3)" % S(sXCC))
    a("v_lshrrev_b32 v1, 6, v0")
    a("v_and_b32 v0, 63, v0")
    a("v_readfirstlane_b32 %s, v1" % S(sW))
    a("s_mov_b32 %s, 0" % S(sTMO))
    a("s_waitcnt lgkmcnt(0)")
    a("s_mov_b32 %s, 0x10000000" % S(sWS + 2))
    a("s_mov_b32 %s, 0x%x" % (S(sWS + 3), SRD3))
    a("s_mov_b32 %s, 256" % S(sDBG + 2))
    a("s_mov_b32 %s, 0x%x" % (S(sDBG + 3), SRD3))
    a("s_cmp_eq_u32 %s, 0" % S(sW))
    a("s_cbranch_scc0 L_tick1")
    a("s_mov_b64 exec, 1")
    a("v_mov_b32 v1, 1")
    a("s_lshl_b32 s3, %s, 2" % S(sXCC))
    a("v_mov_b32 v2, s3")
    a("buffer_atomic_add v1, v2, %s, 0 offen sc0" % SR(sDBG, 4))
    a("s_waitcnt vmcnt(0)")
    a("v_mov_b32 v2, 0")
    a("ds_write_b32 v2, v1")
    a("v_mov_b32 v3, %d" % LDS_CNT)
    a("v_mov_b32 v4, 0\nv_mov_b32 v5, 0")
    a("ds_write_b64 v3, v[4:5]")
    a("s_waitcnt lgkmcnt(0)")
    a("s_mov_b64 exec, -1")
    a.label("L_tick1")
    a("s_barrier")
    a("v_mov_b32 v2, 0")
    a("ds_read_b32 v1, v2")
    a("s_waitcnt lgkmcnt(0)")
    a("v_readfirstlane_b32 %s, v1" % S(sTICK))
    a("s_barrier")
    a("s_cmp_ge_u32 %s, 32" % S(sTICK))
    a("s_cbranch_scc1 L_exit")
    if zero_flags:
        a("s_cmp_eq_u32 %s, 0" % S(sW))
        a("s_cbranch_scc0 L_zf")
        a("s_lshl_b32 s3, %s, 5" % S(sXCC))
        a("s_add_u32 s3, s3, %s" % S(sTICK))
        a("s_mul_i32 s3, s3, 3072")
        a("v_lshlrev_b32 v1, 4, v0")
        a("v_mov_b32 v4, 0\nv_mov_b32 v5, 0\nv_mov_b32 v6, 0\nv_mov_b32 v7, 0")
        for k in range(3):
            a("buffer_store_dwordx4 v[4:7], v1, %s, s3 offen offset:%d sc1" % (SR(sWS, 4), k * 1024))
        a.label("L_zf")

HEADER = """; @launch grid=(256,1,1) block=(256,1,1) lds=163840
.amdgcn_target "amdgcn-amd-amdhsa--gfx950"
.text
.globl {name}
.p2align 8
.type {name},@function
{name}:
"""
FOOTER = """
.section .rodata,"a"
.p2align 6
.amdhsa_kernel {name}
  .amdhsa_next_free_vgpr 512
  .amdhsa_next_free_sgpr 102
  .amdhsa_accum_offset 256
  .amdhsa_group_segment_fixed_size 0
  .amdhsa_kernarg_size 112
  .amdhsa_user_sgpr_count 2
  .amdhsa_user_sgpr_kernarg_segment_ptr 1
  .amdhsa_system_sgpr_workgroup_id_x 1
.end_amdhsa_kernel
"""
KNAME = "interleave_layers__memory_aug_recurrent_mem_tr__swiglu_ffn__prompt_kernel"

TRACE = False
ONLY = None
WS_TRACE = 3 * MB + 768 * KB
NSTAGE = 12
def trace(a, stage, sl, ss, conds, vt0, vt1, st0, st1=None, cyc=False):
    if not TRACE: return
    if ONLY is not None and stage not in ONLY: return
    L = a.newlabel('tr')
    for sg, val in conds:
        a("s_cmp_eq_u32 %s, %d" % (S(sg), val)); a("s_cbranch_scc0 %s" % L)
    a("s_memtime s[98:99]" if cyc else "s_memrealtime s[98:99]")
    a("s_lshl_b32 %s, %s, 6" % (S(st0), S(sl)))
    a("s_add_u32 %s, %s, %s" % (S(st0), S(st0), S(ss)))
    a("s_lshl_b32 %s, %s, 2" % (S(st0), S(st0)))
    a("s_add_u32 %s, %s, %d" % (S(st0), S(st0), WS_TRACE + stage * 512))
    a("s_waitcnt lgkmcnt(0)")
    a("v_mov_b32 %s, s98" % R(vt0))
    a("v_mov_b32 %s, 0" % R(vt1))
    a("s_mov_b64 exec, 1")
    a("buffer_store_dword %s, %s, %s, %s offen" % (R(vt0), R(vt1), SR(sWS, 4), S(st0)))
    a("s_mov_b64 exec, -1")
    a.label(L)

def trace_cu(a, slot, vt0, vt1, st0):
    if not TRACE: return
    L = a.newlabel('tc')
    a("s_cmp_eq_u32 %s, 0" % S(sW)); a("s_cbranch_scc0 %s" % L)
    a("s_memrealtime s[98:99]")
    a("s_lshl_b32 %s, %s, 5" % (S(st0), S(sXCC)))
    a("s_add_u32 %s, %s, %s" % (S(st0), S(st0), S(sTICK)))
    a("s_lshl_b32 %s, %s, 4" % (S(st0), S(st0)))
    a("s_add_u32 %s, %s, %d" % (S(st0), S(st0), WS_TRACE + 8192 + slot * 4))
    a("s_waitcnt lgkmcnt(0)")
    a("v_mov_b32 %s, s98" % R(vt0))
    a("v_mov_b32 %s, 0" % R(vt1))
    a("s_mov_b64 exec, 1")
    a("buffer_store_dword %s, %s, %s, %s offen" % (R(vt0), R(vt1), SR(sWS, 4), S(st0)))
    a("s_mov_b64 exec, -1")
    a.label(L)

def wait_dbg(a, vtmp, voff, byteoff, target, sleep=8):
    L = a.newlabel('wd'); Dn = a.newlabel('wdd')
    tgt = ("%d" % target) if target <= 64 else ("0x%x" % target)
    a("v_mov_b32 %s, %d" % (R(voff), byteoff))
    a.label(L)
    a("buffer_load_dword %s, %s, %s, 0 offen sc1" % (R(vtmp), R(voff), SR(sDBG, 4)))
    a("s_waitcnt vmcnt(0)")
    a("v_cmp_le_u32 vcc, %s, %s" % (tgt, R(vtmp)))
    a("s_cbranch_vccnz %s" % Dn)
    a("s_add_u32 %s, %s, 1" % (S(sTMO), S(sTMO)))
    a("s_cmp_gt_u32 %s, %d" % (S(sTMO), TIMEOUT))
    a("s_cbranch_scc1 %s" % Dn)
    a("s_sleep %d" % sleep)
    a("s_branch %s" % L)
    a.label(Dn)
def gate_wait(a, vtmp, voff, target):
    Lb = a.newlabel('gwb')
    a("s_cmp_eq_u32 %s, 0" % S(sW)); a("s_cbranch_scc0 %s" % Lb)
    wait_dbg(a, vtmp, voff, DBG_W0, target, sleep=16)
    a.label(Lb)
    a("s_barrier")
def add_dbg(a, vt0, vt1, byteoff):
    L = a.newlabel('ad')
    a("s_cmp_eq_u32 %s, 0" % S(sW)); a("s_cbranch_scc0 %s" % L)
    a("s_mov_b64 exec, 1")
    a("v_mov_b32 %s, 1" % R(vt0))
    a("v_mov_b32 %s, %d" % (R(vt1), byteoff))
    a("buffer_atomic_add %s, %s, %s, 0 offen" % (R(vt0), R(vt1), SR(sDBG, 4)))
    a("s_mov_b64 exec, -1")
    a.label(L)

def wg_signal(a, vt0, vt1, s_addr, val=1):
    L = a.newlabel('ws')
    a("s_barrier")
    a("s_cmp_eq_u32 %s, 0" % S(sW)); a("s_cbranch_scc0 %s" % L)
    a("s_mov_b64 exec, 1")
    a("v_mov_b32 %s, %d" % (R(vt0), val))
    a("v_mov_b32 %s, 0" % R(vt1))
    a("buffer_atomic_add %s, %s, %s, %s offen" % (R(vt0), R(vt1), SR(sWS, 4), s_addr))
    a("s_mov_b64 exec, -1")
    a.label(L)
```

```python
S_, D_, H_, E_, M_, SEG, NSEG, F_ = 2048, 512, 32, 128, 8, 32, 64, 1792
KB = 1024; MB = 1024 * 1024

SHARE = True

FL_KV = 0
FL_KM = 4
FL_O  = 32 * 128
FL_P3 = 36 * 128
FL_H2 = 37 * 128
FL_A  = 38 * 128
FL_P5 = 40 * 128
FL_H  = 41 * 128
JOBFLAG_BYTES = 48 * 128
WS_FLAGS = 128
FLAGS_BYTES = 2 * NSEG * JOBFLAG_BYTES
WS_CH = 2 * MB
CH_PART = 0
CH_MEM = 1 * MB
CH_BYTES = 1 * MB + 64 * KB
CH_STRIDE = 2 * MB
def chain_base(l): return WS_CH + l * CH_STRIDE

WS_DUMMY = 3 * MB + 512 * KB
WS_SCRATCH = 5 * MB + 256 * KB
cur = 6 * MB
def _alloc(per_job, shared_ok=True):
    global cur
    base = cur
    n = (1 if (SHARE and shared_ok) else 2) * NSEG * per_job
    cur += n
    lstride = 0 if (SHARE and shared_ok) else NSEG * per_job
    return base, lstride
QKV_JOB = 32 * 24 * KB
WS_QKV, QKV_L = _alloc(QKV_JOB)
KM_JOB = 32 * 8 * KB
WS_KM, KM_L = _alloc(KM_JOB)
O_JOB = 32 * 8 * KB
WS_O, O_L = _alloc(O_JOB)
P3_JOB = 4 * 64 * KB
WS_P3, P3_L = _alloc(P3_JOB)
X1_JOB = 32 * KB
WS_X1, X1_L = _alloc(X1_JOB)
H2_JOB = 32 * KB
WS_H2, H2_L = _alloc(H2_JOB)
ACT_JOB = 14 * 8 * KB
WS_ACT, ACT_L = _alloc(ACT_JOB)
P5_JOB = 2 * 64 * KB
WS_P5, P5_L = _alloc(P5_JOB)
HN_JOB = 32 * KB
WS_HN, HN_L = _alloc(HN_JOB)
X2_JOB = 32 * KB
WS_X2 = cur; cur += NSEG * X2_JOB
WS_END = cur
assert WS_END <= 256 * MB, WS_END / MB
if __name__ == "__main__":
    for k, v in list(globals().items()):
        if k.startswith('WS_'): print(k, v, v / MB)
```

```python
from bulk import *


LAM = 26
MDED = False
sPEND2 = 66
def pos_to_job(a, s_pos):
    La = a.newlabel('pa'); Lb = a.newlabel('pb'); Lc = a.newlabel('pc')
    a("s_mov_b32 %s, %s" % (S(sT0), S(s_pos)))
    a("s_cmp_lt_u32 %s, %d" % (S(sT0), LAM))
    a("s_cbranch_scc0 %s" % La)
    a("s_mov_b32 %s, 0" % S(sJL)); a("s_mov_b32 %s, %s" % (S(sJS), S(sT0)))
    a("s_branch %s" % Lc)
    a.label(La)
    a("s_sub_u32 %s, %s, %d" % (S(sT0), S(sT0), LAM))
    a("s_cmp_lt_u32 %s, %d" % (S(sT0), 2 * (64 - LAM)))
    a("s_cbranch_scc0 %s" % Lb)
    a("s_and_b32 %s, %s, 1" % (S(sT1), S(sT0)))
    a("s_xor_b32 %s, %s, 1" % (S(sJL), S(sT1)))
    a("s_lshr_b32 %s, %s, 1" % (S(sJS), S(sT0)))
    a("s_mul_i32 %s, %s, %d" % (S(sT1), S(sT1), LAM))
    a("s_add_u32 %s, %s, %s" % (S(sJS), S(sJS), S(sT1)))
    a("s_branch %s" % Lc)
    a.label(Lb)
    a("s_mov_b32 %s, 1" % S(sJL))
    a("s_sub_u32 %s, %s, %d" % (S(sJS), S(sT0), 64 - LAM))
    a.label(Lc)
    a("s_lshl_b32 %s, %s, 6" % (S(sT0), S(sJL)))
    a("s_add_u32 %s, %s, %s" % (S(sT0), S(sT0), S(sJS)))
    a("s_mul_i32 %s, %s, %d" % (S(sFLJ), S(sT0), JOBFLAG_BYTES))

sPAR2 = 70

sG0, sG1 = 68, 69
sML, sMS, sMFL, sMSUB = 74, 75, 76, 77
def misc_cands(a, ncu, flag_of):
    for c, g in ((sC0, sG0), (sC1, sG1)):
        a("s_mul_i32 %s, %s, %d" % (S(g), S(c), ncu))
        a("s_add_u32 %s, %s, %s" % (S(g), S(g), S(sREP)))
    a("s_min_u32 %s, %s, 511" % (S(sT2), S(sG0))); flag_of(a, sF0, sT2, 0)
    a("s_min_u32 %s, %s, 511" % (S(sT2), S(sG1))); flag_of(a, sF1, sT2, 1)
def misc_sample(a, VOFF, V0, V1):
    a("buffer_load_dword %s, %s, %s, %s offen sc1" % (R(V0), R(VOFF), SR(sWS, 4), S(sF0)))
    a("buffer_load_dword %s, %s, %s, %s offen sc1" % (R(V1), R(VOFF), SR(sWS, 4), S(sF1)))
def misc_decide(a, V0, V1, target, prio=0):
    a("v_cmp_le_u32 vcc, %d, %s" % (target, R(V0)))
    a("s_cmp_eq_u64 vcc, -1"); a("s_cselect_b32 %s, 1, 0" % S(sT0))
    a("s_cmp_lt_u32 %s, 512" % S(sG0)); a("s_cselect_b32 %s, %s, 0" % (S(sT0), S(sT0)))
    a("v_cmp_le_u32 vcc, %d, %s" % (target, R(V1)))
    a("s_cmp_eq_u64 vcc, -1"); a("s_cselect_b32 %s, 2, 0" % S(sT1))
    a("s_cmp_lt_u32 %s, 512" % S(sG1)); a("s_cselect_b32 %s, %s, 0" % (S(sT1), S(sT1)))
    first, second = (sT0, sT1) if prio == 0 else (sT1, sT0)
    a("s_cmp_lg_u32 %s, 0" % S(first)); a("s_cselect_b32 %s, %s, %s" % (S(sDEC), S(first), S(second)))
    a("s_min_u32 %s, %s, %s" % (S(sT2), S(sG0), S(sG1)))
    a("s_cmp_ge_u32 %s, 512" % S(sT2)); a("s_cselect_b32 %s, 3, %s" % (S(sDEC), S(sDEC)))
def misc_take(a):
    a("s_sub_u32 %s, %s, 1" % (S(sML), S(sDEC)))
    a("s_cmp_eq_u32 %s, 0" % S(sML))
    a("s_cselect_b32 %s, %s, %s" % (S(sT0), S(sG0), S(sG1)))
    a("s_lshr_b32 %s, %s, 3" % (S(sMS), S(sT0)))
    a("s_and_b32 %s, %s, 7" % (S(sMSUB), S(sT0)))
    a("s_lshl_b32 %s, %s, 2" % (S(sMSUB), S(sMSUB)))
    a("s_add_u32 %s, %s, %s" % (S(sMSUB), S(sMSUB), S(sW)))
    a("s_xor_b32 %s, %s, 1" % (S(sT0), S(sML)))
    a("s_add_u32 %s, %s, %s" % (S(sC0), S(sC0), S(sT0)))
    a("s_add_u32 %s, %s, %s" % (S(sC1), S(sC1), S(sML)))
    a("s_lshl_b32 %s, %s, 6" % (S(sT0), S(sML)))
    a("s_add_u32 %s, %s, %s" % (S(sT0), S(sT0), S(sMS)))
    a("s_mul_i32 %s, %s, %d" % (S(sMFL), S(sT0), JOBFLAG_BYTES))
def misc_block_pick(a, tag, ncu, VOFF, V0, V1, T1, T2, flag_of, target):
    Lb = a.newlabel(tag + 'mp'); Lp = a.newlabel(tag + 'mpl'); Ld = a.newlabel(tag + 'mpd')
    misc_cands(a, ncu, flag_of)
    a("s_cmp_eq_u32 %s, 0" % S(sW)); a("s_cbranch_scc0 %s" % Lb)
    a.label(Lp)
    misc_sample(a, VOFF, V0, V1)
    a("s_waitcnt vmcnt(0)")
    misc_decide(a, V0, V1, target)
    a("s_cmp_lg_u32 %s, 0" % S(sDEC)); a("s_cbranch_scc1 %s" % Ld)
    a("s_add_u32 %s, %s, 1" % (S(sTMO), S(sTMO)))
    a("s_cmp_gt_u32 %s, %d" % (S(sTMO), TIMEOUT))
    a("s_cselect_b32 %s, 3, 0" % S(sDEC))
    a("s_cbranch_scc1 %s" % Ld)
    a("s_sleep 1")
    a("s_branch %s" % Lp)
    a.label(Ld)
    bcast_write(a, T1, T2)
    a.label(Lb)
    a("s_barrier")
    bcast_read(a, T1, T2)

def misc_loop(a, tag, ncu, VOFF, V0, V1, T1, T2, flag_of, target, loads, nloads, compute, trace_fn):
    Lj = a.newlabel(tag + 'job'); Ld = a.newlabel(tag + 'done'); Llate = a.newlabel(tag + 'late'); Lnx = a.newlabel(tag + 'nx'); Lw = a.newlabel(tag + 'w0')
    if MDED:
        ncu = ncu // 2
        a("s_cmp_lt_u32 %s, %d" % (S(sREP), ncu))
        a("s_cselect_b32 %s, 0, 512" % S(sC0))
        a("s_cselect_b32 %s, 512, 0" % S(sC1))
        a("s_cselect_b32 %s, 0, %d" % (S(sT0), ncu))
        a("s_sub_u32 %s, %s, %s" % (S(sREP), S(sREP), S(sT0)))
    else:
        a("s_mov_b32 %s, 0" % S(sC0)); a("s_mov_b32 %s, 0" % S(sC1))
    misc_block_pick(a, tag, ncu, VOFF, V0, V1, T1, T2, flag_of, target)
    a("s_cmp_eq_u32 %s, 3" % S(sDEC)); a("s_cbranch_scc1 %s" % Ld)
    misc_take(a)
    loads(a)
    a.label(Lj)
    a("s_mov_b32 %s, %s\ns_mov_b32 %s, %s\ns_mov_b32 %s, %s\ns_mov_b32 %s, %s" % (S(sJL), S(sML), S(sJS), S(sMS), S(sFLJ), S(sMFL), S(sX1), S(sMSUB)))
    misc_cands(a, ncu, flag_of)
    misc_sample(a, VOFF, V0, V1)
    a("s_waitcnt vmcnt(2)")
    compute(a)
    a("s_waitcnt vmcnt(%d)" % compute.nst)
    a("s_cmp_eq_u32 %s, 0" % S(sW)); a("s_cbranch_scc0 %s" % Lw)
    misc_decide(a, V0, V1, target)
    bcast_write(a, T1, T2)
    a.label(Lw)
    a("s_barrier")
    bcast_read(a, T1, T2)
    a("s_sub_u32 %s, %s, 1" % (S(sT0), S(sDEC)))
    a("s_cmp_lt_u32 %s, 2" % S(sT0))
    a("s_cbranch_scc0 %s" % Llate)
    misc_take(a)
    loads(a)
    a("s_waitcnt vmcnt(%d)" % nloads)
    Ls1 = a.newlabel(tag + 's1')
    a("s_cmp_eq_u32 s78, 0"); a("s_cbranch_scc1 %s" % Ls1)
    wg_signal(a, T1, T2, "s78")
    a.label(Ls1)
    trace_fn(a)
    a("s_branch %s" % Lj)
    a.label(Llate)
    a("s_waitcnt vmcnt(0)")
    Ls2 = a.newlabel(tag + 's2')
    a("s_cmp_eq_u32 s78, 0"); a("s_cbranch_scc1 %s" % Ls2)
    wg_signal(a, T1, T2, "s78")
    a.label(Ls2)
    trace_fn(a)
    misc_block_pick(a, tag, ncu, VOFF, V0, V1, T1, T2, flag_of, target)
    a("s_cmp_eq_u32 %s, 3" % S(sDEC)); a("s_cbranch_scc1 %s" % Ld)
    misc_take(a)
    loads(a)
    a("s_branch %s" % Lj)
    a.label(Ld)
    a("s_waitcnt vmcnt(0)")
    a("s_branch L_exit")

def wave_allsum(a, x, t):
    for rr in (8, 4, 2, 1):
        a("v_add_f32_dpp %s, %s, %s row_ror:%d row_mask:0xf bank_mask:0xf" % (R(x), R(x), R(x), rr))
    a("v_mov_b32 %s, %s" % (R(t), R(x)))
    a("v_permlane16_swap_b32 %s, %s" % (R(x), R(t)))
    a("v_add_f32 %s, %s, %s" % (R(x), R(x), R(t)))
    a("v_mov_b32 %s, %s" % (R(t), R(x)))
    a("v_permlane32_swap_b32 %s, %s" % (R(x), R(t)))
    a("v_add_f32 %s, %s, %s" % (R(x), R(x), R(t)))

def rnd_bf(a, x, t=None):
    a("v_cvt_pk_bf16_f32 %s, %s, %s" % (R(x), R(x), R(x)))
    a("v_and_b32 %s, 0xffff0000, %s" % (R(x), R(x)))

def unpack4(a, dst, src):
    a("v_lshlrev_b32 %s, 16, %s" % (R(dst), R(src)))
    a("v_and_b32 %s, 0xffff0000, %s" % (R(dst + 1), R(src)))
    a("v_lshlrev_b32 %s, 16, %s" % (R(dst + 2), R(src + 1)))
    a("v_and_b32 %s, 0xffff0000, %s" % (R(dst + 3), R(src + 1)))

def ln_row(a, X, PKH, M, V_, T):
    a("v_add_f32 %s, %s, %s" % (R(M), R(X), R(X + 1)))
    a("v_add_f32 %s, %s, %s" % (R(T), R(X + 2), R(X + 3)))
    a("v_add_f32 %s, %s, %s" % (R(V_), R(X + 4), R(X + 5)))
    a("v_add_f32 %s, %s, %s" % (R(M), R(M), R(T)))
    a("v_add_f32 %s, %s, %s" % (R(T), R(X + 6), R(X + 7)))
    a("v_add_f32 %s, %s, %s" % (R(V_), R(V_), R(T)))
    a("v_add_f32 %s, %s, %s" % (R(M), R(M), R(V_)))
    wave_allsum(a, M, T)
    a("v_mul_f32 %s, 0x%x, %s" % (R(M), f32(1.0 / 512), R(M)))
    D = PKH + 4
    for i in range(8): a("v_sub_f32 %s, %s, %s" % (R(D + i), R(X + i), R(M)))
    a("v_mul_f32 %s, %s, %s" % (R(V_), R(D), R(D)))
    for i in range(1, 8): a("v_fmac_f32 %s, %s, %s" % (R(V_), R(D + i), R(D + i)))
    wave_allsum(a, V_, T)
    a("v_mul_f32 %s, 0x%x, %s" % (R(V_), f32(1.0 / 512), R(V_)))
    rnd_bf(a, M); rnd_bf(a, V_)
    a("v_add_f32 %s, 0x%x, %s" % (R(V_), f32(1e-5), R(V_)))
    rnd_bf(a, V_)
    a("v_sqrt_f32 %s, %s" % (R(V_), R(V_)))
    rnd_bf(a, V_)
    a("v_rcp_f32 %s, %s" % (R(V_), R(V_)))
    for i in range(8): a("v_sub_f32 %s, %s, %s" % (R(D + i), R(X + i), R(M)))
    for i in range(0, 8, 2):
        a("v_cvt_pk_bf16_f32 %s, %s, %s" % (R(T), R(D + i), R(D + i + 1)))
        a("v_lshlrev_b32 %s, 16, %s" % (R(D + i), R(T)))
        a("v_and_b32 %s, 0xffff0000, %s" % (R(D + i + 1), R(T)))
    for i in range(8): a("v_mul_f32 %s, %s, %s" % (R(D + i), R(D + i), R(V_)))
    for i in range(4): a("v_cvt_pk_bf16_f32 %s, %s, %s" % (R(PKH + i), R(D + 2 * i), R(D + 2 * i + 1)))

RL, RV8, RV16, RT1, RT2, RFL = 0, 1, 2, 13, 14, 3
RP = 16
RX = 48
RXF = 52
RPK = 64
RM, RVv, RT = 80, 81, 82

def row_setup(a):
    a("v_lshlrev_b32 %s, 3, %s" % (R(RV8), R(RL)))
    a("v_lshlrev_b32 %s, 4, %s" % (R(RV16), R(RL)))

def r0_phase(a, nwaves, s_wid):
    Lj = a.newlabel('r0'); Ld = a.newlabel('r0d')
    a("s_mov_b32 %s, %s" % (S(sX0), S(s_wid)))
    a("s_mov_b32 %s, 0" % S(sPAR2))
    a.label(Lj)
    a("s_cmp_ge_u32 %s, 2048" % S(sX0))
    a("s_cbranch_scc1 %s" % Ld)
    a("s_lshl_b32 %s, %s, 10" % (S(sT0), S(sX0)))
    a("buffer_load_dwordx2 %s, %s, %s, %s offen" % (RR(RX, 2), R(RV8), SR(sB, 4), S(sT0)))
    a("buffer_load_dwordx2 %s, %s, %s, %s offen offset:512" % (RR(RX + 2, 2), R(RV8), SR(sB, 4), S(sT0)))
    a("s_waitcnt vmcnt(0)")
    unpack4(a, RXF, RX); unpack4(a, RXF + 4, RX + 2)
    ln_row(a, RXF, RPK, RM, RVv, RT)
    a("s_add_u32 %s, %s, %d" % (S(sT0), S(sT0), WS_HN))
    a("buffer_store_dwordx2 %s, %s, %s, %s offen sc1" % (RR(RPK, 2), R(RV8), SR(sWS, 4), S(sT0)))
    a("buffer_store_dwordx2 %s, %s, %s, %s offen offset:512 sc1" % (RR(RPK + 2, 2), R(RV8), SR(sWS, 4), S(sT0)))
    a("s_lshr_b32 %s, %s, 5" % (S(sT1), S(sX0)))
    a("s_mul_i32 %s, %s, %d" % (S(sT1), S(sT1), JOBFLAG_BYTES))
    a("s_add_u32 %s, %s, %d" % (S(sT1), S(sT1), WS_FLAGS + FL_H))
    a("s_waitcnt vmcnt(0)")
    wg_signal(a, RT1, RT2, S(sT1))
    a("s_add_u32 %s, %s, %d" % (S(sX0), S(sX0), nwaves))
    a("s_branch %s" % Lj)
    a.label(Ld)

def r_role(a, which, ncu):
    tag = 'r%d' % which
    NP = 4 if which == 3 else 2
    RT3 = 15
    RXN = 92
    a("v_mov_b32 %s, 0" % R(RFL))
    a("s_mov_b32 %s, %s" % (S(sREP), S(sAUX)))
    def flag_of(a, sd, sg, lay):
        a("s_lshr_b32 %s, %s, 3" % (S(sd), S(sg)))
        if lay: a("s_add_u32 %s, %s, 64" % (S(sd), S(sd)))
        a("s_mul_i32 %s, %s, %d" % (S(sd), S(sd), JOBFLAG_BYTES))
        a("s_add_u32 %s, %s, %d" % (S(sd), S(sd), WS_FLAGS + (FL_P3 if which == 3 else FL_P5)))
    def loads(a):
        base, ls, jb = (WS_P3, P3_L, P3_JOB) if which == 3 else (WS_P5, P5_L, P5_JOB)
        job_off2(a, sIN, base, ls, jb, sML, sMS)
        a("s_lshl_b32 %s, %s, 11" % (S(sT0), S(sMSUB)))
        a("s_add_u32 %s, %s, %s" % (S(sIN), S(sIN), S(sT0)))
        for p in range(NP):
            a("buffer_load_dwordx4 %s, %s, %s, %s offen sc1" % (RR(RP + 8 * p, 4), R(RV16), SR(sWS, 4), S(sIN)))
            a("buffer_load_dwordx4 %s, %s, %s, %s offen offset:1024 sc1" % (RR(RP + 8 * p + 4, 4), R(RV16), SR(sWS, 4), S(sIN)))
            if p + 1 < NP: a("s_add_u32 %s, %s, 65536" % (S(sIN), S(sIN)))
        a("s_lshl_b32 %s, %s, 5" % (S(sT1), S(sMS)))
        a("s_add_u32 %s, %s, %s" % (S(sT1), S(sT1), S(sMSUB)))
        a("s_lshl_b32 %s, %s, 10" % (S(sT1), S(sT1)))
        if which == 3:
            La = a.newlabel('rin'); Lb = a.newlabel('rin')
            a("s_cmp_eq_u32 %s, 0" % S(sML))
            a("s_cbranch_scc0 %s" % La)
            a("buffer_load_dwordx2 %s, %s, %s, %s offen" % (RR(RXN, 2), R(RV8), SR(sB, 4), S(sT1)))
            a("buffer_load_dwordx2 %s, %s, %s, %s offen offset:512" % (RR(RXN + 2, 2), R(RV8), SR(sB, 4), S(sT1)))
            a("s_branch %s" % Lb)
            a.label(La)
            a("s_add_u32 %s, %s, %d" % (S(sT0), S(sT1), WS_X2))
            a("buffer_load_dwordx2 %s, %s, %s, %s offen sc1" % (RR(RXN, 2), R(RV8), SR(sWS, 4), S(sT0)))
            a("buffer_load_dwordx2 %s, %s, %s, %s offen offset:512 sc1" % (RR(RXN + 2, 2), R(RV8), SR(sWS, 4), S(sT0)))
            a.label(Lb)
        else:
            a("s_mul_i32 %s, %s, %d" % (S(sT0), S(sML), X1_L))
            a("s_add_u32 %s, %s, %s" % (S(sT0), S(sT0), S(sT1)))
            a("s_add_u32 %s, %s, %d" % (S(sT0), S(sT0), WS_X1))
            a("buffer_load_dwordx2 %s, %s, %s, %s offen sc1" % (RR(RXN, 2), R(RV8), SR(sWS, 4), S(sT0)))
            a("buffer_load_dwordx2 %s, %s, %s, %s offen offset:512 sc1" % (RR(RXN + 2, 2), R(RV8), SR(sWS, 4), S(sT0)))
    def compute(a):
        Lfin = a.newlabel('rfin')
        a("s_lshl_b32 %s, %s, 5" % (S(sX2), S(sJS)))
        a("s_add_u32 %s, %s, %s" % (S(sX2), S(sX2), S(sX1)))
        a("s_lshl_b32 %s, %s, 10" % (S(sX2), S(sX2)))
        for p in range(1, NP):
            for i in range(8): a("v_add_f32 %s, %s, %s" % (R(RP + i), R(RP + i), R(RP + 8 * p + i)))
        unpack4(a, RXF, RXN); unpack4(a, RXF + 4, RXN + 2)
        for i in range(0, 8, 2):
            a("v_cvt_pk_bf16_f32 %s, %s, %s" % (R(RT), R(RP + i), R(RP + i + 1)))
            a("v_lshlrev_b32 %s, 16, %s" % (R(RP + i), R(RT)))
            a("v_and_b32 %s, 0xffff0000, %s" % (R(RP + i + 1), R(RT)))
        for i in range(8): a("v_add_f32 %s, %s, %s" % (R(RXF + i), R(RXF + i), R(RP + i)))
        for i in range(4): a("v_cvt_pk_bf16_f32 %s, %s, %s" % (R(RX + i), R(RXF + 2 * i), R(RXF + 2 * i + 1)))
        if which == 3:
            a("s_mul_i32 %s, %s, %d" % (S(sT0), S(sJL), X1_L))
            a("s_add_u32 %s, %s, %s" % (S(sT0), S(sT0), S(sX2)))
            a("s_add_u32 %s, %s, %d" % (S(sT0), S(sT0), WS_X1))
            a("buffer_store_dwordx2 %s, %s, %s, %s offen sc1" % (RR(RX, 2), R(RV8), SR(sWS, 4), S(sT0)))
            a("buffer_store_dwordx2 %s, %s, %s, %s offen offset:512 sc1" % (RR(RX + 2, 2), R(RV8), SR(sWS, 4), S(sT0)))
        else:
            L1 = a.newlabel('r5l1')
            a("s_cmp_eq_u32 %s, 0" % S(sJL))
            a("s_cbranch_scc1 %s" % L1)
            a("buffer_store_dwordx2 %s, %s, %s, %s offen" % (RR(RX, 2), R(RV8), SR(sC, 4), S(sX2)))
            a("buffer_store_dwordx2 %s, %s, %s, %s offen offset:512" % (RR(RX + 2, 2), R(RV8), SR(sC, 4), S(sX2)))
            a("s_mov_b32 s78, 0")
            a("s_waitcnt vmcnt(2)")
            a("s_branch %s" % Lfin)
            a.label(L1)
            a("s_add_u32 %s, %s, %d" % (S(sT0), S(sX2), WS_X2))
            a("buffer_store_dwordx2 %s, %s, %s, %s offen sc1" % (RR(RX, 2), R(RV8), SR(sWS, 4), S(sT0)))
            a("buffer_store_dwordx2 %s, %s, %s, %s offen offset:512 sc1" % (RR(RX + 2, 2), R(RV8), SR(sWS, 4), S(sT0)))
        unpack4(a, RXF, RX); unpack4(a, RXF + 4, RX + 2)
        ln_row(a, RXF, RPK, RM, RVv, RT)
        if which == 3:
            a("s_mul_i32 %s, %s, %d" % (S(sT0), S(sJL), H2_L))
            a("s_add_u32 %s, %s, %s" % (S(sT0), S(sT0), S(sX2)))
            a("s_add_u32 %s, %s, %d" % (S(sT0), S(sT0), WS_H2))
            a("s_add_u32 s78, %s, %d" % (S(sFLJ), WS_FLAGS + FL_H2))
        else:
            a("s_add_u32 %s, %s, %d" % (S(sT0), S(sX2), WS_HN + (HN_L if HN_L else 0)))
            a("s_add_u32 s78, %s, %d" % (S(sFLJ), WS_FLAGS + NSEG * JOBFLAG_BYTES + FL_H))
        a("buffer_store_dwordx2 %s, %s, %s, %s offen sc1" % (RR(RPK, 2), R(RV8), SR(sWS, 4), S(sT0)))
        a("buffer_store_dwordx2 %s, %s, %s, %s offen offset:512 sc1" % (RR(RPK + 2, 2), R(RV8), SR(sWS, 4), S(sT0)))
        a.label(Lfin)
    compute.nst = 4
    misc_loop(a, tag, ncu, RFL, 90, 91, RT1, RT2, flag_of, 16 if which == 3 else 8, loads, 2 * NP + 2, compute,
              lambda a: trace(a, 6 if which == 3 else 11, sJL, sJS, [(sX1, 0)], RT2, RT3, sT0))

def s2_role(a, nwaves):
    lane, T1, T2, T3 = 0, 13, 14, 15
    VL16, VFL, VO = 1, 2, 3
    QFr = lambda qt, ks: 16 + 16 * qt + 4 * ks
    KFr = lambda kt, ks: 48 + 16 * kt + 4 * ks
    VFr = lambda et: 80 + 4 * et
    KMr = lambda ks: 112 + 4 * ks
    VMr = lambda w: 128 + 4 * w
    SM_ = lambda qt: 144 + 4 * qt
    SXr = lambda qt, kt: 152 + 8 * qt + 4 * kt
    PXr = lambda qt: 168 + 4 * qt
    PMr = lambda qt: 176 + 2 * qt
    OAc = lambda qt, et: 180 + 32 * qt + 4 * et
    MX_, Z_, TT = 244, 245, 246
    sMSK = 56
    sSCALE, sL2E = 72, 73
    a("v_lshlrev_b32 %s, 4, %s" % (R(VL16), R(lane)))
    a("v_mov_b32 %s, 0" % R(VFL))
    a("v_lshrrev_b32 %s, 4, %s" % (R(T1), R(lane)))
    a("v_and_b32 %s, 15, %s" % (R(T2), R(lane)))
    a("v_lshlrev_b32 %s, 4, %s" % (R(VO), R(T2)))
    a("v_lshl_add_u32 %s, %s, 9, %s" % (R(VO), R(T1), R(VO)))
    a("v_lshlrev_b32 %s, 2, %s" % (R(T1), R(T1)))
    for i in range(4):
        a("v_add_u32 %s, %d, %s" % (R(T3), i, R(T1)))
        a("v_cmp_le_u32 %s, %s, %s" % (SR(sMSK + 2 * i, 2), R(T3), R(T2)))
    a("s_mov_b32 %s, 0x%x" % (S(sSCALE), f32(128 ** -0.5)))
    a("s_mov_b32 %s, 0x%x" % (S(sL2E), f32(1.4426950408889634)))
    a("s_mov_b32 %s, %s" % (S(sREP), S(sAUX)))
    a("v_bfe_u32 %s, %s, 1, 2" % (R(VFL), R(lane)))
    a("v_lshlrev_b32 %s, 7, %s" % (R(VFL), R(VFL)))
    a("v_and_b32 %s, 1, %s" % (R(T1), R(lane)))
    a("v_lshl_add_u32 %s, %s, 2, %s" % (R(VFL), R(T1), R(VFL)))
    def flag_of(a, sd, sg, lay):
        a("s_lshr_b32 %s, %s, 3" % (S(sd), S(sg)))
        if lay: a("s_add_u32 %s, %s, 64" % (S(sd), S(sd)))
        a("s_mul_i32 %s, %s, %d" % (S(sd), S(sd), JOBFLAG_BYTES))
        a("s_and_b32 %s, %s, 7" % (S(sT3), S(sg)))
        a("s_lshl_b32 %s, %s, 9" % (S(sT3), S(sT3)))
        a("s_add_u32 %s, %s, %s" % (S(sd), S(sd), S(sT3)))
        a("s_add_u32 %s, %s, %d" % (S(sd), S(sd), WS_FLAGS + FL_KV))
    def loads(a):
        def ldlin(dst, n):
            for i in range(n):
                a("buffer_load_dwordx4 %s, %s, %s, %s offen offset:%d sc1" % (RR(dst(i), 4), R(VL16), SR(sWS, 4), S(sIN), (i % 4) * 1024))
                if i % 4 == 3: a("s_add_u32 %s, %s, 4096" % (S(sIN), S(sIN)))
        job_off2(a, sIN, WS_KM, KM_L, KM_JOB, sML, sMS)
        a("s_lshl_b32 %s, %s, 13" % (S(sT0), S(sMSUB)))
        a("s_add_u32 %s, %s, %s" % (S(sIN), S(sIN), S(sT0)))
        ldlin(lambda i: KMr(i), 4)
        ldlin(lambda i: VMr(i), 4)
        job_off2(a, sIN, WS_QKV, QKV_L, QKV_JOB, sML, sMS)
        a("s_mul_i32 %s, %s, %d" % (S(sT0), S(sMSUB), 24 * KB))
        a("s_add_u32 %s, %s, %s" % (S(sIN), S(sIN), S(sT0)))
        ldlin(lambda i: QFr(i >> 2, i & 3), 8)
        ldlin(lambda i: KFr(i >> 2, i & 3), 8)
        ldlin(lambda i: VFr(i), 8)
    def compute(a):
        s2_compute(a)
    compute.nst = 8
    def s2_compute(a):
        def mf(d, aa, b, c): a("v_mfma_f32_16x16x32_bf16 %s, %s, %s, %s" % (RR(d, 4), RR(aa, 4), RR(b, 4), '0' if c is None else RR(c, 4)))
        for ks in range(4):
            for qt in range(2):
                mf(SM_(qt), KMr(ks), QFr(qt, ks), None if ks == 0 else SM_(qt))
            mf(SXr(0, 0), KFr(0, ks), QFr(0, ks), None if ks == 0 else SXr(0, 0))
            mf(SXr(1, 0), KFr(0, ks), QFr(1, ks), None if ks == 0 else SXr(1, 0))
            mf(SXr(1, 1), KFr(1, ks), QFr(1, ks), None if ks == 0 else SXr(1, 1))
        for qt in range(2):
            tiles = [SM_(qt), SXr(qt, 0)] + ([SXr(1, 1)] if qt == 1 else [])
            vals = [t + i for t in tiles for i in range(4)]
            for k in range(0, len(vals), 2):
                x, y = vals[k], vals[k + 1]
                a("v_cvt_pk_bf16_f32 %s, %s, %s" % (R(TT), R(x), R(y)))
                a("v_lshlrev_b32 %s, 16, %s" % (R(x), R(TT)))
                a("v_and_b32 %s, 0xffff0000, %s" % (R(y), R(TT)))
                a("v_mul_f32 %s, %s, %s" % (R(x), S(sSCALE), R(x)))
                a("v_mul_f32 %s, %s, %s" % (R(y), S(sSCALE), R(y)))
                a("v_cvt_pk_bf16_f32 %s, %s, %s" % (R(TT), R(x), R(y)))
                a("v_lshlrev_b32 %s, 16, %s" % (R(x), R(TT)))
                a("v_and_b32 %s, 0xffff0000, %s" % (R(y), R(TT)))
            dg = SXr(qt, qt)
            a("v_mov_b32 %s, 0x%x" % (R(TT), f32(-1e9)))
            for i in range(4):
                a("v_cndmask_b32 %s, %s, %s, %s" % (R(dg + i), R(TT), R(dg + i), SR(sMSK + 2 * i, 2)))
            a("v_max_f32 %s, %s, %s" % (R(MX_), R(vals[0]), R(vals[1])))
            for k in range(2, len(vals), 2):
                a("v_max3_f32 %s, %s, %s, %s" % (R(MX_), R(MX_), R(vals[k]), R(vals[k + 1])))
            for sw in (16, 32):
                a("v_mov_b32 %s, %s" % (R(TT), R(MX_)))
                a("v_permlane%d_swap_b32 %s, %s" % (sw, R(MX_), R(TT)))
                a("v_max_f32 %s, %s, %s" % (R(MX_), R(MX_), R(TT)))
            for v_ in vals:
                a("v_sub_f32 %s, %s, %s" % (R(v_), R(v_), R(MX_)))
                a("v_mul_f32 %s, %s, %s" % (R(v_), S(sL2E), R(v_)))
                a("v_exp_f32 %s, %s" % (R(v_), R(v_)))
            a("v_add_f32 %s, %s, %s" % (R(Z_), R(vals[0]), R(vals[1])))
            a("v_add_f32 %s, %s, %s" % (R(Z_), R(Z_), R(vals[2])))
            a("v_add_f32 %s, %s, %s" % (R(Z_), R(Z_), R(vals[3])))
            a("v_mul_f32 %s, 0.5, %s" % (R(Z_), R(Z_)))
            for v_ in vals[4:]: a("v_add_f32 %s, %s, %s" % (R(Z_), R(Z_), R(v_)))
            for sw in (16, 32):
                a("v_mov_b32 %s, %s" % (R(TT), R(Z_)))
                a("v_permlane%d_swap_b32 %s, %s" % (sw, R(Z_), R(TT)))
                a("v_add_f32 %s, %s, %s" % (R(Z_), R(Z_), R(TT)))
            a("v_rcp_f32 %s, %s" % (R(Z_), R(Z_)))
            for v_ in vals: a("v_mul_f32 %s, %s, %s" % (R(v_), R(v_), R(Z_)))
            a("v_cvt_pk_bf16_f32 %s, %s, %s" % (R(PMr(qt)), R(vals[0]), R(vals[1])))
            a("v_cvt_pk_bf16_f32 %s, %s, %s" % (R(PMr(qt) + 1), R(vals[2]), R(vals[3])))
            a("v_cvt_pk_bf16_f32 %s, %s, %s" % (R(PXr(qt)), R(vals[4]), R(vals[5])))
            a("v_cvt_pk_bf16_f32 %s, %s, %s" % (R(PXr(qt) + 1), R(vals[6]), R(vals[7])))
            if qt == 1:
                a("v_cvt_pk_bf16_f32 %s, %s, %s" % (R(PXr(qt) + 2), R(vals[8]), R(vals[9])))
                a("v_cvt_pk_bf16_f32 %s, %s, %s" % (R(PXr(qt) + 3), R(vals[10]), R(vals[11])))
            else:
                a("v_mov_b32 %s, 0" % R(PXr(qt) + 2)); a("v_mov_b32 %s, 0" % R(PXr(qt) + 3))
        for qt in range(2):
            for et in range(8):
                mf(OAc(qt, et), VFr(et), PXr(qt), None)
            for et in range(8):
                a("v_mfma_f32_16x16x16_bf16 %s, %s, %s, %s" % (RR(OAc(qt, et), 4), RR(VMr(et >> 1) + 2 * (et & 1), 2), RR(PMr(qt), 2), RR(OAc(qt, et), 4)))
        job_off(a, sOUT, WS_O, O_L, O_JOB)
        a("s_lshl_b32 %s, %s, 13" % (S(sT0), S(sX1)))
        a("s_add_u32 %s, %s, %s" % (S(sOUT), S(sOUT), S(sT0)))
        PK = 144
        for tp in range(4):
            for qt in range(2):
                d = PK + 8 * (tp & 1) + 4 * qt
                for t in range(2):
                    o = OAc(qt, 2 * tp + t)
                    a("v_cvt_pk_bf16_f32 %s, %s, %s" % (R(d + 2 * t), R(o), R(o + 1)))
                    a("v_cvt_pk_bf16_f32 %s, %s, %s" % (R(d + 2 * t + 1), R(o + 2), R(o + 3)))
                a("buffer_store_dwordx4 %s, %s, %s, %s offen offset:%d sc1" % (RR(d, 4), R(VO), SR(sWS, 4), S(sOUT), qt * 256))
            if tp < 3: a("s_add_u32 %s, %s, 2048" % (S(sOUT), S(sOUT)))
        a("s_lshr_b32 %s, %s, 3" % (S(sT1), S(sX1)))
        a("s_lshl_b32 %s, %s, 7" % (S(sT1), S(sT1)))
        a("s_add_u32 %s, %s, %s" % (S(sT1), S(sT1), S(sFLJ)))
        a("s_add_u32 s78, %s, %d" % (S(sT1), WS_FLAGS + FL_O))
    misc_loop(a, 's2', nwaves, VFL, 250, 251, T1, T2, flag_of, 1, loads, 32, compute,
              lambda a: trace(a, 3, sJL, sJS, [(sX1, 0)], T1, T2, sT0))

NS2, NR3, NR5 = 24, 14, 14
def misc_role(a, init_target):
    a.comment("==== misc role ====")
    a("s_mov_b32 %s, %s" % (S(sAUX3), S(sX0)))
    load_srd(a, sB, 'x'); load_srd(a, sC, 'out')
    signal_init(a, RT1, RT2)
    a("s_waitcnt lgkmcnt(0)")
    finish_srd(a, sB, 'x'); finish_srd(a, sC, 'out')
    row_setup(a)
    wait_init(a, RT1, RT2, init_target)
    a("s_lshl_b32 %s, %s, 2" % (S(sAUX2), S(sAUX3)))
    a("s_add_u32 %s, %s, %s" % (S(sAUX2), S(sAUX2), S(sW)))
    r0_phase(a, 4 * (NS2 + NR3 + NR5), sAUX2)
    a("s_cmp_lt_u32 %s, %d" % (S(sAUX3), NS2))
    a("s_cbranch_scc1 L_s2")
    a("s_cmp_lt_u32 %s, %d" % (S(sAUX3), NS2 + NR3))
    a("s_cbranch_scc1 L_r3")
    a("s_sub_u32 %s, %s, %d" % (S(sAUX), S(sAUX3), NS2 + NR3))
    r_role(a, 5, NR5)
    a.label("L_r3")
    a("s_sub_u32 %s, %s, %d" % (S(sAUX), S(sAUX3), NS2))
    r_role(a, 3, NR3)
    a.label("L_s2")
    a("s_mov_b32 %s, %s" % (S(sAUX), S(sAUX3)))
    s2_role(a, NS2)
```

```python
import sys
from common import *
import chain, bulk, misc
from bulk import sX0, sX1, sX2, sT0
def build(timing=0, opt=None, zero_flags=True):
    a = Asm()
    prologue(a, zero_flags=zero_flags)
    INIT = 256
    a("s_cmp_lt_u32 %s, 2" % S(sXCC)); a("s_cbranch_scc1 L_chain")
    a("s_cmp_lt_u32 %s, 4" % S(sXCC)); a("s_cbranch_scc1 L_s1j")
    a("s_cmp_eq_u32 %s, 4" % S(sXCC)); a("s_cbranch_scc0 L_n4")
    a("s_mov_b32 %s, %s" % (S(sX0), S(sTICK)))
    a("s_branch L_miscj")
    a.label("L_n4")
    a("s_cmp_lt_u32 %s, 7" % S(sXCC)); a("s_cbranch_scc0 L_x7")
    a("s_sub_u32 %s, %s, 5" % (S(sX0), S(sXCC)))
    a("s_cmp_lt_u32 %s, 16" % S(sTICK)); a("s_cbranch_scc0 L_x56b")
    a("s_lshr_b32 %s, %s, 2" % (S(sX1), S(sTICK))); a("s_and_b32 %s, %s, 3" % (S(sX2), S(sTICK)))
    a("s_branch L_s3j")
    a.label("L_x56b")
    a("s_cmp_lt_u32 %s, 30" % S(sTICK)); a("s_cbranch_scc0 L_x56c")
    a("s_sub_u32 %s, %s, 16" % (S(sX1), S(sTICK)))
    a("s_branch L_s4j")
    a.label("L_x56c")
    a("s_lshl_b32 %s, %s, 1" % (S(sX0), S(sX0)))
    a("s_add_u32 %s, %s, %s" % (S(sX0), S(sX0), S(sTICK)))
    a("s_add_u32 %s, %s, 2" % (S(sX0), S(sX0)))
    a("s_branch L_miscj")
    a.label("L_x7")
    a("s_cmp_lt_u32 %s, 16" % S(sTICK)); a("s_cbranch_scc0 L_x7b")
    a("s_lshr_b32 %s, %s, 3" % (S(sX0), S(sTICK)))
    a("s_bfe_u32 %s, %s, 0x10002" % (S(sX1), S(sTICK)))
    a("s_and_b32 %s, %s, 3" % (S(sX2), S(sTICK)))
    a("s_branch L_s5j")
    a.label("L_x7b")
    a("s_add_u32 %s, %s, 20" % (S(sX0), S(sTICK)))
    a("s_branch L_miscj")
    a.label("L_chain"); chain.chain_role(a, INIT, timing, opt)
    a.label("L_s1j"); bulk.s1_role(a, INIT)
    a.label("L_s3j"); bulk.s35_role(a, 3, INIT)
    a.label("L_s5j"); bulk.s35_role(a, 5, INIT)
    a.label("L_s4j"); bulk.s4_role(a, INIT)
    a.label("L_miscj"); misc.misc_role(a, INIT)
    a.label("L_exit")
    a("s_endpgm")
    body = a.render()
    return HEADER.format(name=KNAME) + body + FOOTER.format(name=KNAME), a.nnops
if __name__ == "__main__":
    src, n = build()
    hdr = open("cdna_kernels/" + KNAME[:-7] + ".s.ref").read().split("; Override launch")[0]
    out = sys.argv[1] if len(sys.argv) > 1 else "full.s"
    open(out, "w").write(hdr + src)
    print("nops", n, "lines", src.count("\n"), "bytes", len(src))
```

```python
from common import *
import struct
def f32(x): return struct.unpack('<I', struct.pack('<f', x))[0]

GATEB = 8
PF_S1 = False
AHEAD = 0
DEDICATED = False
CYC = []
D_S1 = 14
D_POST = 13
GATES1 = 0
sREP, sAUX, sC0, sC1, sJL, sJS, sN, sD0 = 32, 33, 34, 35, 36, 37, 38, 39
sT0, sT1, sT2, sT3, sT4 = 40, 41, 42, 43, 44
sAUX2, sAUX3 = 45, 46
sFLJ = 47
sIN, sOUT = 48, 49
sK = 50
sLDSW = 51
sX0, sX1, sX2, sX3 = 52, 53, 54, 55

def sched_init(a, nrep, d0, rep_sgpr):
    a("s_mov_b32 %s, %s" % (S(sREP), S(rep_sgpr)))
    a("s_mov_b32 %s, 0" % S(sC0)); a("s_mov_b32 %s, 0" % S(sC1))
    if 64 % nrep == 0:
        a("s_mov_b32 %s, %d" % (S(sN), 64 // nrep))
    else:
        assert nrep == 3
        a("s_cmp_eq_u32 %s, 0" % S(sREP))
        a("s_cselect_b32 %s, 22, 21" % S(sN))
    a("s_mov_b32 %s, %d" % (S(sD0), d0))

def sched_layer(a, s_layer):
    a("s_mov_b32 %s, 0" % S(sREP))
    a("s_mov_b32 %s, 64" % S(sN))
    a("s_cmp_eq_u32 %s, 0" % S(s_layer))
    a("s_cselect_b32 %s, 0, 64" % S(sC0))
    a("s_cselect_b32 %s, 64, 0" % S(sC1))

def sched_next(a, nrep, Ldone):
    L0 = a.newlabel('j0'); L1 = a.newlabel('j1'); Le = a.newlabel('je')
    a("s_cmp_lt_u32 %s, %s" % (S(sC0), S(sN)))
    a("s_cbranch_scc0 %s" % L1)
    a("s_cmp_lt_u32 %s, %s" % (S(sC0), S(sD0)))
    a("s_cbranch_scc1 %s" % L0)
    a("s_sub_u32 %s, %s, %s" % (S(sT0), S(sC0), S(sD0)))
    a("s_cmp_le_u32 %s, %s" % (S(sC1), S(sT0)))
    a("s_cbranch_scc1 %s" % L1)
    a.label(L0)
    a("s_mov_b32 %s, 0" % S(sJL))
    a("s_mul_i32 %s, %s, %d" % (S(sJS), S(sC0), nrep))
    a("s_add_u32 %s, %s, 1" % (S(sC0), S(sC0)))
    a("s_branch %s" % Le)
    a.label(L1)
    a("s_cmp_lt_u32 %s, %s" % (S(sC1), S(sN)))
    a("s_cbranch_scc0 %s" % Ldone)
    a("s_mov_b32 %s, 1" % S(sJL))
    a("s_mul_i32 %s, %s, %d" % (S(sJS), S(sC1), nrep))
    a("s_add_u32 %s, %s, 1" % (S(sC1), S(sC1)))
    a.label(Le)
    a("s_add_u32 %s, %s, %s" % (S(sJS), S(sJS), S(sREP)))
    a("s_lshl_b32 %s, %s, 6" % (S(sT0), S(sJL)))
    a("s_add_u32 %s, %s, %s" % (S(sT0), S(sT0), S(sJS)))
    a("s_mul_i32 %s, %s, %d" % (S(sFLJ), S(sT0), JOBFLAG_BYTES))

def job_off(a, sdst, base, lstride, job, extra_sgpr=None):
    a("s_mul_i32 %s, %s, %d" % (S(sdst), S(sJS), job))
    if lstride:
        a("s_mul_i32 %s, %s, %d" % (S(sT4), S(sJL), lstride))
        a("s_add_u32 %s, %s, %s" % (S(sdst), S(sdst), S(sT4)))
    a("s_add_u32 %s, %s, %d" % (S(sdst), S(sdst), base))
    if extra_sgpr is not None:
        a("s_add_u32 %s, %s, %s" % (S(sdst), S(sdst), S(extra_sgpr)))

def flag_store(a, vt0, vt1, soff):
    a("v_mov_b32 %s, 1" % R(vt0))
    a("v_mov_b32 %s, 0" % R(vt1))
    a("s_mov_b64 exec, 1")
    a("buffer_store_dword %s, %s, %s, %s offen sc1" % (R(vt0), R(vt1), SR(sWS, 4), soff))
    a("s_mov_b64 exec, -1")

def load_frags32(a, frags, vrow, vtr, ringslots=32, pre=None, hook=None):
    n = len(frags)
    def issue(c):
        srd, soff, _ = frags[c]
        soff(a, sK)
        a("s_add_u32 m0, %s, %d" % (S(sLDSW), (c % ringslots) * 1024))
        a("buffer_load_dwordx4 %s, %s, %s offen lds" % (R(vrow), SR(srd, 4), S(sK)))
    a("s_waitcnt vmcnt(0)")
    if pre: pre()
    for c in range(min(ringslots, n)): issue(c)
    G = 4
    for c0 in range(0, n, G):
        cs = list(range(c0, min(c0 + G, n)))
        issued = min(c0 + ringslots, n)
        a("s_waitcnt vmcnt(%d)" % (issued - cs[-1] - 1))
        for c in cs:
            d = frags[c][2]
            off = (c % ringslots) * 1024
            a("ds_read_b64_tr_b16 %s, %s offset:%d" % (RR(d, 2), R(vtr), off))
            a("ds_read_b64_tr_b16 %s, %s offset:%d" % (RR(d + 2, 2), R(vtr), off + 256))
        a("s_waitcnt lgkmcnt(0)")
        for c in cs:
            if c + ringslots < n: issue(c + ringslots)
        if hook: hook(c0)

def setup_tr32(a, lane, vtr, t1, t2):
    a("s_lshl_b32 %s, %s, 15" % (S(sLDSW), S(sW)))
    a("v_lshrrev_b32 %s, 5, %s" % (R(t1), R(lane)))
    a("v_lshlrev_b32 %s, 3, %s" % (R(t1), R(t1)))
    a("v_bfe_u32 %s, %s, 2, 2" % (R(t2), R(lane)))
    a("v_add_u32 %s, %s, %s" % (R(t1), R(t1), R(t2)))
    a("v_lshlrev_b32 %s, 6, %s" % (R(t1), R(t1)))
    a("v_bfe_u32 %s, %s, 4, 1" % (R(t2), R(lane)))
    a("v_lshl_add_u32 %s, %s, 5, %s" % (R(t1), R(t2), R(t1)))
    a("v_and_b32 %s, 3, %s" % (R(t2), R(lane)))
    a("v_lshl_add_u32 %s, %s, 3, %s" % (R(t1), R(t2), R(t1)))
    a("v_add_u32 %s, %s, %s" % (R(vtr), S(sLDSW), R(t1)))

def setup_rowtile(a, lane, AF, VD, t1, t2, t3):
    a("v_and_b32 %s, 31, %s" % (R(t1), R(lane)))
    a("v_lshrrev_b32 %s, 5, %s" % (R(t2), R(lane)))
    a("v_and_b32 %s, 15, %s" % (R(t3), R(lane)))
    for j in range(8):
        a("v_add_u32 %s, %d, %s" % (R(AF + j), 2 * j, R(t2)))
        a("v_xor_b32 %s, %s, %s" % (R(AF + j), R(AF + j), R(t3)))
        a("v_lshlrev_b32 %s, 4, %s" % (R(AF + j), R(AF + j)))
        a("v_lshl_add_u32 %s, %s, 8, %s" % (R(AF + j), R(t1), R(AF + j)))
    for t in range(2):
        a("v_lshrrev_b32 %s, 4, %s" % (R(t1), R(lane)))
        a("v_add_u32 %s, %d, %s" % (R(t1), 4 * t, R(t1)))
        a("s_lshl_b32 %s, %s, 3" % (S(sT0), S(sW)))
        a("v_add_u32 %s, %s, %s" % (R(t2), S(sT0), R(t1)))
        a("v_and_b32 %s, 15, %s" % (R(t2), R(t2)))
        a("v_xor_b32 %s, %s, %s" % (R(t2), R(t2), R(t3)))
        a("v_lshlrev_b32 %s, 4, %s" % (R(t2), R(t2)))
        a("v_lshl_add_u32 %s, %s, 10, %s" % (R(VD + t), R(t1), R(t2)))

def rowtile_dma(a, VD, s_src, buf):
    a("s_lshl_b32 %s, %s, 13" % (S(sT0), S(sW)))
    a("s_add_u32 %s, %s, %s" % (S(sT0), S(sT0), S(s_src)))
    a("s_lshl_b32 %s, %s, 11" % (S(sT1), S(sW)))
    for b in range(4):
        for t in range(2):
            a("s_add_u32 m0, %s, %d" % (S(sT1), buf + b * 8192 + t * 1024))
            a("buffer_load_dwordx4 %s, %s, %s offen sc1 lds" % (R(VD + t), SR(sWS, 4), S(sT0)))
        if b < 3: a("s_add_u32 %s, %s, 256" % (S(sT0), S(sT0)))

def S_mf32x(d, aa, b, c):
    return "v_mfma_f32_32x32x16_bf16 %s, %s, %s, %s" % (RR(d, 16), RR(aa, 4), RR(b, 4), '0' if c is None else RR(c, 16))
def rowtile_items(VD, ssrc, sbuf):
    out = [["s_lshl_b32 s77, %s, 13" % S(sW), "s_add_u32 s77, s77, %s" % S(ssrc), "s_lshl_b32 s76, %s, 11" % S(sW), "s_add_u32 s76, s76, %s" % S(sbuf)]]
    for b in range(4):
        for t in range(2):
            g = ["s_add_u32 m0, s76, %d" % (b * 8192 + t * 1024),
                 "buffer_load_dwordx4 %s, %s, s77 offen sc1 lds" % (R(VD + t), SR(sWS, 4))]
            if t == 1 and b < 3: g += ["s_add_u32 s77, s77, 256"]
            out.append(g)
    return out
def mf32x(a, d, aa, b, c):
    a("v_mfma_f32_32x32x16_bf16 %s, %s, %s, %s" % (RR(d, 16), RR(aa, 4), RR(b, 4), '0' if c is None else RR(c, 16)))


sNL, sNS, sNFL, sNV = 56, 57, 58, 59
sPEND, sBUF, sRDYN, sDUM = 60, 61, 62, 63
sCIN = 64
def next_job(a, nrep, tag):
    Ln = a.newlabel(tag + 'nn'); Le = a.newlabel(tag + 'ne')
    a("s_mov_b32 s65, %s\ns_mov_b32 s66, %s\ns_mov_b32 s67, %s" % (S(sJL), S(sJS), S(sFLJ)))
    sched_next(a, nrep, Ln)
    a("s_mov_b32 %s, %s\ns_mov_b32 %s, %s\ns_mov_b32 %s, %s\ns_mov_b32 %s, 1" % (S(sNL), S(sJL), S(sNS), S(sJS), S(sNFL), S(sFLJ), S(sNV)))
    a("s_branch %s" % Le)
    a.label(Ln)
    a("s_mov_b32 %s, 0" % S(sNV))
    a("s_mov_b32 %s, %s" % (S(sNFL), S(sFLJ)))
    a.label(Le)
    a("s_mov_b32 %s, s65\ns_mov_b32 %s, s66\ns_mov_b32 %s, s67" % (S(sJL), S(sJS), S(sFLJ)))

LDS_DEC = LDS_CNT + 16
sF0, sF1, sDEC = 65, 66, 67
def cand_addrs(a, nrep, in_flag_off):
    for c, f, lay in ((sC0, sF0, 0), (sC1, sF1, 1)):
        a("s_mul_i32 %s, %s, %d" % (S(sT0), S(c), nrep))
        a("s_add_u32 %s, %s, %s" % (S(sT0), S(sT0), S(sREP)))
        a("s_min_u32 %s, %s, 63" % (S(sT0), S(sT0)))
        if lay: a("s_add_u32 %s, %s, 64" % (S(sT0), S(sT0)))
        a("s_mul_i32 %s, %s, %d" % (S(sT0), S(sT0), JOBFLAG_BYTES))
        in_flag_off(a, f, sT0)

def decide(a, V0, V1, target, prio):
    a("v_readfirstlane_b32 %s, %s" % (S(sT0), R(V0)))
    a("v_readfirstlane_b32 %s, %s" % (S(sT1), R(V1)))
    a("s_cmp_ge_u32 %s, %d" % (S(sT0), target)); a("s_cselect_b32 %s, 1, 0" % S(sT0))
    a("s_cmp_lt_u32 %s, %s" % (S(sC0), S(sN))); a("s_cselect_b32 %s, %s, 0" % (S(sT0), S(sT0)))
    a("s_cmp_ge_u32 %s, %d" % (S(sT1), target)); a("s_cselect_b32 %s, 2, 0" % S(sT1))
    a("s_cmp_lt_u32 %s, %s" % (S(sC1), S(sN))); a("s_cselect_b32 %s, %s, 0" % (S(sT1), S(sT1)))
    if prio == 1 and AHEAD:
        a("s_add_u32 %s, %s, %d" % (S(sT2), S(sC1), AHEAD))
        a("s_cmp_lt_u32 %s, %s" % (S(sC0), S(sT2))); a("s_cselect_b32 %s, %s, 0" % (S(sT0), S(sT0)))
    first, second = (sT0, sT1) if prio == 0 else (sT1, sT0)
    a("s_cmp_lg_u32 %s, 0" % S(first))
    a("s_cselect_b32 %s, %s, %s" % (S(sDEC), S(first), S(second)))
    a("s_add_u32 %s, %s, %s" % (S(sT2), S(sC0), S(sC1)))
    a("s_lshl_b32 %s, %s, 1" % (S(sT3), S(sN)))
    a("s_cmp_ge_u32 %s, %s" % (S(sT2), S(sT3)))
    a("s_cselect_b32 %s, 3, %s" % (S(sDEC), S(sDEC)))

def take_job(a, nrep, sl, ss, sfl):
    a("s_sub_u32 %s, %s, 1" % (S(sl), S(sDEC)))
    a("s_cmp_eq_u32 %s, 0" % S(sl))
    a("s_cselect_b32 %s, %s, %s" % (S(sT0), S(sC0), S(sC1)))
    a("s_mul_i32 %s, %s, %d" % (S(ss), S(sT0), nrep))
    a("s_add_u32 %s, %s, %s" % (S(ss), S(ss), S(sREP)))
    a("s_xor_b32 %s, %s, 1" % (S(sT0), S(sl)))
    a("s_add_u32 %s, %s, %s" % (S(sC0), S(sC0), S(sT0)))
    a("s_add_u32 %s, %s, %s" % (S(sC1), S(sC1), S(sl)))
    a("s_lshl_b32 %s, %s, 6" % (S(sT0), S(sl)))
    a("s_add_u32 %s, %s, %s" % (S(sT0), S(sT0), S(ss)))
    a("s_mul_i32 %s, %s, %d" % (S(sfl), S(sT0), JOBFLAG_BYTES))

def bcast_write(a, T1, T2):
    a("v_mov_b32 %s, %d" % (R(T1), LDS_DEC))
    a("v_mov_b32 %s, %s" % (R(T2), S(sDEC)))
    a("ds_write_b32 %s, %s" % (R(T1), R(T2)))
    a("s_waitcnt lgkmcnt(0)")
def bcast_read(a, T1, T2):
    a("v_mov_b32 %s, %d" % (R(T1), LDS_DEC))
    a("ds_read_b32 %s, %s" % (R(T2), R(T1)))
    a("s_waitcnt lgkmcnt(0)")
    a("v_readfirstlane_b32 %s, %s" % (S(sDEC), R(T2)))

def blocking_pick(a, tag, nrep, VZ, V0, V1, T1, T2, in_flag_off, target, prio):
    Lb = a.newlabel(tag + 'bp'); Lp = a.newlabel(tag + 'bpl'); Ld = a.newlabel(tag + 'bpd')
    a("s_cmp_eq_u32 %s, 0" % S(sW)); a("s_cbranch_scc0 %s" % Lb)
    cand_addrs(a, nrep, in_flag_off)
    a.label(Lp)
    a("buffer_load_dword %s, %s, %s, %s offen sc1" % (R(V0), R(VZ), SR(sWS, 4), S(sF0)))
    a("buffer_load_dword %s, %s, %s, %s offen sc1" % (R(V1), R(VZ), SR(sWS, 4), S(sF1)))
    a("s_waitcnt vmcnt(0)")
    decide(a, V0, V1, target, prio)
    a("s_cmp_lg_u32 %s, 0" % S(sDEC)); a("s_cbranch_scc1 %s" % Ld)
    a("s_add_u32 %s, %s, 1" % (S(sTMO), S(sTMO)))
    a("s_cmp_gt_u32 %s, %d" % (S(sTMO), TIMEOUT))
    a("s_cselect_b32 %s, 3, 0" % S(sDEC))
    a("s_cbranch_scc1 %s" % Ld)
    a("s_sleep 1")
    a("s_branch %s" % Lp)
    a.label(Ld)
    bcast_write(a, T1, T2)
    a.label(Lb)
    a("s_barrier")
    bcast_read(a, T1, T2)

def wave0_signal(a, T1, T2, s_addr):
    L = a.newlabel('w0s')
    a("s_cmp_eq_u32 %s, 0" % S(sW)); a("s_cbranch_scc0 %s" % L)
    a("s_mov_b64 exec, 1")
    a("v_mov_b32 %s, 1" % R(T1))
    a("v_mov_b32 %s, 0" % R(T2))
    a("buffer_atomic_add %s, %s, %s, %s offen" % (R(T1), R(T2), SR(sWS, 4), s_addr))
    a("s_mov_b64 exec, -1")
    a.label(L)

def run_stream(a, L, steps, fill):
    names = {}
    slot = 0
    for need, mfs, pre in steps:
        if need is not None: L.wait(need())
        for k, m in enumerate(mfs):
            a(m)
            if k == 0 and pre is not None: pre()
            for it in fill.get(slot, []):
                if isinstance(it, str): a(it)
                elif it[0] == 'ds': names[it[2]] = L.ds(it[1])
                elif it[0] == 'wait': L.wait(names[it[1]])
            slot += 1
    return slot

sMODE = 83
sEOUT, sCOUT, sPEND2 = 78, 80, 81
def emit_items(a, L, items, names=None):
    names = {} if names is None else names
    for it in items:
        if isinstance(it, str): a(it)
        elif it[0] == 'ds': names[it[2]] = L.ds(it[1])
        elif it[0] == 'wait': L.wait(names[it[1]])

def gemm_loop(a, tag, nrep, VZ, VFV, T1, T2, in_flag_off, in_target, src_addr, dma_items, toggle, mk_steps, n_slots,
              out_addr, shadow, epi_items, epi_slots, out_flag, bufstride, nst=0, trc=None, prio=0, sig_at=None, defer_layer=1, defer_epi=True):
    if not defer_epi: assert sig_at is not None
    Lj = a.newlabel(tag + 'job'); Lw = a.newlabel(tag + 'w'); Lw2 = a.newlabel(tag + 'w2')
    Lnx = a.newlabel(tag + 'nx'); Lfin = a.newlabel(tag + 'fin')
    V0, V1 = VFV, VFV + 1
    sSRC, sCSRC, sOB, sEXM = 64, 71, 68, 72
    sW0M = 74
    def lines(fn, *args):
        out = []
        class C:
            def __call__(self, t):
                for x in t.strip().split('\n'): out.append(x.strip())
        fn(C(), *args)
        return out
    def sig(saddr):
        return ["s_cmp_lg_u32 %s, 0" % S(saddr), "s_cselect_b32 %s, %s, 0" % (S(sEXM), S(sW0M)), "v_mov_b32 %s, 1" % R(T2),
                "s_mov_b64 exec, %s" % SR(sEXM, 2),
                "buffer_atomic_add %s, %s, %s, %s offen" % (R(T2), R(VZ), SR(sWS, 4), S(saddr)),
                "s_mov_b64 exec, -1", "s_mov_b32 %s, 0" % S(saddr)]
    def samples(a):
        cand_addrs(a, nrep, in_flag_off)
        a("buffer_load_dword %s, %s, %s, %s offen sc1" % (R(V0), R(VZ), SR(sWS, 4), S(sF0)))
        a("buffer_load_dword %s, %s, %s, %s offen sc1" % (R(V1), R(VZ), SR(sWS, 4), S(sF1)))
    a("s_mov_b32 %s, 0" % S(sPEND)); a("s_mov_b32 %s, 0" % S(sPEND2))
    a("s_mov_b32 %s, %d" % (S(sEOUT), WS_SCRATCH))
    a("s_mov_b64 s[86:87], 0")
    a("s_mov_b32 %s, 0" % S(sBUF))
    a("s_cmp_eq_u32 %s, 0" % S(sW)); a("s_cselect_b32 %s, 1, 0" % S(sW0M))
    a("s_mov_b32 %s, 0" % S(sEXM + 1))
    blocking_pick(a, tag, nrep, VZ, V0, V1, T1, T2, in_flag_off, in_target, prio)
    a("s_cmp_eq_u32 %s, 3" % S(sDEC)); a("s_cbranch_scc1 %s" % Lfin)
    take_job(a, nrep, sJL, sJS, sFLJ)
    src_addr(a, sCSRC, sJL, sJS)
    for g in dma_items(sCSRC, sBUF):
        for x in g: a(x)
    samples(a)
    a("s_mov_b32 %s, 0" % S(sMODE))
    a.label(Lj)
    a("s_cmp_eq_u32 %s, 2" % S(sMODE))
    a("s_cbranch_scc1 %s" % Lw2)
    a("s_cmp_eq_u32 %s, 0" % S(sMODE))
    a("s_cbranch_scc1 %s" % Lw)
    a("s_waitcnt vmcnt(%d)" % ((2 if sig_at is None else TOPW[tag]) + (0 if defer_epi else nst)))
    a("s_branch %s" % Lw2)
    a.label(Lw)
    a("s_waitcnt vmcnt(0)")
    a.label(Lw2)
    a("s_barrier")
    if sig_at is None:
        for x in sig(sPEND2): a(x)
    if trc: trace(a, trc[0], sJL, sJS, trc[2], T1, T2, sT0)
    if trc and tag in CYC: trace(a, 12, sJL, sJS, trc[2], T1, T2, sT0, cyc=True)
    L = LdsT(a)
    steps = mk_steps(L)
    def scc_groups(ls, maxlen=4):
        out, cur = [], []
        k = 0
        while k < len(ls):
            unit = [ls[k]]
            if ls[k].startswith('s_cmp'):
                k += 1
                while k < len(ls) and ls[k].startswith(('s_cselect', 's_cbranch')):
                    unit.append(ls[k]); k += 1
            else: k += 1
            if cur and len(cur) + len(unit) > maxlen:
                out.append(cur); cur = []
            cur += unit
        if cur: out.append(cur)
        return out
    def masked(g, m):
        out = []
        vm = [k for k, it in enumerate(g) if isinstance(it, str) and it.startswith('buffer_')]
        if not vm: return list(g)
        for k, it in enumerate(g):
            if k == vm[0]: out.append("s_mov_b64 exec, %s" % SR(m, 2))
            out.append(it)
            if k == vm[-1]: out.append("s_mov_b64 exec, -1")
        return out
    Lhs = a.newlabel(tag + 'hs')
    dec = lines(decide, V0, V1, in_target, prio)
    tj = ["s_sub_u32 %s, %s, 1" % (S(sT0), S(sDEC)),
          "s_cmp_lt_u32 %s, 2" % S(sT0),
          "s_cselect_b32 %s, 1, 0" % S(sRDYN),
          "s_cselect_b32 %s, %s, 0" % (S(sNL), S(sT0)),
          "s_cmp_eq_u32 %s, 0" % S(sNL),
          "s_cselect_b32 %s, %s, %s" % (S(sT0), S(sC0), S(sC1)),
          "s_mul_i32 %s, %s, %d" % (S(sNS), S(sT0), nrep),
          "s_add_u32 %s, %s, %s" % (S(sNS), S(sNS), S(sREP)),
          "s_min_u32 %s, %s, 63" % (S(sNS), S(sNS)),
          "s_xor_b32 %s, %s, 1" % (S(sT0), S(sNL)),
          "s_and_b32 %s, %s, %s" % (S(sT0), S(sT0), S(sRDYN)),
          "s_add_u32 %s, %s, %s" % (S(sC0), S(sC0), S(sT0)),
          "s_and_b32 %s, %s, %s" % (S(sT0), S(sNL), S(sRDYN)),
          "s_add_u32 %s, %s, %s" % (S(sC1), S(sC1), S(sT0)),
          "s_lshl_b32 %s, %s, 6" % (S(sT0), S(sNL)),
          "s_add_u32 %s, %s, %s" % (S(sT0), S(sT0), S(sNS)),
          "s_mul_i32 %s, %s, %d" % (S(sNFL), S(sT0), JOBFLAG_BYTES),
          "s_xor_b32 %s, %s, %d" % (S(sOB), S(sBUF), bufstride)]
    sa = lines(src_addr, sSRC, sNL, sNS) + ["s_cmp_eq_u32 %s, 1" % S(sRDYN), "s_cselect_b32 %s, %s, %s" % (S(sSRC), S(sSRC), S(sCSRC)),
                                            "s_cselect_b64 %s, -1, 0" % SR(84, 2), "s_mov_b32 %s, %s" % (S(75), S(sSRC))]
    di = dma_items(sSRC, sOB)
    ndma = sum(1 for g in di for it in g if isinstance(it, str) and it.startswith('buffer_'))
    A = [(["s_cmp_eq_u32 %s, 2" % S(sMODE), "s_cbranch_scc1 %s" % Lhs, "s_waitcnt vmcnt(%d)" % ((1 if sig_at is None else 0) + (0 if defer_epi else nst)), Lhs + ":", dec[0], dec[1]], 1)]
    A += [(g, 0) for g in scc_groups(dec[2:])]
    A += [(["s_lshl_b32 %s, %s, 2" % (S(sT0), S(sW)), "s_add_u32 %s, %s, %d" % (S(sT0), S(sT0), LDS_DEC),
            "v_mov_b32 %s, %s" % (R(T1), S(sT0)), "v_mov_b32 %s, %s" % (R(T2), S(sDEC))], 0),
          ([('ds', "ds_write_b32 %s, %s" % (R(T1), R(T2)), 'dw')], 0),
          ([('wait', 'dw'), "s_barrier", "v_mov_b32 %s, %d" % (R(T1), LDS_DEC)], 2),
          ([('ds', "ds_read_b32 %s, %s" % (R(V0), R(T1)), 'dr')], 0),
          ([('wait', 'dr'), "v_readfirstlane_b32 %s, %s" % (S(sDEC), R(V0))], 2)]
    A += [(g, (1 if k == 0 else 0)) for k, g in enumerate(scc_groups(tj))]
    A += [(g, 0) for g in scc_groups(sa)]
    A += [(masked(g, 84), 0) for g in di]
    E = [(masked(g, 86), 0) for g in epi_items(sEOUT)] if defer_epi else []
    Zl = scc_groups(lines(out_addr, sCOUT)) + scc_groups(lines(cand_addrs, nrep, in_flag_off))
    Zl += [["buffer_load_dword %s, %s, %s, %s offen sc1" % (R(V0), R(VZ), SR(sWS, 4), S(sF0)),
            "buffer_load_dword %s, %s, %s, %s offen sc1" % (R(V1), R(VZ), SR(sWS, 4), S(sF1))]]
    fill = {}
    load = [0] * n_slots
    def place(thread, first, quota):
        sl = first
        pos = []
        for g, gap in thread:
            sl = sl + gap
            while sl < n_slots and load[sl] + len(g) > quota and load[sl] > 0: sl += 1
            assert sl < n_slots, (tag, 'thread overflow')
            fill.setdefault(sl, []).extend(g); load[sl] += len(g); pos.append(sl)
        return pos
    z0 = n_slots - 1 - len(Zl)
    for k, g in enumerate(Zl):
        fill.setdefault(z0 + k, []).extend(g); load[z0 + k] += len(g)
    if sig_at is not None:
        pe = place(E, 0, QUOTA)
        pa = place(A, 0, QUOTA)
        first_dma = pa[len(A) - len(di)]
        if pe: assert pe[-1] < first_dma, (tag, pe[-1], first_dma)
        ps = max(pa[-1] + 1, sig_at)
        ps_g = [(["s_waitcnt vmcnt(%d)" % ndma, "s_barrier"] + sig(sPEND)[:3], 0), (sig(sPEND)[3:], 0)]
        pp = place(ps_g, ps, QUOTA + 2)
        assert pp[-1] < z0, (tag, pp, z0)
    else:
        pa = place(A, 0, QUOTA)
        pe = place(E, 0, QUOTA)
        assert pe[-1] < z0 and pa[-1] < z0, (tag, pe[-1], pa[-1], z0)
    n = run_stream(a, L, steps, fill)
    assert n == n_slots, (n, n_slots)
    shadow(a)
    if trc: trace(a, trc[1], sJL, sJS, trc[2], T1, T2, sT0)
    if trc and tag in CYC: trace(a, 13, sJL, sJS, trc[2], T1, T2, sT0, cyc=True)
    if sig_at is None: a("s_mov_b32 %s, %s" % (S(sPEND2), S(sPEND)))
    out_flag(a, sT3)
    a("s_mov_b32 %s, %s" % (S(sPEND), S(sT3)))
    a("s_mov_b32 %s, %s" % (S(sEOUT), S(sCOUT)))
    a("s_mov_b64 s[86:87], -1")
    if defer_epi:
        a("s_cmp_eq_u32 %s, %d" % (S(sJL), defer_layer))
        a("s_cselect_b32 %s, %s, 0" % (S(sT0), S(sRDYN)))
        a("s_mov_b32 %s, 1" % S(sMODE))
        a("s_cmp_eq_u32 %s, 0" % S(sT0))
        a("s_cbranch_scc0 %s" % Lnx)
    else:
        L3 = LdsT(a); nm3 = {}
        for g in epi_items(sEOUT): emit_items(a, L3, g, nm3)
        a("s_mov_b32 %s, 1" % S(sMODE))
        a("s_cmp_eq_u32 %s, 0" % S(sRDYN))
        a("s_cbranch_scc0 %s" % Lnx)
    if defer_epi:
        L2 = LdsT(a); nm = {}
        for g in epi_items(sEOUT): emit_items(a, L2, g, nm)
    a("s_waitcnt vmcnt(0)")
    a("s_barrier")
    if sig_at is None:
        for x in sig(sPEND2): a(x)
    for x in sig(sPEND): a(x)
    a("s_mov_b32 %s, %d" % (S(sEOUT), WS_SCRATCH))
    a("s_mov_b64 s[86:87], 0")
    a("s_mov_b32 %s, 2" % S(sMODE))
    a("s_cmp_eq_u32 %s, 0" % S(sRDYN))
    a("s_cbranch_scc0 %s" % Lnx)
    a("s_mov_b32 %s, 0" % S(sMODE))
    blocking_pick(a, tag, nrep, VZ, V0, V1, T1, T2, in_flag_off, in_target, prio)
    a("s_cmp_eq_u32 %s, 3" % S(sDEC)); a("s_cbranch_scc1 %s" % Lfin)
    take_job(a, nrep, sNL, sNS, sNFL)
    a("s_xor_b32 %s, %s, %d" % (S(sOB), S(sBUF), bufstride))
    src_addr(a, 75, sNL, sNS)
    a("s_mov_b32 %s, %s" % (S(sSRC), S(75)))
    for g in dma_items(sSRC, sOB):
        for x in g: a(x)
    samples(a)
    a.label(Lnx)
    a("s_mov_b32 %s, %s\ns_mov_b32 %s, %s\ns_mov_b32 %s, %s" % (S(sJL), S(sNL), S(sJS), S(sNS), S(sFLJ), S(sNFL)))
    a("s_mov_b32 %s, %s" % (S(sBUF), S(sOB)))
    a("s_mov_b32 %s, %s" % (S(sCSRC), S(75)))
    toggle(a)
    a("s_branch %s" % Lj)
    a.label(Lfin)
    a("s_waitcnt vmcnt(0)")
    a("s_branch L_exit")
QUOTA = 4
TOPW = {'s1': 3, 's3': 3, 's5': 3, 's4': 3}

def job_off2(a, sdst, base, lstride, job, sl, ss):
    a("s_mul_i32 %s, %s, %d" % (S(sdst), S(ss), job))
    if lstride:
        a("s_mul_i32 %s, %s, %d" % (S(sT4), S(sl), lstride))
        a("s_add_u32 %s, %s, %s" % (S(sdst), S(sdst), S(sT4)))
    a("s_add_u32 %s, %s, %d" % (S(sdst), S(sdst), base))

def rowtile_dma2(a, VD, s_src, sbuf):
    a("s_lshl_b32 %s, %s, 13" % (S(sT0), S(sW)))
    a("s_add_u32 %s, %s, %s" % (S(sT0), S(sT0), S(s_src)))
    a("s_lshl_b32 %s, %s, 11" % (S(sT1), S(sW)))
    a("s_add_u32 %s, %s, %s" % (S(sT1), S(sT1), S(sbuf)))
    for b in range(4):
        for t in range(2):
            a("s_add_u32 m0, %s, %d" % (S(sT1), b * 8192 + t * 1024))
            a("buffer_load_dwordx4 %s, %s, %s offen sc1 lds" % (R(VD + t), SR(sWS, 4), S(sT0)))
        if b < 3: a("s_add_u32 %s, %s, 256" % (S(sT0), S(sT0)))

def s1_role(a, init_target):
    a.comment("==== S1 role ====")
    lane, T1, T2, T3 = 0, 13, 14, 15
    AF, VD, VST, VSV, VFL, VFV = 2, 10, 12, 1, 104, 105
    ACC = {'q': 16, 'k': 32, 'v': 48}
    XF = [64 + 4 * i for i in range(4)]
    PKD = 80
    def W(x, ks): return {'q': 256, 'k': 384, 'v': 128}[x] + 4 * ks
    a("s_sub_u32 %s, %s, 2" % (S(sT0), S(sXCC)))
    sched_init(a, 2, D_S1, sT0)
    a("s_mov_b32 %s, %s" % (S(sAUX), S(sTICK)))
    load_srd(a, sA, 'Wq'); load_srd(a, sB, 'Wk'); load_srd(a, sC, 'Wv')
    signal_init(a, T1, T2)
    a("s_waitcnt lgkmcnt(0)")
    finish_srd(a, sA, 'Wq'); finish_srd(a, sB, 'Wk'); finish_srd(a, sC, 'Wv')
    if GATES1: gate_wait(a, T1, T2, GATES1)
    VROW, VTR = 20, 21
    setup_tr32(a, lane, VTR, T1, T2)
    a("v_lshrrev_b32 %s, 2, %s" % (R(T1), R(lane)))
    a("v_and_b32 %s, 3, %s" % (R(T2), R(lane)))
    a("v_lshlrev_b32 %s, 4, %s" % (R(T2), R(T2)))
    a("v_lshl_add_u32 %s, %s, 13, %s" % (R(VROW), R(T1), R(T2)))
    a("s_lshl_b32 %s, %s, 8" % (S(sX0), S(sAUX)))
    a("s_lshl_b32 %s, %s, 6" % (S(sT0), S(sW)))
    a("s_add_u32 %s, %s, %s" % (S(sX0), S(sX0), S(sT0)))
    frags = []
    for x, srd in (('k', sB), ('v', sC), ('q', sA)):
        for ks in range(32):
            frags.append((srd, (lambda a_, d, ks=ks: a_("s_add_u32 %s, %s, %d" % (S(d), S(sX0), ks * 16 * 8192))), W(x, ks)))
    if PF_S1:
        a("v_lshlrev_b32 v23, 6, %s" % R(lane))
        a("s_lshl_b32 s75, %s, 2" % S(sAUX)); a("s_add_u32 s75, s75, %s" % S(sW)); a("s_lshl_b32 s75, s75, 15")
        def pf(srd, k0, k1):
            for k in range(k0, k1):
                a("s_add_u32 s76, s75, %d" % (k * 4096))
                a("buffer_load_dword v24, v23, %s, s76 offen" % SR(srd, 4))
        sched = {}
        for k in range(8): sched[4 * k] = (sC, k)
        for k in range(8): sched[32 + 4 * k] = (sA, k)
        load_frags32(a, frags, VROW, VTR, pre=lambda: pf(sB, 0, 8), hook=lambda c: pf(sched[c][0], sched[c][1], sched[c][1] + 1) if c in sched else None)
    else:
        load_frags32(a, frags, VROW, VTR)
    setup_rowtile(a, lane, AF, VD, T1, T2, T3)
    a("v_bfe_u32 %s, %s, 4, 1" % (R(T1), R(lane)))
    a("v_lshrrev_b32 %s, 5, %s" % (R(T2), R(lane)))
    a("v_and_b32 %s, 15, %s" % (R(T3), R(lane)))
    a("v_lshlrev_b32 %s, 4, %s" % (R(T3), R(T3)))
    a("v_lshl_add_u32 %s, %s, 8, %s" % (R(T3), R(T2), R(T3)))
    a("v_lshl_add_u32 %s, %s, 12, %s" % (R(VST), R(T1), R(T3)))
    a("v_lshl_add_u32 %s, %s, 10, %s" % (R(VSV), R(T1), R(T3)))
    a("v_mov_b32 %s, 0" % R(VFL))
    wait_init(a, T1, T2, init_target)
    a("s_barrier")
    def in_flag(a, sd, sf): a("s_add_u32 %s, %s, %d" % (S(sd), S(sf), WS_FLAGS + FL_H))
    def src_addr(a, sd, sl, ss): job_off2(a, sd, WS_HN, HN_L, HN_JOB, sl, ss)
    def dma_items(ssrc, sbuf): return rowtile_items(VD, ssrc, sbuf)
    def toggle(a):
        for j in range(8): a("v_xor_b32 %s, 0x8000, %s" % (R(AF + j), R(AF + j)))
    def rd(ks): return "ds_read_b128 %s, %s offset:%d" % (RR(XF[ks % 4], 4), R(AF + (ks & 7)), (ks >> 3) * 8192)
    def mk_steps(L):
        ids = {}
        for ks in range(3): ids[ks] = L.ds(rd(ks))
        steps = []
        for ks in range(32):
            x = XF[ks % 4]
            mfs = [S_mf32x(ACC['k'], W('k', ks), x, None if ks == 0 else ACC['k']),
                   S_mf32x(ACC['v'], x, W('v', ks), None if ks == 0 else ACC['v']),
                   S_mf32x(ACC['q'], W('q', ks), x, None if ks == 0 else ACC['q'])]
            def pre(ks=ks):
                if ks + 3 < 32: ids[ks + 3] = L.ds(rd(ks + 3))
            steps.append(((lambda ks=ks: ids[ks]), mfs, pre))
        return steps
    def out_addr(a, sd):
        job_off(a, sd, WS_QKV, QKV_L, QKV_JOB)
        a("s_mul_i32 %s, %s, %d" % (S(sT4), S(sAUX), 24 * KB))
        a("s_add_u32 %s, %s, %s" % (S(sd), S(sd), S(sT4)))
    def shadow(a):
        for xi, x in ((0, 'k'), (1, 'q')):
            base = PKD + 8 * xi
            for r_ in range(8):
                a("v_cvt_pk_bf16_f32 %s, %s, %s" % (R(base + r_), R(ACC[x] + 2 * r_), R(ACC[x] + 2 * r_ + 1)))
        base = PKD + 16
        for p in range(2):
            for q, b in enumerate((p, p + 2)):
                for hh in range(2):
                    a("v_cvt_pk_bf16_f32 %s, %s, %s" % (R(base + 4 * p + 2 * q + hh), R(ACC['v'] + 4 * b + 2 * hh), R(ACC['v'] + 4 * b + 2 * hh + 1)))
    def epi_items(so):
        st = lambda r_, v, off: "buffer_store_dwordx4 %s, %s, %s, s79 offen offset:%d sc1" % (RR(r_, 4), R(v), SR(sWS, 4), off)
        return [["s_lshl_b32 s82, %s, 10" % S(sW), "s_add_u32 s79, %s, s82" % S(so), "s_add_u32 s79, s79, 8192", st(PKD, VST, 0)],
                [st(PKD + 4, VST, 512)],
                ["s_add_u32 s79, s79, s82", "s_add_u32 s79, s79, 8192", st(PKD + 16, VSV, 0)],
                [st(PKD + 20, VSV, 512)],
                ["s_add_u32 s79, %s, s82" % S(so), st(PKD + 8, VST, 0)],
                [st(PKD + 12, VST, 512)]]
    def oflag(a, sd):
        a("s_lshl_b32 %s, %s, 7" % (S(sd), S(sAUX)))
        a("s_add_u32 %s, %s, %s" % (S(sd), S(sd), S(sFLJ)))
        a("s_add_u32 %s, %s, %d" % (S(sd), S(sd), WS_FLAGS + FL_KV))
    gemm_loop(a, 's1', 2, VFL, VFV, T1, T2, in_flag, 8, src_addr, dma_items, toggle, mk_steps, 96, out_addr, shadow, epi_items, (2, 2), oflag, 0x8000, trc=(0, 1, [(sAUX, 0), (sW, 0)]), prio=1, sig_at=36, defer_layer=0)

def s35_role(a, which, init_target):
    a.comment("==== S%d role ====" % which)
    tag = 's%d' % which
    NK = 64 if which == 3 else 56
    lane, T1, T2, T3 = 0, 13, 14, 15
    VL16, VTW, VTR_, VST, VFL, VFV, VRD = 1, 2, 3, 4, 5, 8, 7
    ACC = 16
    XF = [32 + 4 * i for i in range(8)]
    TRN = 64
    def W(ks): return 256 + 4 * ks
    if DEDICATED: sched_layer(a, sX0)
    else: sched_init(a, 2, 0, sX0)
    a("s_mov_b32 %s, %s" % (S(sAUX), S(sX1)))
    a("s_mov_b32 %s, %s" % (S(sAUX2), S(sX2)))
    wname = 'Wo' if which == 3 else 'Wd'
    load_srd(a, sA, wname)
    signal_init(a, T1, T2)
    a("s_waitcnt lgkmcnt(0)")
    finish_srd(a, sA, wname)
    if GATEB: gate_wait(a, T1, T2, GATEB)
    VROW, VTR = 20, 21
    setup_tr32(a, lane, VTR, T1, T2)
    a("v_bfe_u32 %s, %s, 4, 1" % (R(T1), R(lane)))
    a("v_lshlrev_b32 %s, %d, %s" % (R(T1), 4 if which == 3 else 3, R(T1)))
    a("v_bfe_u32 %s, %s, 5, 1" % (R(T2), R(lane)))
    a("v_lshl_add_u32 %s, %s, 2, %s" % (R(T1), R(T2), R(T1)))
    a("v_bfe_u32 %s, %s, 2, 2" % (R(T2), R(lane)))
    a("v_add_u32 %s, %s, %s" % (R(T1), R(T1), R(T2)))
    a("v_and_b32 %s, 3, %s" % (R(T2), R(lane)))
    a("v_lshlrev_b32 %s, 4, %s" % (R(T2), R(T2)))
    a("v_lshl_add_u32 %s, %s, 10, %s" % (R(VROW), R(T1), R(T2)))
    a("s_mul_i32 %s, %s, %d" % (S(sX0), S(sAUX), (1024 if which == 3 else 896) * 1024))
    a("s_lshl_b32 %s, %s, 8" % (S(sT0), S(sAUX2)))
    a("s_add_u32 %s, %s, %s" % (S(sX0), S(sX0), S(sT0)))
    a("s_lshl_b32 %s, %s, 6" % (S(sT0), S(sW)))
    a("s_add_u32 %s, %s, %s" % (S(sX0), S(sX0), S(sT0)))
    frags = []
    for ks in range(NK):
        m = ks & 7
        row = (ks >> 3) * 128 + (32 * (m >> 1) + (8 if which == 3 else 16) * (m & 1))
        frags.append((sA, (lambda a_, d, row=row: a_("s_add_u32 %s, %s, %d" % (S(d), S(sX0), row * 1024))), W(ks)))
    load_frags32(a, frags, VROW, VTR)
    a("v_lshlrev_b32 %s, 4, %s" % (R(VL16), R(lane)))
    a("v_mov_b32 %s, %s" % (R(VRD), R(VL16)))
    TB = 131072
    a("v_and_b32 %s, 31, %s" % (R(T1), R(lane)))
    a("v_lshrrev_b32 %s, 5, %s" % (R(T2), R(lane)))
    a("v_and_b32 %s, 7, %s" % (R(T3), R(lane)))
    a("v_xor_b32 %s, %s, %s" % (R(T2), R(T2), R(T3)))
    a("v_lshlrev_b32 %s, 4, %s" % (R(T2), R(T2)))
    a("v_lshl_add_u32 %s, %s, 7, %s" % (R(VTW), R(T1), R(T2)))
    a("s_lshl_b32 %s, %s, 12" % (S(sT0), S(sW)))
    a("s_add_u32 %s, %s, %d" % (S(sT0), S(sT0), TB))
    a("v_add_u32 %s, %s, %s" % (R(VTW), S(sT0), R(VTW)))
    a("v_lshrrev_b32 %s, 3, %s" % (R(T1), R(lane)))
    a("v_and_b32 %s, 7, %s" % (R(T2), R(lane)))
    a("v_xor_b32 %s, %s, %s" % (R(T3), R(T2), R(T1)))
    a("v_lshlrev_b32 %s, 4, %s" % (R(T3), R(T3)))
    a("v_lshl_add_u32 %s, %s, 7, %s" % (R(VTR_), R(T1), R(T3)))
    a("v_add_u32 %s, %s, %s" % (R(VTR_), S(sT0), R(VTR_)))
    a("v_lshlrev_b32 %s, 4, %s" % (R(T2), R(T2)))
    a("v_lshl_add_u32 %s, %s, 11, %s" % (R(VST), R(T1), R(T2)))
    a("v_mov_b32 %s, 0" % R(VFL))
    if which == 3:
        a("s_lshl_b32 %s, %s, 7" % (S(sX1), S(sAUX)))
        a("s_add_u32 %s, %s, %d" % (S(sX1), S(sX1), WS_FLAGS + FL_O))
        a("s_lshl_b32 %s, %s, 16" % (S(sX2), S(sAUX)))
    else:
        a("s_lshl_b32 %s, %s, 7" % (S(sX1), S(sAUX)))
        a("s_add_u32 %s, %s, %d" % (S(sX1), S(sX1), WS_FLAGS + FL_A))
        a("s_mul_i32 %s, %s, %d" % (S(sX2), S(sAUX), 7 * 8192))
    wait_init(a, T1, T2, init_target)
    a("s_barrier")
    def in_flag(a, sd, sf): a("s_add_u32 %s, %s, %s" % (S(sd), S(sf), S(sX1)))
    def src_addr(a, sd, sl, ss):
        if which == 3: job_off2(a, sd, WS_O, O_L, O_JOB, sl, ss)
        else: job_off2(a, sd, WS_ACT, ACT_L, ACT_JOB, sl, ss)
        a("s_add_u32 %s, %s, %s" % (S(sd), S(sd), S(sX2)))
    def dma_items(ssrc, sbuf):
        out = []
        per = NK // 4
        for i in range(0, per, 1):
            g = []
            if i == 0:
                g += ["s_mul_i32 s76, %s, %d" % (S(sW), per * 1024), "s_add_u32 s77, %s, s76" % S(ssrc), "s_add_u32 s76, s76, %s" % S(sbuf)]
                out.append(g); g = []
            if i % 4 == 0:
                g += ["s_add_u32 m0, s76, %d" % (i * 1024)]
                if i: g += ["s_add_u32 s77, s77, 4096"]
            for k in (i,):
                if k < per: g += ["buffer_load_dwordx4 %s, %s, s77 offen offset:%d sc1 lds" % (R(VL16), SR(sWS, 4), (k % 4) * 1024)]
            out.append(g)
        return out
    def toggle(a): a("v_xor_b32 %s, 0x10000, %s" % (R(VRD), R(VRD)))
    PF = 6
    def rd(ks): return "ds_read_b128 %s, %s offset:%d" % (RR(XF[ks % 8], 4), R(VRD), ks * 1024)
    def mk_steps(L):
        ids = {}
        for ks in range(PF): ids[ks] = L.ds(rd(ks))
        steps = []
        for ks in range(NK):
            mfs = [S_mf32x(ACC, W(ks), XF[ks % 8], None if ks == 0 else ACC)]
            def pre(ks=ks):
                if ks + PF < NK: ids[ks + PF] = L.ds(rd(ks + PF))
            steps.append(((lambda ks=ks: ids[ks]), mfs, pre))
        return steps
    SH = 80
    TX = 10
    def out_addr(a, sd):
        if which == 3: job_off(a, sd, WS_P3, P3_L, P3_JOB)
        else: job_off(a, sd, WS_P5, P5_L, P5_JOB)
        a("s_lshl_b32 %s, %s, 16" % (S(sT4), S(sAUX)))
        a("s_add_u32 %s, %s, %s" % (S(sd), S(sd), S(sT4)))
        a("s_lshl_b32 %s, %s, 9" % (S(sT4), S(sAUX2)))
        a("s_add_u32 %s, %s, %s" % (S(sd), S(sd), S(sT4)))
        a("s_lshl_b32 %s, %s, 7" % (S(sT4), S(sW)))
        a("s_add_u32 %s, %s, %s" % (S(sd), S(sd), S(sT4)))
    def shadow(a):
        for r_ in range(0, 16, 2): a("v_mov_b64 %s, %s" % (RR(SH + r_, 2), RR(ACC + r_, 2)))
    def epi_items(so):
        g = [[('ds', "ds_write_b128 %s, %s" % (R(VTW), RR(SH, 4)), 'w0'), "v_xor_b32 %s, 32, %s" % (R(TX), R(VTW))],
             [('ds', "ds_write_b128 %s, %s" % (R(TX), RR(SH + 4, 4)), 'w1')],
             ["v_xor_b32 %s, 64, %s" % (R(TX), R(VTW)), ('ds', "ds_write_b128 %s, %s" % (R(TX), RR(SH + 8, 4)), 'w2')],
             ["v_xor_b32 %s, 96, %s" % (R(TX), R(VTW)), ('ds', "ds_write_b128 %s, %s" % (R(TX), RR(SH + 12, 4)), 'w3')],
             [],
             [('wait', 'w3')] + [('ds', "ds_read_b128 %s, %s offset:%d" % (RR(TRN + 4 * t, 4), R(VTR_), t * 1024), 'r%d' % t) for t in range(4)],
             [],
             ["s_mov_b32 s79, %s" % S(so)]]
        for t in range(4):
            g.append([('wait', 'r%d' % t), "buffer_store_dwordx4 %s, %s, %s, s79 offen sc1" % (RR(TRN + 4 * t, 4), R(VST), SR(sWS, 4)), "s_add_u32 s79, s79, %d" % (8 * 2048)])
        return g
    def oflag(a, sd):
        a("s_add_u32 %s, %s, %d" % (S(sd), S(sFLJ), WS_FLAGS + (FL_P3 if which == 3 else FL_P5)))
    gemm_loop(a, tag, (1 if DEDICATED else 2), VFL, VFV, T1, T2, in_flag, (2 if which == 3 else 7), src_addr, dma_items, toggle, mk_steps, NK, out_addr, shadow, epi_items, (0, 1), oflag, 0x10000, nst=4, sig_at=26, defer_epi=False, trc=((4, 5, [(sAUX, 0), (sAUX2, 0), (sW, 0)]) if which == 3 else (9, 10, [(sAUX, 0), (sAUX2, 0), (sW, 0)])))

def s4_role(a, init_target):
    a.comment("==== S4 role ====")
    lane, T1, T2, T3 = 0, 13, 14, 15
    AF, VD, VL16, VFL, VFV = 2, 10, 12, 1, 124
    AG, AU = 16, 32
    XF = [48 + 4 * i for i in range(4)]
    G, PKD = 64, 112
    def W(x, ks): return 256 + (0 if x == 'g' else 128) + 4 * ks
    if DEDICATED: sched_layer(a, sX0)
    else: sched_init(a, 2, 0, sX0)
    a("s_mov_b32 %s, %s" % (S(sAUX), S(sX1)))
    load_srd(a, sA, 'Wg'); load_srd(a, sB, 'Wu')
    signal_init(a, T1, T2)
    a("s_waitcnt lgkmcnt(0)")
    finish_srd(a, sA, 'Wg'); finish_srd(a, sB, 'Wu')
    if GATEB: gate_wait(a, T1, T2, GATEB)
    VROW, VTR = 20, 21
    setup_tr32(a, lane, VTR, T1, T2)
    a("v_lshrrev_b32 %s, 2, %s" % (R(T1), R(lane)))
    a("s_movk_i32 %s, 3584" % S(sT0))
    a("v_mul_lo_u32 %s, %s, %s" % (R(T1), S(sT0), R(T1)))
    a("v_and_b32 %s, 3, %s" % (R(T2), R(lane)))
    a("v_lshl_add_u32 %s, %s, 4, %s" % (R(VROW), R(T2), R(T1)))
    a("s_lshl_b32 %s, %s, 8" % (S(sX0), S(sAUX)))
    a("s_lshl_b32 %s, %s, 6" % (S(sT0), S(sW)))
    a("s_add_u32 %s, %s, %s" % (S(sX0), S(sX0), S(sT0)))
    frags = []
    for x, srd in (('g', sA), ('u', sB)):
        for ks in range(32):
            frags.append((srd, (lambda a_, d, ks=ks: a_("s_add_u32 %s, %s, %d" % (S(d), S(sX0), ks * 16 * 3584))), W(x, ks)))
    load_frags32(a, frags, VROW, VTR)
    setup_rowtile(a, lane, AF, VD, T1, T2, T3)
    a("v_lshlrev_b32 %s, 4, %s" % (R(VL16), R(lane)))
    a("v_mov_b32 %s, 0" % R(VFL))
    a("s_mov_b32 %s, 0x%x" % (S(sX3), f32(-1.4426950408889634)))
    wait_init(a, T1, T2, init_target)
    a("s_barrier")
    def in_flag(a, sd, sf): a("s_add_u32 %s, %s, %d" % (S(sd), S(sf), WS_FLAGS + FL_H2))
    def src_addr(a, sd, sl, ss): job_off2(a, sd, WS_H2, H2_L, H2_JOB, sl, ss)
    def dma_items(ssrc, sbuf): return rowtile_items(VD, ssrc, sbuf)
    def toggle(a):
        for j in range(8): a("v_xor_b32 %s, 0x8000, %s" % (R(AF + j), R(AF + j)))
    def rd(ks): return "ds_read_b128 %s, %s offset:%d" % (RR(XF[ks % 4], 4), R(AF + (ks & 7)), (ks >> 3) * 8192)
    def mk_steps(L):
        ids = {}
        for ks in range(3): ids[ks] = L.ds(rd(ks))
        steps = []
        for ks in range(32):
            x = XF[ks % 4]
            mfs = [S_mf32x(AG, W('g', ks), x, None if ks == 0 else AG), S_mf32x(AU, W('u', ks), x, None if ks == 0 else AU)]
            def pre(ks=ks):
                if ks + 3 < 32: ids[ks + 3] = L.ds(rd(ks + 3))
            steps.append(((lambda ks=ks: ids[ks]), mfs, pre))
        return steps
    SG, SU, WK_ = 64, 72, 80
    def out_addr(a, sd):
        job_off(a, sd, WS_ACT, ACT_L, ACT_JOB)
        a("s_lshl_b32 %s, %s, 13" % (S(sT4), S(sAUX)))
        a("s_add_u32 %s, %s, %s" % (S(sd), S(sd), S(sT4)))
        a("s_lshl_b32 %s, %s, 11" % (S(sT4), S(sW)))
        a("s_add_u32 %s, %s, %s" % (S(sd), S(sd), S(sT4)))
    def shadow(a):
        for r_ in range(8):
            a("v_cvt_pk_bf16_f32 %s, %s, %s" % (R(SG + r_), R(AG + 2 * r_), R(AG + 2 * r_ + 1)))
            a("v_cvt_pk_bf16_f32 %s, %s, %s" % (R(SU + r_), R(AU + 2 * r_), R(AU + 2 * r_ + 1)))
    def epi_items(so):
        ins = []
        for r_ in range(8):
            t = WK_ + (r_ % 2) * 8
            g0, g1, u0, u1, e0, e1, p = t, t + 1, t + 2, t + 3, t + 4, t + 5, t + 6
            ins += ["v_lshlrev_b32 %s, 16, %s" % (R(g0), R(SG + r_)),
                    "v_and_b32 %s, 0xffff0000, %s" % (R(g1), R(SG + r_)),
                    "v_mul_f32 %s, %s, %s" % (R(e0), S(sX3), R(g0)),
                    "v_mul_f32 %s, %s, %s" % (R(e1), S(sX3), R(g1)),
                    "v_exp_f32 %s, %s" % (R(e0), R(e0)),
                    "v_exp_f32 %s, %s" % (R(e1), R(e1)),
                    "v_lshlrev_b32 %s, 16, %s" % (R(u0), R(SU + r_)),
                    "v_and_b32 %s, 0xffff0000, %s" % (R(u1), R(SU + r_)),
                    "v_add_f32 %s, 1.0, %s" % (R(e0), R(e0)),
                    "v_add_f32 %s, 1.0, %s" % (R(e1), R(e1)),
                    "v_rcp_f32 %s, %s" % (R(e0), R(e0)),
                    "v_rcp_f32 %s, %s" % (R(e1), R(e1)),
                    "s_nop 0",
                    "v_mul_f32 %s, %s, %s" % (R(g0), R(g0), R(e0)),
                    "v_mul_f32 %s, %s, %s" % (R(g1), R(g1), R(e1)),
                    "v_cvt_pk_bf16_f32 %s, %s, %s" % (R(p), R(g0), R(g1)),
                    "v_lshlrev_b32 %s, 16, %s" % (R(g0), R(p)),
                    "v_and_b32 %s, 0xffff0000, %s" % (R(g1), R(p)),
                    "v_mul_f32 %s, %s, %s" % (R(g0), R(g0), R(u0)),
                    "v_mul_f32 %s, %s, %s" % (R(g1), R(g1), R(u1)),
                    "v_cvt_pk_bf16_f32 %s, %s, %s" % (R(PKD + r_), R(g0), R(g1))]
            if r_ in (3, 7):
                ins.append("buffer_store_dwordx4 %s, %s, %s, %s offen offset:%d sc1" % (RR(PKD + 4 * (r_ // 4), 4), R(VL16), SR(sWS, 4), S(so), (r_ // 4) * 1024))
        ins = [x for x in ins if x != "s_nop 0"]
        per = 3
        return [ins[k:k + per] for k in range(0, len(ins), per)]
    def oflag(a, sd):
        a("s_cmp_ge_u32 %s, 7" % S(sAUX))
        a("s_cselect_b32 %s, 128, 0" % S(sd))
        a("s_add_u32 %s, %s, %s" % (S(sd), S(sd), S(sFLJ)))
        a("s_add_u32 %s, %s, %d" % (S(sd), S(sd), WS_FLAGS + FL_A))
    gemm_loop(a, 's4', (1 if DEDICATED else 2), VFL, VFV, T1, T2, in_flag, 8, src_addr, dma_items, toggle, mk_steps, 64, out_addr, shadow, epi_items, (0, 1), oflag, 0x8000, nst=2, sig_at=26, defer_epi=False, trc=(7, 8, [(sAUX, 0), (sW, 0)]))
```

```python
from common import *
import struct

UB = 131072
KV_OFF = 0
MX_OFF = 16384
OX_OFF = MX_OFF + 5120
QI_OFF = 24576
TB_OFF = 29696
SEL_OFF = 30720
GATE = 24
PF_ON = False
IST = 40
PART_CU = 8192
PART_SLOT = 32 * PART_CU
MEM_SLOT = 8192
IDX, MXR, UL, QWQ, QWK, QR, OW, OR_, WLB, FLG, T0, T1, T2 = 0, 1, 5, 6, 7, 8, 9, 10, 11, 12, 13, 14, 15
MA = [16 + 4 * i for i in range(8)]
AQ = [48, 52]; AK = [56, 60]; AV = [64, 68]
KX = [72 + 4 * f for f in range(8)]
QF = [104 + 4 * k for k in range(4)]
VX = [120, 124]
KMF = [48 + 4 * k for k in range(4)]
def WQ(t, i): return 256 + (2 * i + t) * 8
def WK(t, i): return 256 + 128 + (2 * i + t) * 8
def WV(t, i): return 128 + (2 * i + t) * 8
def WO(nt, j): return 192 + (2 * nt + j) * 8
SX = [16, 20]; SM = 88; PX = 92; PM = 96; MXV, ZX, AL, RZ, TA, TB_ = 98, 99, 100, 101, 102, 103
OXA = [104, 108]; OMA = [112, 116]; OC = 92; OA = [120, 124]
WA = [16 + 4 * n for n in range(8)]
TBL = 104
SEL = 108
RD = 48
RS = 56
PK = 112
sL, sH, sSTEP, sCHB = 32, 33, 34, 35
sMEMRD, sMEMST, sPARTST, sPARTLD = 36, 37, 38, 39
sKVSRC, sKMJOB, sFLKV, sFLKM = 40, 41, 42, 43
sRDY, sSLOT = 44, 45
sT0, sT1, sT2, sT3 = 46, 47, 48, 49
sCEXP, sKVLDS = 50, 51
sM2, sEX = 52, 56
sMEMPZ, sPARTPZ = 54, 55
sTK = 58
sFLKMN = 59
sKVDUM = 66
sO8 = 68
sW0 = 64
sMEMRD0, sMEMST0, sPARTST0, sPARTLD0 = 60, 61, 62, 63

def smf(a, d, aa, b):
    a("v_smfmac_f32_16x16x64_bf16 %s, %s, %s, %s" % (RR(d, 4), RR(aa, 4), RR(b, 8), R(IDX)))
def S_smf(d, aa, b):
    return "v_smfmac_f32_16x16x64_bf16 %s, %s, %s, %s" % (RR(d, 4), RR(aa, 4), RR(b, 8), R(IDX))
def S_mf32(d, aa, b, c=None):
    return "v_mfma_f32_16x16x32_bf16 %s, %s, %s, %s" % (RR(d, 4), RR(aa, 4), RR(b, 4), '0' if c is None else RR(c, 4))
def mf32(a, d, aa, b, c=None): a(S_mf32(d, aa, b, c))
def mf16(a, d, aa, b, c=None):
    a("v_mfma_f32_16x16x16_bf16 %s, %s, %s, %s" % (RR(d, 4), RR(aa, 2), RR(b, 2), '0' if c is None else RR(c, 4)))

def weave(a, mf, fill):
    for i, m in enumerate(mf):
        a(m)
        if i < len(fill):
            for f in fill[i]: a(f)
    for rest in fill[len(mf):]:
        for f in rest: a(f)

def chain_pre(a):
    a.comment("==== chain pre ====")
    a("s_mov_b32 %s, %s" % (S(sL), S(sXCC)))
    a("s_mov_b32 %s, %s" % (S(sH), S(sTICK)))
    load_srd(a, sA, 'Wq'); load_srd(a, sB, 'Wk'); load_srd(a, sC, 'Wv'); load_srd(a, sD, 'Wo')
    a("s_load_dwordx2 s[68:69], s[0:1], %d" % KA['mem0'])
    lane = T0
    a("v_mov_b32 %s, v0" % R(lane))
    a("s_waitcnt lgkmcnt(0)")
    for r_, n in ((sA, 'Wq'), (sB, 'Wk'), (sC, 'Wv'), (sD, 'Wo')): finish_srd(a, r_, n)
    a("s_mov_b32 s70, %d" % SIZES['mem0']); a("s_mov_b32 s71, 0x%x" % SRD3)
    a("v_bfe_u32 %s, %s, 2, 1" % (R(T1), R(lane)))
    a("v_lshlrev_b32 %s, 10, %s" % (R(T1), R(T1)))
    a("v_bfe_u32 %s, %s, 4, 1" % (R(T2), R(lane)))
    a("v_lshl_add_u32 %s, %s, 6, %s" % (R(T1), R(T2), R(T1)))
    a("v_and_b32 %s, 3, %s" % (R(T2), R(lane)))
    a("v_lshl_add_u32 %s, %s, 1, %s" % (R(T1), R(T2), R(T1)))
    a("s_and_b32 %s, %s, 3" % (S(sT0), S(sH)))
    a("s_lshl_b32 %s, %s, 11" % (S(sT0), S(sT0)))
    a("s_lshr_b32 %s, %s, 2" % (S(sT1), S(sH)))
    a("s_lshl_b32 %s, %s, 7" % (S(sT1), S(sT1)))
    a("s_add_u32 %s, %s, %s" % (S(sT0), S(sT0), S(sT1)))
    a("s_lshl_b32 %s, %s, 3" % (S(sT1), S(sW)))
    a("s_add_u32 %s, %s, %s" % (S(sT0), S(sT0), S(sT1)))
    a("buffer_load_ushort %s, %s, s[68:71], %s offen" % (R(124), R(T1), S(sT0)))
    a("buffer_load_ushort %s, %s, s[68:71], %s offen offset:32" % (R(125), R(T1), S(sT0)))

def chain_setup(a):
    a.comment("==== chain setup ====")
    lane = T0
    a("v_lshlrev_b32 %s, 4, %s" % (R(UL), R(lane)))
    a("v_add_u32 %s, 0x%x, %s" % (R(UL), UB, R(UL)))
    a("v_and_b32 %s, 2, %s" % (R(T1), R(lane)))
    a("v_cmp_eq_u32 vcc, 0, %s" % R(T1))
    a("v_mov_b32 %s, 0xeeee" % R(T2))
    a("v_mov_b32 %s, 0x4444" % R(IDX))
    a("v_cndmask_b32 %s, %s, %s, vcc" % (R(IDX), R(T2), R(IDX)))
    for k in range(4):
        a("s_add_u32 %s, %s, %d" % (S(sT0), S(sW), k))
        a("s_and_b32 %s, %s, 3" % (S(sT0), S(sT0)))
        a("s_lshl_b32 %s, %s, 11" % (S(sT0), S(sT0)))
        a("v_add_u32 %s, %s, %s" % (R(MXR + k), S(sT0), R(UL)))
    a("v_and_b32 %s, 15, %s" % (R(T1), R(lane)))
    a("s_lshl_b32 %s, %s, 5" % (S(sT0), S(sW)))
    a("v_add_u32 %s, %s, %s" % (R(T1), S(sT0), R(T1)))
    a("v_mul_u32_u24 %s, %d, %s" % (R(T1), IST, R(T1)))
    a("v_lshrrev_b32 %s, 4, %s" % (R(T2), R(lane)))
    a("v_lshl_add_u32 %s, %s, 2, %s" % (R(QWQ), R(T2), R(T1)))
    a("v_add_u32 %s, 0x%x, %s" % (R(QWQ), UB + QI_OFF, R(QWQ)))
    a("v_lshl_add_u32 %s, %s, 3, %s" % (R(QWK), R(T2), R(T1)))
    a("v_add_u32 %s, 0x%x, %s" % (R(QWK), UB + MX_OFF, R(QWK)))
    a("v_lshrrev_b32 %s, 5, %s" % (R(T1), R(lane)))
    a("v_lshlrev_b32 %s, 4, %s" % (R(T1), R(T1)))
    a("v_bfe_u32 %s, %s, 4, 1" % (R(T2), R(lane)))
    a("v_lshl_add_u32 %s, %s, 2, %s" % (R(T1), R(T2), R(T1)))
    a("v_bfe_u32 %s, %s, 2, 2" % (R(T2), R(lane)))
    a("v_add_u32 %s, %s, %s" % (R(T1), R(T1), R(T2)))
    a("v_mul_u32_u24 %s, %d, %s" % (R(QR), IST, R(T1)))
    a("v_and_b32 %s, 3, %s" % (R(T2), R(lane)))
    a("v_lshl_add_u32 %s, %s, 3, %s" % (R(QR), R(T2), R(QR)))
    a("v_add_u32 %s, 0x%x, %s" % (R(QR), UB, R(QR)))
    a("v_and_b32 %s, 15, %s" % (R(T1), R(lane)))
    a("v_lshrrev_b32 %s, 4, %s" % (R(T2), R(lane)))
    a("s_lshl_b32 %s, %s, 2" % (S(sT0), S(sW)))
    a("v_add_u32 %s, %s, %s" % (R(T2), S(sT0), R(T2)))
    a("v_and_b32 %s, 7, %s" % (R(OW), R(lane)))
    a("v_xor_b32 %s, %s, %s" % (R(T2), R(T2), R(OW)))
    a("v_lshlrev_b32 %s, 4, %s" % (R(T2), R(T2)))
    a("v_and_b32 %s, 7, %s" % (R(T1), R(T1)))
    a("v_lshl_add_u32 %s, %s, 8, %s" % (R(OW), R(T1), R(T2)))
    a("v_add_u32 %s, 0x%x, %s" % (R(OW), UB, R(OW)))
    a("v_bfe_u32 %s, %s, 2, 2" % (R(T1), R(lane)))
    a("v_lshlrev_b32 %s, 1, %s" % (R(T1), R(T1)))
    a("v_and_b32 %s, 1, %s" % (R(T2), R(lane)))
    a("v_add_u32 %s, %s, %s" % (R(T1), R(T1), R(T2)))
    a("v_bfe_u32 %s, %s, 1, 1" % (R(T2), R(lane)))
    a("v_lshlrev_b32 %s, 2, %s" % (R(T2), R(T2)))
    a("v_lshrrev_b32 %s, 4, %s" % (R(OR_), R(lane)))
    a("v_add_u32 %s, %s, %s" % (R(T2), R(T2), R(OR_)))
    a("v_xor_b32 %s, %s, %s" % (R(T2), R(T2), R(T1)))
    a("v_lshlrev_b32 %s, 4, %s" % (R(T2), R(T2)))
    a("v_lshl_add_u32 %s, %s, 8, %s" % (R(OR_), R(T1), R(T2)))
    a("v_add_u32 %s, 0x%x, %s" % (R(OR_), UB, R(OR_)))
    a("v_lshlrev_b32 %s, 4, %s" % (R(WLB), R(lane)))
    a("s_lshl_b32 %s, %s, 15" % (S(sT0), S(sW)))
    a("v_add_u32 %s, %s, %s" % (R(WLB), S(sT0), R(WLB)))
    P, Q_, M2, Fo = TBL, TBL + 1, TBL + 2, TBL + 3
    a("v_mov_b32 %s, 0" % R(P))
    a("v_lshrrev_b32 %s, 2, %s" % (R(T1), R(lane)))
    a("v_lshlrev_b32 %s, 13, %s" % (R(Q_), R(T1)))
    a("v_and_b32 %s, 3, %s" % (R(T2), R(lane)))
    a("v_lshl_add_u32 %s, %s, 4, %s" % (R(Q_), R(T2), R(Q_)))
    a("v_lshlrev_b32 %s, 2, %s" % (R(M2), R(T2)))
    a("v_bfe_u32 %s, %s, 2, 1" % (R(T1), R(lane)))
    a("v_lshl_add_u32 %s, %s, 4, %s" % (R(M2), R(T1), R(M2)))
    a("v_bfe_u32 %s, %s, 4, 1" % (R(T1), R(lane)))
    a("v_lshl_add_u32 %s, %s, 5, %s" % (R(M2), R(T1), R(M2)))
    a("v_mov_b32 %s, 0" % R(Fo))
    a("ds_write_b128 %s, %s offset:%d" % (R(UL), RR(TBL, 4), TB_OFF))
    a("v_and_b32 %s, 15, %s" % (R(T1), R(lane)))
    for d in range(4):
        a("v_cmp_eq_u32 vcc, %d, %s" % (2 * d, R(T1)))
        a("v_mov_b32 %s, 0x3f80" % R(T2))
        a("v_cndmask_b32 %s, 0, %s, vcc" % (R(SEL + d), R(T2)))
        a("v_cmp_eq_u32 vcc, %d, %s" % (2 * d + 1, R(T1)))
        a("v_mov_b32 %s, 0x3f800000" % R(T2))
        a("v_cndmask_b32 %s, %s, %s, vcc" % (R(SEL + d), R(SEL + d), R(T2)))
    a("ds_write_b128 %s, %s offset:%d" % (R(UL), RR(SEL, 4), SEL_OFF))
    a("s_waitcnt lgkmcnt(0)")
    a("s_mul_i32 %s, %s, %d" % (S(sCHB), S(sL), CH_STRIDE))
    a("s_add_u32 %s, %s, %d" % (S(sCHB), S(sCHB), WS_CH))
    cexp = struct.unpack('<I', struct.pack('<f', (128 ** -0.5) * 1.4426950408889634))[0]
    a("s_mov_b32 %s, 0x%x" % (S(sCEXP), cexp))
    a("s_mov_b32 %s, 0xf0f0f0f0\ns_mov_b32 %s, 0xf0f0f0f0" % (S(sM2), S(sM2 + 1)))
    a("s_mov_b32 %s, 0x00ff00ff\ns_mov_b32 %s, 0" % (S(sEX), S(sEX + 1)))
    a("s_add_u32 %s, %s, %d" % (S(sT0), S(sCHB), CH_MEM))
    a("s_lshl_b32 %s, %s, 11" % (S(sT1), S(sW)))
    a("s_add_u32 %s, %s, %s" % (S(sMEMRD0), S(sT0), S(sT1)))
    a("s_sub_u32 %s, %s, %d" % (S(sMEMRD0), S(sMEMRD0), UB))
    a("s_lshr_b32 %s, %s, 2" % (S(sT1), S(sH)))
    a("s_lshl_b32 %s, %s, 10" % (S(sT1), S(sT1)))
    a("s_add_u32 %s, %s, %s" % (S(sMEMST0), S(sT0), S(sT1)))
    a("s_lshl_b32 %s, %s, 8" % (S(sT1), S(sW)))
    a("s_add_u32 %s, %s, %s" % (S(sMEMST0), S(sMEMST0), S(sT1)))
    a("s_and_b32 %s, %s, 3" % (S(sT1), S(sH)))
    a("s_lshl_b32 %s, %s, 6" % (S(sT1), S(sT1)))
    a("s_add_u32 %s, %s, %s" % (S(sMEMST0), S(sMEMST0), S(sT1)))
    a("s_lshl_b32 %s, %s, 13" % (S(sT1), S(sH)))
    a("s_add_u32 %s, %s, %s" % (S(sPARTST0), S(sCHB), S(sT1)))
    a("s_lshl_b32 %s, %s, 11" % (S(sT1), S(sW)))
    a("s_add_u32 %s, %s, %s" % (S(sPARTST0), S(sPARTST0), S(sT1)))
    a("s_sub_u32 %s, %s, %d" % (S(sPARTST0), S(sPARTST0), UB))
    a("s_lshl_b32 %s, %s, 8" % (S(sT1), S(sH)))
    a("s_add_u32 %s, %s, %s" % (S(sPARTLD0), S(sCHB), S(sT1)))
    a("s_lshl_b32 %s, %s, 6" % (S(sT1), S(sW)))
    a("s_add_u32 %s, %s, %s" % (S(sPARTLD0), S(sPARTLD0), S(sT1)))
    a("s_mul_i32 %s, %s, %d" % (S(sKVSRC), S(sL), QKV_L))
    a("s_mul_i32 %s, %s, %d" % (S(sT1), S(sH), 24 * KB))
    a("s_add_u32 %s, %s, %s" % (S(sKVSRC), S(sKVSRC), S(sT1)))
    a("s_lshl_b32 %s, %s, 11" % (S(sT1), S(sW)))
    a("s_add_u32 %s, %s, %s" % (S(sKVSRC), S(sKVSRC), S(sT1)))
    a("s_add_u32 %s, %s, %d" % (S(sKVSRC), S(sKVSRC), WS_QKV + 8 * KB - UB))
    a("s_add_u32 %s, %s, %d" % (S(sKVLDS), S(sT1), UB + KV_OFF))
    a("s_mul_i32 %s, %s, %d" % (S(sKMJOB), S(sL), KM_L))
    a("s_lshl_b32 %s, %s, 13" % (S(sT1), S(sH)))
    a("s_add_u32 %s, %s, %s" % (S(sKMJOB), S(sKMJOB), S(sT1)))
    a("s_lshl_b32 %s, %s, 10" % (S(sT1), S(sW)))
    a("s_add_u32 %s, %s, %s" % (S(sKMJOB), S(sKMJOB), S(sT1)))
    a("s_add_u32 %s, %s, %d" % (S(sKMJOB), S(sKMJOB), WS_KM - UB))
    a("s_mul_i32 %s, %s, %d" % (S(sT0), S(sL), NSEG * JOBFLAG_BYTES))
    a("s_lshl_b32 %s, %s, 7" % (S(sT1), S(sH)))
    a("s_add_u32 %s, %s, %s" % (S(sT0), S(sT0), S(sT1)))
    a("s_add_u32 %s, %s, %d" % (S(sFLKV), S(sT0), WS_FLAGS + FL_KV))
    a("s_add_u32 %s, %s, %d" % (S(sFLKMN), S(sT0), WS_FLAGS + FL_KM))
    a("s_add_u32 %s, %s, %d" % (S(sFLKM), S(sCHB), CH_MEM + 4 * MEM_SLOT))
    a("s_sub_u32 %s, %s, %d" % (S(sKVDUM), S(sCHB), UB))
    a("s_cmp_eq_u32 %s, 0" % S(sW))
    a("s_cselect_b32 %s, 1, 0" % S(sW0))
    a("s_mov_b32 %s, 0" % S(sW0 + 1))
    for i in range(4): a("v_mov_b32 %s, -1" % R(KX[0] + i))
    for sl in range(2):
        a("s_add_u32 %s, %s, %d" % (S(sT0), S(sPARTST0), sl * PART_SLOT))
        for p in range(2):
            a("buffer_store_dwordx4 %s, %s, %s, %s offen offset:%d" % (RR(KX[0], 4), R(UL), SR(sWS, 4), S(sT0), p * 1024))
    a("s_waitcnt vmcnt(36)")
    a("v_lshl_or_b32 %s, %s, 16, %s" % (R(T2), R(125), R(124)))
    a("s_add_u32 %s, %s, %d" % (S(sT0), S(sMEMST0), MEM_SLOT))
    a("s_mov_b64 exec, %s" % SR(sEX, 2))
    a("buffer_store_dword %s, %s, %s, %s offen" % (R(T2), R(TBL + 2), SR(sWS, 4), S(sMEMST0)))
    a("buffer_store_dword %s, %s, %s, %s offen" % (R(KX[0]), R(TBL + 2), SR(sWS, 4), S(sT0)))
    a("s_mov_b64 exec, -1")

def chain_load_weights(a, mid=None):
    a.comment("==== chain weight load ====")
    VQ, VO, TR0, TR1 = 16, 17, 18, 19
    lane = T0
    a("v_and_b32 %s, 3, %s" % (R(T2), R(lane)))
    a("v_bfe_u32 v20, %s, 5, 1" % R(lane))
    a("v_lshlrev_b32 v20, 1, v20")
    a("v_xor_b32 %s, %s, v20" % (R(T2), R(T2)))
    a("v_lshlrev_b32 %s, 4, %s" % (R(T2), R(T2)))
    a("v_bfe_u32 v20, %s, 3, 1" % R(lane))
    a("v_lshlrev_b32 v20, 5, v20")
    a("v_bfe_u32 v21, %s, 2, 1" % R(lane))
    a("v_lshl_add_u32 v20, v21, 4, v20")
    a("v_bfe_u32 v21, %s, 4, 2" % R(lane))
    a("v_add_u32 v20, v20, v21")
    a("v_lshl_add_u32 %s, v20, 13, %s" % (R(VQ), R(T2)))
    a("v_bfe_u32 v20, %s, 3, 1" % R(lane))
    a("v_lshlrev_b32 v20, 5, v20")
    a("v_bfe_u32 v21, %s, 5, 1" % R(lane))
    a("v_lshl_add_u32 v20, v21, 4, v20")
    a("v_bfe_u32 v21, %s, 4, 1" % R(lane))
    a("v_lshl_add_u32 v20, v21, 1, v20")
    a("v_bfe_u32 v21, %s, 2, 1" % R(lane))
    a("v_add_u32 v20, v20, v21")
    a("v_lshl_add_u32 %s, v20, 10, %s" % (R(VO), R(T2)))
    a("v_lshrrev_b32 v20, 4, %s" % R(lane))
    a("v_lshlrev_b32 v21, 3, v20")
    a("v_bfe_u32 v22, %s, 2, 2" % R(lane))
    a("v_add_u32 v21, v21, v22")
    a("v_lshlrev_b32 v21, 6, v21")
    a("v_and_b32 v22, 3, %s" % R(lane))
    a("v_lshl_add_u32 v21, v22, 3, v21")
    a("s_lshl_b32 %s, %s, 15" % (S(sT0), S(sW)))
    a("v_add_u32 v21, %s, v21" % S(sT0))
    a("v_and_b32 v20, 1, v20")
    a("v_lshl_add_u32 %s, v20, 5, v21" % R(TR0))
    a("v_xor_b32 %s, 32, %s" % (R(TR1), R(TR0)))
    chunks = []
    for i in range(8): chunks.append(('q', i))
    for i in range(8): chunks.append(('k', i))
    for i in range(4): chunks.append(('v', i))
    for ntp in range(2):
        for j in range(2): chunks.append(('o', (ntp, j)))
    for i in range(4, 8): chunks.append(('v', i))
    for ntp in range(2, 4):
        for j in range(2): chunks.append(('o', (ntp, j)))
    sCOLQ, sCOLO, sLDSW = 72, 73, 74
    a("s_lshl_b32 %s, %s, 8" % (S(sCOLQ), S(sH)))
    a("s_lshl_b32 %s, %s, 6" % (S(sT0), S(sW)))
    a("s_add_u32 %s, %s, %s" % (S(sCOLQ), S(sCOLQ), S(sT0)))
    a("s_lshl_b32 %s, %s, 17" % (S(sCOLO), S(sH)))
    a("s_lshl_b32 %s, %s, 8" % (S(sT0), S(sW)))
    a("s_add_u32 %s, %s, %s" % (S(sCOLO), S(sCOLO), S(sT0)))
    a("s_lshl_b32 %s, %s, 15" % (S(sLDSW), S(sW)))
    sK = sTK
    def issue(c):
        kind, arg = chunks[c]
        slot = c % 8
        if kind in 'qkv':
            i = arg
            a("s_add_u32 s%d, %s, %d" % (sK, S(sW), i >> 1))
            a("s_and_b32 s%d, s%d, 3" % (sK, sK))
            a("s_lshl_b32 s%d, s%d, 1" % (sK, sK))
            if i & 1: a("s_add_u32 s%d, s%d, 1" % (sK, sK))
            a("s_lshl_b32 s%d, s%d, 19" % (sK, sK))
            a("s_add_u32 s%d, s%d, %s" % (sK, sK, S(sCOLQ)))
            srd = {'q': sA, 'k': sB, 'v': sC}[kind]
            vo, rowstep = VQ, 4 * 8192
        else:
            ntp, j = arg
            a("s_add_u32 s%d, %s, %d" % (sK, S(sCOLO), j * 64 * 1024 + ntp * 64))
            srd = sD; vo, rowstep = VO, 4 * 1024
        for u in range(4):
            a("s_add_u32 m0, %s, %d" % (S(sLDSW), slot * 4096 + u * 1024))
            a("buffer_load_dwordx4 %s, %s, s%d offen lds" % (R(vo), SR(srd, 4), sK))
            if u < 3: a("s_add_u32 s%d, s%d, %d" % (sK, sK, rowstep))
    def dest(c, t):
        kind, arg = chunks[c]
        if c >= 24: return 32 + 8 * t
        if kind == 'q': return WQ(t, arg)
        if kind == 'k': return WK(t, arg)
        if kind == 'v': return WV(t, arg)
        ntp, j = arg
        return WO(2 * ntp + t, j)
    VPF, VPD = 23, 24
    a("v_lshlrev_b32 %s, 6, %s" % (R(VPF), R(lane)))
    a("s_lshl_b32 s75, %s, 2" % S(sH)); a("s_add_u32 s75, s75, %s" % S(sW)); a("s_lshl_b32 s75, s75, 15")
    def pf(srd, k0, k1):
        for k in range(k0, k1):
            a("s_add_u32 s76, s75, %d" % (k * 4096))
            a("buffer_load_dword %s, %s, %s, s76 offen" % (R(VPD), R(VPF), SR(srd, 4)))
    PFN = PF_ON
    if PFN:
        pf(sA, 0, 8)
        pf(sB, 0, 2)
    for c in range(8): issue(c)
    if mid: mid(a)
    n = len(chunks)
    for c in range(n):
        inflight = min(c + 8, n) - c - 1
        extra = 0
        if PF_ON:
            extra = sum(1 for cc in range(max(0, c - 8), c) if cc < 22 and cc + 8 > c - 0 and cc >= c - 8)
            extra = min(extra, 63 - inflight * 4)
            extra = 0
        a("s_waitcnt vmcnt(%d)" % (inflight * 4 + extra))
        slot = c % 8
        for t in range(2):
            d = dest(c, t)
            base = TR0 if t == 0 else TR1
            for k, off in enumerate((0, 256, 2048, 2304)):
                a("ds_read_b64_tr_b16 %s, %s offset:%d" % (RR(d + 2 * k, 2), R(base), slot * 4096 + off))
        a("s_waitcnt lgkmcnt(0)")
        if c >= 24:
            for t in range(2):
                d = dest(c, t)
                a("ds_write_b128 %s, %s offset:%d" % (R(WLB), RR(d, 4), slot * 4096 + t * 2048))
                a("ds_write_b128 %s, %s offset:%d" % (R(WLB), RR(d + 4, 4), slot * 4096 + t * 2048 + 1024))
            a("s_waitcnt lgkmcnt(0)")
        if c + 8 < n: issue(c + 8)
        if PF_ON:
            if c < 6: pf(sB, 2 + c, 3 + c)
            elif c < 14: pf(sC, c - 6, c - 5)
            elif c < 22: pf(sD, c - 14, c - 13)

def wv_lds(i, t): return (i - 4) * 4096 + t * 2048
def wo_lds(nt, j): return (4 + 2 * ((nt >> 1) - 2) + j) * 4096 + (nt & 1) * 2048
def S_rdfrag(dst, off):
    return ["ds_read_b128 %s, %s offset:%d" % (RR(dst, 4), R(WLB), off), "ds_read_b128 %s, %s offset:%d" % (RR(dst + 4, 4), R(WLB), off + 1024)]
def rdfrag(a, dst, off):
    for t in S_rdfrag(dst, off): a(t)

def S_kv_dma(src=None):
    src = sKVSRC if src is None else src
    return ["s_mov_b32 m0, %s" % S(sKVLDS),
            "s_add_u32 %s, %s, 8192" % (S(sT1), S(src)),
            "buffer_load_dwordx4 %s, %s, %s offen sc1 lds" % (R(UL), SR(sWS, 4), S(src)),
            "buffer_load_dwordx4 %s, %s, %s offen offset:1024 sc1 lds" % (R(UL), SR(sWS, 4), S(src)),
            "s_add_u32 m0, %s, 8192" % S(sKVLDS),
            "s_nop 0",
            "buffer_load_dwordx4 %s, %s, %s offen sc1 lds" % (R(UL), SR(sWS, 4), S(sT1)),
            "buffer_load_dwordx4 %s, %s, %s offen offset:1024 sc1 lds" % (R(UL), SR(sWS, 4), S(sT1))]

STAMPS = None
def tstamp(a, k, on):
    if on == 2 and STAMPS is None:
        a("s_memtime s[%d:%d]" % (72 + 2 * k, 73 + 2 * k))
def tp(a, name, on):
    if on == 2 and STAMPS is not None and name in STAMPS:
        k = STAMPS.index(name)
        a("s_memtime s[%d:%d]" % (72 + 2 * k, 73 + 2 * k))

def poison_check(a, regs, Lretry, Lgiveup):
    a("v_max3_u32 %s, %s, %s, %s" % (R(T0), R(regs[0]), R(regs[1]), R(regs[2])))
    a("v_max3_u32 %s, %s, %s, %s" % (R(T1), R(regs[3]), R(regs[4]), R(regs[5])))
    a("v_max3_u32 %s, %s, %s, %s" % (R(T0), R(T0), R(regs[6]), R(regs[7])))
    a("v_max_u32 %s, %s, %s" % (R(T0), R(T0), R(T1)))
    a("v_cmp_eq_u32 vcc, -1, %s" % R(T0))
    a("s_cbranch_vccnz %s" % Lretry)

def retry_stub(a, Lretry, Lloop, Ldone):
    a.label(Lretry)
    a("s_add_u32 %s, %s, 1" % (S(sTMO), S(sTMO)))
    a("s_cmp_gt_u32 %s, %d" % (S(sTMO), TIMEOUT))
    a("s_cbranch_scc0 %s" % Lloop)
    a("s_branch %s" % Ldone)

def kv_reads():
    r = [("ds_read_b128 %s, %s offset:%d" % (RR(KX[f], 4), R(UL), KV_OFF + f * 1024)) for f in range(8)]
    r += ["ds_read_b128 %s, %s offset:%d" % (RR(VX[0], 4), R(MXR), KV_OFF + 8192), "ds_read_b128 %s, %s offset:%d" % (RR(VX[1], 4), R(MXR), KV_OFF + 8192 + 1024)]
    return r

def chain_loop(a, timing=0, opt=None):
    opt = opt or {}
    global STAMPS
    STAMPS = opt.get('stamps')
    stubs = []
    F = {(4, 0): 72, (4, 1): 80, (5, 0): 88, (5, 1): 96, (6, 0): 112, (6, 1): 120, (7, 0): 16, (7, 1): 104}
    SX = [16, 20]; SM = 24; PX = 28; PM = 32; MXV, ZX = 34, 35; OC = 36; PUB = 40; TA, RZ = 44, 45
    OACC = [104, 108]; OA = [120, 124]
    WOB = {(4, 0): 72, (4, 1): 80, (5, 0): 88, (5, 1): 96, (6, 0): 48, (6, 1): 56, (7, 0): 112, (7, 1): 64}
    PK = 72; RD = 80; RS = 88; POI = 44
    def vpref(i, t): return S_rdfrag(F[(i, t)], wv_lds(i, t))
    a("s_mov_b32 %s, 0x00ff00ff\ns_mov_b32 %s, 0x00ff00ff" % (S(sO8), S(sO8 + 1)))
    a("s_mov_b32 %s, 0" % S(sSTEP))
    a("s_mov_b32 %s, 0" % S(sSLOT))
    a("s_mov_b32 %s, %s" % (S(sMEMRD), S(sMEMRD0)))
    a("s_add_u32 %s, %s, %d" % (S(sMEMST), S(sMEMST0), MEM_SLOT))
    a("s_mov_b32 %s, %s" % (S(sPARTST), S(sPARTST0)))
    a("s_mov_b32 %s, %s" % (S(sPARTLD), S(sPARTLD0)))
    a("ds_read_b128 %s, %s offset:%d" % (RR(TBL, 4), R(UL), TB_OFF))
    a("s_waitcnt lgkmcnt(0)")
    poll(a, T1, TBL + 3, S(sFLKV))
    for t in S_kv_dma(): a(t)
    a("s_add_u32 %s, %s, %d" % (S(sKVSRC), S(sKVSRC), QKV_JOB))
    a("s_add_u32 %s, %s, %d" % (S(sFLKV), S(sFLKV), JOBFLAG_BYTES))
    a("buffer_load_dword %s, %s, %s, %s offen sc1" % (R(FLG), R(TBL + 3), SR(sWS, 4), S(sFLKV)))
    for r_ in range(48, 72, 2): a("v_mov_b64 %s, 0" % RR(r_, 2))
    for i in (4, 5, 6):
        for t in range(2):
            for x in vpref(i, t): a(x)
    if opt.get('dry'):
        import re as _re
        drop = opt.get('drop', [])
        def filt(line):
            if line.startswith('buffer_'): return None
            if line.startswith('v_cmp_eq_u32 vcc, -1'): return 's_mov_b64 vcc, 0'
            for pat in drop:
                if _re.search(pat, line): return None
            return line
        a.filt = filt
    a.label("L_step")
    Lp = a.newlabel('mpoll'); Ld = a.newlabel('mpolld'); Lr = a.newlabel('mretry')
    a.label(Lp)
    a("buffer_load_dwordx4 %s, %s, %s, %s offen sc1" % (RR(MA[0], 4), R(UL), SR(sWS, 4), S(sMEMRD)))
    a("buffer_load_dwordx4 %s, %s, %s, %s offen offset:1024 sc1" % (RR(MA[1], 4), R(UL), SR(sWS, 4), S(sMEMRD)))
    a("s_waitcnt vmcnt(0)")
    poison_check(a, list(range(MA[0], MA[0] + 8)), Lr, Ld)
    stubs.append((Lr, Lp, Ld))
    a.label(Ld)
    tstamp(a, 0, timing); tp(a, 'top', timing)
    trace(a, 2, sL, sSTEP, [(sH, 0), (sW, 0)], T0, T1, sT0)
    a("ds_write_b128 %s, %s offset:%d" % (R(MXR), RR(MA[0], 4), MX_OFF))
    a("ds_write_b128 %s, %s offset:%d" % (R(MXR), RR(MA[1], 4), MX_OFF + 1024))
    weave(a, [S_smf(AQ[0], MA[0], WQ(0, 0)), S_smf(AQ[1], MA[0], WQ(1, 0)), S_smf(AK[0], MA[0], WK(0, 0)),
              S_smf(AK[1], MA[0], WK(1, 0)), S_smf(AQ[0], MA[1], WQ(0, 1)), S_smf(AQ[1], MA[1], WQ(1, 1))],
          [["v_cmp_ne_u32 vcc, 0, %s" % R(FLG)],
           ["v_mov_b32 %s, 1" % R(T0)],
           ["s_cmp_eq_u64 vcc, -1"],
           ["s_cselect_b32 %s, 1, 0" % S(sRDY)],
           ["s_add_u32 %s, %s, %d" % (S(sT2), S(sFLKV), JOBFLAG_BYTES)],
           []])
    a("s_waitcnt lgkmcnt(0)")
    a("s_barrier")
    mr = ["ds_read_b128 %s, %s offset:%d" % (RR(MA[i], 4), R(MXR + (i >> 1)), MX_OFF + (i & 1) * 1024) for i in range(2, 8)]
    a(mr[0]); a(mr[1])
    weave(a, [S_smf(AK[0], MA[1], WK(0, 1)), S_smf(AK[1], MA[1], WK(1, 1)), S_smf(AV[0], MA[0], WV(0, 0)),
              S_smf(AV[1], MA[0], WV(1, 0)), S_smf(AV[0], MA[1], WV(0, 1)), S_smf(AV[1], MA[1], WV(1, 1))],
          [[mr[2]], [mr[3]], [mr[4]], [mr[5]],
           ["buffer_load_dword %s, %s, %s, %s offen sc1" % (R(FLG), R(TBL + 3), SR(sWS, 4), S(sT2))],
           ["s_mov_b64 exec, %s" % SR(sW0, 2), "buffer_store_dword %s, %s, %s, %s offen sc1" % (R(T0), R(TBL + 3), SR(sWS, 4), S(sFLKM)), "s_mov_b64 exec, -1",
            "s_mov_b32 %s, %s" % (S(sFLKM), S(sFLKMN)), "s_add_u32 %s, %s, %d" % (S(sFLKMN), S(sFLKMN), JOBFLAG_BYTES)]])
    v70, v71 = vpref(7, 0), vpref(7, 1)
    kr = [("ds_read_b128 %s, %s offset:%d" % (RR(KX[f], 4), R(UL), KV_OFF + f * 1024)) for f in range(8)]
    vr = ["ds_read_b128 %s, %s offset:%d" % (RR(VX[0], 4), R(MXR), KV_OFF + 8192), "ds_read_b128 %s, %s offset:%d" % (RR(VX[1], 4), R(MXR), KV_OFF + 8192 + 1024)]
    a("s_waitcnt lgkmcnt(5)")
    smf(a, AQ[0], MA[2], WQ(0, 2)); smf(a, AQ[1], MA[2], WQ(1, 2))
    a("s_waitcnt lgkmcnt(4)")
    smf(a, AQ[0], MA[3], WQ(0, 3)); smf(a, AQ[1], MA[3], WQ(1, 3))
    a("s_waitcnt lgkmcnt(3)")
    smf(a, AQ[0], MA[4], WQ(0, 4)); smf(a, AQ[1], MA[4], WQ(1, 4))
    smf(a, AV[0], MA[4], F[(4, 0)]); smf(a, AV[1], MA[4], F[(4, 1)])
    a("s_waitcnt lgkmcnt(2)")
    weave(a, [S_smf(AQ[0], MA[5], WQ(0, 5)), S_smf(AQ[1], MA[5], WQ(1, 5)), S_smf(AV[0], MA[5], F[(5, 0)]), S_smf(AV[1], MA[5], F[(5, 1)])],
          [[v70[0]], [v70[1]], [v71[0]], [v71[1], "s_waitcnt lgkmcnt(4)"]])
    weave(a, [S_smf(AQ[0], MA[6], WQ(0, 6)), S_smf(AQ[1], MA[6], WQ(1, 6)), S_smf(AQ[0], MA[7], WQ(0, 7)), S_smf(AQ[1], MA[7], WQ(1, 7))],
          [[kr[0]], [kr[1]], [kr[2]], [kr[3]]])
    tstamp(a, 1, timing)
    qpost = ["v_add_f32 %s, %s, %s" % (R(AQ[0]), R(AQ[0]), R(AQ[0] + 2)),
             "v_add_f32 %s, %s, %s" % (R(AQ[0] + 1), R(AQ[0] + 1), R(AQ[0] + 3)),
             "v_add_f32 %s, %s, %s" % (R(AQ[1]), R(AQ[1]), R(AQ[1] + 2)),
             "v_add_f32 %s, %s, %s" % (R(AQ[1] + 1), R(AQ[1] + 1), R(AQ[1] + 3)),
             "v_cvt_pk_bf16_f32 %s, %s, %s" % (R(AQ[0]), R(AQ[0]), R(AQ[0] + 1)),
             "v_cvt_pk_bf16_f32 %s, %s, %s" % (R(AQ[1]), R(AQ[1]), R(AQ[1] + 1)),
             "ds_write2_b32 %s, %s, %s offset0:0 offset1:%d" % (R(QWQ), R(AQ[0]), R(AQ[1]), 16 * IST // 4)]
    km = []
    for i in range(2, 8): km += [S_smf(AK[0], MA[i], WK(0, i)), S_smf(AK[1], MA[i], WK(1, i))]
    a("s_waitcnt lgkmcnt(4)")
    weave(a, [S_smf(AV[0], MA[6], F[(6, 0)]), S_smf(AV[1], MA[6], F[(6, 1)]), S_smf(AV[0], MA[7], F[(7, 0)]), S_smf(AV[1], MA[7], F[(7, 1)])],
          [[kr[4]], [kr[5]], [kr[6]], [kr[7]]])
    qtr = []
    for ks in range(4):
        qtr += ["ds_read_b64_tr_b16 %s, %s offset:%d" % (RR(QF[ks], 2), R(QR), QI_OFF + ks * 32 * IST),
                "ds_read_b64_tr_b16 %s, %s offset:%d" % (RR(QF[ks] + 2, 2), R(QR), QI_OFF + ks * 32 * IST + 8 * IST)]
    weave(a, km[:8], [[qpost[0]], [qpost[1]], [qpost[2]], [qpost[3]], [qpost[4]], [qpost[5]], [qpost[6]], [vr[0]]])
    a(km[8])
    a("s_waitcnt lgkmcnt(1)")
    a("s_barrier")
    weave(a, km[9:], [qtr[0:3], qtr[3:6], qtr[6:8]])
    tp(a, 'kdone', timing); tstamp(a, 2, timing)
    kpost = ["v_add_f32 %s, %s, %s" % (R(AK[0]), R(AK[0]), R(AK[0] + 2)),
             "v_add_f32 %s, %s, %s" % (R(AK[0] + 1), R(AK[0] + 1), R(AK[0] + 3)),
             "v_add_f32 %s, %s, %s" % (R(AK[1]), R(AK[1]), R(AK[1] + 2)),
             "v_add_f32 %s, %s, %s" % (R(AK[1] + 1), R(AK[1] + 1), R(AK[1] + 3)),
             "v_cvt_pk_bf16_f32 %s, %s, %s" % (R(AK[0]), R(AK[0]), R(AK[0] + 1)),
             "v_cvt_pk_bf16_f32 %s, %s, %s" % (R(AK[1]), R(AK[1]), R(AK[1] + 1)),
             "ds_write2_b32 %s, %s, %s offset0:0 offset1:1" % (R(QWK), R(AK[0]), R(AK[0])),
             "ds_write2_b32 %s, %s, %s offset0:%d offset1:%d" % (R(QWK), R(AK[1]), R(AK[1]), 16 * IST // 4, 16 * IST // 4 + 1)]
    a("s_mul_i32 %s, %s, %d" % (S(sT0), S(sW), 32 * IST))
    weave(a, [S_smf(AV[0], MA[2], WV(0, 2)), S_smf(AV[1], MA[2], WV(1, 2)), S_smf(AV[0], MA[3], WV(0, 3)), S_smf(AV[1], MA[3], WV(1, 3))],
          [[vr[1]], ["v_add_u32 %s, %s, %s" % (R(T2), S(sT0), R(QR))], [], []])
    sx = []
    for ks in range(4):
        sx += [S_mf32(SX[0], KX[ks], QF[ks], None if ks == 0 else SX[0]), S_mf32(SX[1], KX[4 + ks], QF[ks], None if ks == 0 else SX[1])]
    a("s_waitcnt lgkmcnt(0)")
    weave(a, sx[:4], [kpost[0:2], kpost[2:4], kpost[4:6], kpost[6:8]])
    a("s_cmp_eq_u32 %s, 1" % S(sRDY))
    a("s_cselect_b32 %s, %s, %s" % (S(sT3), S(sKVSRC), S(sKVDUM)))
    dm = S_kv_dma(src=sT3)
    weave(a, sx[4:], [dm[0:3], dm[3:5], [dm[6]], [dm[7]]])
    tp(a, 'vdone', timing)
    a("s_waitcnt lgkmcnt(0)")
    tp(a, 'b2w', timing)
    a("s_barrier")
    tp(a, 'b2', timing)
    for k2 in range(4):
        a("ds_read_b64_tr_b16 %s, %s offset:%d" % (RR(KMF[k2], 2), R(QR), MX_OFF + k2 * 32 * IST))
        a("ds_read_b64_tr_b16 %s, %s offset:%d" % (RR(KMF[k2] + 2, 2), R(QR), MX_OFF + k2 * 32 * IST + 8 * IST))
    a("ds_read_b64_tr_b16 %s, %s offset:%d" % (RR(PUB, 2), R(T2), MX_OFF))
    a("ds_read_b64_tr_b16 %s, %s offset:%d" % (RR(PUB + 2, 2), R(T2), MX_OFF + 8 * IST))
    def wpref(nt, j): return S_rdfrag(WOB[(nt, j)], wo_lds(nt, j))
    for x in wpref(4, 0) + wpref(4, 1): a(x)
    tp(a, 'dma', timing)
    a("v_cvt_pk_bf16_f32 %s, %s, %s" % (R(64), R(64), R(65)))
    a("v_cvt_pk_bf16_f32 %s, %s, %s" % (R(65), R(66), R(67)))
    a("v_cvt_pk_bf16_f32 %s, %s, %s" % (R(66), R(68), R(69)))
    a("v_cvt_pk_bf16_f32 %s, %s, %s" % (R(67), R(70), R(71)))
    a("s_add_u32 %s, %s, 4096" % (S(sT0), S(sKMJOB)))
    a("buffer_store_dwordx4 %s, %s, %s, %s offen sc1" % (RR(64, 4), R(UL), SR(sWS, 4), S(sT0)))
    for ks in range(4):
        a("s_waitcnt lgkmcnt(%d)" % (4 + 2 + 2 * (3 - ks)))
        mf32(a, SM, KMF[ks], QF[ks], None if ks == 0 else SM)
    tp(a, 'sissued', timing)
    a("v_max3_f32 %s, %s, %s, %s" % (R(TA), R(SX[0] + 1), R(SX[0] + 2), R(SX[0] + 3)))
    a("v_max3_f32 %s, %s, %s, %s" % (R(MXV), R(SX[0]), R(SX[1]), R(SX[1] + 1)))
    a("s_waitcnt lgkmcnt(4)")
    a("buffer_store_dwordx4 %s, %s, %s, %s offen sc1" % (RR(PUB, 4), R(UL), SR(sWS, 4), S(sKMJOB)))
    a("v_max3_f32 %s, %s, %s, %s" % (R(TA), R(TA), R(SX[1] + 2), R(SX[1] + 3)))
    a("s_cmp_eq_u32 %s, 63" % S(sSTEP))
    a("s_cbranch_scc1 L_chain_end")
    tstamp(a, 3, timing); tp(a, 'p3end', timing)
    a("v_max3_f32 %s, %s, %s, %s" % (R(MXV), R(MXV), R(SM), R(SM + 1)))
    a("v_max_f32 %s, %s, %s" % (R(MXV), R(MXV), R(TA)))
    a("v_mov_b32 %s, %s" % (R(TA), R(MXV)))
    for x in wpref(5, 0): a(x)
    a("v_permlane16_swap_b32 %s, %s" % (R(MXV), R(TA)))
    a("v_max_f32 %s, %s, %s" % (R(MXV), R(MXV), R(TA)))
    a("v_mov_b32 %s, %s" % (R(TA), R(MXV)))
    for x in wpref(5, 1): a(x)
    a("v_permlane32_swap_b32 %s, %s" % (R(MXV), R(TA)))
    a("v_max_f32 %s, %s, %s" % (R(MXV), R(MXV), R(TA)))
    a("v_mul_f32 %s, %s, %s" % (R(TA), S(sCEXP), R(MXV)))
    vals = [SM, SM + 1] + [SX[0] + i for i in range(4)] + [SX[1] + i for i in range(4)]
    for v_ in vals: a("v_fma_f32 %s, %s, %s, -%s" % (R(v_), R(v_), S(sCEXP), R(TA)))
    for x in wpref(6, 0): a(x)
    for v_ in vals[:4]: a("v_exp_f32 %s, %s" % (R(v_), R(v_)))
    for x in wpref(6, 1): a(x)
    for v_ in vals[4:]: a("v_exp_f32 %s, %s" % (R(v_), R(v_)))
    a("v_cvt_pk_bf16_f32 %s, %s, %s" % (R(PM), R(SM), R(SM + 1)))
    a("v_cvt_pk_bf16_f32 %s, %s, %s" % (R(PM + 1), R(SM), R(SM + 1)))
    a("v_cvt_pk_bf16_f32 %s, %s, %s" % (R(PX), R(SX[0]), R(SX[0] + 1)))
    a("v_cvt_pk_bf16_f32 %s, %s, %s" % (R(PX + 1), R(SX[0] + 2), R(SX[0] + 3)))
    mf16(a, OACC[0], 64, PM)
    a("v_cvt_pk_bf16_f32 %s, %s, %s" % (R(PX + 2), R(SX[1]), R(SX[1] + 1)))
    a("v_cvt_pk_bf16_f32 %s, %s, %s" % (R(PX + 3), R(SX[1] + 2), R(SX[1] + 3)))
    mf16(a, OACC[1], 66, PM)
    a("v_add_f32 %s, %s, %s" % (R(ZX), R(SM), R(SM + 1)))
    a("v_add_f32 %s, %s, %s" % (R(TA), R(SX[0]), R(SX[0] + 1)))
    mf32(a, OACC[0], VX[0], PX, OACC[0])
    a("v_add_f32 %s, %s, %s" % (R(RZ), R(SX[0] + 2), R(SX[0] + 3)))
    a("v_add_f32 %s, %s, %s" % (R(ZX), R(ZX), R(TA)))
    mf32(a, OACC[1], VX[1], PX, OACC[1])
    a("v_add_f32 %s, %s, %s" % (R(TA), R(SX[1]), R(SX[1] + 1)))
    a("v_add_f32 %s, %s, %s" % (R(ZX), R(ZX), R(RZ)))
    a("v_add_f32 %s, %s, %s" % (R(RZ), R(SX[1] + 2), R(SX[1] + 3)))
    a("v_add_f32 %s, %s, %s" % (R(ZX), R(ZX), R(TA)))
    a("v_add_f32 %s, %s, %s" % (R(ZX), R(ZX), R(RZ)))
    a("v_mov_b32 %s, %s" % (R(TA), R(ZX)))
    for x in wpref(7, 0): a(x)
    a("v_permlane16_swap_b32 %s, %s" % (R(ZX), R(TA)))
    a("v_add_f32 %s, %s, %s" % (R(ZX), R(ZX), R(TA)))
    a("v_mov_b32 %s, %s" % (R(TA), R(ZX)))
    for x in wpref(7, 1): a(x)
    a("v_permlane32_swap_b32 %s, %s" % (R(ZX), R(TA)))
    a("v_add_f32 %s, %s, %s" % (R(ZX), R(ZX), R(TA)))
    a("v_rcp_f32 %s, %s" % (R(RZ), R(ZX)))
    a("v_mov_b64 %s, 0" % RR(16, 2))
    for t in range(2):
        for i in range(4):
            a("v_mul_f32 %s, %s, %s" % (R(OACC[t] + i), R(OACC[t] + i), R(RZ)))
    a("v_cvt_pk_bf16_f32 %s, %s, %s" % (R(OC), R(OACC[0]), R(OACC[0] + 1)))
    a("v_cvt_pk_bf16_f32 %s, %s, %s" % (R(OC + 1), R(OACC[0] + 2), R(OACC[0] + 3)))
    a("v_cvt_pk_bf16_f32 %s, %s, %s" % (R(OC + 2), R(OACC[1]), R(OACC[1] + 1)))
    a("v_cvt_pk_bf16_f32 %s, %s, %s" % (R(OC + 3), R(OACC[1] + 2), R(OACC[1] + 3)))
    a("s_mov_b64 exec, %s" % SR(sO8, 2))
    a("ds_write_b128 %s, %s offset:%d" % (R(OW), RR(OC, 4), OX_OFF))
    a("s_mov_b64 exec, -1")
    tstamp(a, 4, timing)
    for r_ in range(18, 36, 2): a("v_mov_b64 %s, 0" % RR(r_, 2))
    a("s_waitcnt lgkmcnt(0)")
    a("s_barrier")
    a("ds_read_b128 %s, %s offset:%d" % (RR(OA[0], 4), R(OR_), OX_OFF))
    a("ds_read_b128 %s, %s offset:%d" % (RR(OA[1], 4), R(OR_), OX_OFF + 128))
    a("ds_read_b128 %s, %s offset:%d" % (RR(TBL, 4), R(UL), TB_OFF))
    a("ds_read_b128 %s, %s offset:%d" % (RR(SEL, 4), R(UL), SEL_OFF))
    for r_ in range(36, 48, 2): a("v_mov_b64 %s, 0" % RR(r_, 2))
    a("s_waitcnt lgkmcnt(2)")
    def wpost(nt, d):
        x = WA[nt]
        return ["v_add_f32 %s, %s, %s" % (R(x), R(x), R(x + 2)), "v_add_f32 %s, %s, %s" % (R(x + 1), R(x + 1), R(x + 3)),
                "v_cvt_pk_bf16_f32 %s, %s, %s" % (R(d), R(x), R(x + 1))]
    def WB(nt, j): return WO(nt, j) if nt < 4 else WOB[(nt, j)]
    order = [(0, 0), (1, 0), (2, 0), (3, 0), (0, 1), (1, 1), (2, 1), (3, 1), (4, 0), (5, 0), (4, 1), (5, 1), (6, 0), (7, 0), (6, 1), (7, 1)]
    wm = [S_smf(WA[nt], OA[j], WB(nt, j)) for nt, j in order]
    p = [wpost(nt, PK + nt) for nt in range(8)]
    weave(a, wm, [[], [], [], [], [], [], [], [], [], [], [], [p[0][0]], [p[0][1], p[0][2]], [p[1][0], p[1][1]], [p[1][2], p[2][0]], [p[2][1], p[2][2]]])
    for x in p[3]: a(x)
    a("buffer_store_dwordx4 %s, %s, %s, %s offen" % (RR(PK, 4), R(UL), SR(sWS, 4), S(sPARTST)))
    for nt in range(4, 8):
        for x in p[nt]: a(x)
    a("buffer_store_dwordx4 %s, %s, %s, %s offen offset:1024" % (RR(PK + 4, 4), R(UL), SR(sWS, 4), S(sPARTST)))
    tstamp(a, 5, timing)
    for r_ in range(48, 72, 2): a("v_mov_b64 %s, 0" % RR(r_, 2))
    a("s_add_u32 %s, %s, 0x20000" % (S(sT1), S(sPARTLD)))
    dly = opt.get('pdelay', 6)
    if dly: a("s_sleep %d" % dly)
    Lp = a.newlabel('ppoll'); Ld = a.newlabel('ppolld'); Lr = a.newlabel('pretry')
    a.label(Lp)
    a("buffer_load_dwordx4 %s, %s, %s, %s offen sc1" % (RR(RD, 4), R(TBL + 1), SR(sWS, 4), S(sPARTLD)))
    a("buffer_load_dwordx4 %s, %s, %s, %s offen sc1" % (RR(RD + 4, 4), R(TBL + 1), SR(sWS, 4), S(sT1)))
    a("s_waitcnt vmcnt(0)")
    poison_check(a, list(range(RD, RD + 8)), Lr, Ld)
    stubs.append((Lr, Lp, Ld))
    a.label(Ld)
    tstamp(a, 6, timing)
    mf32(a, RS, SEL, RD); mf32(a, RS, SEL, RD + 4, RS)
    a("s_add_u32 %s, %s, 1" % (S(sSLOT), S(sSLOT)))
    a("s_cmp_eq_u32 %s, 3" % S(sSLOT))
    a("s_cselect_b32 %s, 0, %s" % (S(sSLOT), S(sSLOT)))
    a("s_lshl_b32 %s, %s, 13" % (S(sT0), S(sSLOT)))
    a("s_add_u32 %s, %s, %s" % (S(sMEMRD), S(sMEMRD0), S(sT0)))
    a("s_lshl_b32 %s, %s, 18" % (S(sT1), S(sSLOT)))
    a("v_mov_b64 %s, -1" % RR(POI, 2))
    a("v_mov_b64 %s, -1" % RR(POI + 2, 2))
    for i in range(4):
        a("v_add_f32_dpp %s, %s, %s row_ror:8 row_mask:0xf bank_mask:0xf" % (R(RS + i), R(RS + i), R(RS + i)))
    for i in range(4):
        a("v_add_f32_dpp %s, %s, %s row_ror:4 row_mask:0xf bank_mask:0xf" % (R(RS + i), R(RS + i), R(RS + i)))
    a("v_cndmask_b32 %s, %s, %s, %s" % (R(RS), R(RS), R(RS + 1), SR(sM2, 2)))
    a("v_cndmask_b32 %s, %s, %s, %s" % (R(RS + 2), R(RS + 2), R(RS + 3), SR(sM2, 2)))
    a("v_cvt_pk_bf16_f32 %s, %s, %s" % (R(RS), R(RS), R(RS + 2)))
    a("s_mov_b64 exec, %s" % SR(sEX, 2))
    a("buffer_store_dword %s, %s, %s, %s offen" % (R(RS), R(TBL + 2), SR(sWS, 4), S(sMEMST)))
    a("s_mov_b64 exec, -1")
    tstamp(a, 7, timing)
    a("s_add_u32 %s, %s, %s" % (S(sPARTST), S(sPARTST0), S(sT1)))
    a("s_add_u32 %s, %s, %s" % (S(sPARTLD), S(sPARTLD0), S(sT1)))
    a("s_add_u32 %s, %s, 1" % (S(sT2), S(sSLOT)))
    a("s_cmp_eq_u32 %s, 3" % S(sT2))
    a("s_cselect_b32 %s, 0, %s" % (S(sT2), S(sT2)))
    a("s_lshl_b32 %s, %s, 13" % (S(sT0), S(sT2)))
    a("s_add_u32 %s, %s, %s" % (S(sMEMST), S(sMEMST0), S(sT0)))
    a("s_lshl_b32 %s, %s, 18" % (S(sT0), S(sT2)))
    a("s_add_u32 %s, %s, %s" % (S(sT0), S(sPARTST0), S(sT0)))
    a("buffer_store_dwordx4 %s, %s, %s, %s offen" % (RR(POI, 4), R(UL), SR(sWS, 4), S(sT0)))
    a("buffer_store_dwordx4 %s, %s, %s, %s offen offset:1024" % (RR(POI, 4), R(UL), SR(sWS, 4), S(sT0)))
    a("s_mov_b64 exec, %s" % SR(sEX, 2))
    a("buffer_store_dword %s, %s, %s, %s offen" % (R(POI), R(TBL + 2), SR(sWS, 4), S(sMEMST)))
    a("s_mov_b64 exec, -1")
    for i in (4, 5, 6):
        for t in range(2):
            for x in vpref(i, t): a(x)
    Lok = a.newlabel('kvok')
    a("s_cmp_ge_u32 %s, 62" % S(sSTEP))
    a("s_cbranch_scc1 %s" % Lok)
    a("s_cmp_eq_u32 %s, 1" % S(sRDY))
    a("s_cbranch_scc1 %s" % Lok)
    poll(a, T1, TBL + 3, S(sFLKV))
    for t in S_kv_dma(): a(t)
    a.label(Lok)
    a("s_add_u32 %s, %s, 1" % (S(sSTEP), S(sSTEP)))
    a("s_add_u32 %s, %s, %d" % (S(sKVSRC), S(sKVSRC), QKV_JOB))
    a("s_add_u32 %s, %s, %d" % (S(sKMJOB), S(sKMJOB), KM_JOB))
    a("s_add_u32 %s, %s, %d" % (S(sFLKV), S(sFLKV), JOBFLAG_BYTES))
    if opt.get('mdelay', 2): a("s_sleep %d" % opt.get('mdelay', 2))
    if timing == 2:
        a("s_waitcnt lgkmcnt(0)")
        for k in range(7):
            a("s_sub_u32 %s, s%d, s%d" % (S(sT0), 74 + 2 * k, 72 + 2 * k))
            a("s_add_u32 s%d, s%d, %s" % (88 + k, 88 + k, S(sT0)))
    a("s_branch L_step")
    a.filt = None
    for st in stubs: retry_stub(a, *st)
    a.label("L_chain_end")
    a("s_waitcnt vmcnt(0)")
    a("s_barrier")
    a("v_mov_b32 %s, 1" % R(T0))
    a("v_mov_b32 %s, 0" % R(T1))
    a("s_mov_b64 exec, %s" % SR(sW0, 2))
    a("buffer_store_dword %s, %s, %s, %s offen sc1" % (R(T0), R(T1), SR(sWS, 4), S(sFLKM)))
    a("s_mov_b64 exec, -1")

def chain_role(a, init_target, timing=0, opt=None):
    signal_init(a, T1, T2)
    a("s_mov_b32 %s, %s" % (S(sL), S(sXCC)))
    Lg = a.newlabel('go')
    a("s_cmp_eq_u32 %s, 0" % S(sL)); a("s_cbranch_scc1 %s" % Lg)
    if GATE: gate_wait(a, T1, T2, GATE)
    a.label(Lg)
    chain_pre(a)
    if timing:
        for k in range(88, 96): a("s_mov_b32 s%d, 0" % k)
        a("s_memtime s[96:97]")
    chain_load_weights(a, mid=chain_setup)
    trace_cu(a, 3, T1, T2, 3)
    a("s_waitcnt vmcnt(0)")
    a("s_barrier")
    a("s_lshl_b32 %s, %s, 2" % (S(sT0), S(sL)))
    a("s_add_u32 %s, %s, %d" % (S(sT0), S(sT0), DBG_W0))
    Lb = a.newlabel('cb')
    a("s_cmp_eq_u32 %s, 0" % S(sW)); a("s_cbranch_scc0 %s" % Lb)
    a("s_mov_b64 exec, 1")
    a("v_mov_b32 %s, 1" % R(T1))
    a("v_mov_b32 %s, %s" % (R(T2), S(sT0)))
    a("buffer_atomic_add %s, %s, %s, 0 offen" % (R(T1), R(T2), SR(sDBG, 4)))
    a("s_mov_b64 exec, -1")
    Lw = a.newlabel('cw'); Lwd = a.newlabel('cwd')
    a.label(Lw)
    a("buffer_load_dword %s, %s, %s, 0 offen sc1" % (R(T1), R(T2), SR(sDBG, 4)))
    a("s_waitcnt vmcnt(0)")
    a("v_readfirstlane_b32 %s, %s" % (S(sT1), R(T1)))
    a("s_cmp_ge_u32 %s, 32" % S(sT1))
    a("s_cbranch_scc1 %s" % Lwd)
    a("s_add_u32 %s, %s, 1" % (S(sTMO), S(sTMO)))
    a("s_cmp_gt_u32 %s, %d" % (S(sTMO), TIMEOUT))
    a("s_cbranch_scc1 %s" % Lwd)
    a("s_sleep 2")
    a("s_branch %s" % Lw)
    a.label(Lwd)
    a.label(Lb)
    wait_init(a, T1, T2, init_target)
    if timing:
        a("s_memtime s[98:99]")
    chain_loop(a, timing, opt)
    if timing:
        a("s_memtime s[100:101]")
        a("s_waitcnt lgkmcnt(0)")
        a("s_sub_u32 s95, s98, s96")
        a("s_sub_u32 s96, s100, s98")
        a("s_mov_b32 s97, %s" % S(sTMO))
        Lx = a.newlabel('tw')
        a("s_cmp_eq_u32 %s, 0" % S(sH)); a("s_cbranch_scc0 %s" % Lx)
        a("s_cmp_eq_u32 %s, 0" % S(sW)); a("s_cbranch_scc0 %s" % Lx)
        a("s_mov_b64 exec, 1")
        a("s_lshl_b32 %s, %s, 6" % (S(sT0), S(sL)))
        a("v_mov_b32 %s, %s" % (R(T1), S(sT0)))
        for k in range(10):
            a("v_mov_b32 %s, s%d" % (R(T0), 88 + k))
            a("s_mov_b32 %s, %d" % (S(sT1), WS_TRACE + 16384))
            a("buffer_store_dword %s, %s, %s, %s offen offset:%d" % (R(T0), R(T1), SR(sWS, 4), S(sT1), 4 * k))
        a("s_mov_b64 exec, -1")
        a.label(Lx)
    a("s_waitcnt vmcnt(0)")
    a("s_branch L_exit")
```

```python
import common
from bulk import *


LAM = 26
MDED = True
MIMIC = True
sPEND2 = 66
def pos_to_job(a, s_pos):
    La = a.newlabel('pa'); Lb = a.newlabel('pb'); Lc = a.newlabel('pc')
    a("s_mov_b32 %s, %s" % (S(sT0), S(s_pos)))
    a("s_cmp_lt_u32 %s, %d" % (S(sT0), LAM))
    a("s_cbranch_scc0 %s" % La)
    a("s_mov_b32 %s, 0" % S(sJL)); a("s_mov_b32 %s, %s" % (S(sJS), S(sT0)))
    a("s_branch %s" % Lc)
    a.label(La)
    a("s_sub_u32 %s, %s, %d" % (S(sT0), S(sT0), LAM))
    a("s_cmp_lt_u32 %s, %d" % (S(sT0), 2 * (64 - LAM)))
    a("s_cbranch_scc0 %s" % Lb)
    a("s_and_b32 %s, %s, 1" % (S(sT1), S(sT0)))
    a("s_xor_b32 %s, %s, 1" % (S(sJL), S(sT1)))
    a("s_lshr_b32 %s, %s, 1" % (S(sJS), S(sT0)))
    a("s_mul_i32 %s, %s, %d" % (S(sT1), S(sT1), LAM))
    a("s_add_u32 %s, %s, %s" % (S(sJS), S(sJS), S(sT1)))
    a("s_branch %s" % Lc)
    a.label(Lb)
    a("s_mov_b32 %s, 1" % S(sJL))
    a("s_sub_u32 %s, %s, %d" % (S(sJS), S(sT0), 64 - LAM))
    a.label(Lc)
    a("s_lshl_b32 %s, %s, 6" % (S(sT0), S(sJL)))
    a("s_add_u32 %s, %s, %s" % (S(sT0), S(sT0), S(sJS)))
    a("s_mul_i32 %s, %s, %d" % (S(sFLJ), S(sT0), JOBFLAG_BYTES))

sPAR2 = 70

sG0, sG1 = 68, 69
sML, sMS, sMFL, sMSUB = 74, 75, 76, 77
GEO = dict(gpj=8)
def NGRP(): return 64 * GEO['gpj']
def misc_cands(a, ncu, flag_of):
    for c, g in ((sC0, sG0), (sC1, sG1)):
        a("s_mul_i32 %s, %s, %d" % (S(g), S(c), ncu))
        a("s_add_u32 %s, %s, %s" % (S(g), S(g), S(sREP)))
    a("s_min_u32 %s, %s, %d" % (S(sT2), S(sG0), NGRP() - 1)); flag_of(a, sF0, sT2, 0)
    a("s_min_u32 %s, %s, %d" % (S(sT2), S(sG1), NGRP() - 1)); flag_of(a, sF1, sT2, 1)
def misc_sample(a, VOFF, V0, V1):
    a("buffer_load_dword %s, %s, %s, %s offen sc1" % (R(V0), R(VOFF), SR(sWS, 4), S(sF0)))
    a("buffer_load_dword %s, %s, %s, %s offen sc1" % (R(V1), R(VOFF), SR(sWS, 4), S(sF1)))
def misc_decide(a, V0, V1, target, prio=0):
    a("v_cmp_le_u32 vcc, %d, %s" % (target, R(V0)))
    a("s_cmp_eq_u64 vcc, -1"); a("s_cselect_b32 %s, 1, 0" % S(sT0))
    a("s_cmp_lt_u32 %s, %d" % (S(sG0), NGRP())); a("s_cselect_b32 %s, %s, 0" % (S(sT0), S(sT0)))
    a("v_cmp_le_u32 vcc, %d, %s" % (target, R(V1)))
    a("s_cmp_eq_u64 vcc, -1"); a("s_cselect_b32 %s, 2, 0" % S(sT1))
    a("s_cmp_lt_u32 %s, %d" % (S(sG1), NGRP())); a("s_cselect_b32 %s, %s, 0" % (S(sT1), S(sT1)))
    first, second = (sT0, sT1) if prio == 0 else (sT1, sT0)
    a("s_cmp_lg_u32 %s, 0" % S(first)); a("s_cselect_b32 %s, %s, %s" % (S(sDEC), S(first), S(second)))
    a("s_min_u32 %s, %s, %s" % (S(sT2), S(sG0), S(sG1)))
    a("s_cmp_ge_u32 %s, %d" % (S(sT2), NGRP())); a("s_cselect_b32 %s, 3, %s" % (S(sDEC), S(sDEC)))
TR_TAG = [None]
def misc_take(a):
    _take(a)
    if TR_TAG[0] == 's2': trace(a, 12, sML, sMS, [(sMSUB, 0)], 13, 14, sT0)
def _take(a):
    a("s_sub_u32 %s, %s, 1" % (S(sML), S(sDEC)))
    a("s_cmp_eq_u32 %s, 0" % S(sML))
    a("s_cselect_b32 %s, %s, %s" % (S(sT0), S(sG0), S(sG1)))
    sh = {8: 3, 4: 2}[GEO['gpj']]
    a("s_lshr_b32 %s, %s, %d" % (S(sMS), S(sT0), sh))
    a("s_and_b32 %s, %s, %d" % (S(sMSUB), S(sT0), GEO['gpj'] - 1))
    a("s_lshl_b32 %s, %s, %d" % (S(sMSUB), S(sMSUB), 5 - sh))
    a("s_add_u32 %s, %s, %s" % (S(sMSUB), S(sMSUB), S(sW)))
    a("s_xor_b32 %s, %s, 1" % (S(sT0), S(sML)))
    a("s_add_u32 %s, %s, %s" % (S(sC0), S(sC0), S(sT0)))
    a("s_add_u32 %s, %s, %s" % (S(sC1), S(sC1), S(sML)))
    a("s_lshl_b32 %s, %s, 6" % (S(sT0), S(sML)))
    a("s_add_u32 %s, %s, %s" % (S(sT0), S(sT0), S(sMS)))
    a("s_mul_i32 %s, %s, %d" % (S(sMFL), S(sT0), JOBFLAG_BYTES))
def misc_block_pick(a, tag, ncu, VOFF, V0, V1, T1, T2, flag_of, target):
    Lb = a.newlabel(tag + 'mp'); Lp = a.newlabel(tag + 'mpl'); Ld = a.newlabel(tag + 'mpd')
    misc_cands(a, ncu, flag_of)
    a("s_cmp_eq_u32 %s, 0" % S(sW)); a("s_cbranch_scc0 %s" % Lb)
    a.label(Lp)
    misc_sample(a, VOFF, V0, V1)
    a("s_waitcnt vmcnt(0)")
    misc_decide(a, V0, V1, target)
    a("s_cmp_lg_u32 %s, 0" % S(sDEC)); a("s_cbranch_scc1 %s" % Ld)
    a("s_add_u32 %s, %s, 1" % (S(sTMO), S(sTMO)))
    a("s_cmp_gt_u32 %s, %d" % (S(sTMO), TIMEOUT))
    a("s_cselect_b32 %s, 3, 0" % S(sDEC))
    a("s_cbranch_scc1 %s" % Ld)
    a("s_sleep %d" % common.PSLEEP)
    a("s_branch %s" % Lp)
    a.label(Ld)
    bcast_write(a, T1, T2)
    a.label(Lb)
    a("s_barrier")
    bcast_read(a, T1, T2)

def misc_loop(a, tag, ncu, VOFF, V0, V1, T1, T2, flag_of, target, loads, nloads, compute, trace_fn):
    TR_TAG[0] = tag
    Ld = a.newlabel(tag + 'done')
    Lj = [a.newlabel(tag + 'job0'), a.newlabel(tag + 'job1')]
    if MDED:
        ncu = ncu // 2
        a("s_cmp_lt_u32 %s, %d" % (S(sREP), ncu))
        a("s_cselect_b32 %s, 0, 512" % S(sC0))
        a("s_cselect_b32 %s, 512, 0" % S(sC1))
        a("s_cselect_b32 %s, 0, %d" % (S(sT0), ncu))
        a("s_sub_u32 %s, %s, %s" % (S(sREP), S(sREP), S(sT0)))
    else:
        a("s_mov_b32 %s, 0" % S(sC0)); a("s_mov_b32 %s, 0" % S(sC1))
    misc_block_pick(a, tag, ncu, VOFF, V0, V1, T1, T2, flag_of, target)
    a("s_cmp_eq_u32 %s, 3" % S(sDEC)); a("s_cbranch_scc1 %s" % Ld)
    misc_take(a)
    loads(a, 0)
    misc_cands(a, ncu, flag_of)
    misc_sample(a, VOFF, V0, V1)
    a("s_waitcnt vmcnt(0)")
    a("s_mov_b32 s78, 0")
    for p in range(2):
        Llate = a.newlabel(tag + 'late'); Lw = a.newlabel(tag + 'w0'); Lc = a.newlabel(tag + 'c'); Ls1 = a.newlabel(tag + 's1'); Lgo = a.newlabel(tag + 'go')
        a.label(Lj[p])
        a("s_mov_b32 %s, %s\ns_mov_b32 %s, %s\ns_mov_b32 %s, %s\ns_mov_b32 %s, %s" % (S(sJL), S(sML), S(sJS), S(sMS), S(sFLJ), S(sMFL), S(sX1), S(sMSUB)))
        Lv = a.newlabel(tag + 'v'); Lv2 = a.newlabel(tag + 'v2')
        a("s_cmp_eq_u32 s78, 0"); a("s_cbranch_scc1 %s" % Lv)
        a("s_waitcnt vmcnt(1)")
        a("s_branch %s" % Lv2)
        a.label(Lv)
        a("s_waitcnt vmcnt(0)")
        a.label(Lv2)
        a("s_cmp_eq_u32 %s, 0" % S(sW)); a("s_cbranch_scc0 %s" % Lw)
        misc_decide(a, V0, V1, target)
        bcast_write(a, T1, T2)
        a.label(Lw)
        a("s_barrier")
        bcast_read(a, T1, T2)
        a("s_mov_b32 s79, 0")
        a("s_sub_u32 %s, %s, 1" % (S(sT0), S(sDEC)))
        a("s_cmp_lt_u32 %s, 2" % S(sT0))
        a("s_cbranch_scc0 %s" % Lc)
        misc_take(a)
        loads(a, 1 - p)
        a("s_mov_b32 s79, 1")
        a.label(Lc)
        if tag == 's2': trace(a, 13, sJL, sJS, [(sX1, 0)], T1, T2, sT0)
        compute(a, p)
        misc_cands(a, ncu, flag_of)
        misc_sample(a, VOFF, V0, V1)
        a("s_waitcnt vmcnt(2)")
        a("s_cmp_eq_u32 s78, 0"); a("s_cbranch_scc1 %s" % Ls1)
        wg_signal(a, T1, T2, "s78", val=8 // GEO['gpj'])
        a.label(Ls1)
        trace_fn(a)
        a("s_cmp_eq_u32 s79, 1"); a("s_cbranch_scc1 %s" % Lgo)
        misc_block_pick(a, tag, ncu, VOFF, V0, V1, T1, T2, flag_of, target)
        a("s_cmp_eq_u32 %s, 3" % S(sDEC)); a("s_cbranch_scc1 %s" % Ld)
        misc_take(a)
        loads(a, 1 - p)
        misc_cands(a, ncu, flag_of)
        misc_sample(a, VOFF, V0, V1)
        a("s_waitcnt vmcnt(0)")
        a.label(Lgo)
        if p == 1: a("s_branch %s" % Lj[0])
    a.label(Ld)
    a("s_waitcnt vmcnt(0)")
    a("s_branch L_exit")

def wave_allsum(a, x, t):
    for rr in (8, 4, 2, 1):
        a("v_add_f32_dpp %s, %s, %s row_ror:%d row_mask:0xf bank_mask:0xf" % (R(x), R(x), R(x), rr))
    a("v_mov_b32 %s, %s" % (R(t), R(x)))
    a("v_permlane16_swap_b32 %s, %s" % (R(x), R(t)))
    a("v_add_f32 %s, %s, %s" % (R(x), R(x), R(t)))
    a("v_mov_b32 %s, %s" % (R(t), R(x)))
    a("v_permlane32_swap_b32 %s, %s" % (R(x), R(t)))
    a("v_add_f32 %s, %s, %s" % (R(x), R(x), R(t)))

def rnd_bf(a, x, t=None):
    a("v_cvt_pk_bf16_f32 %s, %s, %s" % (R(x), R(x), R(x)))
    a("v_and_b32 %s, 0xffff0000, %s" % (R(x), R(x)))

def unpack4(a, dst, src):
    a("v_lshlrev_b32 %s, 16, %s" % (R(dst), R(src)))
    a("v_and_b32 %s, 0xffff0000, %s" % (R(dst + 1), R(src)))
    a("v_lshlrev_b32 %s, 16, %s" % (R(dst + 2), R(src + 1)))
    a("v_and_b32 %s, 0xffff0000, %s" % (R(dst + 3), R(src + 1)))

def ln_row(a, X, PKH, M, V_, T):
    a("v_add_f32 %s, %s, %s" % (R(M), R(X), R(X + 1)))
    a("v_add_f32 %s, %s, %s" % (R(T), R(X + 2), R(X + 3)))
    a("v_add_f32 %s, %s, %s" % (R(V_), R(X + 4), R(X + 5)))
    a("v_add_f32 %s, %s, %s" % (R(M), R(M), R(T)))
    a("v_add_f32 %s, %s, %s" % (R(T), R(X + 6), R(X + 7)))
    a("v_add_f32 %s, %s, %s" % (R(V_), R(V_), R(T)))
    a("v_add_f32 %s, %s, %s" % (R(M), R(M), R(V_)))
    wave_allsum(a, M, T)
    a("v_mul_f32 %s, 0x%x, %s" % (R(M), f32(1.0 / 512), R(M)))
    D = PKH + 4
    for i in range(8): a("v_sub_f32 %s, %s, %s" % (R(D + i), R(X + i), R(M)))
    a("v_mul_f32 %s, %s, %s" % (R(V_), R(D), R(D)))
    for i in range(1, 8): a("v_fmac_f32 %s, %s, %s" % (R(V_), R(D + i), R(D + i)))
    wave_allsum(a, V_, T)
    a("v_mul_f32 %s, 0x%x, %s" % (R(V_), f32(1.0 / 512), R(V_)))
    rnd_bf(a, M); rnd_bf(a, V_)
    a("v_add_f32 %s, 0x%x, %s" % (R(V_), f32(1e-5), R(V_)))
    rnd_bf(a, V_)
    a("v_sqrt_f32 %s, %s" % (R(V_), R(V_)))
    rnd_bf(a, V_)
    a("v_rcp_f32 %s, %s" % (R(V_), R(V_)))
    for i in range(8): a("v_sub_f32 %s, %s, %s" % (R(D + i), R(X + i), R(M)))
    for i in range(0, 8, 2):
        a("v_cvt_pk_bf16_f32 %s, %s, %s" % (R(T), R(D + i), R(D + i + 1)))
        a("v_lshlrev_b32 %s, 16, %s" % (R(D + i), R(T)))
        a("v_and_b32 %s, 0xffff0000, %s" % (R(D + i + 1), R(T)))
    for i in range(8): a("v_mul_f32 %s, %s, %s" % (R(D + i), R(D + i), R(V_)))
    for i in range(4): a("v_cvt_pk_bf16_f32 %s, %s, %s" % (R(PKH + i), R(D + 2 * i), R(D + 2 * i + 1)))

RL, RV8, RV16, RT1, RT2, RFL = 0, 1, 2, 13, 14, 3
RP = 16
RX = 48
RXF = 52
RPK = 64
RM, RVv, RT = 80, 81, 82

def row_setup(a):
    a("v_lshlrev_b32 %s, 3, %s" % (R(RV8), R(RL)))
    a("v_lshlrev_b32 %s, 4, %s" % (R(RV16), R(RL)))

def r0_phase(a, nwaves, s_wid):
    Lj = a.newlabel('r0'); Ld = a.newlabel('r0d')
    a("s_mov_b32 %s, %s" % (S(sX0), S(s_wid)))
    a("s_mov_b32 %s, 0" % S(sPAR2))
    a.label(Lj)
    a("s_cmp_ge_u32 %s, 2048" % S(sX0))
    a("s_cbranch_scc1 %s" % Ld)
    a("s_lshl_b32 %s, %s, 10" % (S(sT0), S(sX0)))
    a("buffer_load_dwordx2 %s, %s, %s, %s offen" % (RR(RX, 2), R(RV8), SR(sB, 4), S(sT0)))
    a("buffer_load_dwordx2 %s, %s, %s, %s offen offset:512" % (RR(RX + 2, 2), R(RV8), SR(sB, 4), S(sT0)))
    a("s_waitcnt vmcnt(0)")
    unpack4(a, RXF, RX); unpack4(a, RXF + 4, RX + 2)
    ln_row(a, RXF, RPK, RM, RVv, RT)
    a("s_add_u32 %s, %s, %d" % (S(sT0), S(sT0), WS_HN))
    a("buffer_store_dwordx2 %s, %s, %s, %s offen sc1" % (RR(RPK, 2), R(RV8), SR(sWS, 4), S(sT0)))
    a("buffer_store_dwordx2 %s, %s, %s, %s offen offset:512 sc1" % (RR(RPK + 2, 2), R(RV8), SR(sWS, 4), S(sT0)))
    a("s_lshr_b32 %s, %s, 5" % (S(sT1), S(sX0)))
    a("s_mul_i32 %s, %s, %d" % (S(sT1), S(sT1), JOBFLAG_BYTES))
    a("s_add_u32 %s, %s, %d" % (S(sT1), S(sT1), WS_FLAGS + FL_H))
    a("s_waitcnt vmcnt(0)")
    wg_signal(a, RT1, RT2, S(sT1))
    a("s_add_u32 %s, %s, %d" % (S(sX0), S(sX0), nwaves))
    a("s_branch %s" % Lj)
    a.label(Ld)

def r_role(a, which, ncu):
    tag = 'r%d' % which
    NP = 4 if which == 3 else 2
    RT3 = 15
    GEO['gpj'] = 4
    RPs = [[16, 100], [132, 164]]
    RXNs = [[92, 96], [196, 200]]
    a("v_mov_b32 %s, 0" % R(RFL))
    a("s_mov_b32 %s, %s" % (S(sREP), S(sAUX)))
    def flag_of(a, sd, sg, lay):
        a("s_lshr_b32 %s, %s, 2" % (S(sd), S(sg)))
        if lay: a("s_add_u32 %s, %s, 64" % (S(sd), S(sd)))
        a("s_mul_i32 %s, %s, %d" % (S(sd), S(sd), JOBFLAG_BYTES))
        a("s_add_u32 %s, %s, %d" % (S(sd), S(sd), WS_FLAGS + (FL_P3 if which == 3 else FL_P5)))
    def loads(a, pp):
        for rr in range(2):
            loads1(a, RPs[pp][rr], RXNs[pp][rr])
            if rr == 0: a("s_add_u32 %s, %s, 4" % (S(sMSUB), S(sMSUB)))
        a("s_sub_u32 %s, %s, 4" % (S(sMSUB), S(sMSUB)))
    def loads1(a, RP, RXN):
        base, ls, jb = (WS_P3, P3_L, P3_JOB) if which == 3 else (WS_P5, P5_L, P5_JOB)
        job_off2(a, sIN, base, ls, jb, sML, sMS)
        a("s_lshl_b32 %s, %s, 11" % (S(sT0), S(sMSUB)))
        a("s_add_u32 %s, %s, %s" % (S(sIN), S(sIN), S(sT0)))
        for p in range(NP):
            a("buffer_load_dwordx4 %s, %s, %s, %s offen sc1" % (RR(RP + 8 * p, 4), R(RV16), SR(sWS, 4), S(sIN)))
            a("buffer_load_dwordx4 %s, %s, %s, %s offen offset:1024 sc1" % (RR(RP + 8 * p + 4, 4), R(RV16), SR(sWS, 4), S(sIN)))
            if p + 1 < NP: a("s_add_u32 %s, %s, 65536" % (S(sIN), S(sIN)))
        a("s_lshl_b32 %s, %s, 5" % (S(sT1), S(sMS)))
        a("s_add_u32 %s, %s, %s" % (S(sT1), S(sT1), S(sMSUB)))
        a("s_lshl_b32 %s, %s, 10" % (S(sT1), S(sT1)))
        if which == 3:
            La = a.newlabel('rin'); Lb = a.newlabel('rin')
            a("s_cmp_eq_u32 %s, 0" % S(sML))
            a("s_cbranch_scc0 %s" % La)
            a("buffer_load_dwordx2 %s, %s, %s, %s offen" % (RR(RXN, 2), R(RV8), SR(sB, 4), S(sT1)))
            a("buffer_load_dwordx2 %s, %s, %s, %s offen offset:512" % (RR(RXN + 2, 2), R(RV8), SR(sB, 4), S(sT1)))
            a("s_branch %s" % Lb)
            a.label(La)
            a("s_add_u32 %s, %s, %d" % (S(sT0), S(sT1), WS_X2))
            a("buffer_load_dwordx2 %s, %s, %s, %s offen sc1" % (RR(RXN, 2), R(RV8), SR(sWS, 4), S(sT0)))
            a("buffer_load_dwordx2 %s, %s, %s, %s offen offset:512 sc1" % (RR(RXN + 2, 2), R(RV8), SR(sWS, 4), S(sT0)))
            a.label(Lb)
        else:
            a("s_mul_i32 %s, %s, %d" % (S(sT0), S(sML), X1_L))
            a("s_add_u32 %s, %s, %s" % (S(sT0), S(sT0), S(sT1)))
            a("s_add_u32 %s, %s, %d" % (S(sT0), S(sT0), WS_X1))
            a("buffer_load_dwordx2 %s, %s, %s, %s offen sc1" % (RR(RXN, 2), R(RV8), SR(sWS, 4), S(sT0)))
            a("buffer_load_dwordx2 %s, %s, %s, %s offen offset:512 sc1" % (RR(RXN + 2, 2), R(RV8), SR(sWS, 4), S(sT0)))
    def compute(a, pp):
        for rr in range(2):
            compute1(a, RPs[pp][rr], RXNs[pp][rr], rr)
            if rr == 0: a("s_add_u32 %s, %s, 4" % (S(sX1), S(sX1)))
        a("s_sub_u32 %s, %s, 4" % (S(sX1), S(sX1)))
    def compute1(a, RP, RXN, rr):
        RX = 48 + 36 * 0 + (0 if rr == 0 else 160)
        RPK = 64 if rr == 0 else 216
        Lfin = a.newlabel('rfin')
        a("s_lshl_b32 %s, %s, 5" % (S(sX2), S(sJS)))
        a("s_add_u32 %s, %s, %s" % (S(sX2), S(sX2), S(sX1)))
        a("s_lshl_b32 %s, %s, 10" % (S(sX2), S(sX2)))
        for p in range(1, NP):
            for i in range(8): a("v_add_f32 %s, %s, %s" % (R(RP + i), R(RP + i), R(RP + 8 * p + i)))
        unpack4(a, RXF, RXN); unpack4(a, RXF + 4, RXN + 2)
        for i in range(0, 8, 2):
            a("v_cvt_pk_bf16_f32 %s, %s, %s" % (R(RT), R(RP + i), R(RP + i + 1)))
            a("v_lshlrev_b32 %s, 16, %s" % (R(RP + i), R(RT)))
            a("v_and_b32 %s, 0xffff0000, %s" % (R(RP + i + 1), R(RT)))
        for i in range(8): a("v_add_f32 %s, %s, %s" % (R(RXF + i), R(RXF + i), R(RP + i)))
        for i in range(4): a("v_cvt_pk_bf16_f32 %s, %s, %s" % (R(RX + i), R(RXF + 2 * i), R(RXF + 2 * i + 1)))
        if which == 3:
            a("s_mul_i32 %s, %s, %d" % (S(sT0), S(sJL), X1_L))
            a("s_add_u32 %s, %s, %s" % (S(sT0), S(sT0), S(sX2)))
            a("s_add_u32 %s, %s, %d" % (S(sT0), S(sT0), WS_X1))
            a("buffer_store_dwordx2 %s, %s, %s, %s offen sc1" % (RR(RX, 2), R(RV8), SR(sWS, 4), S(sT0)))
            a("buffer_store_dwordx2 %s, %s, %s, %s offen offset:512 sc1" % (RR(RX + 2, 2), R(RV8), SR(sWS, 4), S(sT0)))
        else:
            L1 = a.newlabel('r5l1')
            a("s_cmp_eq_u32 %s, 0" % S(sJL))
            a("s_cbranch_scc1 %s" % L1)
            a("buffer_store_dwordx2 %s, %s, %s, %s offen" % (RR(RX, 2), R(RV8), SR(sC, 4), S(sX2)))
            a("buffer_store_dwordx2 %s, %s, %s, %s offen offset:512" % (RR(RX + 2, 2), R(RV8), SR(sC, 4), S(sX2)))
            a("s_mov_b32 s78, 0")
            a("s_branch %s" % Lfin)
            a.label(L1)
            a("s_add_u32 %s, %s, %d" % (S(sT0), S(sX2), WS_X2))
            a("buffer_store_dwordx2 %s, %s, %s, %s offen sc1" % (RR(RX, 2), R(RV8), SR(sWS, 4), S(sT0)))
            a("buffer_store_dwordx2 %s, %s, %s, %s offen offset:512 sc1" % (RR(RX + 2, 2), R(RV8), SR(sWS, 4), S(sT0)))
        unpack4(a, RXF, RX); unpack4(a, RXF + 4, RX + 2)
        ln_row(a, RXF, RPK, RM, RVv, RT)
        if which == 3:
            a("s_mul_i32 %s, %s, %d" % (S(sT0), S(sJL), H2_L))
            a("s_add_u32 %s, %s, %s" % (S(sT0), S(sT0), S(sX2)))
            a("s_add_u32 %s, %s, %d" % (S(sT0), S(sT0), WS_H2))
            a("s_add_u32 s78, %s, %d" % (S(sFLJ), WS_FLAGS + FL_H2))
        else:
            a("s_add_u32 %s, %s, %d" % (S(sT0), S(sX2), WS_HN + (HN_L if HN_L else 0)))
            a("s_add_u32 s78, %s, %d" % (S(sFLJ), WS_FLAGS + NSEG * JOBFLAG_BYTES + FL_H))
        a("buffer_store_dwordx2 %s, %s, %s, %s offen sc1" % (RR(RPK, 2), R(RV8), SR(sWS, 4), S(sT0)))
        a("buffer_store_dwordx2 %s, %s, %s, %s offen offset:512 sc1" % (RR(RPK + 2, 2), R(RV8), SR(sWS, 4), S(sT0)))
        a.label(Lfin)
    misc_loop(a, tag, ncu, RFL, 90, 91, RT1, RT2, flag_of, 16 if which == 3 else 8, loads, 2 * NP + 2, compute,
              lambda a: trace(a, 6 if which == 3 else 11, sJL, sJS, [(sX1, 0)], RT2, RT3, sT0))

def s2_role(a, nwaves):
    lane, T1, T2, T3 = 0, 13, 14, 15
    VL16, VFL, VO = 1, 2, 3
    SETB = [16, 256]
    cur = [0]
    QFr = lambda qt, ks: SETB[cur[0]] + 16 * qt + 4 * ks
    KFr = lambda kt, ks: SETB[cur[0]] + 32 + 16 * kt + 4 * ks
    VFr = lambda et: SETB[cur[0]] + 64 + 4 * et
    KMr = lambda ks: SETB[cur[0]] + 96 + 4 * ks
    VMr = lambda w: SETB[cur[0]] + 112 + 4 * w
    SM_ = lambda qt: 144 + 4 * qt
    SXr = lambda qt, kt: 152 + 8 * qt + 4 * kt
    PXr = lambda qt: 168 + 4 * qt
    PMr = lambda qt: 176 + 2 * qt
    OAc = lambda qt, et: 180 + 32 * qt + 4 * et
    MX_, Z_, TT = 244, 245, 246
    sMSK = 56
    sSCALE, sL2E = 72, 73
    a("v_lshlrev_b32 %s, 4, %s" % (R(VL16), R(lane)))
    a("v_mov_b32 %s, 0" % R(VFL))
    a("v_lshrrev_b32 %s, 4, %s" % (R(T1), R(lane)))
    a("v_and_b32 %s, 15, %s" % (R(T2), R(lane)))
    a("v_lshlrev_b32 %s, 4, %s" % (R(VO), R(T2)))
    a("v_lshl_add_u32 %s, %s, 9, %s" % (R(VO), R(T1), R(VO)))
    a("v_lshlrev_b32 %s, 2, %s" % (R(T1), R(T1)))
    for i in range(4):
        a("v_add_u32 %s, %d, %s" % (R(T3), i, R(T1)))
        a("v_cmp_le_u32 %s, %s, %s" % (SR(sMSK + 2 * i, 2), R(T3), R(T2)))
    a("s_mov_b32 %s, 0x%x" % (S(sSCALE), f32(128 ** -0.5)))
    a("s_mov_b32 %s, 0x%x" % (S(sL2E), f32(1.4426950408889634 * (1.0 if MIMIC else 128 ** -0.5))))
    a("s_mov_b32 %s, %s" % (S(sREP), S(sAUX)))
    a("v_bfe_u32 %s, %s, 3, 2" % (R(VFL), R(lane)))
    a("v_lshlrev_b32 %s, 7, %s" % (R(VFL), R(VFL)))
    a("v_and_b32 %s, 7, %s" % (R(T1), R(lane)))
    a("v_min_u32 %s, 1, %s" % (R(T1), R(T1)))
    a("v_lshl_add_u32 %s, %s, 2, %s" % (R(VFL), R(T1), R(VFL)))
    def flag_of(a, sd, sg, lay):
        a("s_lshr_b32 %s, %s, 3" % (S(sd), S(sg)))
        if lay: a("s_add_u32 %s, %s, 64" % (S(sd), S(sd)))
        a("s_mul_i32 %s, %s, %d" % (S(sd), S(sd), JOBFLAG_BYTES))
        a("s_and_b32 %s, %s, 7" % (S(sT3), S(sg)))
        a("s_lshl_b32 %s, %s, 9" % (S(sT3), S(sT3)))
        a("s_add_u32 %s, %s, %s" % (S(sd), S(sd), S(sT3)))
        a("s_add_u32 %s, %s, %d" % (S(sd), S(sd), WS_FLAGS + FL_KV))
    def ldlin(dst, n):
        for i in range(n):
            a("buffer_load_dwordx4 %s, %s, %s, %s offen offset:%d sc1" % (RR(dst(i), 4), R(VL16), SR(sWS, 4), S(sIN), (i % 4) * 1024))
            if i % 4 == 3: a("s_add_u32 %s, %s, 4096" % (S(sIN), S(sIN)))
    def loads_km(a):
        job_off2(a, sIN, WS_KM, KM_L, KM_JOB, sJL, sJS)
        a("s_lshl_b32 %s, %s, 13" % (S(sT0), S(sX1)))
        a("s_add_u32 %s, %s, %s" % (S(sIN), S(sIN), S(sT0)))
        ldlin(lambda i: KMr(i), 4)
        ldlin(lambda i: VMr(i), 4)
    def loads_qkv(a, sl, ss, sh):
        job_off2(a, sIN, WS_QKV, QKV_L, QKV_JOB, sl, ss)
        a("s_mul_i32 %s, %s, %d" % (S(sT0), S(sh), 24 * KB))
        a("s_add_u32 %s, %s, %s" % (S(sIN), S(sIN), S(sT0)))
        ldlin(lambda i: QFr(i >> 2, i & 3), 8)
        ldlin(lambda i: KFr(i >> 2, i & 3), 8)
        ldlin(lambda i: VFr(i), 8)
    def s2_compute(a):
        def mf(d, aa, b, c): a("v_mfma_f32_16x16x32_bf16 %s, %s, %s, %s" % (RR(d, 4), RR(aa, 4), RR(b, 4), '0' if c is None else RR(c, 4)))
        for ks in range(4):
            for qt in range(2):
                mf(SM_(qt), KMr(ks), QFr(qt, ks), None if ks == 0 else SM_(qt))
            mf(SXr(0, 0), KFr(0, ks), QFr(0, ks), None if ks == 0 else SXr(0, 0))
            mf(SXr(1, 0), KFr(0, ks), QFr(1, ks), None if ks == 0 else SXr(1, 0))
            mf(SXr(1, 1), KFr(1, ks), QFr(1, ks), None if ks == 0 else SXr(1, 1))
        for qt in range(2):
            tiles = [SM_(qt), SXr(qt, 0)] + ([SXr(1, 1)] if qt == 1 else [])
            vals = [t + i for t in tiles for i in range(4)]
            for k in (range(0, len(vals), 2) if MIMIC else []):
                x, y = vals[k], vals[k + 1]
                a("v_cvt_pk_bf16_f32 %s, %s, %s" % (R(TT), R(x), R(y)))
                a("v_lshlrev_b32 %s, 16, %s" % (R(x), R(TT)))
                a("v_and_b32 %s, 0xffff0000, %s" % (R(y), R(TT)))
                a("v_mul_f32 %s, %s, %s" % (R(x), S(sSCALE), R(x)))
                a("v_mul_f32 %s, %s, %s" % (R(y), S(sSCALE), R(y)))
                a("v_cvt_pk_bf16_f32 %s, %s, %s" % (R(TT), R(x), R(y)))
                a("v_lshlrev_b32 %s, 16, %s" % (R(x), R(TT)))
                a("v_and_b32 %s, 0xffff0000, %s" % (R(y), R(TT)))
            dg = SXr(qt, qt)
            a("v_mov_b32 %s, 0x%x" % (R(TT), f32(-1e9)))
            for i in range(4):
                a("v_cndmask_b32 %s, %s, %s, %s" % (R(dg + i), R(TT), R(dg + i), SR(sMSK + 2 * i, 2)))
            a("v_max_f32 %s, %s, %s" % (R(MX_), R(vals[0]), R(vals[1])))
            for k in range(2, len(vals), 2):
                a("v_max3_f32 %s, %s, %s, %s" % (R(MX_), R(MX_), R(vals[k]), R(vals[k + 1])))
            for sw in (16, 32):
                a("v_mov_b32 %s, %s" % (R(TT), R(MX_)))
                a("v_permlane%d_swap_b32 %s, %s" % (sw, R(MX_), R(TT)))
                a("v_max_f32 %s, %s, %s" % (R(MX_), R(MX_), R(TT)))
            a("v_mul_f32 %s, %s, %s" % (R(MX_), S(sL2E), R(MX_)))
            for v_ in vals:
                a("v_fma_f32 %s, %s, %s, -%s" % (R(v_), R(v_), S(sL2E), R(MX_)))
            for v_ in vals:
                a("v_exp_f32 %s, %s" % (R(v_), R(v_)))
            a("v_add_f32 %s, %s, %s" % (R(Z_), R(vals[0]), R(vals[1])))
            a("v_add_f32 %s, %s, %s" % (R(Z_), R(Z_), R(vals[2])))
            a("v_add_f32 %s, %s, %s" % (R(Z_), R(Z_), R(vals[3])))
            a("v_mul_f32 %s, 0.5, %s" % (R(Z_), R(Z_)))
            for v_ in vals[4:]: a("v_add_f32 %s, %s, %s" % (R(Z_), R(Z_), R(v_)))
            for sw in (16, 32):
                a("v_mov_b32 %s, %s" % (R(TT), R(Z_)))
                a("v_permlane%d_swap_b32 %s, %s" % (sw, R(Z_), R(TT)))
                a("v_add_f32 %s, %s, %s" % (R(Z_), R(Z_), R(TT)))
            a("v_rcp_f32 %s, %s" % (R(Z_), R(Z_)))
            for v_ in vals: a("v_mul_f32 %s, %s, %s" % (R(v_), R(v_), R(Z_)))
            a("v_cvt_pk_bf16_f32 %s, %s, %s" % (R(PMr(qt)), R(vals[0]), R(vals[1])))
            a("v_cvt_pk_bf16_f32 %s, %s, %s" % (R(PMr(qt) + 1), R(vals[2]), R(vals[3])))
            a("v_cvt_pk_bf16_f32 %s, %s, %s" % (R(PXr(qt)), R(vals[4]), R(vals[5])))
            a("v_cvt_pk_bf16_f32 %s, %s, %s" % (R(PXr(qt) + 1), R(vals[6]), R(vals[7])))
            if qt == 1:
                a("v_cvt_pk_bf16_f32 %s, %s, %s" % (R(PXr(qt) + 2), R(vals[8]), R(vals[9])))
                a("v_cvt_pk_bf16_f32 %s, %s, %s" % (R(PXr(qt) + 3), R(vals[10]), R(vals[11])))
            else:
                a("v_mov_b32 %s, 0" % R(PXr(qt) + 2)); a("v_mov_b32 %s, 0" % R(PXr(qt) + 3))
        for qt in range(2):
            for et in range(8):
                mf(OAc(qt, et), VFr(et), PXr(qt), None)
            for et in range(8):
                a("v_mfma_f32_16x16x16_bf16 %s, %s, %s, %s" % (RR(OAc(qt, et), 4), RR(VMr(et >> 1) + 2 * (et & 1), 2), RR(PMr(qt), 2), RR(OAc(qt, et), 4)))
        job_off(a, sOUT, WS_O, O_L, O_JOB)
        a("s_lshl_b32 %s, %s, 13" % (S(sT0), S(sX1)))
        a("s_add_u32 %s, %s, %s" % (S(sOUT), S(sOUT), S(sT0)))
        PK = 144
        for tp in range(4):
            for qt in range(2):
                d = PK + 8 * (tp & 1) + 4 * qt
                for t in range(2):
                    o = OAc(qt, 2 * tp + t)
                    a("v_cvt_pk_bf16_f32 %s, %s, %s" % (R(d + 2 * t), R(o), R(o + 1)))
                    a("v_cvt_pk_bf16_f32 %s, %s, %s" % (R(d + 2 * t + 1), R(o + 2), R(o + 3)))
                a("buffer_store_dwordx4 %s, %s, %s, %s offen offset:%d sc1" % (RR(d, 4), R(VO), SR(sWS, 4), S(sOUT), qt * 256))
            if tp < 3: a("s_add_u32 %s, %s, 2048" % (S(sOUT), S(sOUT)))
        a("s_lshr_b32 %s, %s, 3" % (S(sT1), S(sX1)))
        a("s_lshl_b32 %s, %s, 7" % (S(sT1), S(sT1)))
        a("s_add_u32 %s, %s, %s" % (S(sT1), S(sT1), S(sFLJ)))
        a("s_add_u32 s78, %s, %d" % (S(sT1), WS_FLAGS + FL_O))
    ncu = nwaves // 2
    sG, sGN, sKVF = 68, 69, 70
    VKV, VKMo = 250, 251
    a("v_bfe_u32 %s, %s, 3, 2" % (R(VKV), R(lane)))
    a("v_lshlrev_b32 %s, 7, %s" % (R(VKV), R(VKV)))
    a("v_add_u32 %s, 4, %s" % (R(VKMo), R(VKV)))
    a("s_cmp_lt_u32 %s, %d" % (S(sREP), ncu))
    a("s_cselect_b32 %s, 0, 1" % S(sJL))
    a("s_cselect_b32 %s, 0, %d" % (S(sT0), ncu))
    a("s_sub_u32 %s, %s, %s" % (S(sG), S(sREP), S(sT0)))
    def decode(sg, ss, sh, sfl):
        a("s_lshr_b32 %s, %s, 3" % (S(ss), S(sg)))
        a("s_and_b32 %s, %s, 7" % (S(sh), S(sg)))
        a("s_lshl_b32 %s, %s, 9" % (S(sfl), S(sh)))
        a("s_lshl_b32 %s, %s, 2" % (S(sh), S(sh)))
        a("s_add_u32 %s, %s, %s" % (S(sh), S(sh), S(sW)))
        a("s_lshl_b32 %s, %s, 6" % (S(sT0), S(sJL)))
        a("s_add_u32 %s, %s, %s" % (S(sT0), S(sT0), S(ss)))
        a("s_mul_i32 %s, %s, %d" % (S(sT0), S(sT0), JOBFLAG_BYTES))
        a("s_add_u32 %s, %s, %s" % (S(sfl), S(sfl), S(sT0)))
        a("s_add_u32 %s, %s, %d" % (S(sfl), S(sfl), WS_FLAGS))
    def wait_flags(voff, sfl):
        Lb = a.newlabel('s2wf')
        a("s_cmp_eq_u32 %s, 0" % S(sW)); a("s_cbranch_scc0 %s" % Lb)
        poll(a, T1, voff, S(sfl), sleep=common.PSLEEP)
        a.label(Lb)
        a("s_barrier")
    Lj = a.newlabel('s2job'); Ld = a.newlabel('s2done'); Lhave = a.newlabel('s2have'); Lnoq = a.newlabel('s2noq'); Lsg = a.newlabel('s2sg')
    a("s_mov_b32 s79, 0")
    a.label(Lj)
    a("s_cmp_ge_u32 %s, 512" % S(sG)); a("s_cbranch_scc1 %s" % Ld)
    decode(sG, sJS, sX1, sKVF)
    a("s_lshl_b32 %s, %s, 6" % (S(sT0), S(sJL)))
    a("s_add_u32 %s, %s, %s" % (S(sT0), S(sT0), S(sJS)))
    a("s_mul_i32 %s, %s, %d" % (S(sFLJ), S(sT0), JOBFLAG_BYTES))
    a("s_cmp_eq_u32 s79, 1"); a("s_cbranch_scc1 %s" % Lhave)
    wait_flags(VKV, sKVF)
    loads_qkv(a, sJL, sJS, sX1)
    a.label(Lhave)
    wait_flags(VKMo, sKVF)
    loads_km(a)
    a("s_add_u32 %s, %s, %d" % (S(sGN), S(sG), ncu))
    a("s_min_u32 %s, %s, 511" % (S(sT2), S(sGN)))
    decode(sT2, sML, sMSUB, sMFL)
    a("buffer_load_dword %s, %s, %s, %s offen sc1" % (R(T3), R(VKV), SR(sWS, 4), S(sMFL)))
    a("s_waitcnt vmcnt(0)")
    trace(a, 13, sJL, sJS, [(sX1, 0)], T1, T2, sT0)
    s2_compute(a)
    Lw = a.newlabel('s2w0')
    a("s_cmp_eq_u32 %s, 0" % S(sW)); a("s_cbranch_scc0 %s" % Lw)
    a("v_cmp_ne_u32 vcc, 0, %s" % R(T3))
    a("s_cmp_eq_u64 vcc, -1"); a("s_cselect_b32 %s, 1, 0" % S(sDEC))
    a("s_cmp_lt_u32 %s, 512" % S(sGN)); a("s_cselect_b32 %s, %s, 0" % (S(sDEC), S(sDEC)))
    bcast_write(a, T1, T2)
    a.label(Lw)
    a("s_barrier")
    bcast_read(a, T1, T2)
    a("s_mov_b32 s79, %s" % S(sDEC))
    a("s_cmp_eq_u32 s79, 1"); a("s_cbranch_scc0 %s" % Lnoq)
    loads_qkv(a, sJL, sML, sMSUB)
    a("s_waitcnt vmcnt(24)")
    a("s_branch %s" % Lsg)
    a.label(Lnoq)
    a("s_waitcnt vmcnt(0)")
    a.label(Lsg)
    wg_signal(a, T1, T2, "s78")
    trace(a, 3, sJL, sJS, [(sX1, 0)], T1, T2, sT0)
    a("s_mov_b32 %s, %s" % (S(sG), S(sGN)))
    a("s_branch %s" % Lj)
    a.label(Ld)
    a("s_waitcnt vmcnt(0)")
    a("s_branch L_exit")

NS2, NR3, NR5 = 28, 12, 12
def misc_role(a, init_target):
    a.comment("==== misc role ====")
    a("s_mov_b32 %s, %s" % (S(sAUX3), S(sX0)))
    load_srd(a, sB, 'x'); load_srd(a, sC, 'out')
    signal_init(a, RT1, RT2)
    a("s_waitcnt lgkmcnt(0)")
    finish_srd(a, sB, 'x'); finish_srd(a, sC, 'out')
    row_setup(a)
    wait_init(a, RT1, RT2, init_target)
    a("s_lshl_b32 %s, %s, 2" % (S(sAUX2), S(sAUX3)))
    a("s_add_u32 %s, %s, %s" % (S(sAUX2), S(sAUX2), S(sW)))
    r0_phase(a, 4 * (NS2 + NR3 + NR5), sAUX2)
    rng = [(0, 14, 's2', 0), (14, 23, 'r3', 0), (23, 32, 'r5', 0), (32, 34, 'r3', 9), (34, 36, 'r5', 9), (36, 50, 's2', 14), (50, 51, 'r3', 11), (51, 52, 'r5', 11)]
    for lo, hi, role, base in rng:
        Ln = a.newlabel('rm')
        a("s_cmp_lt_u32 %s, %d" % (S(sAUX3), hi))
        a("s_cbranch_scc0 %s" % Ln)
        a("s_sub_u32 %s, %s, %d" % (S(sAUX), S(sAUX3), lo))
        if base: a("s_add_u32 %s, %s, %d" % (S(sAUX), S(sAUX), base))
        a("s_branch L_%s" % role)
        a.label(Ln)
    a.label("L_r5")
    r_role(a, 5, NR5)
    a.label("L_r3")
    r_role(a, 3, NR3)
    a.label("L_s2")
    s2_role(a, NS2)
```

```python
from common import *
import struct
def f32(x): return struct.unpack('<I', struct.pack('<f', x))[0]

GATEB = 8
PF_S1 = False
AHEAD = 0
DEDICATED = False
CYC = []
D_S1 = 14
D_POST = 13
GATES1 = 0
sREP, sAUX, sC0, sC1, sJL, sJS, sN, sD0 = 32, 33, 34, 35, 36, 37, 38, 39
sT0, sT1, sT2, sT3, sT4 = 40, 41, 42, 43, 44
sAUX2, sAUX3 = 45, 46
sFLJ = 47
sIN, sOUT = 48, 49
sK = 50
sLDSW = 51
sX0, sX1, sX2, sX3 = 52, 53, 54, 55

def sched_init(a, nrep, d0, rep_sgpr):
    a("s_mov_b32 %s, %s" % (S(sREP), S(rep_sgpr)))
    a("s_mov_b32 %s, 0" % S(sC0)); a("s_mov_b32 %s, 0" % S(sC1))
    if 64 % nrep == 0:
        a("s_mov_b32 %s, %d" % (S(sN), 64 // nrep))
    else:
        assert nrep == 3
        a("s_cmp_eq_u32 %s, 0" % S(sREP))
        a("s_cselect_b32 %s, 22, 21" % S(sN))
    a("s_mov_b32 %s, %d" % (S(sD0), d0))

def sched_layer(a, s_layer):
    a("s_mov_b32 %s, 0" % S(sREP))
    a("s_mov_b32 %s, 64" % S(sN))
    a("s_cmp_eq_u32 %s, 0" % S(s_layer))
    a("s_cselect_b32 %s, 0, 64" % S(sC0))
    a("s_cselect_b32 %s, 64, 0" % S(sC1))

def sched_next(a, nrep, Ldone):
    L0 = a.newlabel('j0'); L1 = a.newlabel('j1'); Le = a.newlabel('je')
    a("s_cmp_lt_u32 %s, %s" % (S(sC0), S(sN)))
    a("s_cbranch_scc0 %s" % L1)
    a("s_cmp_lt_u32 %s, %s" % (S(sC0), S(sD0)))
    a("s_cbranch_scc1 %s" % L0)
    a("s_sub_u32 %s, %s, %s" % (S(sT0), S(sC0), S(sD0)))
    a("s_cmp_le_u32 %s, %s" % (S(sC1), S(sT0)))
    a("s_cbranch_scc1 %s" % L1)
    a.label(L0)
    a("s_mov_b32 %s, 0" % S(sJL))
    a("s_mul_i32 %s, %s, %d" % (S(sJS), S(sC0), nrep))
    a("s_add_u32 %s, %s, 1" % (S(sC0), S(sC0)))
    a("s_branch %s" % Le)
    a.label(L1)
    a("s_cmp_lt_u32 %s, %s" % (S(sC1), S(sN)))
    a("s_cbranch_scc0 %s" % Ldone)
    a("s_mov_b32 %s, 1" % S(sJL))
    a("s_mul_i32 %s, %s, %d" % (S(sJS), S(sC1), nrep))
    a("s_add_u32 %s, %s, 1" % (S(sC1), S(sC1)))
    a.label(Le)
    a("s_add_u32 %s, %s, %s" % (S(sJS), S(sJS), S(sREP)))
    a("s_lshl_b32 %s, %s, 6" % (S(sT0), S(sJL)))
    a("s_add_u32 %s, %s, %s" % (S(sT0), S(sT0), S(sJS)))
    a("s_mul_i32 %s, %s, %d" % (S(sFLJ), S(sT0), JOBFLAG_BYTES))

def job_off(a, sdst, base, lstride, job, extra_sgpr=None):
    a("s_mul_i32 %s, %s, %d" % (S(sdst), S(sJS), job))
    if lstride:
        a("s_mul_i32 %s, %s, %d" % (S(sT4), S(sJL), lstride))
        a("s_add_u32 %s, %s, %s" % (S(sdst), S(sdst), S(sT4)))
    a("s_add_u32 %s, %s, %d" % (S(sdst), S(sdst), base))
    if extra_sgpr is not None:
        a("s_add_u32 %s, %s, %s" % (S(sdst), S(sdst), S(extra_sgpr)))

def flag_store(a, vt0, vt1, soff):
    a("v_mov_b32 %s, 1" % R(vt0))
    a("v_mov_b32 %s, 0" % R(vt1))
    a("s_mov_b64 exec, 1")
    a("buffer_store_dword %s, %s, %s, %s offen sc1" % (R(vt0), R(vt1), SR(sWS, 4), soff))
    a("s_mov_b64 exec, -1")

def load_frags32(a, frags, vrow, vtr, ringslots=32, pre=None, hook=None):
    n = len(frags)
    def issue(c):
        srd, soff, _ = frags[c]
        soff(a, sK)
        a("s_add_u32 m0, %s, %d" % (S(sLDSW), (c % ringslots) * 1024))
        a("buffer_load_dwordx4 %s, %s, %s offen lds" % (R(vrow), SR(srd, 4), S(sK)))
    a("s_waitcnt vmcnt(0)")
    if pre: pre()
    for c in range(min(ringslots, n)): issue(c)
    G = 4
    for c0 in range(0, n, G):
        cs = list(range(c0, min(c0 + G, n)))
        issued = min(c0 + ringslots, n)
        a("s_waitcnt vmcnt(%d)" % (issued - cs[-1] - 1))
        for c in cs:
            d = frags[c][2]
            off = (c % ringslots) * 1024
            a("ds_read_b64_tr_b16 %s, %s offset:%d" % (RR(d, 2), R(vtr), off))
            a("ds_read_b64_tr_b16 %s, %s offset:%d" % (RR(d + 2, 2), R(vtr), off + 256))
        a("s_waitcnt lgkmcnt(0)")
        for c in cs:
            if c + ringslots < n: issue(c + ringslots)
        if hook: hook(c0)

def setup_tr32(a, lane, vtr, t1, t2):
    a("s_lshl_b32 %s, %s, 15" % (S(sLDSW), S(sW)))
    a("v_lshrrev_b32 %s, 5, %s" % (R(t1), R(lane)))
    a("v_lshlrev_b32 %s, 3, %s" % (R(t1), R(t1)))
    a("v_bfe_u32 %s, %s, 2, 2" % (R(t2), R(lane)))
    a("v_add_u32 %s, %s, %s" % (R(t1), R(t1), R(t2)))
    a("v_lshlrev_b32 %s, 6, %s" % (R(t1), R(t1)))
    a("v_bfe_u32 %s, %s, 4, 1" % (R(t2), R(lane)))
    a("v_lshl_add_u32 %s, %s, 5, %s" % (R(t1), R(t2), R(t1)))
    a("v_and_b32 %s, 3, %s" % (R(t2), R(lane)))
    a("v_lshl_add_u32 %s, %s, 3, %s" % (R(t1), R(t2), R(t1)))
    a("v_add_u32 %s, %s, %s" % (R(vtr), S(sLDSW), R(t1)))

def setup_rowtile(a, lane, AF, VD, t1, t2, t3):
    a("v_and_b32 %s, 31, %s" % (R(t1), R(lane)))
    a("v_lshrrev_b32 %s, 5, %s" % (R(t2), R(lane)))
    a("v_and_b32 %s, 15, %s" % (R(t3), R(lane)))
    for j in range(8):
        a("v_add_u32 %s, %d, %s" % (R(AF + j), 2 * j, R(t2)))
        a("v_xor_b32 %s, %s, %s" % (R(AF + j), R(AF + j), R(t3)))
        a("v_lshlrev_b32 %s, 4, %s" % (R(AF + j), R(AF + j)))
        a("v_lshl_add_u32 %s, %s, 8, %s" % (R(AF + j), R(t1), R(AF + j)))
    for t in range(2):
        a("v_lshrrev_b32 %s, 4, %s" % (R(t1), R(lane)))
        a("v_add_u32 %s, %d, %s" % (R(t1), 4 * t, R(t1)))
        a("s_lshl_b32 %s, %s, 3" % (S(sT0), S(sW)))
        a("v_add_u32 %s, %s, %s" % (R(t2), S(sT0), R(t1)))
        a("v_and_b32 %s, 15, %s" % (R(t2), R(t2)))
        a("v_xor_b32 %s, %s, %s" % (R(t2), R(t2), R(t3)))
        a("v_lshlrev_b32 %s, 4, %s" % (R(t2), R(t2)))
        a("v_lshl_add_u32 %s, %s, 10, %s" % (R(VD + t), R(t1), R(t2)))

def rowtile_dma(a, VD, s_src, buf):
    a("s_lshl_b32 %s, %s, 13" % (S(sT0), S(sW)))
    a("s_add_u32 %s, %s, %s" % (S(sT0), S(sT0), S(s_src)))
    a("s_lshl_b32 %s, %s, 11" % (S(sT1), S(sW)))
    for b in range(4):
        for t in range(2):
            a("s_add_u32 m0, %s, %d" % (S(sT1), buf + b * 8192 + t * 1024))
            a("buffer_load_dwordx4 %s, %s, %s offen sc1 lds" % (R(VD + t), SR(sWS, 4), S(sT0)))
        if b < 3: a("s_add_u32 %s, %s, 256" % (S(sT0), S(sT0)))

def S_mf32x(d, aa, b, c):
    return "v_mfma_f32_32x32x16_bf16 %s, %s, %s, %s" % (RR(d, 16), RR(aa, 4), RR(b, 4), '0' if c is None else RR(c, 16))
def rowtile_items(VD, ssrc, sbuf):
    out = [["s_lshl_b32 s77, %s, 13" % S(sW), "s_add_u32 s77, s77, %s" % S(ssrc), "s_lshl_b32 s76, %s, 11" % S(sW), "s_add_u32 s76, s76, %s" % S(sbuf)]]
    for b in range(4):
        for t in range(2):
            g = ["s_add_u32 m0, s76, %d" % (b * 8192 + t * 1024),
                 "buffer_load_dwordx4 %s, %s, s77 offen sc1 lds" % (R(VD + t), SR(sWS, 4))]
            if t == 1 and b < 3: g += ["s_add_u32 s77, s77, 256"]
            out.append(g)
    return out
def mf32x(a, d, aa, b, c):
    a("v_mfma_f32_32x32x16_bf16 %s, %s, %s, %s" % (RR(d, 16), RR(aa, 4), RR(b, 4), '0' if c is None else RR(c, 16)))


sNL, sNS, sNFL, sNV = 56, 57, 58, 59
sPEND, sBUF, sRDYN, sDUM = 60, 61, 62, 63
sCIN = 64
def next_job(a, nrep, tag):
    Ln = a.newlabel(tag + 'nn'); Le = a.newlabel(tag + 'ne')
    a("s_mov_b32 s65, %s\ns_mov_b32 s66, %s\ns_mov_b32 s67, %s" % (S(sJL), S(sJS), S(sFLJ)))
    sched_next(a, nrep, Ln)
    a("s_mov_b32 %s, %s\ns_mov_b32 %s, %s\ns_mov_b32 %s, %s\ns_mov_b32 %s, 1" % (S(sNL), S(sJL), S(sNS), S(sJS), S(sNFL), S(sFLJ), S(sNV)))
    a("s_branch %s" % Le)
    a.label(Ln)
    a("s_mov_b32 %s, 0" % S(sNV))
    a("s_mov_b32 %s, %s" % (S(sNFL), S(sFLJ)))
    a.label(Le)
    a("s_mov_b32 %s, s65\ns_mov_b32 %s, s66\ns_mov_b32 %s, s67" % (S(sJL), S(sJS), S(sFLJ)))

LDS_DEC = LDS_CNT + 16
sF0, sF1, sDEC = 65, 66, 67
def cand_addrs(a, nrep, in_flag_off):
    for c, f, lay in ((sC0, sF0, 0), (sC1, sF1, 1)):
        a("s_mul_i32 %s, %s, %d" % (S(sT0), S(c), nrep))
        a("s_add_u32 %s, %s, %s" % (S(sT0), S(sT0), S(sREP)))
        a("s_min_u32 %s, %s, 63" % (S(sT0), S(sT0)))
        if lay: a("s_add_u32 %s, %s, 64" % (S(sT0), S(sT0)))
        a("s_mul_i32 %s, %s, %d" % (S(sT0), S(sT0), JOBFLAG_BYTES))
        in_flag_off(a, f, sT0)

def decide(a, V0, V1, target, prio):
    a("v_readfirstlane_b32 %s, %s" % (S(sT0), R(V0)))
    a("v_readfirstlane_b32 %s, %s" % (S(sT1), R(V1)))
    a("s_cmp_ge_u32 %s, %d" % (S(sT0), target)); a("s_cselect_b32 %s, 1, 0" % S(sT0))
    a("s_cmp_lt_u32 %s, %s" % (S(sC0), S(sN))); a("s_cselect_b32 %s, %s, 0" % (S(sT0), S(sT0)))
    a("s_cmp_ge_u32 %s, %d" % (S(sT1), target)); a("s_cselect_b32 %s, 2, 0" % S(sT1))
    a("s_cmp_lt_u32 %s, %s" % (S(sC1), S(sN))); a("s_cselect_b32 %s, %s, 0" % (S(sT1), S(sT1)))
    if prio == 1 and AHEAD:
        a("s_add_u32 %s, %s, %d" % (S(sT2), S(sC1), AHEAD))
        a("s_cmp_lt_u32 %s, %s" % (S(sC0), S(sT2))); a("s_cselect_b32 %s, %s, 0" % (S(sT0), S(sT0)))
    first, second = (sT0, sT1) if prio == 0 else (sT1, sT0)
    a("s_cmp_lg_u32 %s, 0" % S(first))
    a("s_cselect_b32 %s, %s, %s" % (S(sDEC), S(first), S(second)))
    a("s_add_u32 %s, %s, %s" % (S(sT2), S(sC0), S(sC1)))
    a("s_lshl_b32 %s, %s, 1" % (S(sT3), S(sN)))
    a("s_cmp_ge_u32 %s, %s" % (S(sT2), S(sT3)))
    a("s_cselect_b32 %s, 3, %s" % (S(sDEC), S(sDEC)))

def take_job(a, nrep, sl, ss, sfl):
    a("s_sub_u32 %s, %s, 1" % (S(sl), S(sDEC)))
    a("s_cmp_eq_u32 %s, 0" % S(sl))
    a("s_cselect_b32 %s, %s, %s" % (S(sT0), S(sC0), S(sC1)))
    a("s_mul_i32 %s, %s, %d" % (S(ss), S(sT0), nrep))
    a("s_add_u32 %s, %s, %s" % (S(ss), S(ss), S(sREP)))
    a("s_xor_b32 %s, %s, 1" % (S(sT0), S(sl)))
    a("s_add_u32 %s, %s, %s" % (S(sC0), S(sC0), S(sT0)))
    a("s_add_u32 %s, %s, %s" % (S(sC1), S(sC1), S(sl)))
    a("s_lshl_b32 %s, %s, 6" % (S(sT0), S(sl)))
    a("s_add_u32 %s, %s, %s" % (S(sT0), S(sT0), S(ss)))
    a("s_mul_i32 %s, %s, %d" % (S(sfl), S(sT0), JOBFLAG_BYTES))

def bcast_write(a, T1, T2):
    a("v_mov_b32 %s, %d" % (R(T1), LDS_DEC))
    a("v_mov_b32 %s, %s" % (R(T2), S(sDEC)))
    a("ds_write_b32 %s, %s" % (R(T1), R(T2)))
    a("s_waitcnt lgkmcnt(0)")
def bcast_read(a, T1, T2):
    a("v_mov_b32 %s, %d" % (R(T1), LDS_DEC))
    a("ds_read_b32 %s, %s" % (R(T2), R(T1)))
    a("s_waitcnt lgkmcnt(0)")
    a("v_readfirstlane_b32 %s, %s" % (S(sDEC), R(T2)))

def blocking_pick(a, tag, nrep, VZ, V0, V1, T1, T2, in_flag_off, target, prio):
    Lb = a.newlabel(tag + 'bp'); Lp = a.newlabel(tag + 'bpl'); Ld = a.newlabel(tag + 'bpd')
    a("s_cmp_eq_u32 %s, 0" % S(sW)); a("s_cbranch_scc0 %s" % Lb)
    cand_addrs(a, nrep, in_flag_off)
    a.label(Lp)
    a("buffer_load_dword %s, %s, %s, %s offen sc1" % (R(V0), R(VZ), SR(sWS, 4), S(sF0)))
    a("buffer_load_dword %s, %s, %s, %s offen sc1" % (R(V1), R(VZ), SR(sWS, 4), S(sF1)))
    a("s_waitcnt vmcnt(0)")
    decide(a, V0, V1, target, prio)
    a("s_cmp_lg_u32 %s, 0" % S(sDEC)); a("s_cbranch_scc1 %s" % Ld)
    a("s_add_u32 %s, %s, 1" % (S(sTMO), S(sTMO)))
    a("s_cmp_gt_u32 %s, %d" % (S(sTMO), TIMEOUT))
    a("s_cselect_b32 %s, 3, 0" % S(sDEC))
    a("s_cbranch_scc1 %s" % Ld)
    a("s_sleep 1")
    a("s_branch %s" % Lp)
    a.label(Ld)
    bcast_write(a, T1, T2)
    a.label(Lb)
    a("s_barrier")
    bcast_read(a, T1, T2)

def wave0_signal(a, T1, T2, s_addr):
    L = a.newlabel('w0s')
    a("s_cmp_eq_u32 %s, 0" % S(sW)); a("s_cbranch_scc0 %s" % L)
    a("s_mov_b64 exec, 1")
    a("v_mov_b32 %s, 1" % R(T1))
    a("v_mov_b32 %s, 0" % R(T2))
    a("buffer_atomic_add %s, %s, %s, %s offen" % (R(T1), R(T2), SR(sWS, 4), s_addr))
    a("s_mov_b64 exec, -1")
    a.label(L)

def run_stream(a, L, steps, fill):
    names = {}
    slot = 0
    for need, mfs, pre in steps:
        if need is not None: L.wait(need())
        for k, m in enumerate(mfs):
            a(m)
            if k == 0 and pre is not None: pre()
            for it in fill.get(slot, []):
                if isinstance(it, str): a(it)
                elif it[0] == 'ds': names[it[2]] = L.ds(it[1])
                elif it[0] == 'wait': L.wait(names[it[1]])
            slot += 1
    return slot

sMODE = 83
sEOUT, sCOUT, sPEND2 = 78, 80, 81
def emit_items(a, L, items, names=None):
    names = {} if names is None else names
    for it in items:
        if isinstance(it, str): a(it)
        elif it[0] == 'ds': names[it[2]] = L.ds(it[1])
        elif it[0] == 'wait': L.wait(names[it[1]])

def gemm_loop(a, tag, nrep, VZ, VFV, T1, T2, in_flag_off, in_target, src_addr, dma_items, toggle, mk_steps, n_slots,
              out_addr, shadow, epi_items, epi_slots, out_flag, bufstride, nst=0, trc=None, prio=0, sig_at=None, defer_layer=1, defer_epi=True):
    if not defer_epi: assert sig_at is not None
    Lj = a.newlabel(tag + 'job'); Lw = a.newlabel(tag + 'w'); Lw2 = a.newlabel(tag + 'w2')
    Lnx = a.newlabel(tag + 'nx'); Lfin = a.newlabel(tag + 'fin')
    V0, V1 = VFV, VFV + 1
    sSRC, sCSRC, sOB, sEXM = 64, 71, 68, 72
    sW0M = 74
    def lines(fn, *args):
        out = []
        class C:
            def __call__(self, t):
                for x in t.strip().split('\n'): out.append(x.strip())
        fn(C(), *args)
        return out
    def sig(saddr):
        return ["s_cmp_lg_u32 %s, 0" % S(saddr), "s_cselect_b32 %s, %s, 0" % (S(sEXM), S(sW0M)), "v_mov_b32 %s, 1" % R(T2),
                "s_mov_b64 exec, %s" % SR(sEXM, 2),
                "buffer_atomic_add %s, %s, %s, %s offen" % (R(T2), R(VZ), SR(sWS, 4), S(saddr)),
                "s_mov_b64 exec, -1", "s_mov_b32 %s, 0" % S(saddr)]
    def samples(a):
        cand_addrs(a, nrep, in_flag_off)
        a("buffer_load_dword %s, %s, %s, %s offen sc1" % (R(V0), R(VZ), SR(sWS, 4), S(sF0)))
        a("buffer_load_dword %s, %s, %s, %s offen sc1" % (R(V1), R(VZ), SR(sWS, 4), S(sF1)))
    a("s_mov_b32 %s, 0" % S(sPEND)); a("s_mov_b32 %s, 0" % S(sPEND2))
    a("s_mov_b32 %s, %d" % (S(sEOUT), WS_SCRATCH))
    a("s_mov_b64 s[86:87], 0")
    a("s_mov_b32 %s, 0" % S(sBUF))
    a("s_cmp_eq_u32 %s, 0" % S(sW)); a("s_cselect_b32 %s, 1, 0" % S(sW0M))
    a("s_mov_b32 %s, 0" % S(sEXM + 1))
    blocking_pick(a, tag, nrep, VZ, V0, V1, T1, T2, in_flag_off, in_target, prio)
    a("s_cmp_eq_u32 %s, 3" % S(sDEC)); a("s_cbranch_scc1 %s" % Lfin)
    take_job(a, nrep, sJL, sJS, sFLJ)
    src_addr(a, sCSRC, sJL, sJS)
    for g in dma_items(sCSRC, sBUF):
        for x in g: a(x)
    samples(a)
    a("s_mov_b32 %s, 0" % S(sMODE))
    a.label(Lj)
    a("s_cmp_eq_u32 %s, 2" % S(sMODE))
    a("s_cbranch_scc1 %s" % Lw2)
    a("s_cmp_eq_u32 %s, 0" % S(sMODE))
    a("s_cbranch_scc1 %s" % Lw)
    a("s_waitcnt vmcnt(%d)" % ((2 if sig_at is None else TOPW[tag]) + (0 if defer_epi else nst)))
    a("s_branch %s" % Lw2)
    a.label(Lw)
    a("s_waitcnt vmcnt(0)")
    a.label(Lw2)
    a("s_barrier")
    if sig_at is None:
        for x in sig(sPEND2): a(x)
    if trc: trace(a, trc[0], sJL, sJS, trc[2], T1, T2, sT0)
    if trc and tag in CYC: trace(a, 12, sJL, sJS, trc[2], T1, T2, sT0, cyc=True)
    L = LdsT(a)
    steps = mk_steps(L)
    def scc_groups(ls, maxlen=4):
        out, cur = [], []
        k = 0
        while k < len(ls):
            unit = [ls[k]]
            if ls[k].startswith('s_cmp'):
                k += 1
                while k < len(ls) and ls[k].startswith(('s_cselect', 's_cbranch')):
                    unit.append(ls[k]); k += 1
            else: k += 1
            if cur and len(cur) + len(unit) > maxlen:
                out.append(cur); cur = []
            cur += unit
        if cur: out.append(cur)
        return out
    def masked(g, m):
        out = []
        vm = [k for k, it in enumerate(g) if isinstance(it, str) and it.startswith('buffer_')]
        if not vm: return list(g)
        for k, it in enumerate(g):
            if k == vm[0]: out.append("s_mov_b64 exec, %s" % SR(m, 2))
            out.append(it)
            if k == vm[-1]: out.append("s_mov_b64 exec, -1")
        return out
    Lhs = a.newlabel(tag + 'hs')
    dec = lines(decide, V0, V1, in_target, prio)
    tj = ["s_sub_u32 %s, %s, 1" % (S(sT0), S(sDEC)),
          "s_cmp_lt_u32 %s, 2" % S(sT0),
          "s_cselect_b32 %s, 1, 0" % S(sRDYN),
          "s_cselect_b32 %s, %s, 0" % (S(sNL), S(sT0)),
          "s_cmp_eq_u32 %s, 0" % S(sNL),
          "s_cselect_b32 %s, %s, %s" % (S(sT0), S(sC0), S(sC1)),
          "s_mul_i32 %s, %s, %d" % (S(sNS), S(sT0), nrep),
          "s_add_u32 %s, %s, %s" % (S(sNS), S(sNS), S(sREP)),
          "s_min_u32 %s, %s, 63" % (S(sNS), S(sNS)),
          "s_xor_b32 %s, %s, 1" % (S(sT0), S(sNL)),
          "s_and_b32 %s, %s, %s" % (S(sT0), S(sT0), S(sRDYN)),
          "s_add_u32 %s, %s, %s" % (S(sC0), S(sC0), S(sT0)),
          "s_and_b32 %s, %s, %s" % (S(sT0), S(sNL), S(sRDYN)),
          "s_add_u32 %s, %s, %s" % (S(sC1), S(sC1), S(sT0)),
          "s_lshl_b32 %s, %s, 6" % (S(sT0), S(sNL)),
          "s_add_u32 %s, %s, %s" % (S(sT0), S(sT0), S(sNS)),
          "s_mul_i32 %s, %s, %d" % (S(sNFL), S(sT0), JOBFLAG_BYTES),
          "s_xor_b32 %s, %s, %d" % (S(sOB), S(sBUF), bufstride)]
    sa = lines(src_addr, sSRC, sNL, sNS) + ["s_cmp_eq_u32 %s, 1" % S(sRDYN), "s_cselect_b32 %s, %s, %s" % (S(sSRC), S(sSRC), S(sCSRC)),
                                            "s_cselect_b64 %s, -1, 0" % SR(84, 2), "s_mov_b32 %s, %s" % (S(75), S(sSRC))]
    di = dma_items(sSRC, sOB)
    ndma = sum(1 for g in di for it in g if isinstance(it, str) and it.startswith('buffer_'))
    A = [(["s_cmp_eq_u32 %s, 2" % S(sMODE), "s_cbranch_scc1 %s" % Lhs, "s_waitcnt vmcnt(%d)" % ((1 if sig_at is None else 0) + (0 if defer_epi else nst)), Lhs + ":", dec[0], dec[1]], 1)]
    A += [(g, 0) for g in scc_groups(dec[2:])]
    A += [(["s_lshl_b32 %s, %s, 2" % (S(sT0), S(sW)), "s_add_u32 %s, %s, %d" % (S(sT0), S(sT0), LDS_DEC),
            "v_mov_b32 %s, %s" % (R(T1), S(sT0)), "v_mov_b32 %s, %s" % (R(T2), S(sDEC))], 0),
          ([('ds', "ds_write_b32 %s, %s" % (R(T1), R(T2)), 'dw')], 0),
          ([('wait', 'dw'), "s_barrier", "v_mov_b32 %s, %d" % (R(T1), LDS_DEC)], 2),
          ([('ds', "ds_read_b32 %s, %s" % (R(V0), R(T1)), 'dr')], 0),
          ([('wait', 'dr'), "v_readfirstlane_b32 %s, %s" % (S(sDEC), R(V0))], 2)]
    A += [(g, (1 if k == 0 else 0)) for k, g in enumerate(scc_groups(tj))]
    A += [(g, 0) for g in scc_groups(sa)]
    A += [(masked(g, 84), 0) for g in di]
    E = [(masked(g, 86), 0) for g in epi_items(sEOUT)] if defer_epi else []
    Zl = scc_groups(lines(out_addr, sCOUT))
    Zs = [(g, 0) for g in scc_groups(lines(cand_addrs, nrep, in_flag_off))]
    Zs += [(["buffer_load_dword %s, %s, %s, %s offen sc1" % (R(V0), R(VZ), SR(sWS, 4), S(sF0)),
             "buffer_load_dword %s, %s, %s, %s offen sc1" % (R(V1), R(VZ), SR(sWS, 4), S(sF1))], 0)]
    fill = {}
    load = [0] * n_slots
    def place(thread, first, quota):
        sl = first
        pos = []
        for g, gap in thread:
            sl = sl + gap
            while sl < n_slots and load[sl] + len(g) > quota and load[sl] > 0: sl += 1
            assert sl < n_slots, (tag, 'thread overflow')
            fill.setdefault(sl, []).extend(g); load[sl] += len(g); pos.append(sl)
        return pos
    z0 = n_slots - 1 - len(Zl)
    for k, g in enumerate(Zl):
        fill.setdefault(z0 + k, []).extend(g); load[z0 + k] += len(g)
    if sig_at is not None:
        pa0 = place(A[:1], 0, QUOTA + 4)
        pe = place(E, pa0[0] + 1, QUOTA)
        pa = pa0 + place(A[1:], pa0[0] + 1, QUOTA)
        first_dma = pa[len(A) - len(di)]
        if pe: assert pe[-1] < first_dma, (tag, pe[-1], first_dma)
        ps = max(pa[-1] + 1, sig_at)
        ps_g = [(["s_waitcnt vmcnt(%d)" % ndma, "s_barrier"] + sig(sPEND)[:3], 0), (sig(sPEND)[3:], 0)]
        pp = place(ps_g, ps, QUOTA + 2)
        assert pp[-1] < z0, (tag, pp, z0)
        pz = place(Zs, max(pp[-1] + 1, n_slots - SAMP_BACK), QUOTA)
        assert pz[-1] < n_slots
    else:
        pa = place(A, 0, QUOTA)
        pe = place(E, 0, QUOTA)
        assert pe[-1] < z0 and pa[-1] < z0, (tag, pe[-1], pa[-1], z0)
    n = run_stream(a, L, steps, fill)
    assert n == n_slots, (n, n_slots)
    shadow(a)
    if trc: trace(a, trc[1], sJL, sJS, trc[2], T1, T2, sT0)
    if trc and tag in CYC: trace(a, 13, sJL, sJS, trc[2], T1, T2, sT0, cyc=True)
    if sig_at is None: a("s_mov_b32 %s, %s" % (S(sPEND2), S(sPEND)))
    out_flag(a, sT3)
    a("s_mov_b32 %s, %s" % (S(sPEND), S(sT3)))
    a("s_mov_b32 %s, %s" % (S(sEOUT), S(sCOUT)))
    a("s_mov_b64 s[86:87], -1")
    if defer_epi:
        a("s_cmp_eq_u32 %s, %d" % (S(sJL), defer_layer))
        a("s_cselect_b32 %s, %s, 0" % (S(sT0), S(sRDYN)))
        a("s_mov_b32 %s, 1" % S(sMODE))
        a("s_cmp_eq_u32 %s, 0" % S(sT0))
        a("s_cbranch_scc0 %s" % Lnx)
    else:
        L3 = LdsT(a); nm3 = {}
        for g in epi_items(sEOUT): emit_items(a, L3, g, nm3)
        a("s_mov_b32 %s, 1" % S(sMODE))
        a("s_cmp_eq_u32 %s, 0" % S(sRDYN))
        a("s_cbranch_scc0 %s" % Lnx)
    if defer_epi:
        L2 = LdsT(a); nm = {}
        for g in epi_items(sEOUT): emit_items(a, L2, g, nm)
    a("s_waitcnt vmcnt(0)")
    a("s_barrier")
    if sig_at is None:
        for x in sig(sPEND2): a(x)
    for x in sig(sPEND): a(x)
    a("s_mov_b32 %s, %d" % (S(sEOUT), WS_SCRATCH))
    a("s_mov_b64 s[86:87], 0")
    a("s_mov_b32 %s, 2" % S(sMODE))
    a("s_cmp_eq_u32 %s, 0" % S(sRDYN))
    a("s_cbranch_scc0 %s" % Lnx)
    a("s_mov_b32 %s, 0" % S(sMODE))
    blocking_pick(a, tag, nrep, VZ, V0, V1, T1, T2, in_flag_off, in_target, prio)
    a("s_cmp_eq_u32 %s, 3" % S(sDEC)); a("s_cbranch_scc1 %s" % Lfin)
    take_job(a, nrep, sNL, sNS, sNFL)
    a("s_xor_b32 %s, %s, %d" % (S(sOB), S(sBUF), bufstride))
    src_addr(a, 75, sNL, sNS)
    a("s_mov_b32 %s, %s" % (S(sSRC), S(75)))
    for g in dma_items(sSRC, sOB):
        for x in g: a(x)
    samples(a)
    a.label(Lnx)
    a("s_mov_b32 %s, %s\ns_mov_b32 %s, %s\ns_mov_b32 %s, %s" % (S(sJL), S(sNL), S(sJS), S(sNS), S(sFLJ), S(sNFL)))
    a("s_mov_b32 %s, %s" % (S(sBUF), S(sOB)))
    a("s_mov_b32 %s, %s" % (S(sCSRC), S(75)))
    toggle(a)
    a("s_branch %s" % Lj)
    a.label(Lfin)
    a("s_waitcnt vmcnt(0)")
    a("s_branch L_exit")
QUOTA = 4
SAMP_BACK = 26
TOPW = {'s1': 3, 's3': 3, 's5': 3, 's4': 3}

def job_off2(a, sdst, base, lstride, job, sl, ss):
    a("s_mul_i32 %s, %s, %d" % (S(sdst), S(ss), job))
    if lstride:
        a("s_mul_i32 %s, %s, %d" % (S(sT4), S(sl), lstride))
        a("s_add_u32 %s, %s, %s" % (S(sdst), S(sdst), S(sT4)))
    a("s_add_u32 %s, %s, %d" % (S(sdst), S(sdst), base))

def rowtile_dma2(a, VD, s_src, sbuf):
    a("s_lshl_b32 %s, %s, 13" % (S(sT0), S(sW)))
    a("s_add_u32 %s, %s, %s" % (S(sT0), S(sT0), S(s_src)))
    a("s_lshl_b32 %s, %s, 11" % (S(sT1), S(sW)))
    a("s_add_u32 %s, %s, %s" % (S(sT1), S(sT1), S(sbuf)))
    for b in range(4):
        for t in range(2):
            a("s_add_u32 m0, %s, %d" % (S(sT1), b * 8192 + t * 1024))
            a("buffer_load_dwordx4 %s, %s, %s offen sc1 lds" % (R(VD + t), SR(sWS, 4), S(sT0)))
        if b < 3: a("s_add_u32 %s, %s, 256" % (S(sT0), S(sT0)))

def s1_role(a, init_target):
    a.comment("==== S1 role ====")
    lane, T1, T2, T3 = 0, 13, 14, 15
    AF, VD, VST, VSV, VFL, VFV = 2, 10, 12, 1, 104, 105
    ACC = {'q': 16, 'k': 32, 'v': 48}
    XF = [64 + 4 * i for i in range(4)]
    PKD = 80
    def W(x, ks): return {'q': 256, 'k': 384, 'v': 128}[x] + 4 * ks
    a("s_sub_u32 %s, %s, 2" % (S(sT0), S(sXCC)))
    sched_init(a, 2, D_S1, sT0)
    a("s_mov_b32 %s, %s" % (S(sAUX), S(sTICK)))
    load_srd(a, sA, 'Wq'); load_srd(a, sB, 'Wk'); load_srd(a, sC, 'Wv')
    signal_init(a, T1, T2)
    a("s_waitcnt lgkmcnt(0)")
    finish_srd(a, sA, 'Wq'); finish_srd(a, sB, 'Wk'); finish_srd(a, sC, 'Wv')
    if GATES1: gate_wait(a, T1, T2, GATES1)
    VROW, VTR = 20, 21
    setup_tr32(a, lane, VTR, T1, T2)
    a("v_lshrrev_b32 %s, 2, %s" % (R(T1), R(lane)))
    a("v_and_b32 %s, 3, %s" % (R(T2), R(lane)))
    a("v_lshlrev_b32 %s, 4, %s" % (R(T2), R(T2)))
    a("v_lshl_add_u32 %s, %s, 13, %s" % (R(VROW), R(T1), R(T2)))
    a("s_lshl_b32 %s, %s, 8" % (S(sX0), S(sAUX)))
    a("s_lshl_b32 %s, %s, 6" % (S(sT0), S(sW)))
    a("s_add_u32 %s, %s, %s" % (S(sX0), S(sX0), S(sT0)))
    frags = []
    for x, srd in (('k', sB), ('v', sC), ('q', sA)):
        for ks in range(32):
            frags.append((srd, (lambda a_, d, ks=ks: a_("s_add_u32 %s, %s, %d" % (S(d), S(sX0), ks * 16 * 8192))), W(x, ks)))
    if PF_S1:
        a("v_lshlrev_b32 v23, 6, %s" % R(lane))
        a("s_lshl_b32 s75, %s, 2" % S(sAUX)); a("s_add_u32 s75, s75, %s" % S(sW)); a("s_lshl_b32 s75, s75, 15")
        def pf(srd, k0, k1):
            for k in range(k0, k1):
                a("s_add_u32 s76, s75, %d" % (k * 4096))
                a("buffer_load_dword v24, v23, %s, s76 offen" % SR(srd, 4))
        sched = {}
        for k in range(8): sched[4 * k] = (sC, k)
        for k in range(8): sched[32 + 4 * k] = (sA, k)
        load_frags32(a, frags, VROW, VTR, pre=lambda: pf(sB, 0, 8), hook=lambda c: pf(sched[c][0], sched[c][1], sched[c][1] + 1) if c in sched else None)
    else:
        load_frags32(a, frags, VROW, VTR)
    setup_rowtile(a, lane, AF, VD, T1, T2, T3)
    a("v_bfe_u32 %s, %s, 4, 1" % (R(T1), R(lane)))
    a("v_lshrrev_b32 %s, 5, %s" % (R(T2), R(lane)))
    a("v_and_b32 %s, 15, %s" % (R(T3), R(lane)))
    a("v_lshlrev_b32 %s, 4, %s" % (R(T3), R(T3)))
    a("v_lshl_add_u32 %s, %s, 8, %s" % (R(T3), R(T2), R(T3)))
    a("v_lshl_add_u32 %s, %s, 12, %s" % (R(VST), R(T1), R(T3)))
    a("v_lshl_add_u32 %s, %s, 10, %s" % (R(VSV), R(T1), R(T3)))
    a("v_mov_b32 %s, 0" % R(VFL))
    wait_init(a, T1, T2, init_target)
    a("s_barrier")
    def in_flag(a, sd, sf): a("s_add_u32 %s, %s, %d" % (S(sd), S(sf), WS_FLAGS + FL_H))
    def src_addr(a, sd, sl, ss): job_off2(a, sd, WS_HN, HN_L, HN_JOB, sl, ss)
    def dma_items(ssrc, sbuf): return rowtile_items(VD, ssrc, sbuf)
    def toggle(a):
        for j in range(8): a("v_xor_b32 %s, 0x8000, %s" % (R(AF + j), R(AF + j)))
    def rd(ks): return "ds_read_b128 %s, %s offset:%d" % (RR(XF[ks % 4], 4), R(AF + (ks & 7)), (ks >> 3) * 8192)
    def mk_steps(L):
        ids = {}
        for ks in range(3): ids[ks] = L.ds(rd(ks))
        steps = []
        for ks in range(32):
            x = XF[ks % 4]
            mfs = [S_mf32x(ACC['k'], W('k', ks), x, None if ks == 0 else ACC['k']),
                   S_mf32x(ACC['v'], x, W('v', ks), None if ks == 0 else ACC['v']),
                   S_mf32x(ACC['q'], W('q', ks), x, None if ks == 0 else ACC['q'])]
            def pre(ks=ks):
                if ks + 3 < 32: ids[ks + 3] = L.ds(rd(ks + 3))
            steps.append(((lambda ks=ks: ids[ks]), mfs, pre))
        return steps
    def out_addr(a, sd):
        job_off(a, sd, WS_QKV, QKV_L, QKV_JOB)
        a("s_mul_i32 %s, %s, %d" % (S(sT4), S(sAUX), 24 * KB))
        a("s_add_u32 %s, %s, %s" % (S(sd), S(sd), S(sT4)))
    def shadow(a):
        for xi, x in ((0, 'k'), (1, 'q')):
            base = PKD + 8 * xi
            for r_ in range(8):
                a("v_cvt_pk_bf16_f32 %s, %s, %s" % (R(base + r_), R(ACC[x] + 2 * r_), R(ACC[x] + 2 * r_ + 1)))
        base = PKD + 16
        for p in range(2):
            for q, b in enumerate((p, p + 2)):
                for hh in range(2):
                    a("v_cvt_pk_bf16_f32 %s, %s, %s" % (R(base + 4 * p + 2 * q + hh), R(ACC['v'] + 4 * b + 2 * hh), R(ACC['v'] + 4 * b + 2 * hh + 1)))
    def epi_items(so):
        st = lambda r_, v, off: "buffer_store_dwordx4 %s, %s, %s, s79 offen offset:%d sc1" % (RR(r_, 4), R(v), SR(sWS, 4), off)
        return [["s_lshl_b32 s82, %s, 10" % S(sW), "s_add_u32 s79, %s, s82" % S(so), "s_add_u32 s79, s79, 8192", st(PKD, VST, 0)],
                [st(PKD + 4, VST, 512)],
                ["s_add_u32 s79, s79, s82", "s_add_u32 s79, s79, 8192", st(PKD + 16, VSV, 0)],
                [st(PKD + 20, VSV, 512)],
                ["s_add_u32 s79, %s, s82" % S(so), st(PKD + 8, VST, 0)],
                [st(PKD + 12, VST, 512)]]
    def oflag(a, sd):
        a("s_lshl_b32 %s, %s, 7" % (S(sd), S(sAUX)))
        a("s_add_u32 %s, %s, %s" % (S(sd), S(sd), S(sFLJ)))
        a("s_add_u32 %s, %s, %d" % (S(sd), S(sd), WS_FLAGS + FL_KV))
    gemm_loop(a, 's1', 2, VFL, VFV, T1, T2, in_flag, 8, src_addr, dma_items, toggle, mk_steps, 96, out_addr, shadow, epi_items, (2, 2), oflag, 0x8000, trc=(0, 1, [(sAUX, 0), (sW, 0)]), prio=1, sig_at=36, defer_layer=0)

def s35_role(a, which, init_target):
    a.comment("==== S%d role ====" % which)
    tag = 's%d' % which
    NK = 64 if which == 3 else 56
    lane, T1, T2, T3 = 0, 13, 14, 15
    VL16, VTW, VTR_, VST, VFL, VFV, VRD = 1, 2, 3, 4, 5, 8, 7
    ACC = 16
    XF = [32 + 4 * i for i in range(8)]
    TRN = 64
    def W(ks): return 256 + 4 * ks
    if DEDICATED: sched_layer(a, sX0)
    else: sched_init(a, 2, 0, sX0)
    a("s_mov_b32 %s, %s" % (S(sAUX), S(sX1)))
    a("s_mov_b32 %s, %s" % (S(sAUX2), S(sX2)))
    wname = 'Wo' if which == 3 else 'Wd'
    load_srd(a, sA, wname)
    signal_init(a, T1, T2)
    a("s_waitcnt lgkmcnt(0)")
    finish_srd(a, sA, wname)
    if GATEB: gate_wait(a, T1, T2, GATEB)
    VROW, VTR = 20, 21
    setup_tr32(a, lane, VTR, T1, T2)
    a("v_bfe_u32 %s, %s, 4, 1" % (R(T1), R(lane)))
    a("v_lshlrev_b32 %s, %d, %s" % (R(T1), 4 if which == 3 else 3, R(T1)))
    a("v_bfe_u32 %s, %s, 5, 1" % (R(T2), R(lane)))
    a("v_lshl_add_u32 %s, %s, 2, %s" % (R(T1), R(T2), R(T1)))
    a("v_bfe_u32 %s, %s, 2, 2" % (R(T2), R(lane)))
    a("v_add_u32 %s, %s, %s" % (R(T1), R(T1), R(T2)))
    a("v_and_b32 %s, 3, %s" % (R(T2), R(lane)))
    a("v_lshlrev_b32 %s, 4, %s" % (R(T2), R(T2)))
    a("v_lshl_add_u32 %s, %s, 10, %s" % (R(VROW), R(T1), R(T2)))
    a("s_mul_i32 %s, %s, %d" % (S(sX0), S(sAUX), (1024 if which == 3 else 896) * 1024))
    a("s_lshl_b32 %s, %s, 8" % (S(sT0), S(sAUX2)))
    a("s_add_u32 %s, %s, %s" % (S(sX0), S(sX0), S(sT0)))
    a("s_lshl_b32 %s, %s, 6" % (S(sT0), S(sW)))
    a("s_add_u32 %s, %s, %s" % (S(sX0), S(sX0), S(sT0)))
    frags = []
    for ks in range(NK):
        m = ks & 7
        row = (ks >> 3) * 128 + (32 * (m >> 1) + (8 if which == 3 else 16) * (m & 1))
        frags.append((sA, (lambda a_, d, row=row: a_("s_add_u32 %s, %s, %d" % (S(d), S(sX0), row * 1024))), W(ks)))
    load_frags32(a, frags, VROW, VTR)
    a("v_lshlrev_b32 %s, 4, %s" % (R(VL16), R(lane)))
    a("v_mov_b32 %s, %s" % (R(VRD), R(VL16)))
    TB = 131072
    a("v_and_b32 %s, 31, %s" % (R(T1), R(lane)))
    a("v_lshrrev_b32 %s, 5, %s" % (R(T2), R(lane)))
    a("v_and_b32 %s, 7, %s" % (R(T3), R(lane)))
    a("v_xor_b32 %s, %s, %s" % (R(T2), R(T2), R(T3)))
    a("v_lshlrev_b32 %s, 4, %s" % (R(T2), R(T2)))
    a("v_lshl_add_u32 %s, %s, 7, %s" % (R(VTW), R(T1), R(T2)))
    a("s_lshl_b32 %s, %s, 12" % (S(sT0), S(sW)))
    a("s_add_u32 %s, %s, %d" % (S(sT0), S(sT0), TB))
    a("v_add_u32 %s, %s, %s" % (R(VTW), S(sT0), R(VTW)))
    a("v_lshrrev_b32 %s, 3, %s" % (R(T1), R(lane)))
    a("v_and_b32 %s, 7, %s" % (R(T2), R(lane)))
    a("v_xor_b32 %s, %s, %s" % (R(T3), R(T2), R(T1)))
    a("v_lshlrev_b32 %s, 4, %s" % (R(T3), R(T3)))
    a("v_lshl_add_u32 %s, %s, 7, %s" % (R(VTR_), R(T1), R(T3)))
    a("v_add_u32 %s, %s, %s" % (R(VTR_), S(sT0), R(VTR_)))
    a("v_lshlrev_b32 %s, 4, %s" % (R(T2), R(T2)))
    a("v_lshl_add_u32 %s, %s, 11, %s" % (R(VST), R(T1), R(T2)))
    a("v_mov_b32 %s, 0" % R(VFL))
    if which == 3:
        a("s_lshl_b32 %s, %s, 7" % (S(sX1), S(sAUX)))
        a("s_add_u32 %s, %s, %d" % (S(sX1), S(sX1), WS_FLAGS + FL_O))
        a("s_lshl_b32 %s, %s, 16" % (S(sX2), S(sAUX)))
    else:
        a("s_lshl_b32 %s, %s, 7" % (S(sX1), S(sAUX)))
        a("s_add_u32 %s, %s, %d" % (S(sX1), S(sX1), WS_FLAGS + FL_A))
        a("s_mul_i32 %s, %s, %d" % (S(sX2), S(sAUX), 7 * 8192))
    wait_init(a, T1, T2, init_target)
    a("s_barrier")
    def in_flag(a, sd, sf): a("s_add_u32 %s, %s, %s" % (S(sd), S(sf), S(sX1)))
    def src_addr(a, sd, sl, ss):
        if which == 3: job_off2(a, sd, WS_O, O_L, O_JOB, sl, ss)
        else: job_off2(a, sd, WS_ACT, ACT_L, ACT_JOB, sl, ss)
        a("s_add_u32 %s, %s, %s" % (S(sd), S(sd), S(sX2)))
    def dma_items(ssrc, sbuf):
        out = []
        per = NK // 4
        for i in range(0, per, 1):
            g = []
            if i == 0:
                g += ["s_mul_i32 s76, %s, %d" % (S(sW), per * 1024), "s_add_u32 s77, %s, s76" % S(ssrc), "s_add_u32 s76, s76, %s" % S(sbuf)]
                out.append(g); g = []
            if i % 4 == 0:
                g += ["s_add_u32 m0, s76, %d" % (i * 1024)]
                if i: g += ["s_add_u32 s77, s77, 4096"]
            for k in (i,):
                if k < per: g += ["buffer_load_dwordx4 %s, %s, s77 offen offset:%d sc1 lds" % (R(VL16), SR(sWS, 4), (k % 4) * 1024)]
            out.append(g)
        return out
    def toggle(a): a("v_xor_b32 %s, 0x10000, %s" % (R(VRD), R(VRD)))
    PF = 6
    def rd(ks): return "ds_read_b128 %s, %s offset:%d" % (RR(XF[ks % 8], 4), R(VRD), ks * 1024)
    def mk_steps(L):
        ids = {}
        for ks in range(PF): ids[ks] = L.ds(rd(ks))
        steps = []
        for ks in range(NK):
            mfs = [S_mf32x(ACC, W(ks), XF[ks % 8], None if ks == 0 else ACC)]
            def pre(ks=ks):
                if ks + PF < NK: ids[ks + PF] = L.ds(rd(ks + PF))
            steps.append(((lambda ks=ks: ids[ks]), mfs, pre))
        return steps
    SH = 80
    TX = 10
    def out_addr(a, sd):
        if which == 3: job_off(a, sd, WS_P3, P3_L, P3_JOB)
        else: job_off(a, sd, WS_P5, P5_L, P5_JOB)
        a("s_lshl_b32 %s, %s, 16" % (S(sT4), S(sAUX)))
        a("s_add_u32 %s, %s, %s" % (S(sd), S(sd), S(sT4)))
        a("s_lshl_b32 %s, %s, 9" % (S(sT4), S(sAUX2)))
        a("s_add_u32 %s, %s, %s" % (S(sd), S(sd), S(sT4)))
        a("s_lshl_b32 %s, %s, 7" % (S(sT4), S(sW)))
        a("s_add_u32 %s, %s, %s" % (S(sd), S(sd), S(sT4)))
    def shadow(a):
        for r_ in range(0, 16, 2): a("v_mov_b64 %s, %s" % (RR(SH + r_, 2), RR(ACC + r_, 2)))
    def epi_items(so):
        g = [[('ds', "ds_write_b128 %s, %s" % (R(VTW), RR(SH, 4)), 'w0'), "v_xor_b32 %s, 32, %s" % (R(TX), R(VTW))],
             [('ds', "ds_write_b128 %s, %s" % (R(TX), RR(SH + 4, 4)), 'w1')],
             ["v_xor_b32 %s, 64, %s" % (R(TX), R(VTW)), ('ds', "ds_write_b128 %s, %s" % (R(TX), RR(SH + 8, 4)), 'w2')],
             ["v_xor_b32 %s, 96, %s" % (R(TX), R(VTW)), ('ds', "ds_write_b128 %s, %s" % (R(TX), RR(SH + 12, 4)), 'w3')],
             [],
             [('wait', 'w3')] + [('ds', "ds_read_b128 %s, %s offset:%d" % (RR(TRN + 4 * t, 4), R(VTR_), t * 1024), 'r%d' % t) for t in range(4)],
             [],
             ["s_mov_b32 s79, %s" % S(so)]]
        for t in range(4):
            g.append([('wait', 'r%d' % t), "buffer_store_dwordx4 %s, %s, %s, s79 offen sc1" % (RR(TRN + 4 * t, 4), R(VST), SR(sWS, 4)), "s_add_u32 s79, s79, %d" % (8 * 2048)])
        return g
    def oflag(a, sd):
        a("s_add_u32 %s, %s, %d" % (S(sd), S(sFLJ), WS_FLAGS + (FL_P3 if which == 3 else FL_P5)))
    gemm_loop(a, tag, (1 if DEDICATED else 2), VFL, VFV, T1, T2, in_flag, (2 if which == 3 else 7), src_addr, dma_items, toggle, mk_steps, NK, out_addr, shadow, epi_items, (0, 1), oflag, 0x10000, nst=4, sig_at=26, defer_epi=False, trc=((4, 5, [(sAUX, 0), (sAUX2, 0), (sW, 0)]) if which == 3 else (9, 10, [(sAUX, 0), (sAUX2, 0), (sW, 0)])))

def s4_role(a, init_target):
    a.comment("==== S4 role ====")
    lane, T1, T2, T3 = 0, 13, 14, 15
    AF, VD, VL16, VFL, VFV = 2, 10, 12, 1, 124
    AG, AU = 16, 32
    XF = [48 + 4 * i for i in range(4)]
    G, PKD = 64, 112
    def W(x, ks): return 256 + (0 if x == 'g' else 128) + 4 * ks
    if DEDICATED: sched_layer(a, sX0)
    else: sched_init(a, 2, 0, sX0)
    a("s_mov_b32 %s, %s" % (S(sAUX), S(sX1)))
    load_srd(a, sA, 'Wg'); load_srd(a, sB, 'Wu')
    signal_init(a, T1, T2)
    a("s_waitcnt lgkmcnt(0)")
    finish_srd(a, sA, 'Wg'); finish_srd(a, sB, 'Wu')
    if GATEB: gate_wait(a, T1, T2, GATEB)
    VROW, VTR = 20, 21
    setup_tr32(a, lane, VTR, T1, T2)
    a("v_lshrrev_b32 %s, 2, %s" % (R(T1), R(lane)))
    a("s_movk_i32 %s, 3584" % S(sT0))
    a("v_mul_lo_u32 %s, %s, %s" % (R(T1), S(sT0), R(T1)))
    a("v_and_b32 %s, 3, %s" % (R(T2), R(lane)))
    a("v_lshl_add_u32 %s, %s, 4, %s" % (R(VROW), R(T2), R(T1)))
    a("s_lshl_b32 %s, %s, 8" % (S(sX0), S(sAUX)))
    a("s_lshl_b32 %s, %s, 6" % (S(sT0), S(sW)))
    a("s_add_u32 %s, %s, %s" % (S(sX0), S(sX0), S(sT0)))
    frags = []
    for x, srd in (('g', sA), ('u', sB)):
        for ks in range(32):
            frags.append((srd, (lambda a_, d, ks=ks: a_("s_add_u32 %s, %s, %d" % (S(d), S(sX0), ks * 16 * 3584))), W(x, ks)))
    load_frags32(a, frags, VROW, VTR)
    setup_rowtile(a, lane, AF, VD, T1, T2, T3)
    a("v_lshlrev_b32 %s, 4, %s" % (R(VL16), R(lane)))
    a("v_mov_b32 %s, 0" % R(VFL))
    a("s_mov_b32 %s, 0x%x" % (S(sX3), f32(-1.4426950408889634)))
    wait_init(a, T1, T2, init_target)
    a("s_barrier")
    def in_flag(a, sd, sf): a("s_add_u32 %s, %s, %d" % (S(sd), S(sf), WS_FLAGS + FL_H2))
    def src_addr(a, sd, sl, ss): job_off2(a, sd, WS_H2, H2_L, H2_JOB, sl, ss)
    def dma_items(ssrc, sbuf): return rowtile_items(VD, ssrc, sbuf)
    def toggle(a):
        for j in range(8): a("v_xor_b32 %s, 0x8000, %s" % (R(AF + j), R(AF + j)))
    def rd(ks): return "ds_read_b128 %s, %s offset:%d" % (RR(XF[ks % 4], 4), R(AF + (ks & 7)), (ks >> 3) * 8192)
    def mk_steps(L):
        ids = {}
        for ks in range(3): ids[ks] = L.ds(rd(ks))
        steps = []
        for ks in range(32):
            x = XF[ks % 4]
            mfs = [S_mf32x(AG, W('g', ks), x, None if ks == 0 else AG), S_mf32x(AU, W('u', ks), x, None if ks == 0 else AU)]
            def pre(ks=ks):
                if ks + 3 < 32: ids[ks + 3] = L.ds(rd(ks + 3))
            steps.append(((lambda ks=ks: ids[ks]), mfs, pre))
        return steps
    SG, SU, WK_ = 64, 72, 80
    def out_addr(a, sd):
        job_off(a, sd, WS_ACT, ACT_L, ACT_JOB)
        a("s_lshl_b32 %s, %s, 13" % (S(sT4), S(sAUX)))
        a("s_add_u32 %s, %s, %s" % (S(sd), S(sd), S(sT4)))
        a("s_lshl_b32 %s, %s, 11" % (S(sT4), S(sW)))
        a("s_add_u32 %s, %s, %s" % (S(sd), S(sd), S(sT4)))
    def shadow(a):
        for r_ in range(8):
            a("v_cvt_pk_bf16_f32 %s, %s, %s" % (R(SG + r_), R(AG + 2 * r_), R(AG + 2 * r_ + 1)))
            a("v_cvt_pk_bf16_f32 %s, %s, %s" % (R(SU + r_), R(AU + 2 * r_), R(AU + 2 * r_ + 1)))
    def epi_items(so):
        ins = []
        for r_ in range(8):
            t = WK_ + (r_ % 2) * 8
            g0, g1, u0, u1, e0, e1, p = t, t + 1, t + 2, t + 3, t + 4, t + 5, t + 6
            ins += ["v_lshlrev_b32 %s, 16, %s" % (R(g0), R(SG + r_)),
                    "v_and_b32 %s, 0xffff0000, %s" % (R(g1), R(SG + r_)),
                    "v_mul_f32 %s, %s, %s" % (R(e0), S(sX3), R(g0)),
                    "v_mul_f32 %s, %s, %s" % (R(e1), S(sX3), R(g1)),
                    "v_exp_f32 %s, %s" % (R(e0), R(e0)),
                    "v_exp_f32 %s, %s" % (R(e1), R(e1)),
                    "v_lshlrev_b32 %s, 16, %s" % (R(u0), R(SU + r_)),
                    "v_and_b32 %s, 0xffff0000, %s" % (R(u1), R(SU + r_)),
                    "v_add_f32 %s, 1.0, %s" % (R(e0), R(e0)),
                    "v_add_f32 %s, 1.0, %s" % (R(e1), R(e1)),
                    "v_rcp_f32 %s, %s" % (R(e0), R(e0)),
                    "v_rcp_f32 %s, %s" % (R(e1), R(e1)),
                    "s_nop 0",
                    "v_mul_f32 %s, %s, %s" % (R(g0), R(g0), R(e0)),
                    "v_mul_f32 %s, %s, %s" % (R(g1), R(g1), R(e1)),
                    "v_cvt_pk_bf16_f32 %s, %s, %s" % (R(p), R(g0), R(g1)),
                    "v_lshlrev_b32 %s, 16, %s" % (R(g0), R(p)),
                    "v_and_b32 %s, 0xffff0000, %s" % (R(g1), R(p)),
                    "v_mul_f32 %s, %s, %s" % (R(g0), R(g0), R(u0)),
                    "v_mul_f32 %s, %s, %s" % (R(g1), R(g1), R(u1)),
                    "v_cvt_pk_bf16_f32 %s, %s, %s" % (R(PKD + r_), R(g0), R(g1))]
            if r_ in (3, 7):
                ins.append("buffer_store_dwordx4 %s, %s, %s, %s offen offset:%d sc1" % (RR(PKD + 4 * (r_ // 4), 4), R(VL16), SR(sWS, 4), S(so), (r_ // 4) * 1024))
        ins = [x for x in ins if x != "s_nop 0"]
        per = 3
        return [ins[k:k + per] for k in range(0, len(ins), per)]
    def oflag(a, sd):
        a("s_cmp_ge_u32 %s, 7" % S(sAUX))
        a("s_cselect_b32 %s, 128, 0" % S(sd))
        a("s_add_u32 %s, %s, %s" % (S(sd), S(sd), S(sFLJ)))
        a("s_add_u32 %s, %s, %d" % (S(sd), S(sd), WS_FLAGS + FL_A))
    gemm_loop(a, 's4', (1 if DEDICATED else 2), VFL, VFV, T1, T2, in_flag, 8, src_addr, dma_items, toggle, mk_steps, 64, out_addr, shadow, epi_items, (0, 1), oflag, 0x8000, nst=2, sig_at=26, defer_epi=False, trc=(7, 8, [(sAUX, 0), (sW, 0)]))
```

```python
from common import *
import struct

UB = 131072
KV_OFF = 0
MX_OFF = 16384
OX_OFF = MX_OFF + 5120
QI_OFF = 24576
TB_OFF = 29696
SEL_OFF = 30720
GATE = 24
PF_ON = False
IST = 40
PART_CU = 8192
PART_SLOT = 32 * PART_CU
MEM_SLOT = 8192
IDX, MXR, UL, QWQ, QWK, QR, OW, OR_, WLB, FLG, T0, T1, T2 = 0, 1, 5, 6, 7, 8, 9, 10, 11, 12, 13, 14, 15
MA = [16 + 4 * i for i in range(8)]
AQ = [48, 52]; AK = [56, 60]; AV = [64, 68]
KX = [72 + 4 * f for f in range(8)]
QF = [104 + 4 * k for k in range(4)]
VX = [120, 124]
KMF = [48 + 4 * k for k in range(4)]
def WQ(t, i): return 256 + (2 * i + t) * 8
def WK(t, i): return 256 + 128 + (2 * i + t) * 8
def WV(t, i): return 128 + (2 * i + t) * 8
def WO(nt, j): return 192 + (2 * nt + j) * 8
SX = [16, 20]; SM = 88; PX = 92; PM = 96; MXV, ZX, AL, RZ, TA, TB_ = 98, 99, 100, 101, 102, 103
OXA = [104, 108]; OMA = [112, 116]; OC = 92; OA = [120, 124]
WA = [16 + 4 * n for n in range(8)]
TBL = 104
SEL = 108
RD = 48
RS = 56
PK = 112
sL, sH, sSTEP, sCHB = 32, 33, 34, 35
sMEMRD, sMEMST, sPARTST, sPARTLD = 36, 37, 38, 39
sKVSRC, sKMJOB, sFLKV, sFLKM = 40, 41, 42, 43
sRDY, sSLOT = 44, 45
sT0, sT1, sT2, sT3 = 46, 47, 48, 49
sCEXP, sKVLDS = 50, 51
sM2, sEX = 52, 56
sMEMPZ, sPARTPZ = 54, 55
sTK = 58
sFLKMN = 59
sKVDUM = 66
sO8 = 68
sW0 = 64
sMEMRD0, sMEMST0, sPARTST0, sPARTLD0 = 60, 61, 62, 63

def smf(a, d, aa, b):
    a("v_smfmac_f32_16x16x64_bf16 %s, %s, %s, %s" % (RR(d, 4), RR(aa, 4), RR(b, 8), R(IDX)))
def S_smf(d, aa, b):
    return "v_smfmac_f32_16x16x64_bf16 %s, %s, %s, %s" % (RR(d, 4), RR(aa, 4), RR(b, 8), R(IDX))
def S_mf32(d, aa, b, c=None):
    return "v_mfma_f32_16x16x32_bf16 %s, %s, %s, %s" % (RR(d, 4), RR(aa, 4), RR(b, 4), '0' if c is None else RR(c, 4))
def mf32(a, d, aa, b, c=None): a(S_mf32(d, aa, b, c))
def mf16(a, d, aa, b, c=None):
    a("v_mfma_f32_16x16x16_bf16 %s, %s, %s, %s" % (RR(d, 4), RR(aa, 2), RR(b, 2), '0' if c is None else RR(c, 4)))

def weave(a, mf, fill):
    for i, m in enumerate(mf):
        a(m)
        if i < len(fill):
            for f in fill[i]: a(f)
    for rest in fill[len(mf):]:
        for f in rest: a(f)

def chain_pre(a):
    a.comment("==== chain pre ====")
    a("s_mov_b32 %s, %s" % (S(sL), S(sXCC)))
    a("s_mov_b32 %s, %s" % (S(sH), S(sTICK)))
    load_srd(a, sA, 'Wq'); load_srd(a, sB, 'Wk'); load_srd(a, sC, 'Wv'); load_srd(a, sD, 'Wo')
    a("s_load_dwordx2 s[68:69], s[0:1], %d" % KA['mem0'])
    lane = T0
    a("v_mov_b32 %s, v0" % R(lane))
    a("s_waitcnt lgkmcnt(0)")
    for r_, n in ((sA, 'Wq'), (sB, 'Wk'), (sC, 'Wv'), (sD, 'Wo')): finish_srd(a, r_, n)
    a("s_mov_b32 s70, %d" % SIZES['mem0']); a("s_mov_b32 s71, 0x%x" % SRD3)
    a("v_bfe_u32 %s, %s, 2, 1" % (R(T1), R(lane)))
    a("v_lshlrev_b32 %s, 10, %s" % (R(T1), R(T1)))
    a("v_bfe_u32 %s, %s, 4, 1" % (R(T2), R(lane)))
    a("v_lshl_add_u32 %s, %s, 6, %s" % (R(T1), R(T2), R(T1)))
    a("v_and_b32 %s, 3, %s" % (R(T2), R(lane)))
    a("v_lshl_add_u32 %s, %s, 1, %s" % (R(T1), R(T2), R(T1)))
    a("s_and_b32 %s, %s, 3" % (S(sT0), S(sH)))
    a("s_lshl_b32 %s, %s, 11" % (S(sT0), S(sT0)))
    a("s_lshr_b32 %s, %s, 2" % (S(sT1), S(sH)))
    a("s_lshl_b32 %s, %s, 7" % (S(sT1), S(sT1)))
    a("s_add_u32 %s, %s, %s" % (S(sT0), S(sT0), S(sT1)))
    a("s_lshl_b32 %s, %s, 3" % (S(sT1), S(sW)))
    a("s_add_u32 %s, %s, %s" % (S(sT0), S(sT0), S(sT1)))
    a("buffer_load_ushort %s, %s, s[68:71], %s offen" % (R(124), R(T1), S(sT0)))
    a("buffer_load_ushort %s, %s, s[68:71], %s offen offset:32" % (R(125), R(T1), S(sT0)))

def chain_setup(a):
    a.comment("==== chain setup ====")
    lane = T0
    a("v_lshlrev_b32 %s, 4, %s" % (R(UL), R(lane)))
    a("v_add_u32 %s, 0x%x, %s" % (R(UL), UB, R(UL)))
    a("v_and_b32 %s, 2, %s" % (R(T1), R(lane)))
    a("v_cmp_eq_u32 vcc, 0, %s" % R(T1))
    a("v_mov_b32 %s, 0xeeee" % R(T2))
    a("v_mov_b32 %s, 0x4444" % R(IDX))
    a("v_cndmask_b32 %s, %s, %s, vcc" % (R(IDX), R(T2), R(IDX)))
    for k in range(4):
        a("s_add_u32 %s, %s, %d" % (S(sT0), S(sW), k))
        a("s_and_b32 %s, %s, 3" % (S(sT0), S(sT0)))
        a("s_lshl_b32 %s, %s, 11" % (S(sT0), S(sT0)))
        a("v_add_u32 %s, %s, %s" % (R(MXR + k), S(sT0), R(UL)))
    a("v_and_b32 %s, 15, %s" % (R(T1), R(lane)))
    a("s_lshl_b32 %s, %s, 5" % (S(sT0), S(sW)))
    a("v_add_u32 %s, %s, %s" % (R(T1), S(sT0), R(T1)))
    a("v_mul_u32_u24 %s, %d, %s" % (R(T1), IST, R(T1)))
    a("v_lshrrev_b32 %s, 4, %s" % (R(T2), R(lane)))
    a("v_lshl_add_u32 %s, %s, 2, %s" % (R(QWQ), R(T2), R(T1)))
    a("v_add_u32 %s, 0x%x, %s" % (R(QWQ), UB + QI_OFF, R(QWQ)))
    a("v_lshl_add_u32 %s, %s, 3, %s" % (R(QWK), R(T2), R(T1)))
    a("v_add_u32 %s, 0x%x, %s" % (R(QWK), UB + MX_OFF, R(QWK)))
    a("v_lshrrev_b32 %s, 5, %s" % (R(T1), R(lane)))
    a("v_lshlrev_b32 %s, 4, %s" % (R(T1), R(T1)))
    a("v_bfe_u32 %s, %s, 4, 1" % (R(T2), R(lane)))
    a("v_lshl_add_u32 %s, %s, 2, %s" % (R(T1), R(T2), R(T1)))
    a("v_bfe_u32 %s, %s, 2, 2" % (R(T2), R(lane)))
    a("v_add_u32 %s, %s, %s" % (R(T1), R(T1), R(T2)))
    a("v_mul_u32_u24 %s, %d, %s" % (R(QR), IST, R(T1)))
    a("v_and_b32 %s, 3, %s" % (R(T2), R(lane)))
    a("v_lshl_add_u32 %s, %s, 3, %s" % (R(QR), R(T2), R(QR)))
    a("v_add_u32 %s, 0x%x, %s" % (R(QR), UB, R(QR)))
    a("v_and_b32 %s, 15, %s" % (R(T1), R(lane)))
    a("v_lshrrev_b32 %s, 4, %s" % (R(T2), R(lane)))
    a("s_lshl_b32 %s, %s, 2" % (S(sT0), S(sW)))
    a("v_add_u32 %s, %s, %s" % (R(T2), S(sT0), R(T2)))
    a("v_and_b32 %s, 7, %s" % (R(OW), R(lane)))
    a("v_xor_b32 %s, %s, %s" % (R(T2), R(T2), R(OW)))
    a("v_lshlrev_b32 %s, 4, %s" % (R(T2), R(T2)))
    a("v_and_b32 %s, 7, %s" % (R(T1), R(T1)))
    a("v_lshl_add_u32 %s, %s, 8, %s" % (R(OW), R(T1), R(T2)))
    a("v_add_u32 %s, 0x%x, %s" % (R(OW), UB, R(OW)))
    a("v_bfe_u32 %s, %s, 2, 2" % (R(T1), R(lane)))
    a("v_lshlrev_b32 %s, 1, %s" % (R(T1), R(T1)))
    a("v_and_b32 %s, 1, %s" % (R(T2), R(lane)))
    a("v_add_u32 %s, %s, %s" % (R(T1), R(T1), R(T2)))
    a("v_bfe_u32 %s, %s, 1, 1" % (R(T2), R(lane)))
    a("v_lshlrev_b32 %s, 2, %s" % (R(T2), R(T2)))
    a("v_lshrrev_b32 %s, 4, %s" % (R(OR_), R(lane)))
    a("v_add_u32 %s, %s, %s" % (R(T2), R(T2), R(OR_)))
    a("v_xor_b32 %s, %s, %s" % (R(T2), R(T2), R(T1)))
    a("v_lshlrev_b32 %s, 4, %s" % (R(T2), R(T2)))
    a("v_lshl_add_u32 %s, %s, 8, %s" % (R(OR_), R(T1), R(T2)))
    a("v_add_u32 %s, 0x%x, %s" % (R(OR_), UB, R(OR_)))
    a("v_lshlrev_b32 %s, 4, %s" % (R(WLB), R(lane)))
    a("s_lshl_b32 %s, %s, 15" % (S(sT0), S(sW)))
    a("v_add_u32 %s, %s, %s" % (R(WLB), S(sT0), R(WLB)))
    P, Q_, M2, Fo = TBL, TBL + 1, TBL + 2, TBL + 3
    a("v_mov_b32 %s, 0" % R(P))
    a("v_lshrrev_b32 %s, 2, %s" % (R(T1), R(lane)))
    a("v_lshlrev_b32 %s, 13, %s" % (R(Q_), R(T1)))
    a("v_and_b32 %s, 3, %s" % (R(T2), R(lane)))
    a("v_lshl_add_u32 %s, %s, 4, %s" % (R(Q_), R(T2), R(Q_)))
    a("v_lshlrev_b32 %s, 2, %s" % (R(M2), R(T2)))
    a("v_bfe_u32 %s, %s, 2, 1" % (R(T1), R(lane)))
    a("v_lshl_add_u32 %s, %s, 4, %s" % (R(M2), R(T1), R(M2)))
    a("v_bfe_u32 %s, %s, 4, 1" % (R(T1), R(lane)))
    a("v_lshl_add_u32 %s, %s, 5, %s" % (R(M2), R(T1), R(M2)))
    a("v_mov_b32 %s, 0" % R(Fo))
    a("ds_write_b128 %s, %s offset:%d" % (R(UL), RR(TBL, 4), TB_OFF))
    a("v_and_b32 %s, 15, %s" % (R(T1), R(lane)))
    for d in range(4):
        a("v_cmp_eq_u32 vcc, %d, %s" % (2 * d, R(T1)))
        a("v_mov_b32 %s, 0x3f80" % R(T2))
        a("v_cndmask_b32 %s, 0, %s, vcc" % (R(SEL + d), R(T2)))
        a("v_cmp_eq_u32 vcc, %d, %s" % (2 * d + 1, R(T1)))
        a("v_mov_b32 %s, 0x3f800000" % R(T2))
        a("v_cndmask_b32 %s, %s, %s, vcc" % (R(SEL + d), R(SEL + d), R(T2)))
    a("ds_write_b128 %s, %s offset:%d" % (R(UL), RR(SEL, 4), SEL_OFF))
    a("s_waitcnt lgkmcnt(0)")
    a("s_mul_i32 %s, %s, %d" % (S(sCHB), S(sL), CH_STRIDE))
    a("s_add_u32 %s, %s, %d" % (S(sCHB), S(sCHB), WS_CH))
    cexp = struct.unpack('<I', struct.pack('<f', (128 ** -0.5) * 1.4426950408889634))[0]
    a("s_mov_b32 %s, 0x%x" % (S(sCEXP), cexp))
    a("s_mov_b32 %s, 0xf0f0f0f0\ns_mov_b32 %s, 0xf0f0f0f0" % (S(sM2), S(sM2 + 1)))
    a("s_mov_b32 %s, 0x00ff00ff\ns_mov_b32 %s, 0" % (S(sEX), S(sEX + 1)))
    a("s_add_u32 %s, %s, %d" % (S(sT0), S(sCHB), CH_MEM))
    a("s_lshl_b32 %s, %s, 11" % (S(sT1), S(sW)))
    a("s_add_u32 %s, %s, %s" % (S(sMEMRD0), S(sT0), S(sT1)))
    a("s_sub_u32 %s, %s, %d" % (S(sMEMRD0), S(sMEMRD0), UB))
    a("s_lshr_b32 %s, %s, 2" % (S(sT1), S(sH)))
    a("s_lshl_b32 %s, %s, 10" % (S(sT1), S(sT1)))
    a("s_add_u32 %s, %s, %s" % (S(sMEMST0), S(sT0), S(sT1)))
    a("s_lshl_b32 %s, %s, 8" % (S(sT1), S(sW)))
    a("s_add_u32 %s, %s, %s" % (S(sMEMST0), S(sMEMST0), S(sT1)))
    a("s_and_b32 %s, %s, 3" % (S(sT1), S(sH)))
    a("s_lshl_b32 %s, %s, 6" % (S(sT1), S(sT1)))
    a("s_add_u32 %s, %s, %s" % (S(sMEMST0), S(sMEMST0), S(sT1)))
    a("s_lshl_b32 %s, %s, 13" % (S(sT1), S(sH)))
    a("s_add_u32 %s, %s, %s" % (S(sPARTST0), S(sCHB), S(sT1)))
    a("s_lshl_b32 %s, %s, 11" % (S(sT1), S(sW)))
    a("s_add_u32 %s, %s, %s" % (S(sPARTST0), S(sPARTST0), S(sT1)))
    a("s_sub_u32 %s, %s, %d" % (S(sPARTST0), S(sPARTST0), UB))
    a("s_lshl_b32 %s, %s, 8" % (S(sT1), S(sH)))
    a("s_add_u32 %s, %s, %s" % (S(sPARTLD0), S(sCHB), S(sT1)))
    a("s_lshl_b32 %s, %s, 6" % (S(sT1), S(sW)))
    a("s_add_u32 %s, %s, %s" % (S(sPARTLD0), S(sPARTLD0), S(sT1)))
    a("s_mul_i32 %s, %s, %d" % (S(sKVSRC), S(sL), QKV_L))
    a("s_mul_i32 %s, %s, %d" % (S(sT1), S(sH), 24 * KB))
    a("s_add_u32 %s, %s, %s" % (S(sKVSRC), S(sKVSRC), S(sT1)))
    a("s_lshl_b32 %s, %s, 11" % (S(sT1), S(sW)))
    a("s_add_u32 %s, %s, %s" % (S(sKVSRC), S(sKVSRC), S(sT1)))
    a("s_add_u32 %s, %s, %d" % (S(sKVSRC), S(sKVSRC), WS_QKV + 8 * KB - UB))
    a("s_add_u32 %s, %s, %d" % (S(sKVLDS), S(sT1), UB + KV_OFF))
    a("s_mul_i32 %s, %s, %d" % (S(sKMJOB), S(sL), KM_L))
    a("s_lshl_b32 %s, %s, 13" % (S(sT1), S(sH)))
    a("s_add_u32 %s, %s, %s" % (S(sKMJOB), S(sKMJOB), S(sT1)))
    a("s_lshl_b32 %s, %s, 10" % (S(sT1), S(sW)))
    a("s_add_u32 %s, %s, %s" % (S(sKMJOB), S(sKMJOB), S(sT1)))
    a("s_add_u32 %s, %s, %d" % (S(sKMJOB), S(sKMJOB), WS_KM - UB))
    a("s_mul_i32 %s, %s, %d" % (S(sT0), S(sL), NSEG * JOBFLAG_BYTES))
    a("s_lshl_b32 %s, %s, 7" % (S(sT1), S(sH)))
    a("s_add_u32 %s, %s, %s" % (S(sT0), S(sT0), S(sT1)))
    a("s_add_u32 %s, %s, %d" % (S(sFLKV), S(sT0), WS_FLAGS + FL_KV))
    a("s_add_u32 %s, %s, %d" % (S(sFLKMN), S(sT0), WS_FLAGS + FL_KM))
    a("s_add_u32 %s, %s, %d" % (S(sFLKM), S(sCHB), CH_MEM + 4 * MEM_SLOT))
    a("s_sub_u32 %s, %s, %d" % (S(sKVDUM), S(sCHB), UB))
    a("s_cmp_eq_u32 %s, 0" % S(sW))
    a("s_cselect_b32 %s, 1, 0" % S(sW0))
    a("s_mov_b32 %s, 0" % S(sW0 + 1))
    for i in range(4): a("v_mov_b32 %s, -1" % R(KX[0] + i))
    for sl in range(2):
        a("s_add_u32 %s, %s, %d" % (S(sT0), S(sPARTST0), sl * PART_SLOT))
        for p in range(2):
            a("buffer_store_dwordx4 %s, %s, %s, %s offen offset:%d" % (RR(KX[0], 4), R(UL), SR(sWS, 4), S(sT0), p * 1024))
    a("s_waitcnt vmcnt(36)")
    a("v_lshl_or_b32 %s, %s, 16, %s" % (R(T2), R(125), R(124)))
    a("s_add_u32 %s, %s, %d" % (S(sT0), S(sMEMST0), MEM_SLOT))
    a("s_mov_b64 exec, %s" % SR(sEX, 2))
    a("buffer_store_dword %s, %s, %s, %s offen" % (R(T2), R(TBL + 2), SR(sWS, 4), S(sMEMST0)))
    a("buffer_store_dword %s, %s, %s, %s offen" % (R(KX[0]), R(TBL + 2), SR(sWS, 4), S(sT0)))
    a("s_mov_b64 exec, -1")

def chain_load_weights(a, mid=None):
    a.comment("==== chain weight load ====")
    VQ, VO, TR0, TR1 = 16, 17, 18, 19
    lane = T0
    a("v_and_b32 %s, 3, %s" % (R(T2), R(lane)))
    a("v_bfe_u32 v20, %s, 5, 1" % R(lane))
    a("v_lshlrev_b32 v20, 1, v20")
    a("v_xor_b32 %s, %s, v20" % (R(T2), R(T2)))
    a("v_lshlrev_b32 %s, 4, %s" % (R(T2), R(T2)))
    a("v_bfe_u32 v20, %s, 3, 1" % R(lane))
    a("v_lshlrev_b32 v20, 5, v20")
    a("v_bfe_u32 v21, %s, 2, 1" % R(lane))
    a("v_lshl_add_u32 v20, v21, 4, v20")
    a("v_bfe_u32 v21, %s, 4, 2" % R(lane))
    a("v_add_u32 v20, v20, v21")
    a("v_lshl_add_u32 %s, v20, 13, %s" % (R(VQ), R(T2)))
    a("v_bfe_u32 v20, %s, 3, 1" % R(lane))
    a("v_lshlrev_b32 v20, 5, v20")
    a("v_bfe_u32 v21, %s, 5, 1" % R(lane))
    a("v_lshl_add_u32 v20, v21, 4, v20")
    a("v_bfe_u32 v21, %s, 4, 1" % R(lane))
    a("v_lshl_add_u32 v20, v21, 1, v20")
    a("v_bfe_u32 v21, %s, 2, 1" % R(lane))
    a("v_add_u32 v20, v20, v21")
    a("v_lshl_add_u32 %s, v20, 10, %s" % (R(VO), R(T2)))
    a("v_lshrrev_b32 v20, 4, %s" % R(lane))
    a("v_lshlrev_b32 v21, 3, v20")
    a("v_bfe_u32 v22, %s, 2, 2" % R(lane))
    a("v_add_u32 v21, v21, v22")
    a("v_lshlrev_b32 v21, 6, v21")
    a("v_and_b32 v22, 3, %s" % R(lane))
    a("v_lshl_add_u32 v21, v22, 3, v21")
    a("s_lshl_b32 %s, %s, 15" % (S(sT0), S(sW)))
    a("v_add_u32 v21, %s, v21" % S(sT0))
    a("v_and_b32 v20, 1, v20")
    a("v_lshl_add_u32 %s, v20, 5, v21" % R(TR0))
    a("v_xor_b32 %s, 32, %s" % (R(TR1), R(TR0)))
    chunks = []
    for i in range(8): chunks.append(('q', i))
    for i in range(8): chunks.append(('k', i))
    for i in range(4): chunks.append(('v', i))
    for ntp in range(2):
        for j in range(2): chunks.append(('o', (ntp, j)))
    for i in range(4, 8): chunks.append(('v', i))
    for ntp in range(2, 4):
        for j in range(2): chunks.append(('o', (ntp, j)))
    sCOLQ, sCOLO, sLDSW = 72, 73, 74
    a("s_lshl_b32 %s, %s, 8" % (S(sCOLQ), S(sH)))
    a("s_lshl_b32 %s, %s, 6" % (S(sT0), S(sW)))
    a("s_add_u32 %s, %s, %s" % (S(sCOLQ), S(sCOLQ), S(sT0)))
    a("s_lshl_b32 %s, %s, 17" % (S(sCOLO), S(sH)))
    a("s_lshl_b32 %s, %s, 8" % (S(sT0), S(sW)))
    a("s_add_u32 %s, %s, %s" % (S(sCOLO), S(sCOLO), S(sT0)))
    a("s_lshl_b32 %s, %s, 15" % (S(sLDSW), S(sW)))
    sK = sTK
    def issue(c):
        kind, arg = chunks[c]
        slot = c % 8
        if kind in 'qkv':
            i = arg
            a("s_add_u32 s%d, %s, %d" % (sK, S(sW), i >> 1))
            a("s_and_b32 s%d, s%d, 3" % (sK, sK))
            a("s_lshl_b32 s%d, s%d, 1" % (sK, sK))
            if i & 1: a("s_add_u32 s%d, s%d, 1" % (sK, sK))
            a("s_lshl_b32 s%d, s%d, 19" % (sK, sK))
            a("s_add_u32 s%d, s%d, %s" % (sK, sK, S(sCOLQ)))
            srd = {'q': sA, 'k': sB, 'v': sC}[kind]
            vo, rowstep = VQ, 4 * 8192
        else:
            ntp, j = arg
            a("s_add_u32 s%d, %s, %d" % (sK, S(sCOLO), j * 64 * 1024 + ntp * 64))
            srd = sD; vo, rowstep = VO, 4 * 1024
        for u in range(4):
            a("s_add_u32 m0, %s, %d" % (S(sLDSW), slot * 4096 + u * 1024))
            a("buffer_load_dwordx4 %s, %s, s%d offen lds" % (R(vo), SR(srd, 4), sK))
            if u < 3: a("s_add_u32 s%d, s%d, %d" % (sK, sK, rowstep))
    def dest(c, t):
        kind, arg = chunks[c]
        if c >= 24: return 32 + 8 * t
        if kind == 'q': return WQ(t, arg)
        if kind == 'k': return WK(t, arg)
        if kind == 'v': return WV(t, arg)
        ntp, j = arg
        return WO(2 * ntp + t, j)
    VPF, VPD = 23, 24
    a("v_lshlrev_b32 %s, 6, %s" % (R(VPF), R(lane)))
    a("s_lshl_b32 s75, %s, 2" % S(sH)); a("s_add_u32 s75, s75, %s" % S(sW)); a("s_lshl_b32 s75, s75, 15")
    def pf(srd, k0, k1):
        for k in range(k0, k1):
            a("s_add_u32 s76, s75, %d" % (k * 4096))
            a("buffer_load_dword %s, %s, %s, s76 offen" % (R(VPD), R(VPF), SR(srd, 4)))
    PFN = PF_ON
    if PFN:
        pf(sA, 0, 8)
        pf(sB, 0, 2)
    for c in range(8): issue(c)
    if mid: mid(a)
    n = len(chunks)
    for c in range(n):
        inflight = min(c + 8, n) - c - 1
        extra = 0
        if PF_ON:
            extra = sum(1 for cc in range(max(0, c - 8), c) if cc < 22 and cc + 8 > c - 0 and cc >= c - 8)
            extra = min(extra, 63 - inflight * 4)
            extra = 0
        a("s_waitcnt vmcnt(%d)" % (inflight * 4 + extra))
        slot = c % 8
        for t in range(2):
            d = dest(c, t)
            base = TR0 if t == 0 else TR1
            for k, off in enumerate((0, 256, 2048, 2304)):
                a("ds_read_b64_tr_b16 %s, %s offset:%d" % (RR(d + 2 * k, 2), R(base), slot * 4096 + off))
        a("s_waitcnt lgkmcnt(0)")
        if c >= 24:
            for t in range(2):
                d = dest(c, t)
                a("ds_write_b128 %s, %s offset:%d" % (R(WLB), RR(d, 4), slot * 4096 + t * 2048))
                a("ds_write_b128 %s, %s offset:%d" % (R(WLB), RR(d + 4, 4), slot * 4096 + t * 2048 + 1024))
            a("s_waitcnt lgkmcnt(0)")
        if c + 8 < n: issue(c + 8)
        if PF_ON:
            if c < 6: pf(sB, 2 + c, 3 + c)
            elif c < 14: pf(sC, c - 6, c - 5)
            elif c < 22: pf(sD, c - 14, c - 13)

def wv_lds(i, t): return (i - 4) * 4096 + t * 2048
def wo_lds(nt, j): return (4 + 2 * ((nt >> 1) - 2) + j) * 4096 + (nt & 1) * 2048
def S_rdfrag(dst, off):
    return ["ds_read_b128 %s, %s offset:%d" % (RR(dst, 4), R(WLB), off), "ds_read_b128 %s, %s offset:%d" % (RR(dst + 4, 4), R(WLB), off + 1024)]
def rdfrag(a, dst, off):
    for t in S_rdfrag(dst, off): a(t)

def S_kv_dma(src=None):
    src = sKVSRC if src is None else src
    return ["s_mov_b32 m0, %s" % S(sKVLDS),
            "s_add_u32 %s, %s, 8192" % (S(sT1), S(src)),
            "buffer_load_dwordx4 %s, %s, %s offen sc1 lds" % (R(UL), SR(sWS, 4), S(src)),
            "buffer_load_dwordx4 %s, %s, %s offen offset:1024 sc1 lds" % (R(UL), SR(sWS, 4), S(src)),
            "s_add_u32 m0, %s, 8192" % S(sKVLDS),
            "s_nop 0",
            "buffer_load_dwordx4 %s, %s, %s offen sc1 lds" % (R(UL), SR(sWS, 4), S(sT1)),
            "buffer_load_dwordx4 %s, %s, %s offen offset:1024 sc1 lds" % (R(UL), SR(sWS, 4), S(sT1))]

STAMPS = None
def tstamp(a, k, on):
    if on == 2 and STAMPS is None:
        a("s_memtime s[%d:%d]" % (72 + 2 * k, 73 + 2 * k))
def tp(a, name, on):
    if on == 2 and STAMPS is not None and name in STAMPS:
        k = STAMPS.index(name)
        a("s_memtime s[%d:%d]" % (72 + 2 * k, 73 + 2 * k))

def poison_check(a, regs, Lretry, Lgiveup):
    a("v_max3_u32 %s, %s, %s, %s" % (R(T0), R(regs[0]), R(regs[1]), R(regs[2])))
    a("v_max3_u32 %s, %s, %s, %s" % (R(T1), R(regs[3]), R(regs[4]), R(regs[5])))
    a("v_max3_u32 %s, %s, %s, %s" % (R(T0), R(T0), R(regs[6]), R(regs[7])))
    a("v_max_u32 %s, %s, %s" % (R(T0), R(T0), R(T1)))
    a("v_cmp_eq_u32 vcc, -1, %s" % R(T0))
    a("s_cbranch_vccnz %s" % Lretry)

def retry_stub(a, Lretry, Lloop, Ldone):
    a.label(Lretry)
    a("s_add_u32 %s, %s, 1" % (S(sTMO), S(sTMO)))
    a("s_cmp_gt_u32 %s, %d" % (S(sTMO), TIMEOUT))
    a("s_cbranch_scc0 %s" % Lloop)
    a("s_branch %s" % Ldone)

def kv_reads():
    r = [("ds_read_b128 %s, %s offset:%d" % (RR(KX[f], 4), R(UL), KV_OFF + f * 1024)) for f in range(8)]
    r += ["ds_read_b128 %s, %s offset:%d" % (RR(VX[0], 4), R(MXR), KV_OFF + 8192), "ds_read_b128 %s, %s offset:%d" % (RR(VX[1], 4), R(MXR), KV_OFF + 8192 + 1024)]
    return r

def chain_loop(a, timing=0, opt=None):
    opt = opt or {}
    global STAMPS
    STAMPS = opt.get('stamps')
    stubs = []
    stubB = []
    F = {(4, 0): 72, (4, 1): 80, (5, 0): 88, (5, 1): 96, (6, 0): 112, (6, 1): 120, (7, 0): 16, (7, 1): 104}
    SX = [16, 20]; SM = 24; PX = 28; PM = 32; MXV, ZX = 34, 35; OC = 36; PUB = 40; TA, RZ = 44, 45
    OACC = [104, 108]; OA = [120, 124]
    WOB = {(4, 0): 72, (4, 1): 80, (5, 0): 88, (5, 1): 96, (6, 0): 48, (6, 1): 56, (7, 0): 112, (7, 1): 64}
    PK = 72; RD = 80; RS = 88; POI = 44
    def vpref(i, t): return S_rdfrag(F[(i, t)], wv_lds(i, t))
    a("s_mov_b32 %s, 0x00ff00ff\ns_mov_b32 %s, 0x00ff00ff" % (S(sO8), S(sO8 + 1)))
    a("s_mov_b32 %s, 0" % S(sSTEP))
    a("s_mov_b32 %s, 0" % S(sSLOT))
    a("s_mov_b32 %s, %s" % (S(sMEMRD), S(sMEMRD0)))
    a("s_add_u32 %s, %s, %d" % (S(sMEMST), S(sMEMST0), MEM_SLOT))
    a("s_mov_b32 %s, %s" % (S(sPARTST), S(sPARTST0)))
    a("s_mov_b32 %s, %s" % (S(sPARTLD), S(sPARTLD0)))
    a("ds_read_b128 %s, %s offset:%d" % (RR(TBL, 4), R(UL), TB_OFF))
    a("s_waitcnt lgkmcnt(0)")
    poll(a, T1, TBL + 3, S(sFLKV))
    for t in S_kv_dma(): a(t)
    a("s_add_u32 %s, %s, %d" % (S(sKVSRC), S(sKVSRC), QKV_JOB))
    a("s_add_u32 %s, %s, %d" % (S(sFLKV), S(sFLKV), JOBFLAG_BYTES))
    a("buffer_load_dword %s, %s, %s, %s offen sc1" % (R(FLG), R(TBL + 3), SR(sWS, 4), S(sFLKV)))
    for r_ in range(48, 72, 2): a("v_mov_b64 %s, 0" % RR(r_, 2))
    for i in (4, 5, 6):
        for t in range(2):
            for x in vpref(i, t): a(x)
    if opt.get('dry'):
        import re as _re
        drop = opt.get('drop', [])
        def filt(line):
            if line.startswith('buffer_'): return None
            if line.startswith('v_cmp_eq_u32 vcc, -1'): return 's_mov_b64 vcc, 0'
            for pat in drop:
                if _re.search(pat, line): return None
            return line
        a.filt = filt
    a.label("L_step")
    Lp = a.newlabel('mpoll'); Ld = a.newlabel('mpolld'); Lr = a.newlabel('mretry'); Lb = a.newlabel('mpollb')
    dbl = opt.get('dbl', 0)
    if dbl:
        a("buffer_load_dwordx4 %s, %s, %s, %s offen sc1" % (RR(MA[0], 4), R(UL), SR(sWS, 4), S(sMEMRD)))
        a("buffer_load_dwordx4 %s, %s, %s, %s offen offset:1024 sc1" % (RR(MA[1], 4), R(UL), SR(sWS, 4), S(sMEMRD)))
        a("s_sleep %d" % opt.get('mstag', 2))
        a("buffer_load_dwordx4 %s, %s, %s, %s offen sc1" % (RR(MA[2], 4), R(UL), SR(sWS, 4), S(sMEMRD)))
        a("buffer_load_dwordx4 %s, %s, %s, %s offen offset:1024 sc1" % (RR(MA[3], 4), R(UL), SR(sWS, 4), S(sMEMRD)))
        a("s_waitcnt vmcnt(2)")
        poison_check(a, list(range(MA[0], MA[0] + 8)), Lb, Ld)
        stubB.append(('mem', Lb, Lp, Ld))
        a("s_branch %s" % Ld)
    a.label(Lp)
    a("buffer_load_dwordx4 %s, %s, %s, %s offen sc1" % (RR(MA[0], 4), R(UL), SR(sWS, 4), S(sMEMRD)))
    a("buffer_load_dwordx4 %s, %s, %s, %s offen offset:1024 sc1" % (RR(MA[1], 4), R(UL), SR(sWS, 4), S(sMEMRD)))
    a("s_waitcnt vmcnt(0)")
    poison_check(a, list(range(MA[0], MA[0] + 8)), Lr, Ld)
    stubs.append((Lr, Lp, Ld))
    a.label(Ld)
    tstamp(a, 0, timing); tp(a, 'top', timing)
    trace(a, 2, sL, sSTEP, [(sH, 0), (sW, 0)], T0, T1, sT0)
    a("ds_write_b128 %s, %s offset:%d" % (R(MXR), RR(MA[0], 4), MX_OFF))
    a("ds_write_b128 %s, %s offset:%d" % (R(MXR), RR(MA[1], 4), MX_OFF + 1024))
    weave(a, [S_smf(AQ[0], MA[0], WQ(0, 0)), S_smf(AQ[1], MA[0], WQ(1, 0)), S_smf(AK[0], MA[0], WK(0, 0)),
              S_smf(AK[1], MA[0], WK(1, 0)), S_smf(AQ[0], MA[1], WQ(0, 1)), S_smf(AQ[1], MA[1], WQ(1, 1))],
          [[],
           ["v_mov_b32 %s, 1" % R(T0)],
           [], [], [], []])
    a("s_waitcnt vmcnt(0) lgkmcnt(0)")
    a("s_barrier")
    mr = ["ds_read_b128 %s, %s offset:%d" % (RR(MA[i], 4), R(MXR + (i >> 1)), MX_OFF + (i & 1) * 1024) for i in range(2, 8)]
    a(mr[0]); a(mr[1])
    weave(a, [S_smf(AK[0], MA[1], WK(0, 1)), S_smf(AK[1], MA[1], WK(1, 1)), S_smf(AV[0], MA[0], WV(0, 0)),
              S_smf(AV[1], MA[0], WV(1, 0)), S_smf(AV[0], MA[1], WV(0, 1)), S_smf(AV[1], MA[1], WV(1, 1))],
          [[mr[2]], [mr[3]], [mr[4]], [mr[5]],
           ["buffer_load_dword %s, %s, %s, %s offen sc1" % (R(FLG), R(TBL + 3), SR(sWS, 4), S(sFLKV))],
           ["s_mov_b64 exec, %s" % SR(sW0, 2), "buffer_store_dword %s, %s, %s, %s offen sc1" % (R(T0), R(TBL + 3), SR(sWS, 4), S(sFLKM)), "s_mov_b64 exec, -1",
            "s_mov_b32 %s, %s" % (S(sFLKM), S(sFLKMN)), "s_add_u32 %s, %s, %d" % (S(sFLKMN), S(sFLKMN), JOBFLAG_BYTES)]])
    v70, v71 = vpref(7, 0), vpref(7, 1)
    kr = [("ds_read_b128 %s, %s offset:%d" % (RR(KX[f], 4), R(UL), KV_OFF + f * 1024)) for f in range(8)]
    vr = ["ds_read_b128 %s, %s offset:%d" % (RR(VX[0], 4), R(MXR), KV_OFF + 8192), "ds_read_b128 %s, %s offset:%d" % (RR(VX[1], 4), R(MXR), KV_OFF + 8192 + 1024)]
    a("s_waitcnt lgkmcnt(5)")
    smf(a, AQ[0], MA[2], WQ(0, 2)); smf(a, AQ[1], MA[2], WQ(1, 2))
    a("s_waitcnt lgkmcnt(4)")
    smf(a, AQ[0], MA[3], WQ(0, 3)); smf(a, AQ[1], MA[3], WQ(1, 3))
    a("s_waitcnt lgkmcnt(3)")
    smf(a, AQ[0], MA[4], WQ(0, 4)); smf(a, AQ[1], MA[4], WQ(1, 4))
    smf(a, AV[0], MA[4], F[(4, 0)]); smf(a, AV[1], MA[4], F[(4, 1)])
    a("s_waitcnt lgkmcnt(2)")
    weave(a, [S_smf(AQ[0], MA[5], WQ(0, 5)), S_smf(AQ[1], MA[5], WQ(1, 5)), S_smf(AV[0], MA[5], F[(5, 0)]), S_smf(AV[1], MA[5], F[(5, 1)])],
          [[v70[0]], [v70[1]], [v71[0]], [v71[1], "s_waitcnt lgkmcnt(4)"]])
    weave(a, [S_smf(AQ[0], MA[6], WQ(0, 6)), S_smf(AQ[1], MA[6], WQ(1, 6)), S_smf(AQ[0], MA[7], WQ(0, 7)), S_smf(AQ[1], MA[7], WQ(1, 7))],
          [[kr[0]], [kr[1]], [kr[2]], [kr[3]]])
    tstamp(a, 1, timing)
    qpost = ["v_add_f32 %s, %s, %s" % (R(AQ[0]), R(AQ[0]), R(AQ[0] + 2)),
             "v_add_f32 %s, %s, %s" % (R(AQ[0] + 1), R(AQ[0] + 1), R(AQ[0] + 3)),
             "v_add_f32 %s, %s, %s" % (R(AQ[1]), R(AQ[1]), R(AQ[1] + 2)),
             "v_add_f32 %s, %s, %s" % (R(AQ[1] + 1), R(AQ[1] + 1), R(AQ[1] + 3)),
             "v_cvt_pk_bf16_f32 %s, %s, %s" % (R(AQ[0]), R(AQ[0]), R(AQ[0] + 1)),
             "v_cvt_pk_bf16_f32 %s, %s, %s" % (R(AQ[1]), R(AQ[1]), R(AQ[1] + 1)),
             "ds_write2_b32 %s, %s, %s offset0:0 offset1:%d" % (R(QWQ), R(AQ[0]), R(AQ[1]), 16 * IST // 4)]
    km = []
    for i in range(2, 8): km += [S_smf(AK[0], MA[i], WK(0, i)), S_smf(AK[1], MA[i], WK(1, i))]
    a("s_waitcnt lgkmcnt(4)")
    weave(a, [S_smf(AV[0], MA[6], F[(6, 0)]), S_smf(AV[1], MA[6], F[(6, 1)]), S_smf(AV[0], MA[7], F[(7, 0)]), S_smf(AV[1], MA[7], F[(7, 1)])],
          [[kr[4]], [kr[5]], [kr[6]], [kr[7]]])
    qtr = []
    for ks in range(4):
        qtr += ["ds_read_b64_tr_b16 %s, %s offset:%d" % (RR(QF[ks], 2), R(QR), QI_OFF + ks * 32 * IST),
                "ds_read_b64_tr_b16 %s, %s offset:%d" % (RR(QF[ks] + 2, 2), R(QR), QI_OFF + ks * 32 * IST + 8 * IST)]
    weave(a, km[:8], [[qpost[0]], [qpost[1]], [qpost[2]], [qpost[3]], [qpost[4]], [qpost[5]], [qpost[6]], [vr[0]]])
    a(km[8])
    a("s_waitcnt lgkmcnt(1)")
    a("s_barrier")
    weave(a, km[9:], [qtr[0:3], qtr[3:6], qtr[6:8]])
    tp(a, 'kdone', timing); tstamp(a, 2, timing)
    kpost = ["v_add_f32 %s, %s, %s" % (R(AK[0]), R(AK[0]), R(AK[0] + 2)),
             "v_add_f32 %s, %s, %s" % (R(AK[0] + 1), R(AK[0] + 1), R(AK[0] + 3)),
             "v_add_f32 %s, %s, %s" % (R(AK[1]), R(AK[1]), R(AK[1] + 2)),
             "v_add_f32 %s, %s, %s" % (R(AK[1] + 1), R(AK[1] + 1), R(AK[1] + 3)),
             "v_cvt_pk_bf16_f32 %s, %s, %s" % (R(AK[0]), R(AK[0]), R(AK[0] + 1)),
             "v_cvt_pk_bf16_f32 %s, %s, %s" % (R(AK[1]), R(AK[1]), R(AK[1] + 1)),
             "ds_write2_b32 %s, %s, %s offset0:0 offset1:1" % (R(QWK), R(AK[0]), R(AK[0])),
             "ds_write2_b32 %s, %s, %s offset0:%d offset1:%d" % (R(QWK), R(AK[1]), R(AK[1]), 16 * IST // 4, 16 * IST // 4 + 1)]
    a("s_mul_i32 %s, %s, %d" % (S(sT0), S(sW), 32 * IST))
    weave(a, [S_smf(AV[0], MA[2], WV(0, 2)), S_smf(AV[1], MA[2], WV(1, 2)), S_smf(AV[0], MA[3], WV(0, 3)), S_smf(AV[1], MA[3], WV(1, 3))],
          [[vr[1]], ["v_add_u32 %s, %s, %s" % (R(T2), S(sT0), R(QR))], [], []])
    sx = []
    for ks in range(4):
        sx += [S_mf32(SX[0], KX[ks], QF[ks], None if ks == 0 else SX[0]), S_mf32(SX[1], KX[4 + ks], QF[ks], None if ks == 0 else SX[1])]
    a("s_waitcnt lgkmcnt(0)")
    weave(a, sx[:4], [kpost[0:2], kpost[2:4], kpost[4:6], kpost[6:8]])
    a("s_waitcnt vmcnt(1)")
    a("v_cmp_ne_u32 vcc, 0, %s" % R(FLG))
    dm = S_kv_dma(src=sT3)
    weave(a, sx[4:], [["s_cmp_eq_u64 vcc, -1", "s_cselect_b32 %s, 1, 0" % S(sRDY), "s_cselect_b32 %s, %s, %s" % (S(sT3), S(sKVSRC), S(sKVDUM))],
                      dm[0:3], dm[3:5] + [dm[6]], [dm[7]]])
    tp(a, 'vdone', timing)
    a("s_waitcnt lgkmcnt(0)")
    tp(a, 'b2w', timing)
    a("s_barrier")
    tp(a, 'b2', timing)
    for k2 in range(4):
        a("ds_read_b64_tr_b16 %s, %s offset:%d" % (RR(KMF[k2], 2), R(QR), MX_OFF + k2 * 32 * IST))
        a("ds_read_b64_tr_b16 %s, %s offset:%d" % (RR(KMF[k2] + 2, 2), R(QR), MX_OFF + k2 * 32 * IST + 8 * IST))
    a("ds_read_b64_tr_b16 %s, %s offset:%d" % (RR(PUB, 2), R(T2), MX_OFF))
    a("ds_read_b64_tr_b16 %s, %s offset:%d" % (RR(PUB + 2, 2), R(T2), MX_OFF + 8 * IST))
    def wpref(nt, j): return S_rdfrag(WOB[(nt, j)], wo_lds(nt, j))
    for x in wpref(4, 0) + wpref(4, 1): a(x)
    tp(a, 'dma', timing)
    a("v_cvt_pk_bf16_f32 %s, %s, %s" % (R(64), R(64), R(65)))
    a("v_cvt_pk_bf16_f32 %s, %s, %s" % (R(65), R(66), R(67)))
    a("v_cvt_pk_bf16_f32 %s, %s, %s" % (R(66), R(68), R(69)))
    a("v_cvt_pk_bf16_f32 %s, %s, %s" % (R(67), R(70), R(71)))
    a("s_add_u32 %s, %s, 4096" % (S(sT0), S(sKMJOB)))
    a("buffer_store_dwordx4 %s, %s, %s, %s offen sc1" % (RR(64, 4), R(UL), SR(sWS, 4), S(sT0)))
    for ks in range(4):
        a("s_waitcnt lgkmcnt(%d)" % (4 + 2 + 2 * (3 - ks)))
        mf32(a, SM, KMF[ks], QF[ks], None if ks == 0 else SM)
    tp(a, 'sissued', timing)
    a("v_max3_f32 %s, %s, %s, %s" % (R(TA), R(SX[0] + 1), R(SX[0] + 2), R(SX[0] + 3)))
    a("v_max3_f32 %s, %s, %s, %s" % (R(MXV), R(SX[0]), R(SX[1]), R(SX[1] + 1)))
    a("s_waitcnt lgkmcnt(4)")
    a("buffer_store_dwordx4 %s, %s, %s, %s offen sc1" % (RR(PUB, 4), R(UL), SR(sWS, 4), S(sKMJOB)))
    a("v_max3_f32 %s, %s, %s, %s" % (R(TA), R(TA), R(SX[1] + 2), R(SX[1] + 3)))
    a("s_cmp_eq_u32 %s, 63" % S(sSTEP))
    a("s_cbranch_scc1 L_chain_end")
    tstamp(a, 3, timing); tp(a, 'p3end', timing)
    a("v_max3_f32 %s, %s, %s, %s" % (R(MXV), R(MXV), R(SM), R(SM + 1)))
    a("v_max_f32 %s, %s, %s" % (R(MXV), R(MXV), R(TA)))
    a("v_mov_b32 %s, %s" % (R(TA), R(MXV)))
    for x in wpref(5, 0): a(x)
    a("v_permlane16_swap_b32 %s, %s" % (R(MXV), R(TA)))
    a("v_max_f32 %s, %s, %s" % (R(MXV), R(MXV), R(TA)))
    a("v_mov_b32 %s, %s" % (R(TA), R(MXV)))
    for x in wpref(5, 1): a(x)
    a("v_permlane32_swap_b32 %s, %s" % (R(MXV), R(TA)))
    a("v_max_f32 %s, %s, %s" % (R(MXV), R(MXV), R(TA)))
    a("v_mul_f32 %s, %s, %s" % (R(TA), S(sCEXP), R(MXV)))
    vals = [SM, SM + 1] + [SX[0] + i for i in range(4)] + [SX[1] + i for i in range(4)]
    for v_ in vals: a("v_fma_f32 %s, %s, %s, -%s" % (R(v_), R(v_), S(sCEXP), R(TA)))
    for x in wpref(6, 0): a(x)
    for v_ in vals[:4]: a("v_exp_f32 %s, %s" % (R(v_), R(v_)))
    for x in wpref(6, 1): a(x)
    for v_ in vals[4:]: a("v_exp_f32 %s, %s" % (R(v_), R(v_)))
    a("v_cvt_pk_bf16_f32 %s, %s, %s" % (R(PM), R(SM), R(SM + 1)))
    a("v_cvt_pk_bf16_f32 %s, %s, %s" % (R(PM + 1), R(SM), R(SM + 1)))
    a("v_cvt_pk_bf16_f32 %s, %s, %s" % (R(PX), R(SX[0]), R(SX[0] + 1)))
    a("v_cvt_pk_bf16_f32 %s, %s, %s" % (R(PX + 1), R(SX[0] + 2), R(SX[0] + 3)))
    mf16(a, OACC[0], 64, PM)
    a("v_cvt_pk_bf16_f32 %s, %s, %s" % (R(PX + 2), R(SX[1]), R(SX[1] + 1)))
    a("v_cvt_pk_bf16_f32 %s, %s, %s" % (R(PX + 3), R(SX[1] + 2), R(SX[1] + 3)))
    mf16(a, OACC[1], 66, PM)
    a("v_add_f32 %s, %s, %s" % (R(ZX), R(SM), R(SM + 1)))
    a("v_add_f32 %s, %s, %s" % (R(TA), R(SX[0]), R(SX[0] + 1)))
    mf32(a, OACC[0], VX[0], PX, OACC[0])
    a("v_add_f32 %s, %s, %s" % (R(RZ), R(SX[0] + 2), R(SX[0] + 3)))
    a("v_add_f32 %s, %s, %s" % (R(ZX), R(ZX), R(TA)))
    mf32(a, OACC[1], VX[1], PX, OACC[1])
    a("v_add_f32 %s, %s, %s" % (R(TA), R(SX[1]), R(SX[1] + 1)))
    a("v_add_f32 %s, %s, %s" % (R(ZX), R(ZX), R(RZ)))
    a("v_add_f32 %s, %s, %s" % (R(RZ), R(SX[1] + 2), R(SX[1] + 3)))
    a("v_add_f32 %s, %s, %s" % (R(ZX), R(ZX), R(TA)))
    a("v_add_f32 %s, %s, %s" % (R(ZX), R(ZX), R(RZ)))
    a("v_mov_b32 %s, %s" % (R(TA), R(ZX)))
    for x in wpref(7, 0): a(x)
    a("v_permlane16_swap_b32 %s, %s" % (R(ZX), R(TA)))
    a("v_add_f32 %s, %s, %s" % (R(ZX), R(ZX), R(TA)))
    a("v_mov_b32 %s, %s" % (R(TA), R(ZX)))
    for x in wpref(7, 1): a(x)
    a("v_permlane32_swap_b32 %s, %s" % (R(ZX), R(TA)))
    a("v_add_f32 %s, %s, %s" % (R(ZX), R(ZX), R(TA)))
    a("v_rcp_f32 %s, %s" % (R(RZ), R(ZX)))
    a("v_mov_b64 %s, 0" % RR(16, 2))
    for t in range(2):
        for i in range(4):
            a("v_mul_f32 %s, %s, %s" % (R(OACC[t] + i), R(OACC[t] + i), R(RZ)))
    a("v_cvt_pk_bf16_f32 %s, %s, %s" % (R(OC), R(OACC[0]), R(OACC[0] + 1)))
    a("v_cvt_pk_bf16_f32 %s, %s, %s" % (R(OC + 1), R(OACC[0] + 2), R(OACC[0] + 3)))
    a("v_cvt_pk_bf16_f32 %s, %s, %s" % (R(OC + 2), R(OACC[1]), R(OACC[1] + 1)))
    a("v_cvt_pk_bf16_f32 %s, %s, %s" % (R(OC + 3), R(OACC[1] + 2), R(OACC[1] + 3)))
    a("s_mov_b64 exec, %s" % SR(sO8, 2))
    a("ds_write_b128 %s, %s offset:%d" % (R(OW), RR(OC, 4), OX_OFF))
    a("s_mov_b64 exec, -1")
    tstamp(a, 4, timing)
    for r_ in range(18, 36, 2): a("v_mov_b64 %s, 0" % RR(r_, 2))
    a("s_waitcnt lgkmcnt(0)")
    a("s_barrier")
    a("ds_read_b128 %s, %s offset:%d" % (RR(OA[0], 4), R(OR_), OX_OFF))
    a("ds_read_b128 %s, %s offset:%d" % (RR(OA[1], 4), R(OR_), OX_OFF + 128))
    a("ds_read_b128 %s, %s offset:%d" % (RR(TBL, 4), R(UL), TB_OFF))
    a("ds_read_b128 %s, %s offset:%d" % (RR(SEL, 4), R(UL), SEL_OFF))
    for r_ in range(36, 48, 2): a("v_mov_b64 %s, 0" % RR(r_, 2))
    a("s_waitcnt lgkmcnt(2)")
    def wpost(nt, d):
        x = WA[nt]
        return ["v_add_f32 %s, %s, %s" % (R(x), R(x), R(x + 2)), "v_add_f32 %s, %s, %s" % (R(x + 1), R(x + 1), R(x + 3)),
                "v_cvt_pk_bf16_f32 %s, %s, %s" % (R(d), R(x), R(x + 1))]
    def WB(nt, j): return WO(nt, j) if nt < 4 else WOB[(nt, j)]
    order = [(0, 0), (1, 0), (2, 0), (3, 0), (0, 1), (1, 1), (2, 1), (3, 1), (4, 0), (5, 0), (4, 1), (5, 1), (6, 0), (7, 0), (6, 1), (7, 1)]
    wm = [S_smf(WA[nt], OA[j], WB(nt, j)) for nt, j in order]
    p = [wpost(nt, PK + nt) for nt in range(8)]
    weave(a, wm, [[], [], [], [], [], [], [], [], [], [], [], [p[0][0]], [p[0][1], p[0][2]], [p[1][0], p[1][1]], [p[1][2], p[2][0]], [p[2][1], p[2][2]]])
    for x in p[3]: a(x)
    a("buffer_store_dwordx4 %s, %s, %s, %s offen" % (RR(PK, 4), R(UL), SR(sWS, 4), S(sPARTST)))
    for nt in range(4, 8):
        for x in p[nt]: a(x)
    a("buffer_store_dwordx4 %s, %s, %s, %s offen offset:1024" % (RR(PK + 4, 4), R(UL), SR(sWS, 4), S(sPARTST)))
    tstamp(a, 5, timing)
    for r_ in range(48, 72, 2): a("v_mov_b64 %s, 0" % RR(r_, 2))
    a("s_add_u32 %s, %s, 0x20000" % (S(sT1), S(sPARTLD)))
    dly = opt.get('pdelay', 6)
    if dly: a("s_sleep %d" % dly)
    Lp = a.newlabel('ppoll'); Ld = a.newlabel('ppolld'); Lr = a.newlabel('pretry'); Lb = a.newlabel('ppollb')
    RD2 = 92
    if dbl:
        a("buffer_load_dwordx4 %s, %s, %s, %s offen sc1" % (RR(RD, 4), R(TBL + 1), SR(sWS, 4), S(sPARTLD)))
        a("buffer_load_dwordx4 %s, %s, %s, %s offen sc1" % (RR(RD + 4, 4), R(TBL + 1), SR(sWS, 4), S(sT1)))
        a("s_sleep %d" % opt.get('pstag', 2))
        a("buffer_load_dwordx4 %s, %s, %s, %s offen sc1" % (RR(RD2, 4), R(TBL + 1), SR(sWS, 4), S(sPARTLD)))
        a("buffer_load_dwordx4 %s, %s, %s, %s offen sc1" % (RR(RD2 + 4, 4), R(TBL + 1), SR(sWS, 4), S(sT1)))
        a("s_waitcnt vmcnt(2)")
        poison_check(a, list(range(RD, RD + 8)), Lb, Ld)
        stubB.append(('part', Lb, Lp, Ld))
        a("s_branch %s" % Ld)
    a.label(Lp)
    a("buffer_load_dwordx4 %s, %s, %s, %s offen sc1" % (RR(RD, 4), R(TBL + 1), SR(sWS, 4), S(sPARTLD)))
    a("buffer_load_dwordx4 %s, %s, %s, %s offen sc1" % (RR(RD + 4, 4), R(TBL + 1), SR(sWS, 4), S(sT1)))
    a("s_waitcnt vmcnt(0)")
    poison_check(a, list(range(RD, RD + 8)), Lr, Ld)
    stubs.append((Lr, Lp, Ld))
    a.label(Ld)
    tstamp(a, 6, timing)
    mf32(a, RS, SEL, RD); mf32(a, RS, SEL, RD + 4, RS)
    a("s_add_u32 %s, %s, 1" % (S(sSLOT), S(sSLOT)))
    a("s_cmp_eq_u32 %s, 3" % S(sSLOT))
    a("s_cselect_b32 %s, 0, %s" % (S(sSLOT), S(sSLOT)))
    a("s_lshl_b32 %s, %s, 13" % (S(sT0), S(sSLOT)))
    a("s_add_u32 %s, %s, %s" % (S(sMEMRD), S(sMEMRD0), S(sT0)))
    a("s_lshl_b32 %s, %s, 18" % (S(sT1), S(sSLOT)))
    a("v_mov_b64 %s, -1" % RR(POI, 2))
    a("v_mov_b64 %s, -1" % RR(POI + 2, 2))
    for i in range(4):
        a("v_add_f32_dpp %s, %s, %s row_ror:8 row_mask:0xf bank_mask:0xf" % (R(RS + i), R(RS + i), R(RS + i)))
    for i in range(4):
        a("v_add_f32_dpp %s, %s, %s row_ror:4 row_mask:0xf bank_mask:0xf" % (R(RS + i), R(RS + i), R(RS + i)))
    a("v_cndmask_b32 %s, %s, %s, %s" % (R(RS), R(RS), R(RS + 1), SR(sM2, 2)))
    a("v_cndmask_b32 %s, %s, %s, %s" % (R(RS + 2), R(RS + 2), R(RS + 3), SR(sM2, 2)))
    a("v_cvt_pk_bf16_f32 %s, %s, %s" % (R(RS), R(RS), R(RS + 2)))
    a("s_mov_b64 exec, %s" % SR(sEX, 2))
    a("buffer_store_dword %s, %s, %s, %s offen" % (R(RS), R(TBL + 2), SR(sWS, 4), S(sMEMST)))
    a("s_mov_b64 exec, -1")
    tstamp(a, 7, timing)
    a("s_add_u32 %s, %s, %s" % (S(sPARTST), S(sPARTST0), S(sT1)))
    a("s_add_u32 %s, %s, %s" % (S(sPARTLD), S(sPARTLD0), S(sT1)))
    a("s_add_u32 %s, %s, 1" % (S(sT2), S(sSLOT)))
    a("s_cmp_eq_u32 %s, 3" % S(sT2))
    a("s_cselect_b32 %s, 0, %s" % (S(sT2), S(sT2)))
    a("s_lshl_b32 %s, %s, 13" % (S(sT0), S(sT2)))
    a("s_add_u32 %s, %s, %s" % (S(sMEMST), S(sMEMST0), S(sT0)))
    a("s_lshl_b32 %s, %s, 18" % (S(sT0), S(sT2)))
    a("s_add_u32 %s, %s, %s" % (S(sT0), S(sPARTST0), S(sT0)))
    a("buffer_store_dwordx4 %s, %s, %s, %s offen" % (RR(POI, 4), R(UL), SR(sWS, 4), S(sT0)))
    a("buffer_store_dwordx4 %s, %s, %s, %s offen offset:1024" % (RR(POI, 4), R(UL), SR(sWS, 4), S(sT0)))
    a("s_mov_b64 exec, %s" % SR(sEX, 2))
    a("buffer_store_dword %s, %s, %s, %s offen" % (R(POI), R(TBL + 2), SR(sWS, 4), S(sMEMST)))
    a("s_mov_b64 exec, -1")
    a("s_waitcnt vmcnt(4)")
    for i in (4, 5, 6):
        for t in range(2):
            for x in vpref(i, t): a(x)
    Lok = a.newlabel('kvok')
    a("s_cmp_ge_u32 %s, 62" % S(sSTEP))
    a("s_cbranch_scc1 %s" % Lok)
    a("s_cmp_eq_u32 %s, 1" % S(sRDY))
    a("s_cbranch_scc1 %s" % Lok)
    poll(a, T1, TBL + 3, S(sFLKV))
    for t in S_kv_dma(): a(t)
    a.label(Lok)
    a("s_add_u32 %s, %s, 1" % (S(sSTEP), S(sSTEP)))
    a("s_add_u32 %s, %s, %d" % (S(sKVSRC), S(sKVSRC), QKV_JOB))
    a("s_add_u32 %s, %s, %d" % (S(sKMJOB), S(sKMJOB), KM_JOB))
    a("s_add_u32 %s, %s, %d" % (S(sFLKV), S(sFLKV), JOBFLAG_BYTES))
    if opt.get('mdelay', 2): a("s_sleep %d" % opt.get('mdelay', 2))
    if timing == 2:
        a("s_waitcnt lgkmcnt(0)")
        for k in range(7):
            a("s_sub_u32 %s, s%d, s%d" % (S(sT0), 74 + 2 * k, 72 + 2 * k))
            a("s_add_u32 s%d, s%d, %s" % (88 + k, 88 + k, S(sT0)))
    a("s_branch L_step")
    a.filt = None
    for st in stubs: retry_stub(a, *st)
    for kind, Lb, Lp, Ld in stubB:
        src, dst = ((MA[2], MA[0]) if kind == 'mem' else (92, RD))
        a.label(Lb)
        a("s_waitcnt vmcnt(0)")
        Lf = a.newlabel('bfail')
        poison_check(a, list(range(src, src + 8)), Lf, Ld)
        for k in range(0, 8, 2): a("v_mov_b64 %s, %s" % (RR(dst + k, 2), RR(src + k, 2)))
        a("s_branch %s" % Ld)
        a.label(Lf)
        a("s_add_u32 %s, %s, 1" % (S(sTMO), S(sTMO)))
        a("s_branch %s" % Lp)
    a.label("L_chain_end")
    a("s_waitcnt vmcnt(0)")
    a("s_barrier")
    a("v_mov_b32 %s, 1" % R(T0))
    a("v_mov_b32 %s, 0" % R(T1))
    a("s_mov_b64 exec, %s" % SR(sW0, 2))
    a("buffer_store_dword %s, %s, %s, %s offen sc1" % (R(T0), R(T1), SR(sWS, 4), S(sFLKM)))
    a("s_mov_b64 exec, -1")

def chain_role(a, init_target, timing=0, opt=None):
    signal_init(a, T1, T2)
    a("s_mov_b32 %s, %s" % (S(sL), S(sXCC)))
    Lg = a.newlabel('go')
    a("s_cmp_eq_u32 %s, 0" % S(sL)); a("s_cbranch_scc1 %s" % Lg)
    if GATE: gate_wait(a, T1, T2, GATE)
    a.label(Lg)
    chain_pre(a)
    if timing:
        for k in range(88, 96): a("s_mov_b32 s%d, 0" % k)
        a("s_memtime s[96:97]")
    chain_load_weights(a, mid=chain_setup)
    trace_cu(a, 3, T1, T2, 3)
    a("s_waitcnt vmcnt(0)")
    a("s_barrier")
    a("s_lshl_b32 %s, %s, 2" % (S(sT0), S(sL)))
    a("s_add_u32 %s, %s, %d" % (S(sT0), S(sT0), DBG_W0))
    Lb = a.newlabel('cb')
    a("s_cmp_eq_u32 %s, 0" % S(sW)); a("s_cbranch_scc0 %s" % Lb)
    a("s_mov_b64 exec, 1")
    a("v_mov_b32 %s, 1" % R(T1))
    a("v_mov_b32 %s, %s" % (R(T2), S(sT0)))
    a("buffer_atomic_add %s, %s, %s, 0 offen" % (R(T1), R(T2), SR(sDBG, 4)))
    a("s_mov_b64 exec, -1")
    Lw = a.newlabel('cw'); Lwd = a.newlabel('cwd')
    a.label(Lw)
    a("buffer_load_dword %s, %s, %s, 0 offen sc1" % (R(T1), R(T2), SR(sDBG, 4)))
    a("s_waitcnt vmcnt(0)")
    a("v_readfirstlane_b32 %s, %s" % (S(sT1), R(T1)))
    a("s_cmp_ge_u32 %s, 32" % S(sT1))
    a("s_cbranch_scc1 %s" % Lwd)
    a("s_add_u32 %s, %s, 1" % (S(sTMO), S(sTMO)))
    a("s_cmp_gt_u32 %s, %d" % (S(sTMO), TIMEOUT))
    a("s_cbranch_scc1 %s" % Lwd)
    a("s_sleep 2")
    a("s_branch %s" % Lw)
    a.label(Lwd)
    a.label(Lb)
    wait_init(a, T1, T2, init_target)
    if timing:
        a("s_memtime s[98:99]")
    chain_loop(a, timing, opt)
    if timing:
        a("s_memtime s[100:101]")
        a("s_waitcnt lgkmcnt(0)")
        a("s_sub_u32 s95, s98, s96")
        a("s_sub_u32 s96, s100, s98")
        a("s_mov_b32 s97, %s" % S(sTMO))
        Lx = a.newlabel('tw')
        a("s_cmp_eq_u32 %s, 0" % S(sH)); a("s_cbranch_scc0 %s" % Lx)
        a("s_cmp_eq_u32 %s, 0" % S(sW)); a("s_cbranch_scc0 %s" % Lx)
        a("s_mov_b64 exec, 1")
        a("s_lshl_b32 %s, %s, 6" % (S(sT0), S(sL)))
        a("v_mov_b32 %s, %s" % (R(T1), S(sT0)))
        for k in range(10):
            a("v_mov_b32 %s, s%d" % (R(T0), 88 + k))
            a("s_mov_b32 %s, %d" % (S(sT1), WS_TRACE + 16384))
            a("buffer_store_dword %s, %s, %s, %s offen offset:%d" % (R(T0), R(T1), SR(sWS, 4), S(sT1), 4 * k))
        a("s_mov_b64 exec, -1")
        a.label(Lx)
    a("s_waitcnt vmcnt(0)")
    a("s_branch L_exit")
```

```python
import common
from common import *
import struct
def f32(x): return struct.unpack('<I', struct.pack('<f', x))[0]

GATEB = 8
PF_S1 = False
AHEAD = 0
DEDICATED = False
CYC = []
D_S1 = 14
D_POST = 13
GATES1 = 0
sREP, sAUX, sC0, sC1, sJL, sJS, sN, sD0 = 32, 33, 34, 35, 36, 37, 38, 39
sT0, sT1, sT2, sT3, sT4 = 40, 41, 42, 43, 44
sAUX2, sAUX3 = 45, 46
sFLJ = 47
sIN, sOUT = 48, 49
sK = 50
sLDSW = 51
sX0, sX1, sX2, sX3 = 52, 53, 54, 55

def sched_init(a, nrep, d0, rep_sgpr):
    a("s_mov_b32 %s, %s" % (S(sREP), S(rep_sgpr)))
    a("s_mov_b32 %s, 0" % S(sC0)); a("s_mov_b32 %s, 0" % S(sC1))
    if 64 % nrep == 0:
        a("s_mov_b32 %s, %d" % (S(sN), 64 // nrep))
    else:
        assert nrep == 3
        a("s_cmp_eq_u32 %s, 0" % S(sREP))
        a("s_cselect_b32 %s, 22, 21" % S(sN))
    a("s_mov_b32 %s, %d" % (S(sD0), d0))

def sched_layer(a, s_layer):
    a("s_mov_b32 %s, 0" % S(sREP))
    a("s_mov_b32 %s, 64" % S(sN))
    a("s_cmp_eq_u32 %s, 0" % S(s_layer))
    a("s_cselect_b32 %s, 0, 64" % S(sC0))
    a("s_cselect_b32 %s, 64, 0" % S(sC1))

def sched_next(a, nrep, Ldone):
    L0 = a.newlabel('j0'); L1 = a.newlabel('j1'); Le = a.newlabel('je')
    a("s_cmp_lt_u32 %s, %s" % (S(sC0), S(sN)))
    a("s_cbranch_scc0 %s" % L1)
    a("s_cmp_lt_u32 %s, %s" % (S(sC0), S(sD0)))
    a("s_cbranch_scc1 %s" % L0)
    a("s_sub_u32 %s, %s, %s" % (S(sT0), S(sC0), S(sD0)))
    a("s_cmp_le_u32 %s, %s" % (S(sC1), S(sT0)))
    a("s_cbranch_scc1 %s" % L1)
    a.label(L0)
    a("s_mov_b32 %s, 0" % S(sJL))
    a("s_mul_i32 %s, %s, %d" % (S(sJS), S(sC0), nrep))
    a("s_add_u32 %s, %s, 1" % (S(sC0), S(sC0)))
    a("s_branch %s" % Le)
    a.label(L1)
    a("s_cmp_lt_u32 %s, %s" % (S(sC1), S(sN)))
    a("s_cbranch_scc0 %s" % Ldone)
    a("s_mov_b32 %s, 1" % S(sJL))
    a("s_mul_i32 %s, %s, %d" % (S(sJS), S(sC1), nrep))
    a("s_add_u32 %s, %s, 1" % (S(sC1), S(sC1)))
    a.label(Le)
    a("s_add_u32 %s, %s, %s" % (S(sJS), S(sJS), S(sREP)))
    a("s_lshl_b32 %s, %s, 6" % (S(sT0), S(sJL)))
    a("s_add_u32 %s, %s, %s" % (S(sT0), S(sT0), S(sJS)))
    a("s_mul_i32 %s, %s, %d" % (S(sFLJ), S(sT0), JOBFLAG_BYTES))

def job_off(a, sdst, base, lstride, job, extra_sgpr=None):
    a("s_mul_i32 %s, %s, %d" % (S(sdst), S(sJS), job))
    if lstride:
        a("s_mul_i32 %s, %s, %d" % (S(sT4), S(sJL), lstride))
        a("s_add_u32 %s, %s, %s" % (S(sdst), S(sdst), S(sT4)))
    a("s_add_u32 %s, %s, %d" % (S(sdst), S(sdst), base))
    if extra_sgpr is not None:
        a("s_add_u32 %s, %s, %s" % (S(sdst), S(sdst), S(extra_sgpr)))

def flag_store(a, vt0, vt1, soff):
    a("v_mov_b32 %s, 1" % R(vt0))
    a("v_mov_b32 %s, 0" % R(vt1))
    a("s_mov_b64 exec, 1")
    a("buffer_store_dword %s, %s, %s, %s offen sc1" % (R(vt0), R(vt1), SR(sWS, 4), soff))
    a("s_mov_b64 exec, -1")

def load_frags32(a, frags, vrow, vtr, ringslots=32, pre=None, hook=None):
    n = len(frags)
    def issue(c):
        srd, soff, _ = frags[c]
        soff(a, sK)
        a("s_add_u32 m0, %s, %d" % (S(sLDSW), (c % ringslots) * 1024))
        a("buffer_load_dwordx4 %s, %s, %s offen lds" % (R(vrow), SR(srd, 4), S(sK)))
    a("s_waitcnt vmcnt(0)")
    if pre: pre()
    for c in range(min(ringslots, n)): issue(c)
    G = 4
    for c0 in range(0, n, G):
        cs = list(range(c0, min(c0 + G, n)))
        issued = min(c0 + ringslots, n)
        a("s_waitcnt vmcnt(%d)" % (issued - cs[-1] - 1))
        for c in cs:
            d = frags[c][2]
            off = (c % ringslots) * 1024
            a("ds_read_b64_tr_b16 %s, %s offset:%d" % (RR(d, 2), R(vtr), off))
            a("ds_read_b64_tr_b16 %s, %s offset:%d" % (RR(d + 2, 2), R(vtr), off + 256))
        a("s_waitcnt lgkmcnt(0)")
        for c in cs:
            if c + ringslots < n: issue(c + ringslots)
        if hook: hook(c0)

def setup_tr32(a, lane, vtr, t1, t2):
    a("s_lshl_b32 %s, %s, 15" % (S(sLDSW), S(sW)))
    a("v_lshrrev_b32 %s, 5, %s" % (R(t1), R(lane)))
    a("v_lshlrev_b32 %s, 3, %s" % (R(t1), R(t1)))
    a("v_bfe_u32 %s, %s, 2, 2" % (R(t2), R(lane)))
    a("v_add_u32 %s, %s, %s" % (R(t1), R(t1), R(t2)))
    a("v_lshlrev_b32 %s, 6, %s" % (R(t1), R(t1)))
    a("v_bfe_u32 %s, %s, 4, 1" % (R(t2), R(lane)))
    a("v_lshl_add_u32 %s, %s, 5, %s" % (R(t1), R(t2), R(t1)))
    a("v_and_b32 %s, 3, %s" % (R(t2), R(lane)))
    a("v_lshl_add_u32 %s, %s, 3, %s" % (R(t1), R(t2), R(t1)))
    a("v_add_u32 %s, %s, %s" % (R(vtr), S(sLDSW), R(t1)))

def setup_rowtile(a, lane, AF, VD, t1, t2, t3):
    a("v_and_b32 %s, 31, %s" % (R(t1), R(lane)))
    a("v_lshrrev_b32 %s, 5, %s" % (R(t2), R(lane)))
    a("v_and_b32 %s, 15, %s" % (R(t3), R(lane)))
    for j in range(8):
        a("v_add_u32 %s, %d, %s" % (R(AF + j), 2 * j, R(t2)))
        a("v_xor_b32 %s, %s, %s" % (R(AF + j), R(AF + j), R(t3)))
        a("v_lshlrev_b32 %s, 4, %s" % (R(AF + j), R(AF + j)))
        a("v_lshl_add_u32 %s, %s, 8, %s" % (R(AF + j), R(t1), R(AF + j)))
    for t in range(2):
        a("v_lshrrev_b32 %s, 4, %s" % (R(t1), R(lane)))
        a("v_add_u32 %s, %d, %s" % (R(t1), 4 * t, R(t1)))
        a("s_lshl_b32 %s, %s, 3" % (S(sT0), S(sW)))
        a("v_add_u32 %s, %s, %s" % (R(t2), S(sT0), R(t1)))
        a("v_and_b32 %s, 15, %s" % (R(t2), R(t2)))
        a("v_xor_b32 %s, %s, %s" % (R(t2), R(t2), R(t3)))
        a("v_lshlrev_b32 %s, 4, %s" % (R(t2), R(t2)))
        a("v_lshl_add_u32 %s, %s, 10, %s" % (R(VD + t), R(t1), R(t2)))

def rowtile_dma(a, VD, s_src, buf):
    a("s_lshl_b32 %s, %s, 13" % (S(sT0), S(sW)))
    a("s_add_u32 %s, %s, %s" % (S(sT0), S(sT0), S(s_src)))
    a("s_lshl_b32 %s, %s, 11" % (S(sT1), S(sW)))
    for b in range(4):
        for t in range(2):
            a("s_add_u32 m0, %s, %d" % (S(sT1), buf + b * 8192 + t * 1024))
            a("buffer_load_dwordx4 %s, %s, %s offen sc1 lds" % (R(VD + t), SR(sWS, 4), S(sT0)))
        if b < 3: a("s_add_u32 %s, %s, 256" % (S(sT0), S(sT0)))

def S_mf32x(d, aa, b, c):
    return "v_mfma_f32_32x32x16_bf16 %s, %s, %s, %s" % (RR(d, 16), RR(aa, 4), RR(b, 4), '0' if c is None else RR(c, 16))
def rowtile_items(VD, ssrc, sbuf):
    out = [["s_lshl_b32 s77, %s, 13" % S(sW), "s_add_u32 s77, s77, %s" % S(ssrc), "s_lshl_b32 s76, %s, 11" % S(sW), "s_add_u32 s76, s76, %s" % S(sbuf)]]
    for b in range(4):
        for t in range(2):
            g = ["s_add_u32 m0, s76, %d" % (b * 8192 + t * 1024),
                 "buffer_load_dwordx4 %s, %s, s77 offen sc1 lds" % (R(VD + t), SR(sWS, 4))]
            if t == 1 and b < 3: g += ["s_add_u32 s77, s77, 256"]
            out.append(g)
    return out
def mf32x(a, d, aa, b, c):
    a("v_mfma_f32_32x32x16_bf16 %s, %s, %s, %s" % (RR(d, 16), RR(aa, 4), RR(b, 4), '0' if c is None else RR(c, 16)))


sNL, sNS, sNFL, sNV = 56, 57, 58, 59
sPEND, sBUF, sRDYN, sDUM = 60, 61, 62, 63
sCIN = 64
def next_job(a, nrep, tag):
    Ln = a.newlabel(tag + 'nn'); Le = a.newlabel(tag + 'ne')
    a("s_mov_b32 s65, %s\ns_mov_b32 s66, %s\ns_mov_b32 s67, %s" % (S(sJL), S(sJS), S(sFLJ)))
    sched_next(a, nrep, Ln)
    a("s_mov_b32 %s, %s\ns_mov_b32 %s, %s\ns_mov_b32 %s, %s\ns_mov_b32 %s, 1" % (S(sNL), S(sJL), S(sNS), S(sJS), S(sNFL), S(sFLJ), S(sNV)))
    a("s_branch %s" % Le)
    a.label(Ln)
    a("s_mov_b32 %s, 0" % S(sNV))
    a("s_mov_b32 %s, %s" % (S(sNFL), S(sFLJ)))
    a.label(Le)
    a("s_mov_b32 %s, s65\ns_mov_b32 %s, s66\ns_mov_b32 %s, s67" % (S(sJL), S(sJS), S(sFLJ)))

LDS_DEC = LDS_CNT + 16
sF0, sF1, sDEC = 65, 66, 67
def cand_addrs(a, nrep, in_flag_off):
    for c, f, lay in ((sC0, sF0, 0), (sC1, sF1, 1)):
        a("s_mul_i32 %s, %s, %d" % (S(sT0), S(c), nrep))
        a("s_add_u32 %s, %s, %s" % (S(sT0), S(sT0), S(sREP)))
        a("s_min_u32 %s, %s, 63" % (S(sT0), S(sT0)))
        if lay: a("s_add_u32 %s, %s, 64" % (S(sT0), S(sT0)))
        a("s_mul_i32 %s, %s, %d" % (S(sT0), S(sT0), JOBFLAG_BYTES))
        in_flag_off(a, f, sT0)

def decide(a, V0, V1, target, prio):
    a("v_readfirstlane_b32 %s, %s" % (S(sT0), R(V0)))
    a("v_readfirstlane_b32 %s, %s" % (S(sT1), R(V1)))
    a("s_cmp_ge_u32 %s, %d" % (S(sT0), target)); a("s_cselect_b32 %s, 1, 0" % S(sT0))
    a("s_cmp_lt_u32 %s, %s" % (S(sC0), S(sN))); a("s_cselect_b32 %s, %s, 0" % (S(sT0), S(sT0)))
    a("s_cmp_ge_u32 %s, %d" % (S(sT1), target)); a("s_cselect_b32 %s, 2, 0" % S(sT1))
    a("s_cmp_lt_u32 %s, %s" % (S(sC1), S(sN))); a("s_cselect_b32 %s, %s, 0" % (S(sT1), S(sT1)))
    if prio == 1 and AHEAD:
        a("s_add_u32 %s, %s, %d" % (S(sT2), S(sC1), AHEAD))
        a("s_cmp_lt_u32 %s, %s" % (S(sC0), S(sT2))); a("s_cselect_b32 %s, %s, 0" % (S(sT0), S(sT0)))
    first, second = (sT0, sT1) if prio == 0 else (sT1, sT0)
    a("s_cmp_lg_u32 %s, 0" % S(first))
    a("s_cselect_b32 %s, %s, %s" % (S(sDEC), S(first), S(second)))
    a("s_add_u32 %s, %s, %s" % (S(sT2), S(sC0), S(sC1)))
    a("s_lshl_b32 %s, %s, 1" % (S(sT3), S(sN)))
    a("s_cmp_ge_u32 %s, %s" % (S(sT2), S(sT3)))
    a("s_cselect_b32 %s, 3, %s" % (S(sDEC), S(sDEC)))

def take_job(a, nrep, sl, ss, sfl):
    a("s_sub_u32 %s, %s, 1" % (S(sl), S(sDEC)))
    a("s_cmp_eq_u32 %s, 0" % S(sl))
    a("s_cselect_b32 %s, %s, %s" % (S(sT0), S(sC0), S(sC1)))
    a("s_mul_i32 %s, %s, %d" % (S(ss), S(sT0), nrep))
    a("s_add_u32 %s, %s, %s" % (S(ss), S(ss), S(sREP)))
    a("s_xor_b32 %s, %s, 1" % (S(sT0), S(sl)))
    a("s_add_u32 %s, %s, %s" % (S(sC0), S(sC0), S(sT0)))
    a("s_add_u32 %s, %s, %s" % (S(sC1), S(sC1), S(sl)))
    a("s_lshl_b32 %s, %s, 6" % (S(sT0), S(sl)))
    a("s_add_u32 %s, %s, %s" % (S(sT0), S(sT0), S(ss)))
    a("s_mul_i32 %s, %s, %d" % (S(sfl), S(sT0), JOBFLAG_BYTES))

def bcast_write(a, T1, T2):
    a("v_mov_b32 %s, %d" % (R(T1), LDS_DEC))
    a("v_mov_b32 %s, %s" % (R(T2), S(sDEC)))
    a("ds_write_b32 %s, %s" % (R(T1), R(T2)))
    a("s_waitcnt lgkmcnt(0)")
def bcast_read(a, T1, T2):
    a("v_mov_b32 %s, %d" % (R(T1), LDS_DEC))
    a("ds_read_b32 %s, %s" % (R(T2), R(T1)))
    a("s_waitcnt lgkmcnt(0)")
    a("v_readfirstlane_b32 %s, %s" % (S(sDEC), R(T2)))

def blocking_pick(a, tag, nrep, VZ, V0, V1, T1, T2, in_flag_off, target, prio):
    Lb = a.newlabel(tag + 'bp'); Lp = a.newlabel(tag + 'bpl'); Ld = a.newlabel(tag + 'bpd')
    a("s_cmp_eq_u32 %s, 0" % S(sW)); a("s_cbranch_scc0 %s" % Lb)
    cand_addrs(a, nrep, in_flag_off)
    a.label(Lp)
    a("buffer_load_dword %s, %s, %s, %s offen sc1" % (R(V0), R(VZ), SR(sWS, 4), S(sF0)))
    a("buffer_load_dword %s, %s, %s, %s offen sc1" % (R(V1), R(VZ), SR(sWS, 4), S(sF1)))
    a("s_waitcnt vmcnt(0)")
    decide(a, V0, V1, target, prio)
    a("s_cmp_lg_u32 %s, 0" % S(sDEC)); a("s_cbranch_scc1 %s" % Ld)
    a("s_add_u32 %s, %s, 1" % (S(sTMO), S(sTMO)))
    a("s_cmp_gt_u32 %s, %d" % (S(sTMO), TIMEOUT))
    a("s_cselect_b32 %s, 3, 0" % S(sDEC))
    a("s_cbranch_scc1 %s" % Ld)
    a("s_sleep %d" % common.PSLEEP)
    a("s_branch %s" % Lp)
    a.label(Ld)
    bcast_write(a, T1, T2)
    a.label(Lb)
    a("s_barrier")
    bcast_read(a, T1, T2)

def wave0_signal(a, T1, T2, s_addr):
    L = a.newlabel('w0s')
    a("s_cmp_eq_u32 %s, 0" % S(sW)); a("s_cbranch_scc0 %s" % L)
    a("s_mov_b64 exec, 1")
    a("v_mov_b32 %s, 1" % R(T1))
    a("v_mov_b32 %s, 0" % R(T2))
    a("buffer_atomic_add %s, %s, %s, %s offen" % (R(T1), R(T2), SR(sWS, 4), s_addr))
    a("s_mov_b64 exec, -1")
    a.label(L)

def run_stream(a, L, steps, fill):
    names = {}
    slot = 0
    for need, mfs, pre in steps:
        if need is not None: L.wait(need())
        for k, m in enumerate(mfs):
            a(m)
            if k == 0 and pre is not None: pre()
            for it in fill.get(slot, []):
                if isinstance(it, str): a(it)
                elif it[0] == 'ds': names[it[2]] = L.ds(it[1])
                elif it[0] == 'wait': L.wait(names[it[1]])
            slot += 1
    return slot

sMODE = 83
sEOUT, sCOUT, sPEND2 = 78, 80, 81
def emit_items(a, L, items, names=None):
    names = {} if names is None else names
    for it in items:
        if isinstance(it, str): a(it)
        elif it[0] == 'ds': names[it[2]] = L.ds(it[1])
        elif it[0] == 'wait': L.wait(names[it[1]])

def gemm_loop(a, tag, nrep, VZ, VFV, T1, T2, in_flag_off, in_target, src_addr, dma_items, toggle, mk_steps, n_slots,
              out_addr, shadow, epi_items, epi_slots, out_flag, bufstride, nst=0, trc=None, prio=0, sig_at=None, defer_layer=1, defer_epi=True, dec_at=None):
    if not defer_epi: assert sig_at is not None
    Lj = a.newlabel(tag + 'job'); Lw = a.newlabel(tag + 'w'); Lw2 = a.newlabel(tag + 'w2')
    Lnx = a.newlabel(tag + 'nx'); Lfin = a.newlabel(tag + 'fin')
    V0, V1 = VFV, VFV + 1
    sSRC, sCSRC, sOB, sEXM = 64, 71, 68, 72
    sW0M = 74
    def lines(fn, *args):
        out = []
        class C:
            def __call__(self, t):
                for x in t.strip().split('\n'): out.append(x.strip())
        fn(C(), *args)
        return out
    def sig(saddr):
        return ["s_cmp_lg_u32 %s, 0" % S(saddr), "s_cselect_b32 %s, %s, 0" % (S(sEXM), S(sW0M)), "v_mov_b32 %s, 1" % R(T2),
                "s_mov_b64 exec, %s" % SR(sEXM, 2),
                "buffer_atomic_add %s, %s, %s, %s offen" % (R(T2), R(VZ), SR(sWS, 4), S(saddr)),
                "s_mov_b64 exec, -1", "s_mov_b32 %s, 0" % S(saddr)]
    def samples(a):
        cand_addrs(a, nrep, in_flag_off)
        a("buffer_load_dword %s, %s, %s, %s offen sc1" % (R(V0), R(VZ), SR(sWS, 4), S(sF0)))
        a("buffer_load_dword %s, %s, %s, %s offen sc1" % (R(V1), R(VZ), SR(sWS, 4), S(sF1)))
    a("s_mov_b32 %s, 0" % S(sPEND)); a("s_mov_b32 %s, 0" % S(sPEND2))
    a("s_mov_b32 %s, %d" % (S(sEOUT), WS_SCRATCH))
    a("s_mov_b64 s[86:87], 0")
    a("s_mov_b32 %s, 0" % S(sBUF))
    a("s_cmp_eq_u32 %s, 0" % S(sW)); a("s_cselect_b32 %s, 1, 0" % S(sW0M))
    a("s_mov_b32 %s, 0" % S(sEXM + 1))
    blocking_pick(a, tag, nrep, VZ, V0, V1, T1, T2, in_flag_off, in_target, prio)
    a("s_cmp_eq_u32 %s, 3" % S(sDEC)); a("s_cbranch_scc1 %s" % Lfin)
    take_job(a, nrep, sJL, sJS, sFLJ)
    src_addr(a, sCSRC, sJL, sJS)
    for g in dma_items(sCSRC, sBUF):
        for x in g: a(x)
    samples(a)
    a("s_mov_b32 %s, 0" % S(sMODE))
    a.label(Lj)
    a("s_cmp_eq_u32 %s, 2" % S(sMODE))
    a("s_cbranch_scc1 %s" % Lw2)
    a("s_cmp_eq_u32 %s, 0" % S(sMODE))
    a("s_cbranch_scc1 %s" % Lw)
    if dec_at is not None: a("s_waitcnt vmcnt(%d)" % (0 if defer_epi else nst))
    else: a("s_waitcnt vmcnt(%d)" % ((2 if sig_at is None else TOPW[tag]) + (0 if defer_epi else nst)))
    a("s_branch %s" % Lw2)
    a.label(Lw)
    a("s_waitcnt vmcnt(0)")
    a.label(Lw2)
    a("s_barrier")
    if sig_at is None:
        for x in sig(sPEND2): a(x)
    if trc: trace(a, trc[0], sJL, sJS, trc[2], T1, T2, sT0)
    if trc and tag in CYC: trace(a, 12, sJL, sJS, trc[2], T1, T2, sT0, cyc=True)
    L = LdsT(a)
    steps = mk_steps(L)
    def scc_groups(ls, maxlen=4):
        out, cur = [], []
        k = 0
        while k < len(ls):
            unit = [ls[k]]
            if ls[k].startswith('s_cmp'):
                k += 1
                while k < len(ls) and ls[k].startswith(('s_cselect', 's_cbranch')):
                    unit.append(ls[k]); k += 1
            else: k += 1
            if cur and len(cur) + len(unit) > maxlen:
                out.append(cur); cur = []
            cur += unit
        if cur: out.append(cur)
        return out
    def masked(g, m):
        out = []
        vm = [k for k, it in enumerate(g) if isinstance(it, str) and it.startswith('buffer_')]
        if not vm: return list(g)
        for k, it in enumerate(g):
            if k == vm[0]: out.append("s_mov_b64 exec, %s" % SR(m, 2))
            out.append(it)
            if k == vm[-1]: out.append("s_mov_b64 exec, -1")
        return out
    Lhs = a.newlabel(tag + 'hs')
    dec = lines(decide, V0, V1, in_target, prio)
    tj = ["s_sub_u32 %s, %s, 1" % (S(sT0), S(sDEC)),
          "s_cmp_lt_u32 %s, 2" % S(sT0),
          "s_cselect_b32 %s, 1, 0" % S(sRDYN),
          "s_cselect_b32 %s, %s, 0" % (S(sNL), S(sT0)),
          "s_cmp_eq_u32 %s, 0" % S(sNL),
          "s_cselect_b32 %s, %s, %s" % (S(sT0), S(sC0), S(sC1)),
          "s_mul_i32 %s, %s, %d" % (S(sNS), S(sT0), nrep),
          "s_add_u32 %s, %s, %s" % (S(sNS), S(sNS), S(sREP)),
          "s_min_u32 %s, %s, 63" % (S(sNS), S(sNS)),
          "s_xor_b32 %s, %s, 1" % (S(sT0), S(sNL)),
          "s_and_b32 %s, %s, %s" % (S(sT0), S(sT0), S(sRDYN)),
          "s_add_u32 %s, %s, %s" % (S(sC0), S(sC0), S(sT0)),
          "s_and_b32 %s, %s, %s" % (S(sT0), S(sNL), S(sRDYN)),
          "s_add_u32 %s, %s, %s" % (S(sC1), S(sC1), S(sT0)),
          "s_lshl_b32 %s, %s, 6" % (S(sT0), S(sNL)),
          "s_add_u32 %s, %s, %s" % (S(sT0), S(sT0), S(sNS)),
          "s_mul_i32 %s, %s, %d" % (S(sNFL), S(sT0), JOBFLAG_BYTES),
          "s_xor_b32 %s, %s, %d" % (S(sOB), S(sBUF), bufstride)]
    sa = lines(src_addr, sSRC, sNL, sNS) + ["s_cmp_eq_u32 %s, 1" % S(sRDYN), "s_cselect_b32 %s, %s, %s" % (S(sSRC), S(sSRC), S(sCSRC)),
                                            "s_cselect_b64 %s, -1, 0" % SR(84, 2), "s_mov_b32 %s, %s" % (S(75), S(sSRC))]
    di = dma_items(sSRC, sOB)
    ndma = sum(1 for g in di for it in g if isinstance(it, str) and it.startswith('buffer_'))
    A = [(["s_cmp_eq_u32 %s, 2" % S(sMODE), "s_cbranch_scc1 %s" % Lhs, "s_waitcnt vmcnt(%d)" % ((1 if sig_at is None else 0) + (0 if defer_epi else nst)), Lhs + ":", dec[0], dec[1]], 1)]
    A += [(g, 0) for g in scc_groups(dec[2:])]
    A += [(["s_lshl_b32 %s, %s, 2" % (S(sT0), S(sW)), "s_add_u32 %s, %s, %d" % (S(sT0), S(sT0), LDS_DEC),
            "v_mov_b32 %s, %s" % (R(T1), S(sT0)), "v_mov_b32 %s, %s" % (R(T2), S(sDEC))], 0),
          ([('ds', "ds_write_b32 %s, %s" % (R(T1), R(T2)), 'dw')], 0),
          ([('wait', 'dw'), "s_barrier", "v_mov_b32 %s, %d" % (R(T1), LDS_DEC)], 2),
          ([('ds', "ds_read_b32 %s, %s" % (R(V0), R(T1)), 'dr')], 0),
          ([('wait', 'dr'), "v_readfirstlane_b32 %s, %s" % (S(sDEC), R(V0))], 2)]
    A += [(g, (1 if k == 0 else 0)) for k, g in enumerate(scc_groups(tj))]
    A += [(g, 0) for g in scc_groups(sa)]
    A += [(masked(g, 84), 0) for g in di]
    E = [(masked(g, 86), 0) for g in epi_items(sEOUT)] if defer_epi else []
    Zl = scc_groups(lines(out_addr, sCOUT))
    Zs = [(g, 0) for g in scc_groups(lines(cand_addrs, nrep, in_flag_off))]
    Zs += [(["buffer_load_dword %s, %s, %s, %s offen sc1" % (R(V0), R(VZ), SR(sWS, 4), S(sF0)),
             "buffer_load_dword %s, %s, %s, %s offen sc1" % (R(V1), R(VZ), SR(sWS, 4), S(sF1))], 0)]
    fill = {}
    load = [0] * n_slots
    def place(thread, first, quota):
        sl = first
        pos = []
        for g, gap in thread:
            sl = sl + gap
            while sl < n_slots and load[sl] + len(g) > quota and load[sl] > 0: sl += 1
            assert sl < n_slots, (tag, 'thread overflow')
            fill.setdefault(sl, []).extend(g); load[sl] += len(g); pos.append(sl)
        return pos
    z0 = n_slots - 1 - len(Zl)
    for k, g in enumerate(Zl):
        fill.setdefault(z0 + k, []).extend(g); load[z0 + k] += len(g)
    if dec_at is not None:
        pe = place(E, 1, QUOTA)
        pz = place(Zs, max(pe[-1] + 1 if pe else 0, dec_at - 26), QUOTA)
        assert pz[-1] < dec_at - 10, (tag, pz, dec_at)
        A2 = [(["s_waitcnt vmcnt(0)", dec[0], dec[1]], 0)] + A[1:]
        kb = next(k for k, (g, gap) in enumerate(A2) if "s_barrier" in g)
        A2 = A2[:kb + 1] + [(sig(sPEND)[:3], 0), (sig(sPEND)[3:], 0)] + A2[kb + 1:]
        pa = place(A2, dec_at, QUOTA)
        assert pa[-1] < z0, (tag, pa[-1], z0)
    elif sig_at is not None:
        pa0 = place(A[:1], 0, QUOTA + 4)
        pe = place(E, pa0[0] + 1, QUOTA)
        pa = pa0 + place(A[1:], pa0[0] + 1, QUOTA)
        first_dma = pa[len(A) - len(di)]
        if pe: assert pe[-1] < first_dma, (tag, pe[-1], first_dma)
        ps = max(pa[-1] + 1, sig_at)
        ps_g = [(["s_waitcnt vmcnt(%d)" % ndma, "s_barrier"] + sig(sPEND)[:3], 0), (sig(sPEND)[3:], 0)]
        pp = place(ps_g, ps, QUOTA + 2)
        assert pp[-1] < z0, (tag, pp, z0)
        pz = place(Zs, max(pp[-1] + 1, n_slots - SAMP_BACK), QUOTA)
        assert pz[-1] < n_slots
    else:
        pa = place(A, 0, QUOTA)
        pe = place(E, 0, QUOTA)
        assert pe[-1] < z0 and pa[-1] < z0, (tag, pe[-1], pa[-1], z0)
    n = run_stream(a, L, steps, fill)
    assert n == n_slots, (n, n_slots)
    shadow(a)
    if trc: trace(a, trc[1], sJL, sJS, trc[2], T1, T2, sT0)
    if trc and tag in CYC: trace(a, 13, sJL, sJS, trc[2], T1, T2, sT0, cyc=True)
    if sig_at is None: a("s_mov_b32 %s, %s" % (S(sPEND2), S(sPEND)))
    out_flag(a, sT3)
    a("s_mov_b32 %s, %s" % (S(sPEND), S(sT3)))
    a("s_mov_b32 %s, %s" % (S(sEOUT), S(sCOUT)))
    a("s_mov_b64 s[86:87], -1")
    if defer_epi:
        a("s_cmp_eq_u32 %s, %d" % (S(sJL), defer_layer))
        a("s_cselect_b32 %s, %s, 0" % (S(sT0), S(sRDYN)))
        a("s_mov_b32 %s, 1" % S(sMODE))
        a("s_cmp_eq_u32 %s, 0" % S(sT0))
        a("s_cbranch_scc0 %s" % Lnx)
    else:
        L3 = LdsT(a); nm3 = {}
        for g in epi_items(sEOUT): emit_items(a, L3, g, nm3)
        a("s_mov_b32 %s, 1" % S(sMODE))
        a("s_cmp_eq_u32 %s, 0" % S(sRDYN))
        a("s_cbranch_scc0 %s" % Lnx)
    if defer_epi:
        L2 = LdsT(a); nm = {}
        for g in epi_items(sEOUT): emit_items(a, L2, g, nm)
    a("s_waitcnt vmcnt(0)")
    a("s_barrier")
    if sig_at is None:
        for x in sig(sPEND2): a(x)
    for x in sig(sPEND): a(x)
    a("s_mov_b32 %s, %d" % (S(sEOUT), WS_SCRATCH))
    a("s_mov_b64 s[86:87], 0")
    a("s_mov_b32 %s, 2" % S(sMODE))
    a("s_cmp_eq_u32 %s, 0" % S(sRDYN))
    a("s_cbranch_scc0 %s" % Lnx)
    a("s_mov_b32 %s, 0" % S(sMODE))
    blocking_pick(a, tag, nrep, VZ, V0, V1, T1, T2, in_flag_off, in_target, prio)
    a("s_cmp_eq_u32 %s, 3" % S(sDEC)); a("s_cbranch_scc1 %s" % Lfin)
    take_job(a, nrep, sNL, sNS, sNFL)
    a("s_xor_b32 %s, %s, %d" % (S(sOB), S(sBUF), bufstride))
    src_addr(a, 75, sNL, sNS)
    a("s_mov_b32 %s, %s" % (S(sSRC), S(75)))
    for g in dma_items(sSRC, sOB):
        for x in g: a(x)
    samples(a)
    a.label(Lnx)
    a("s_mov_b32 %s, %s\ns_mov_b32 %s, %s\ns_mov_b32 %s, %s" % (S(sJL), S(sNL), S(sJS), S(sNS), S(sFLJ), S(sNFL)))
    a("s_mov_b32 %s, %s" % (S(sBUF), S(sOB)))
    a("s_mov_b32 %s, %s" % (S(sCSRC), S(75)))
    toggle(a)
    a("s_branch %s" % Lj)
    a.label(Lfin)
    a("s_waitcnt vmcnt(0)")
    a("s_branch L_exit")
QUOTA = 4
DEC_S1 = 52
DEC_S35 = None
DEC_S4 = None
SAMP_BACK = 26
TOPW = {'s1': 3, 's3': 3, 's5': 3, 's4': 3}

def job_off2(a, sdst, base, lstride, job, sl, ss):
    a("s_mul_i32 %s, %s, %d" % (S(sdst), S(ss), job))
    if lstride:
        a("s_mul_i32 %s, %s, %d" % (S(sT4), S(sl), lstride))
        a("s_add_u32 %s, %s, %s" % (S(sdst), S(sdst), S(sT4)))
    a("s_add_u32 %s, %s, %d" % (S(sdst), S(sdst), base))

def rowtile_dma2(a, VD, s_src, sbuf):
    a("s_lshl_b32 %s, %s, 13" % (S(sT0), S(sW)))
    a("s_add_u32 %s, %s, %s" % (S(sT0), S(sT0), S(s_src)))
    a("s_lshl_b32 %s, %s, 11" % (S(sT1), S(sW)))
    a("s_add_u32 %s, %s, %s" % (S(sT1), S(sT1), S(sbuf)))
    for b in range(4):
        for t in range(2):
            a("s_add_u32 m0, %s, %d" % (S(sT1), b * 8192 + t * 1024))
            a("buffer_load_dwordx4 %s, %s, %s offen sc1 lds" % (R(VD + t), SR(sWS, 4), S(sT0)))
        if b < 3: a("s_add_u32 %s, %s, 256" % (S(sT0), S(sT0)))

def s1_role(a, init_target):
    a.comment("==== S1 role ====")
    lane, T1, T2, T3 = 0, 13, 14, 15
    AF, VD, VST, VSV, VFL, VFV = 2, 10, 12, 1, 104, 105
    ACC = {'q': 16, 'k': 32, 'v': 48}
    XF = [64 + 4 * i for i in range(4)]
    PKD = 80
    def W(x, ks): return {'q': 256, 'k': 384, 'v': 128}[x] + 4 * ks
    a("s_sub_u32 %s, %s, 2" % (S(sT0), S(sXCC)))
    sched_init(a, 2, D_S1, sT0)
    a("s_mov_b32 %s, %s" % (S(sAUX), S(sTICK)))
    load_srd(a, sA, 'Wq'); load_srd(a, sB, 'Wk'); load_srd(a, sC, 'Wv')
    trace_cu(a, 0, T1, T2, 3)
    a("s_waitcnt lgkmcnt(0)")
    finish_srd(a, sA, 'Wq'); finish_srd(a, sB, 'Wk'); finish_srd(a, sC, 'Wv')
    if GATES1: gate_wait(a, T1, T2, GATES1)
    VROW, VTR = 20, 21
    setup_tr32(a, lane, VTR, T1, T2)
    a("v_lshrrev_b32 %s, 2, %s" % (R(T1), R(lane)))
    a("v_and_b32 %s, 3, %s" % (R(T2), R(lane)))
    a("v_lshlrev_b32 %s, 4, %s" % (R(T2), R(T2)))
    a("v_lshl_add_u32 %s, %s, 13, %s" % (R(VROW), R(T1), R(T2)))
    a("s_lshl_b32 %s, %s, 8" % (S(sX0), S(sAUX)))
    a("s_lshl_b32 %s, %s, 6" % (S(sT0), S(sW)))
    a("s_add_u32 %s, %s, %s" % (S(sX0), S(sX0), S(sT0)))
    frags = []
    for x, srd in (('k', sB), ('v', sC), ('q', sA)):
        for ks in range(32):
            frags.append((srd, (lambda a_, d, ks=ks: a_("s_add_u32 %s, %s, %d" % (S(d), S(sX0), ks * 16 * 8192))), W(x, ks)))
    if PF_S1:
        a("v_lshlrev_b32 v23, 6, %s" % R(lane))
        a("s_lshl_b32 s75, %s, 2" % S(sAUX)); a("s_add_u32 s75, s75, %s" % S(sW)); a("s_lshl_b32 s75, s75, 15")
        def pf(srd, k0, k1):
            for k in range(k0, k1):
                a("s_add_u32 s76, s75, %d" % (k * 4096))
                a("buffer_load_dword v24, v23, %s, s76 offen" % SR(srd, 4))
        sched = {}
        for k in range(8): sched[4 * k] = (sC, k)
        for k in range(8): sched[32 + 4 * k] = (sA, k)
        load_frags32(a, frags, VROW, VTR, pre=lambda: pf(sB, 0, 8), hook=lambda c: pf(sched[c][0], sched[c][1], sched[c][1] + 1) if c in sched else None)
    else:
        load_frags32(a, frags, VROW, VTR)
    setup_rowtile(a, lane, AF, VD, T1, T2, T3)
    a("v_bfe_u32 %s, %s, 4, 1" % (R(T1), R(lane)))
    a("v_lshrrev_b32 %s, 5, %s" % (R(T2), R(lane)))
    a("v_and_b32 %s, 15, %s" % (R(T3), R(lane)))
    a("v_lshlrev_b32 %s, 4, %s" % (R(T3), R(T3)))
    a("v_lshl_add_u32 %s, %s, 8, %s" % (R(T3), R(T2), R(T3)))
    a("v_lshl_add_u32 %s, %s, 12, %s" % (R(VST), R(T1), R(T3)))
    a("v_lshl_add_u32 %s, %s, 10, %s" % (R(VSV), R(T1), R(T3)))
    a("v_mov_b32 %s, 0" % R(VFL))
    wait_init(a, T1, T2, init_target)
    a("s_barrier")
    def in_flag(a, sd, sf): a("s_add_u32 %s, %s, %d" % (S(sd), S(sf), WS_FLAGS + FL_H))
    def src_addr(a, sd, sl, ss): job_off2(a, sd, WS_HN, HN_L, HN_JOB, sl, ss)
    def dma_items(ssrc, sbuf): return rowtile_items(VD, ssrc, sbuf)
    def toggle(a):
        for j in range(8): a("v_xor_b32 %s, 0x8000, %s" % (R(AF + j), R(AF + j)))
    def rd(ks): return "ds_read_b128 %s, %s offset:%d" % (RR(XF[ks % 4], 4), R(AF + (ks & 7)), (ks >> 3) * 8192)
    def mk_steps(L):
        ids = {}
        for ks in range(3): ids[ks] = L.ds(rd(ks))
        steps = []
        for ks in range(32):
            x = XF[ks % 4]
            mfs = [S_mf32x(ACC['k'], W('k', ks), x, None if ks == 0 else ACC['k']),
                   S_mf32x(ACC['v'], x, W('v', ks), None if ks == 0 else ACC['v']),
                   S_mf32x(ACC['q'], W('q', ks), x, None if ks == 0 else ACC['q'])]
            def pre(ks=ks):
                if ks + 3 < 32: ids[ks + 3] = L.ds(rd(ks + 3))
            steps.append(((lambda ks=ks: ids[ks]), mfs, pre))
        return steps
    def out_addr(a, sd):
        job_off(a, sd, WS_QKV, QKV_L, QKV_JOB)
        a("s_mul_i32 %s, %s, %d" % (S(sT4), S(sAUX), 24 * KB))
        a("s_add_u32 %s, %s, %s" % (S(sd), S(sd), S(sT4)))
    def shadow(a):
        for xi, x in ((0, 'k'), (1, 'q')):
            base = PKD + 8 * xi
            for r_ in range(8):
                a("v_cvt_pk_bf16_f32 %s, %s, %s" % (R(base + r_), R(ACC[x] + 2 * r_), R(ACC[x] + 2 * r_ + 1)))
        base = PKD + 16
        for p in range(2):
            for q, b in enumerate((p, p + 2)):
                for hh in range(2):
                    a("v_cvt_pk_bf16_f32 %s, %s, %s" % (R(base + 4 * p + 2 * q + hh), R(ACC['v'] + 4 * b + 2 * hh), R(ACC['v'] + 4 * b + 2 * hh + 1)))
    def epi_items(so):
        st = lambda r_, v, off: "buffer_store_dwordx4 %s, %s, %s, s79 offen offset:%d sc1" % (RR(r_, 4), R(v), SR(sWS, 4), off)
        return [["s_lshl_b32 s82, %s, 10" % S(sW), "s_add_u32 s79, %s, s82" % S(so), "s_add_u32 s79, s79, 8192", st(PKD, VST, 0)],
                [st(PKD + 4, VST, 512)],
                ["s_add_u32 s79, s79, s82", "s_add_u32 s79, s79, 8192", st(PKD + 16, VSV, 0)],
                [st(PKD + 20, VSV, 512)],
                ["s_add_u32 s79, %s, s82" % S(so), st(PKD + 8, VST, 0)],
                [st(PKD + 12, VST, 512)]]
    def oflag(a, sd):
        a("s_lshl_b32 %s, %s, 7" % (S(sd), S(sAUX)))
        a("s_add_u32 %s, %s, %s" % (S(sd), S(sd), S(sFLJ)))
        a("s_add_u32 %s, %s, %d" % (S(sd), S(sd), WS_FLAGS + FL_KV))
    gemm_loop(a, 's1', 2, VFL, VFV, T1, T2, in_flag, 8, src_addr, dma_items, toggle, mk_steps, 96, out_addr, shadow, epi_items, (2, 2), oflag, 0x8000, trc=(0, 1, [(sAUX, 0), (sW, 0)]), prio=1, sig_at=36, defer_layer=0, dec_at=DEC_S1)

def s35_role(a, which, init_target):
    a.comment("==== S%d role ====" % which)
    tag = 's%d' % which
    NK = 64 if which == 3 else 56
    lane, T1, T2, T3 = 0, 13, 14, 15
    VL16, VTW, VTR_, VST, VFL, VFV, VRD = 1, 2, 3, 4, 5, 8, 7
    ACC = 16
    XF = [32 + 4 * i for i in range(8)]
    TRN = 64
    def W(ks): return 256 + 4 * ks
    if DEDICATED: sched_layer(a, sX0)
    else: sched_init(a, 2, 0, sX0)
    a("s_mov_b32 %s, %s" % (S(sAUX), S(sX1)))
    a("s_mov_b32 %s, %s" % (S(sAUX2), S(sX2)))
    wname = 'Wo' if which == 3 else 'Wd'
    load_srd(a, sA, wname)
    signal_init(a, T1, T2)
    a("s_waitcnt lgkmcnt(0)")
    finish_srd(a, sA, wname)
    if GATEB: gate_wait(a, T1, T2, GATEB)
    VROW, VTR = 20, 21
    setup_tr32(a, lane, VTR, T1, T2)
    a("v_bfe_u32 %s, %s, 4, 1" % (R(T1), R(lane)))
    a("v_lshlrev_b32 %s, %d, %s" % (R(T1), 4 if which == 3 else 3, R(T1)))
    a("v_bfe_u32 %s, %s, 5, 1" % (R(T2), R(lane)))
    a("v_lshl_add_u32 %s, %s, 2, %s" % (R(T1), R(T2), R(T1)))
    a("v_bfe_u32 %s, %s, 2, 2" % (R(T2), R(lane)))
    a("v_add_u32 %s, %s, %s" % (R(T1), R(T1), R(T2)))
    a("v_and_b32 %s, 3, %s" % (R(T2), R(lane)))
    a("v_lshlrev_b32 %s, 4, %s" % (R(T2), R(T2)))
    a("v_lshl_add_u32 %s, %s, 10, %s" % (R(VROW), R(T1), R(T2)))
    a("s_mul_i32 %s, %s, %d" % (S(sX0), S(sAUX), (1024 if which == 3 else 896) * 1024))
    a("s_lshl_b32 %s, %s, 8" % (S(sT0), S(sAUX2)))
    a("s_add_u32 %s, %s, %s" % (S(sX0), S(sX0), S(sT0)))
    a("s_lshl_b32 %s, %s, 6" % (S(sT0), S(sW)))
    a("s_add_u32 %s, %s, %s" % (S(sX0), S(sX0), S(sT0)))
    frags = []
    for ks in range(NK):
        m = ks & 7
        row = (ks >> 3) * 128 + (32 * (m >> 1) + (8 if which == 3 else 16) * (m & 1))
        frags.append((sA, (lambda a_, d, row=row: a_("s_add_u32 %s, %s, %d" % (S(d), S(sX0), row * 1024))), W(ks)))
    load_frags32(a, frags, VROW, VTR)
    a("v_lshlrev_b32 %s, 4, %s" % (R(VL16), R(lane)))
    a("v_mov_b32 %s, %s" % (R(VRD), R(VL16)))
    TB = 131072
    a("v_and_b32 %s, 31, %s" % (R(T1), R(lane)))
    a("v_lshrrev_b32 %s, 5, %s" % (R(T2), R(lane)))
    a("v_and_b32 %s, 7, %s" % (R(T3), R(lane)))
    a("v_xor_b32 %s, %s, %s" % (R(T2), R(T2), R(T3)))
    a("v_lshlrev_b32 %s, 4, %s" % (R(T2), R(T2)))
    a("v_lshl_add_u32 %s, %s, 7, %s" % (R(VTW), R(T1), R(T2)))
    a("s_lshl_b32 %s, %s, 12" % (S(sT0), S(sW)))
    a("s_add_u32 %s, %s, %d" % (S(sT0), S(sT0), TB))
    a("v_add_u32 %s, %s, %s" % (R(VTW), S(sT0), R(VTW)))
    a("v_lshrrev_b32 %s, 3, %s" % (R(T1), R(lane)))
    a("v_and_b32 %s, 7, %s" % (R(T2), R(lane)))
    a("v_xor_b32 %s, %s, %s" % (R(T3), R(T2), R(T1)))
    a("v_lshlrev_b32 %s, 4, %s" % (R(T3), R(T3)))
    a("v_lshl_add_u32 %s, %s, 7, %s" % (R(VTR_), R(T1), R(T3)))
    a("v_add_u32 %s, %s, %s" % (R(VTR_), S(sT0), R(VTR_)))
    a("v_lshlrev_b32 %s, 4, %s" % (R(T2), R(T2)))
    a("v_lshl_add_u32 %s, %s, 11, %s" % (R(VST), R(T1), R(T2)))
    a("v_mov_b32 %s, 0" % R(VFL))
    if which == 3:
        a("s_lshl_b32 %s, %s, 7" % (S(sX1), S(sAUX)))
        a("s_add_u32 %s, %s, %d" % (S(sX1), S(sX1), WS_FLAGS + FL_O))
        a("s_lshl_b32 %s, %s, 16" % (S(sX2), S(sAUX)))
    else:
        a("s_lshl_b32 %s, %s, 7" % (S(sX1), S(sAUX)))
        a("s_add_u32 %s, %s, %d" % (S(sX1), S(sX1), WS_FLAGS + FL_A))
        a("s_mul_i32 %s, %s, %d" % (S(sX2), S(sAUX), 7 * 8192))
    wait_init(a, T1, T2, init_target)
    a("s_barrier")
    def in_flag(a, sd, sf): a("s_add_u32 %s, %s, %s" % (S(sd), S(sf), S(sX1)))
    def src_addr(a, sd, sl, ss):
        if which == 3: job_off2(a, sd, WS_O, O_L, O_JOB, sl, ss)
        else: job_off2(a, sd, WS_ACT, ACT_L, ACT_JOB, sl, ss)
        a("s_add_u32 %s, %s, %s" % (S(sd), S(sd), S(sX2)))
    def dma_items(ssrc, sbuf):
        out = []
        per = NK // 4
        for i in range(0, per, 1):
            g = []
            if i == 0:
                g += ["s_mul_i32 s76, %s, %d" % (S(sW), per * 1024), "s_add_u32 s77, %s, s76" % S(ssrc), "s_add_u32 s76, s76, %s" % S(sbuf)]
                out.append(g); g = []
            if i % 4 == 0:
                g += ["s_add_u32 m0, s76, %d" % (i * 1024)]
                if i: g += ["s_add_u32 s77, s77, 4096"]
            for k in (i,):
                if k < per: g += ["buffer_load_dwordx4 %s, %s, s77 offen offset:%d sc1 lds" % (R(VL16), SR(sWS, 4), (k % 4) * 1024)]
            out.append(g)
        return out
    def toggle(a): a("v_xor_b32 %s, 0x10000, %s" % (R(VRD), R(VRD)))
    PF = 6
    def rd(ks): return "ds_read_b128 %s, %s offset:%d" % (RR(XF[ks % 8], 4), R(VRD), ks * 1024)
    def mk_steps(L):
        ids = {}
        for ks in range(PF): ids[ks] = L.ds(rd(ks))
        steps = []
        for ks in range(NK):
            mfs = [S_mf32x(ACC, W(ks), XF[ks % 8], None if ks == 0 else ACC)]
            def pre(ks=ks):
                if ks + PF < NK: ids[ks + PF] = L.ds(rd(ks + PF))
            steps.append(((lambda ks=ks: ids[ks]), mfs, pre))
        return steps
    SH = 80
    TX = 10
    def out_addr(a, sd):
        if which == 3: job_off(a, sd, WS_P3, P3_L, P3_JOB)
        else: job_off(a, sd, WS_P5, P5_L, P5_JOB)
        a("s_lshl_b32 %s, %s, 16" % (S(sT4), S(sAUX)))
        a("s_add_u32 %s, %s, %s" % (S(sd), S(sd), S(sT4)))
        a("s_lshl_b32 %s, %s, 9" % (S(sT4), S(sAUX2)))
        a("s_add_u32 %s, %s, %s" % (S(sd), S(sd), S(sT4)))
        a("s_lshl_b32 %s, %s, 7" % (S(sT4), S(sW)))
        a("s_add_u32 %s, %s, %s" % (S(sd), S(sd), S(sT4)))
    def shadow(a):
        for r_ in range(0, 16, 2): a("v_mov_b64 %s, %s" % (RR(SH + r_, 2), RR(ACC + r_, 2)))
    def epi_items(so):
        g = [[('ds', "ds_write_b128 %s, %s" % (R(VTW), RR(SH, 4)), 'w0'), "v_xor_b32 %s, 32, %s" % (R(TX), R(VTW))],
             [('ds', "ds_write_b128 %s, %s" % (R(TX), RR(SH + 4, 4)), 'w1')],
             ["v_xor_b32 %s, 64, %s" % (R(TX), R(VTW)), ('ds', "ds_write_b128 %s, %s" % (R(TX), RR(SH + 8, 4)), 'w2')],
             ["v_xor_b32 %s, 96, %s" % (R(TX), R(VTW)), ('ds', "ds_write_b128 %s, %s" % (R(TX), RR(SH + 12, 4)), 'w3')],
             [],
             [('wait', 'w3')] + [('ds', "ds_read_b128 %s, %s offset:%d" % (RR(TRN + 4 * t, 4), R(VTR_), t * 1024), 'r%d' % t) for t in range(4)],
             [],
             ["s_mov_b32 s79, %s" % S(so)]]
        for t in range(4):
            g.append([('wait', 'r%d' % t), "buffer_store_dwordx4 %s, %s, %s, s79 offen sc1" % (RR(TRN + 4 * t, 4), R(VST), SR(sWS, 4)), "s_add_u32 s79, s79, %d" % (8 * 2048)])
        return g
    def oflag(a, sd):
        a("s_add_u32 %s, %s, %d" % (S(sd), S(sFLJ), WS_FLAGS + (FL_P3 if which == 3 else FL_P5)))
    gemm_loop(a, tag, (1 if DEDICATED else 2), VFL, VFV, T1, T2, in_flag, (2 if which == 3 else 7), src_addr, dma_items, toggle, mk_steps, NK, out_addr, shadow, epi_items, (0, 1), oflag, 0x10000, nst=4, sig_at=26, defer_epi=False, dec_at=(DEC_S35 if which == 3 or DEC_S35 is None else DEC_S35 - 4), trc=((4, 5, [(sAUX, 0), (sAUX2, 0), (sW, 0)]) if which == 3 else (9, 10, [(sAUX, 0), (sAUX2, 0), (sW, 0)])))

def s4_role(a, init_target):
    a.comment("==== S4 role ====")
    lane, T1, T2, T3 = 0, 13, 14, 15
    AF, VD, VL16, VFL, VFV = 2, 10, 12, 1, 124
    AG, AU = 16, 32
    XF = [48 + 4 * i for i in range(4)]
    G, PKD = 64, 112
    def W(x, ks): return 256 + (0 if x == 'g' else 128) + 4 * ks
    if DEDICATED: sched_layer(a, sX0)
    else: sched_init(a, 2, 0, sX0)
    a("s_mov_b32 %s, %s" % (S(sAUX), S(sX1)))
    load_srd(a, sA, 'Wg'); load_srd(a, sB, 'Wu')
    signal_init(a, T1, T2)
    a("s_waitcnt lgkmcnt(0)")
    finish_srd(a, sA, 'Wg'); finish_srd(a, sB, 'Wu')
    if GATEB: gate_wait(a, T1, T2, GATEB)
    VROW, VTR = 20, 21
    setup_tr32(a, lane, VTR, T1, T2)
    a("v_lshrrev_b32 %s, 2, %s" % (R(T1), R(lane)))
    a("s_movk_i32 %s, 3584" % S(sT0))
    a("v_mul_lo_u32 %s, %s, %s" % (R(T1), S(sT0), R(T1)))
    a("v_and_b32 %s, 3, %s" % (R(T2), R(lane)))
    a("v_lshl_add_u32 %s, %s, 4, %s" % (R(VROW), R(T2), R(T1)))
    a("s_lshl_b32 %s, %s, 8" % (S(sX0), S(sAUX)))
    a("s_lshl_b32 %s, %s, 6" % (S(sT0), S(sW)))
    a("s_add_u32 %s, %s, %s" % (S(sX0), S(sX0), S(sT0)))
    frags = []
    for x, srd in (('g', sA), ('u', sB)):
        for ks in range(32):
            frags.append((srd, (lambda a_, d, ks=ks: a_("s_add_u32 %s, %s, %d" % (S(d), S(sX0), ks * 16 * 3584))), W(x, ks)))
    load_frags32(a, frags, VROW, VTR)
    setup_rowtile(a, lane, AF, VD, T1, T2, T3)
    a("v_lshlrev_b32 %s, 4, %s" % (R(VL16), R(lane)))
    a("v_mov_b32 %s, 0" % R(VFL))
    a("s_mov_b32 %s, 0x%x" % (S(sX3), f32(-1.4426950408889634)))
    wait_init(a, T1, T2, init_target)
    a("s_barrier")
    def in_flag(a, sd, sf): a("s_add_u32 %s, %s, %d" % (S(sd), S(sf), WS_FLAGS + FL_H2))
    def src_addr(a, sd, sl, ss): job_off2(a, sd, WS_H2, H2_L, H2_JOB, sl, ss)
    def dma_items(ssrc, sbuf): return rowtile_items(VD, ssrc, sbuf)
    def toggle(a):
        for j in range(8): a("v_xor_b32 %s, 0x8000, %s" % (R(AF + j), R(AF + j)))
    def rd(ks): return "ds_read_b128 %s, %s offset:%d" % (RR(XF[ks % 4], 4), R(AF + (ks & 7)), (ks >> 3) * 8192)
    def mk_steps(L):
        ids = {}
        for ks in range(3): ids[ks] = L.ds(rd(ks))
        steps = []
        for ks in range(32):
            x = XF[ks % 4]
            mfs = [S_mf32x(AG, W('g', ks), x, None if ks == 0 else AG), S_mf32x(AU, W('u', ks), x, None if ks == 0 else AU)]
            def pre(ks=ks):
                if ks + 3 < 32: ids[ks + 3] = L.ds(rd(ks + 3))
            steps.append(((lambda ks=ks: ids[ks]), mfs, pre))
        return steps
    SG, SU, WK_ = 64, 72, 80
    def out_addr(a, sd):
        job_off(a, sd, WS_ACT, ACT_L, ACT_JOB)
        a("s_lshl_b32 %s, %s, 13" % (S(sT4), S(sAUX)))
        a("s_add_u32 %s, %s, %s" % (S(sd), S(sd), S(sT4)))
        a("s_lshl_b32 %s, %s, 11" % (S(sT4), S(sW)))
        a("s_add_u32 %s, %s, %s" % (S(sd), S(sd), S(sT4)))
    def shadow(a):
        for r_ in range(8):
            a("v_cvt_pk_bf16_f32 %s, %s, %s" % (R(SG + r_), R(AG + 2 * r_), R(AG + 2 * r_ + 1)))
            a("v_cvt_pk_bf16_f32 %s, %s, %s" % (R(SU + r_), R(AU + 2 * r_), R(AU + 2 * r_ + 1)))
    def epi_items(so):
        ins = []
        for r_ in range(8):
            t = WK_ + (r_ % 2) * 8
            g0, g1, u0, u1, e0, e1, p = t, t + 1, t + 2, t + 3, t + 4, t + 5, t + 6
            ins += ["v_lshlrev_b32 %s, 16, %s" % (R(g0), R(SG + r_)),
                    "v_and_b32 %s, 0xffff0000, %s" % (R(g1), R(SG + r_)),
                    "v_mul_f32 %s, %s, %s" % (R(e0), S(sX3), R(g0)),
                    "v_mul_f32 %s, %s, %s" % (R(e1), S(sX3), R(g1)),
                    "v_exp_f32 %s, %s" % (R(e0), R(e0)),
                    "v_exp_f32 %s, %s" % (R(e1), R(e1)),
                    "v_lshlrev_b32 %s, 16, %s" % (R(u0), R(SU + r_)),
                    "v_and_b32 %s, 0xffff0000, %s" % (R(u1), R(SU + r_)),
                    "v_add_f32 %s, 1.0, %s" % (R(e0), R(e0)),
                    "v_add_f32 %s, 1.0, %s" % (R(e1), R(e1)),
                    "v_rcp_f32 %s, %s" % (R(e0), R(e0)),
                    "v_rcp_f32 %s, %s" % (R(e1), R(e1)),
                    "s_nop 0",
                    "v_mul_f32 %s, %s, %s" % (R(g0), R(g0), R(e0)),
                    "v_mul_f32 %s, %s, %s" % (R(g1), R(g1), R(e1)),
                    "v_cvt_pk_bf16_f32 %s, %s, %s" % (R(p), R(g0), R(g1)),
                    "v_lshlrev_b32 %s, 16, %s" % (R(g0), R(p)),
                    "v_and_b32 %s, 0xffff0000, %s" % (R(g1), R(p)),
                    "v_mul_f32 %s, %s, %s" % (R(g0), R(g0), R(u0)),
                    "v_mul_f32 %s, %s, %s" % (R(g1), R(g1), R(u1)),
                    "v_cvt_pk_bf16_f32 %s, %s, %s" % (R(PKD + r_), R(g0), R(g1))]
            if r_ in (3, 7):
                ins.append("buffer_store_dwordx4 %s, %s, %s, %s offen offset:%d sc1" % (RR(PKD + 4 * (r_ // 4), 4), R(VL16), SR(sWS, 4), S(so), (r_ // 4) * 1024))
        ins = [x for x in ins if x != "s_nop 0"]
        per = 3
        return [ins[k:k + per] for k in range(0, len(ins), per)]
    def oflag(a, sd):
        a("s_cmp_ge_u32 %s, 7" % S(sAUX))
        a("s_cselect_b32 %s, 128, 0" % S(sd))
        a("s_add_u32 %s, %s, %s" % (S(sd), S(sd), S(sFLJ)))
        a("s_add_u32 %s, %s, %d" % (S(sd), S(sd), WS_FLAGS + FL_A))
    gemm_loop(a, 's4', (1 if DEDICATED else 2), VFL, VFV, T1, T2, in_flag, 8, src_addr, dma_items, toggle, mk_steps, 64, out_addr, shadow, epi_items, (0, 1), oflag, 0x8000, nst=2, sig_at=26, defer_epi=False, dec_at=DEC_S4, trc=(7, 8, [(sAUX, 0), (sW, 0)]))
```

```python
from common import *
import struct

UB = 131072
KV_OFF = 0
MX_OFF = 16384
OX_OFF = MX_OFF + 5120
QI_OFF = 24576
TB_OFF = 29696
SEL_OFF = 30720
GATE = 24
PF_ON = False
IST = 40
PART_CU = 8192
PART_SLOT = 32 * PART_CU
MEM_SLOT = 8192
IDX, MXR, UL, QWQ, QWK, QR, OW, OR_, WLB, FLG, T0, T1, T2 = 0, 1, 5, 6, 7, 8, 9, 10, 11, 12, 13, 14, 15
MA = [16 + 4 * i for i in range(8)]
AQ = [48, 52]; AK = [56, 60]; AV = [64, 68]
KX = [72 + 4 * f for f in range(8)]
QF = [104 + 4 * k for k in range(4)]
VX = [120, 124]
KMF = [48 + 4 * k for k in range(4)]
def WQ(t, i): return 256 + (2 * i + t) * 8
def WK(t, i): return 256 + 128 + (2 * i + t) * 8
def WV(t, i): return 128 + (2 * i + t) * 8
def WO(nt, j): return 192 + (2 * nt + j) * 8
SX = [16, 20]; SM = 88; PX = 92; PM = 96; MXV, ZX, AL, RZ, TA, TB_ = 98, 99, 100, 101, 102, 103
OXA = [104, 108]; OMA = [112, 116]; OC = 92; OA = [120, 124]
WA = [16 + 4 * n for n in range(8)]
TBL = 104
SEL = 108
RD = 48
RS = 56
PK = 112
sL, sH, sSTEP, sCHB = 32, 33, 34, 35
sMEMRD, sMEMST, sPARTST, sPARTLD = 36, 37, 38, 39
sKVSRC, sKMJOB, sFLKV, sFLKM = 40, 41, 42, 43
sRDY, sSLOT = 44, 45
sT0, sT1, sT2, sT3 = 46, 47, 48, 49
sCEXP, sKVLDS = 50, 51
sM2, sEX = 52, 56
sMEMPZ, sPARTPZ = 54, 55
sTK = 58
sFLKMN = 59
sKVDUM = 66
sO8 = 68
sW0 = 64
sMEMRD0, sMEMST0, sPARTST0, sPARTLD0 = 60, 61, 62, 63

def smf(a, d, aa, b):
    a("v_smfmac_f32_16x16x64_bf16 %s, %s, %s, %s" % (RR(d, 4), RR(aa, 4), RR(b, 8), R(IDX)))
def S_smf(d, aa, b):
    return "v_smfmac_f32_16x16x64_bf16 %s, %s, %s, %s" % (RR(d, 4), RR(aa, 4), RR(b, 8), R(IDX))
def S_mf32(d, aa, b, c=None):
    return "v_mfma_f32_16x16x32_bf16 %s, %s, %s, %s" % (RR(d, 4), RR(aa, 4), RR(b, 4), '0' if c is None else RR(c, 4))
def mf32(a, d, aa, b, c=None): a(S_mf32(d, aa, b, c))
def mf16(a, d, aa, b, c=None):
    a("v_mfma_f32_16x16x16_bf16 %s, %s, %s, %s" % (RR(d, 4), RR(aa, 2), RR(b, 2), '0' if c is None else RR(c, 4)))

def weave(a, mf, fill):
    for i, m in enumerate(mf):
        a(m)
        if i < len(fill):
            for f in fill[i]: a(f)
    for rest in fill[len(mf):]:
        for f in rest: a(f)

def chain_pre(a):
    a.comment("==== chain pre ====")
    a("s_mov_b32 %s, %s" % (S(sL), S(sXCC)))
    a("s_mov_b32 %s, %s" % (S(sH), S(sTICK)))
    load_srd(a, sA, 'Wq'); load_srd(a, sB, 'Wk'); load_srd(a, sC, 'Wv'); load_srd(a, sD, 'Wo')
    a("s_load_dwordx2 s[68:69], s[0:1], %d" % KA['mem0'])
    lane = T0
    a("v_mov_b32 %s, v0" % R(lane))
    a("s_waitcnt lgkmcnt(0)")
    for r_, n in ((sA, 'Wq'), (sB, 'Wk'), (sC, 'Wv'), (sD, 'Wo')): finish_srd(a, r_, n)
    a("s_mov_b32 s70, %d" % SIZES['mem0']); a("s_mov_b32 s71, 0x%x" % SRD3)
    a("v_bfe_u32 %s, %s, 2, 1" % (R(T1), R(lane)))
    a("v_lshlrev_b32 %s, 10, %s" % (R(T1), R(T1)))
    a("v_bfe_u32 %s, %s, 4, 1" % (R(T2), R(lane)))
    a("v_lshl_add_u32 %s, %s, 6, %s" % (R(T1), R(T2), R(T1)))
    a("v_and_b32 %s, 3, %s" % (R(T2), R(lane)))
    a("v_lshl_add_u32 %s, %s, 1, %s" % (R(T1), R(T2), R(T1)))
    a("s_and_b32 %s, %s, 3" % (S(sT0), S(sH)))
    a("s_lshl_b32 %s, %s, 11" % (S(sT0), S(sT0)))
    a("s_lshr_b32 %s, %s, 2" % (S(sT1), S(sH)))
    a("s_lshl_b32 %s, %s, 7" % (S(sT1), S(sT1)))
    a("s_add_u32 %s, %s, %s" % (S(sT0), S(sT0), S(sT1)))
    a("s_lshl_b32 %s, %s, 3" % (S(sT1), S(sW)))
    a("s_add_u32 %s, %s, %s" % (S(sT0), S(sT0), S(sT1)))
    a("buffer_load_ushort %s, %s, s[68:71], %s offen" % (R(124), R(T1), S(sT0)))
    a("buffer_load_ushort %s, %s, s[68:71], %s offen offset:32" % (R(125), R(T1), S(sT0)))

def chain_setup(a):
    a.comment("==== chain setup ====")
    lane = T0
    a("v_lshlrev_b32 %s, 4, %s" % (R(UL), R(lane)))
    a("v_add_u32 %s, 0x%x, %s" % (R(UL), UB, R(UL)))
    a("v_and_b32 %s, 2, %s" % (R(T1), R(lane)))
    a("v_cmp_eq_u32 vcc, 0, %s" % R(T1))
    a("v_mov_b32 %s, 0xeeee" % R(T2))
    a("v_mov_b32 %s, 0x4444" % R(IDX))
    a("v_cndmask_b32 %s, %s, %s, vcc" % (R(IDX), R(T2), R(IDX)))
    for k in range(4):
        a("s_add_u32 %s, %s, %d" % (S(sT0), S(sW), k))
        a("s_and_b32 %s, %s, 3" % (S(sT0), S(sT0)))
        a("s_lshl_b32 %s, %s, 11" % (S(sT0), S(sT0)))
        a("v_add_u32 %s, %s, %s" % (R(MXR + k), S(sT0), R(UL)))
    a("v_and_b32 %s, 15, %s" % (R(T1), R(lane)))
    a("s_lshl_b32 %s, %s, 5" % (S(sT0), S(sW)))
    a("v_add_u32 %s, %s, %s" % (R(T1), S(sT0), R(T1)))
    a("v_mul_u32_u24 %s, %d, %s" % (R(T1), IST, R(T1)))
    a("v_lshrrev_b32 %s, 4, %s" % (R(T2), R(lane)))
    a("v_lshl_add_u32 %s, %s, 2, %s" % (R(QWQ), R(T2), R(T1)))
    a("v_add_u32 %s, 0x%x, %s" % (R(QWQ), UB + QI_OFF, R(QWQ)))
    a("v_lshl_add_u32 %s, %s, 3, %s" % (R(QWK), R(T2), R(T1)))
    a("v_add_u32 %s, 0x%x, %s" % (R(QWK), UB + MX_OFF, R(QWK)))
    a("v_lshrrev_b32 %s, 5, %s" % (R(T1), R(lane)))
    a("v_lshlrev_b32 %s, 4, %s" % (R(T1), R(T1)))
    a("v_bfe_u32 %s, %s, 4, 1" % (R(T2), R(lane)))
    a("v_lshl_add_u32 %s, %s, 2, %s" % (R(T1), R(T2), R(T1)))
    a("v_bfe_u32 %s, %s, 2, 2" % (R(T2), R(lane)))
    a("v_add_u32 %s, %s, %s" % (R(T1), R(T1), R(T2)))
    a("v_mul_u32_u24 %s, %d, %s" % (R(QR), IST, R(T1)))
    a("v_and_b32 %s, 3, %s" % (R(T2), R(lane)))
    a("v_lshl_add_u32 %s, %s, 3, %s" % (R(QR), R(T2), R(QR)))
    a("v_add_u32 %s, 0x%x, %s" % (R(QR), UB, R(QR)))
    a("v_and_b32 %s, 15, %s" % (R(T1), R(lane)))
    a("v_lshrrev_b32 %s, 4, %s" % (R(T2), R(lane)))
    a("s_lshl_b32 %s, %s, 2" % (S(sT0), S(sW)))
    a("v_add_u32 %s, %s, %s" % (R(T2), S(sT0), R(T2)))
    a("v_and_b32 %s, 7, %s" % (R(OW), R(lane)))
    a("v_xor_b32 %s, %s, %s" % (R(T2), R(T2), R(OW)))
    a("v_lshlrev_b32 %s, 4, %s" % (R(T2), R(T2)))
    a("v_and_b32 %s, 7, %s" % (R(T1), R(T1)))
    a("v_lshl_add_u32 %s, %s, 8, %s" % (R(OW), R(T1), R(T2)))
    a("v_add_u32 %s, 0x%x, %s" % (R(OW), UB, R(OW)))
    a("v_bfe_u32 %s, %s, 2, 2" % (R(T1), R(lane)))
    a("v_lshlrev_b32 %s, 1, %s" % (R(T1), R(T1)))
    a("v_and_b32 %s, 1, %s" % (R(T2), R(lane)))
    a("v_add_u32 %s, %s, %s" % (R(T1), R(T1), R(T2)))
    a("v_bfe_u32 %s, %s, 1, 1" % (R(T2), R(lane)))
    a("v_lshlrev_b32 %s, 2, %s" % (R(T2), R(T2)))
    a("v_lshrrev_b32 %s, 4, %s" % (R(OR_), R(lane)))
    a("v_add_u32 %s, %s, %s" % (R(T2), R(T2), R(OR_)))
    a("v_xor_b32 %s, %s, %s" % (R(T2), R(T2), R(T1)))
    a("v_lshlrev_b32 %s, 4, %s" % (R(T2), R(T2)))
    a("v_lshl_add_u32 %s, %s, 8, %s" % (R(OR_), R(T1), R(T2)))
    a("v_add_u32 %s, 0x%x, %s" % (R(OR_), UB, R(OR_)))
    a("v_lshlrev_b32 %s, 4, %s" % (R(WLB), R(lane)))
    a("s_lshl_b32 %s, %s, 15" % (S(sT0), S(sW)))
    a("v_add_u32 %s, %s, %s" % (R(WLB), S(sT0), R(WLB)))
    P, Q_, M2, Fo = TBL, TBL + 1, TBL + 2, TBL + 3
    a("v_mov_b32 %s, 0" % R(P))
    a("v_lshrrev_b32 %s, 2, %s" % (R(T1), R(lane)))
    a("v_lshlrev_b32 %s, 13, %s" % (R(Q_), R(T1)))
    a("v_and_b32 %s, 3, %s" % (R(T2), R(lane)))
    a("v_lshl_add_u32 %s, %s, 4, %s" % (R(Q_), R(T2), R(Q_)))
    a("v_lshlrev_b32 %s, 2, %s" % (R(M2), R(T2)))
    a("v_bfe_u32 %s, %s, 2, 1" % (R(T1), R(lane)))
    a("v_lshl_add_u32 %s, %s, 4, %s" % (R(M2), R(T1), R(M2)))
    a("v_bfe_u32 %s, %s, 4, 1" % (R(T1), R(lane)))
    a("v_lshl_add_u32 %s, %s, 5, %s" % (R(M2), R(T1), R(M2)))
    a("v_mov_b32 %s, 0" % R(Fo))
    a("ds_write_b128 %s, %s offset:%d" % (R(UL), RR(TBL, 4), TB_OFF))
    a("v_and_b32 %s, 15, %s" % (R(T1), R(lane)))
    for d in range(4):
        a("v_cmp_eq_u32 vcc, %d, %s" % (2 * d, R(T1)))
        a("v_mov_b32 %s, 0x3f80" % R(T2))
        a("v_cndmask_b32 %s, 0, %s, vcc" % (R(SEL + d), R(T2)))
        a("v_cmp_eq_u32 vcc, %d, %s" % (2 * d + 1, R(T1)))
        a("v_mov_b32 %s, 0x3f800000" % R(T2))
        a("v_cndmask_b32 %s, %s, %s, vcc" % (R(SEL + d), R(SEL + d), R(T2)))
    a("ds_write_b128 %s, %s offset:%d" % (R(UL), RR(SEL, 4), SEL_OFF))
    a("s_waitcnt lgkmcnt(0)")
    a("s_mul_i32 %s, %s, %d" % (S(sCHB), S(sL), CH_STRIDE))
    a("s_add_u32 %s, %s, %d" % (S(sCHB), S(sCHB), WS_CH))
    cexp = struct.unpack('<I', struct.pack('<f', (128 ** -0.5) * 1.4426950408889634))[0]
    a("s_mov_b32 %s, 0x%x" % (S(sCEXP), cexp))
    a("s_mov_b32 %s, 0xf0f0f0f0\ns_mov_b32 %s, 0xf0f0f0f0" % (S(sM2), S(sM2 + 1)))
    a("s_mov_b32 %s, 0x00ff00ff\ns_mov_b32 %s, 0" % (S(sEX), S(sEX + 1)))
    a("s_add_u32 %s, %s, %d" % (S(sT0), S(sCHB), CH_MEM))
    a("s_lshl_b32 %s, %s, 11" % (S(sT1), S(sW)))
    a("s_add_u32 %s, %s, %s" % (S(sMEMRD0), S(sT0), S(sT1)))
    a("s_sub_u32 %s, %s, %d" % (S(sMEMRD0), S(sMEMRD0), UB))
    a("s_lshr_b32 %s, %s, 2" % (S(sT1), S(sH)))
    a("s_lshl_b32 %s, %s, 10" % (S(sT1), S(sT1)))
    a("s_add_u32 %s, %s, %s" % (S(sMEMST0), S(sT0), S(sT1)))
    a("s_lshl_b32 %s, %s, 8" % (S(sT1), S(sW)))
    a("s_add_u32 %s, %s, %s" % (S(sMEMST0), S(sMEMST0), S(sT1)))
    a("s_and_b32 %s, %s, 3" % (S(sT1), S(sH)))
    a("s_lshl_b32 %s, %s, 6" % (S(sT1), S(sT1)))
    a("s_add_u32 %s, %s, %s" % (S(sMEMST0), S(sMEMST0), S(sT1)))
    a("s_lshl_b32 %s, %s, 13" % (S(sT1), S(sH)))
    a("s_add_u32 %s, %s, %s" % (S(sPARTST0), S(sCHB), S(sT1)))
    a("s_lshl_b32 %s, %s, 11" % (S(sT1), S(sW)))
    a("s_add_u32 %s, %s, %s" % (S(sPARTST0), S(sPARTST0), S(sT1)))
    a("s_sub_u32 %s, %s, %d" % (S(sPARTST0), S(sPARTST0), UB))
    a("s_lshl_b32 %s, %s, 8" % (S(sT1), S(sH)))
    a("s_add_u32 %s, %s, %s" % (S(sPARTLD0), S(sCHB), S(sT1)))
    a("s_lshl_b32 %s, %s, 6" % (S(sT1), S(sW)))
    a("s_add_u32 %s, %s, %s" % (S(sPARTLD0), S(sPARTLD0), S(sT1)))
    a("s_mul_i32 %s, %s, %d" % (S(sKVSRC), S(sL), QKV_L))
    a("s_mul_i32 %s, %s, %d" % (S(sT1), S(sH), 24 * KB))
    a("s_add_u32 %s, %s, %s" % (S(sKVSRC), S(sKVSRC), S(sT1)))
    a("s_lshl_b32 %s, %s, 11" % (S(sT1), S(sW)))
    a("s_add_u32 %s, %s, %s" % (S(sKVSRC), S(sKVSRC), S(sT1)))
    a("s_add_u32 %s, %s, %d" % (S(sKVSRC), S(sKVSRC), WS_QKV + 8 * KB - UB))
    a("s_add_u32 %s, %s, %d" % (S(sKVLDS), S(sT1), UB + KV_OFF))
    a("s_mul_i32 %s, %s, %d" % (S(sKMJOB), S(sL), KM_L))
    a("s_lshl_b32 %s, %s, 13" % (S(sT1), S(sH)))
    a("s_add_u32 %s, %s, %s" % (S(sKMJOB), S(sKMJOB), S(sT1)))
    a("s_lshl_b32 %s, %s, 10" % (S(sT1), S(sW)))
    a("s_add_u32 %s, %s, %s" % (S(sKMJOB), S(sKMJOB), S(sT1)))
    a("s_add_u32 %s, %s, %d" % (S(sKMJOB), S(sKMJOB), WS_KM - UB))
    a("s_mul_i32 %s, %s, %d" % (S(sT0), S(sL), NSEG * JOBFLAG_BYTES))
    a("s_lshl_b32 %s, %s, 7" % (S(sT1), S(sH)))
    a("s_add_u32 %s, %s, %s" % (S(sT0), S(sT0), S(sT1)))
    a("s_add_u32 %s, %s, %d" % (S(sFLKV), S(sT0), WS_FLAGS + FL_KV))
    a("s_add_u32 %s, %s, %d" % (S(sFLKMN), S(sT0), WS_FLAGS + FL_KM))
    a("s_add_u32 %s, %s, %d" % (S(sFLKM), S(sCHB), CH_MEM + 4 * MEM_SLOT))
    a("s_sub_u32 %s, %s, %d" % (S(sKVDUM), S(sCHB), UB))
    a("s_cmp_eq_u32 %s, 0" % S(sW))
    a("s_cselect_b32 %s, 1, 0" % S(sW0))
    a("s_mov_b32 %s, 0" % S(sW0 + 1))
    for i in range(4): a("v_mov_b32 %s, -1" % R(KX[0] + i))
    for sl in range(2):
        a("s_add_u32 %s, %s, %d" % (S(sT0), S(sPARTST0), sl * PART_SLOT))
        for p in range(2):
            a("buffer_store_dwordx4 %s, %s, %s, %s offen offset:%d" % (RR(KX[0], 4), R(UL), SR(sWS, 4), S(sT0), p * 1024))
    a("s_waitcnt vmcnt(36)")
    a("v_lshl_or_b32 %s, %s, 16, %s" % (R(T2), R(125), R(124)))
    a("s_add_u32 %s, %s, %d" % (S(sT0), S(sMEMST0), MEM_SLOT))
    a("s_mov_b64 exec, %s" % SR(sEX, 2))
    a("buffer_store_dword %s, %s, %s, %s offen" % (R(T2), R(TBL + 2), SR(sWS, 4), S(sMEMST0)))
    a("buffer_store_dword %s, %s, %s, %s offen" % (R(KX[0]), R(TBL + 2), SR(sWS, 4), S(sT0)))
    a("s_mov_b64 exec, -1")

def chain_load_weights(a, mid=None):
    a.comment("==== chain weight load ====")
    VQ, VO, TR0, TR1 = 16, 17, 18, 19
    lane = T0
    a("v_and_b32 %s, 3, %s" % (R(T2), R(lane)))
    a("v_bfe_u32 v20, %s, 5, 1" % R(lane))
    a("v_lshlrev_b32 v20, 1, v20")
    a("v_xor_b32 %s, %s, v20" % (R(T2), R(T2)))
    a("v_lshlrev_b32 %s, 4, %s" % (R(T2), R(T2)))
    a("v_bfe_u32 v20, %s, 3, 1" % R(lane))
    a("v_lshlrev_b32 v20, 5, v20")
    a("v_bfe_u32 v21, %s, 2, 1" % R(lane))
    a("v_lshl_add_u32 v20, v21, 4, v20")
    a("v_bfe_u32 v21, %s, 4, 2" % R(lane))
    a("v_add_u32 v20, v20, v21")
    a("v_lshl_add_u32 %s, v20, 13, %s" % (R(VQ), R(T2)))
    a("v_bfe_u32 v20, %s, 3, 1" % R(lane))
    a("v_lshlrev_b32 v20, 5, v20")
    a("v_bfe_u32 v21, %s, 5, 1" % R(lane))
    a("v_lshl_add_u32 v20, v21, 4, v20")
    a("v_bfe_u32 v21, %s, 4, 1" % R(lane))
    a("v_lshl_add_u32 v20, v21, 1, v20")
    a("v_bfe_u32 v21, %s, 2, 1" % R(lane))
    a("v_add_u32 v20, v20, v21")
    a("v_lshl_add_u32 %s, v20, 10, %s" % (R(VO), R(T2)))
    a("v_lshrrev_b32 v20, 4, %s" % R(lane))
    a("v_lshlrev_b32 v21, 3, v20")
    a("v_bfe_u32 v22, %s, 2, 2" % R(lane))
    a("v_add_u32 v21, v21, v22")
    a("v_lshlrev_b32 v21, 6, v21")
    a("v_and_b32 v22, 3, %s" % R(lane))
    a("v_lshl_add_u32 v21, v22, 3, v21")
    a("s_lshl_b32 %s, %s, 15" % (S(sT0), S(sW)))
    a("v_add_u32 v21, %s, v21" % S(sT0))
    a("v_and_b32 v20, 1, v20")
    a("v_lshl_add_u32 %s, v20, 5, v21" % R(TR0))
    a("v_xor_b32 %s, 32, %s" % (R(TR1), R(TR0)))
    chunks = []
    for i in range(8): chunks.append(('q', i))
    for i in range(8): chunks.append(('k', i))
    for i in range(4): chunks.append(('v', i))
    for ntp in range(2):
        for j in range(2): chunks.append(('o', (ntp, j)))
    for i in range(4, 8): chunks.append(('v', i))
    for ntp in range(2, 4):
        for j in range(2): chunks.append(('o', (ntp, j)))
    sCOLQ, sCOLO, sLDSW = 72, 73, 74
    a("s_lshl_b32 %s, %s, 8" % (S(sCOLQ), S(sH)))
    a("s_lshl_b32 %s, %s, 6" % (S(sT0), S(sW)))
    a("s_add_u32 %s, %s, %s" % (S(sCOLQ), S(sCOLQ), S(sT0)))
    a("s_lshl_b32 %s, %s, 17" % (S(sCOLO), S(sH)))
    a("s_lshl_b32 %s, %s, 8" % (S(sT0), S(sW)))
    a("s_add_u32 %s, %s, %s" % (S(sCOLO), S(sCOLO), S(sT0)))
    a("s_lshl_b32 %s, %s, 15" % (S(sLDSW), S(sW)))
    sK = sTK
    def issue(c):
        kind, arg = chunks[c]
        slot = c % 8
        if kind in 'qkv':
            i = arg
            a("s_add_u32 s%d, %s, %d" % (sK, S(sW), i >> 1))
            a("s_and_b32 s%d, s%d, 3" % (sK, sK))
            a("s_lshl_b32 s%d, s%d, 1" % (sK, sK))
            if i & 1: a("s_add_u32 s%d, s%d, 1" % (sK, sK))
            a("s_lshl_b32 s%d, s%d, 19" % (sK, sK))
            a("s_add_u32 s%d, s%d, %s" % (sK, sK, S(sCOLQ)))
            srd = {'q': sA, 'k': sB, 'v': sC}[kind]
            vo, rowstep = VQ, 4 * 8192
        else:
            ntp, j = arg
            a("s_add_u32 s%d, %s, %d" % (sK, S(sCOLO), j * 64 * 1024 + ntp * 64))
            srd = sD; vo, rowstep = VO, 4 * 1024
        for u in range(4):
            a("s_add_u32 m0, %s, %d" % (S(sLDSW), slot * 4096 + u * 1024))
            a("buffer_load_dwordx4 %s, %s, s%d offen lds" % (R(vo), SR(srd, 4), sK))
            if u < 3: a("s_add_u32 s%d, s%d, %d" % (sK, sK, rowstep))
    def dest(c, t):
        kind, arg = chunks[c]
        if c >= 24: return 32 + 8 * t
        if kind == 'q': return WQ(t, arg)
        if kind == 'k': return WK(t, arg)
        if kind == 'v': return WV(t, arg)
        ntp, j = arg
        return WO(2 * ntp + t, j)
    VPF, VPD = 23, 24
    a("v_lshlrev_b32 %s, 6, %s" % (R(VPF), R(lane)))
    a("s_lshl_b32 s75, %s, 2" % S(sH)); a("s_add_u32 s75, s75, %s" % S(sW)); a("s_lshl_b32 s75, s75, 15")
    def pf(srd, k0, k1):
        for k in range(k0, k1):
            a("s_add_u32 s76, s75, %d" % (k * 4096))
            a("buffer_load_dword %s, %s, %s, s76 offen" % (R(VPD), R(VPF), SR(srd, 4)))
    PFN = PF_ON
    if PFN:
        pf(sA, 0, 8)
        pf(sB, 0, 2)
    for c in range(8): issue(c)
    if mid: mid(a)
    n = len(chunks)
    for c in range(n):
        inflight = min(c + 8, n) - c - 1
        extra = 0
        if PF_ON:
            extra = sum(1 for cc in range(max(0, c - 8), c) if cc < 22 and cc + 8 > c - 0 and cc >= c - 8)
            extra = min(extra, 63 - inflight * 4)
            extra = 0
        a("s_waitcnt vmcnt(%d)" % (inflight * 4 + extra))
        slot = c % 8
        for t in range(2):
            d = dest(c, t)
            base = TR0 if t == 0 else TR1
            for k, off in enumerate((0, 256, 2048, 2304)):
                a("ds_read_b64_tr_b16 %s, %s offset:%d" % (RR(d + 2 * k, 2), R(base), slot * 4096 + off))
        a("s_waitcnt lgkmcnt(0)")
        if c >= 24:
            for t in range(2):
                d = dest(c, t)
                a("ds_write_b128 %s, %s offset:%d" % (R(WLB), RR(d, 4), slot * 4096 + t * 2048))
                a("ds_write_b128 %s, %s offset:%d" % (R(WLB), RR(d + 4, 4), slot * 4096 + t * 2048 + 1024))
            a("s_waitcnt lgkmcnt(0)")
        if c + 8 < n: issue(c + 8)
        if PF_ON:
            if c < 6: pf(sB, 2 + c, 3 + c)
            elif c < 14: pf(sC, c - 6, c - 5)
            elif c < 22: pf(sD, c - 14, c - 13)

def wv_lds(i, t): return (i - 4) * 4096 + t * 2048
def wo_lds(nt, j): return (4 + 2 * ((nt >> 1) - 2) + j) * 4096 + (nt & 1) * 2048
def S_rdfrag(dst, off):
    return ["ds_read_b128 %s, %s offset:%d" % (RR(dst, 4), R(WLB), off), "ds_read_b128 %s, %s offset:%d" % (RR(dst + 4, 4), R(WLB), off + 1024)]
def rdfrag(a, dst, off):
    for t in S_rdfrag(dst, off): a(t)

def S_kv_dma(src=None):
    src = sKVSRC if src is None else src
    return ["s_mov_b32 m0, %s" % S(sKVLDS),
            "s_add_u32 %s, %s, 8192" % (S(sT1), S(src)),
            "buffer_load_dwordx4 %s, %s, %s offen sc1 lds" % (R(UL), SR(sWS, 4), S(src)),
            "buffer_load_dwordx4 %s, %s, %s offen offset:1024 sc1 lds" % (R(UL), SR(sWS, 4), S(src)),
            "s_add_u32 m0, %s, 8192" % S(sKVLDS),
            "s_nop 0",
            "buffer_load_dwordx4 %s, %s, %s offen sc1 lds" % (R(UL), SR(sWS, 4), S(sT1)),
            "buffer_load_dwordx4 %s, %s, %s offen offset:1024 sc1 lds" % (R(UL), SR(sWS, 4), S(sT1))]

STAMPS = None
def tstamp(a, k, on):
    if on == 2 and STAMPS is None:
        a("s_memtime s[%d:%d]" % (72 + 2 * k, 73 + 2 * k))
def tp(a, name, on):
    if on == 2 and STAMPS is not None and name in STAMPS:
        k = STAMPS.index(name)
        a("s_memtime s[%d:%d]" % (72 + 2 * k, 73 + 2 * k))

def poison_check(a, regs, Lretry, Lgiveup):
    a("v_max3_u32 %s, %s, %s, %s" % (R(T0), R(regs[0]), R(regs[1]), R(regs[2])))
    a("v_max3_u32 %s, %s, %s, %s" % (R(T1), R(regs[3]), R(regs[4]), R(regs[5])))
    a("v_max3_u32 %s, %s, %s, %s" % (R(T0), R(T0), R(regs[6]), R(regs[7])))
    a("v_max_u32 %s, %s, %s" % (R(T0), R(T0), R(T1)))
    a("v_cmp_eq_u32 vcc, -1, %s" % R(T0))
    a("s_cbranch_vccnz %s" % Lretry)

def retry_stub(a, Lretry, Lloop, Ldone):
    a.label(Lretry)
    a("s_add_u32 %s, %s, 1" % (S(sTMO), S(sTMO)))
    a("s_cmp_gt_u32 %s, %d" % (S(sTMO), TIMEOUT))
    a("s_cbranch_scc0 %s" % Lloop)
    a("s_branch %s" % Ldone)

def kv_reads():
    r = [("ds_read_b128 %s, %s offset:%d" % (RR(KX[f], 4), R(UL), KV_OFF + f * 1024)) for f in range(8)]
    r += ["ds_read_b128 %s, %s offset:%d" % (RR(VX[0], 4), R(MXR), KV_OFF + 8192), "ds_read_b128 %s, %s offset:%d" % (RR(VX[1], 4), R(MXR), KV_OFF + 8192 + 1024)]
    return r

def chain_loop(a, timing=0, opt=None):
    opt = opt or {}
    global STAMPS
    STAMPS = opt.get('stamps')
    stubs = []
    stubB = []
    F = {(4, 0): 72, (4, 1): 80, (5, 0): 88, (5, 1): 96, (6, 0): 112, (6, 1): 120, (7, 0): 16, (7, 1): 104}
    SX = [16, 20]; SM = 24; PX = 28; PM = 32; MXV, ZX = 34, 35; OC = 36; PUB = 40; TA, RZ = 44, 45
    OACC = [104, 108]; OA = [120, 124]
    WOB = {(4, 0): 72, (4, 1): 80, (5, 0): 88, (5, 1): 96, (6, 0): 48, (6, 1): 56, (7, 0): 112, (7, 1): 64}
    PK = 72; RD = 80; RS = 88; POI = 44
    def vpref(i, t): return S_rdfrag(F[(i, t)], wv_lds(i, t))
    a("s_mov_b32 %s, 0x00ff00ff\ns_mov_b32 %s, 0x00ff00ff" % (S(sO8), S(sO8 + 1)))
    a("s_mov_b32 %s, 0" % S(sSTEP))
    a("s_mov_b32 %s, 0" % S(sSLOT))
    a("s_mov_b32 %s, %s" % (S(sMEMRD), S(sMEMRD0)))
    a("s_add_u32 %s, %s, %d" % (S(sMEMST), S(sMEMST0), MEM_SLOT))
    a("s_mov_b32 %s, %s" % (S(sPARTST), S(sPARTST0)))
    a("s_mov_b32 %s, %s" % (S(sPARTLD), S(sPARTLD0)))
    a("ds_read_b128 %s, %s offset:%d" % (RR(TBL, 4), R(UL), TB_OFF))
    a("s_waitcnt lgkmcnt(0)")
    poll(a, T1, TBL + 3, S(sFLKV))
    for t in S_kv_dma(): a(t)
    a("s_add_u32 %s, %s, %d" % (S(sKVSRC), S(sKVSRC), QKV_JOB))
    a("s_add_u32 %s, %s, %d" % (S(sFLKV), S(sFLKV), JOBFLAG_BYTES))
    a("buffer_load_dword %s, %s, %s, %s offen sc1" % (R(FLG), R(TBL + 3), SR(sWS, 4), S(sFLKV)))
    for r_ in range(48, 72, 2): a("v_mov_b64 %s, 0" % RR(r_, 2))
    for i in (4, 5, 6):
        for t in range(2):
            for x in vpref(i, t): a(x)
    if opt.get('dry'):
        import re as _re
        drop = opt.get('drop', [])
        def filt(line):
            if line.startswith('buffer_'): return None
            if line.startswith('v_cmp_eq_u32 vcc, -1'): return 's_mov_b64 vcc, 0'
            for pat in drop:
                if _re.search(pat, line): return None
            return line
        a.filt = filt
    a.label("L_step")
    Lp = a.newlabel('mpoll'); Ld = a.newlabel('mpolld'); Lr = a.newlabel('mretry'); Lb = a.newlabel('mpollb')
    dbl = opt.get('dbl', 0)
    if dbl:
        a("buffer_load_dwordx4 %s, %s, %s, %s offen sc1" % (RR(MA[0], 4), R(UL), SR(sWS, 4), S(sMEMRD)))
        a("buffer_load_dwordx4 %s, %s, %s, %s offen offset:1024 sc1" % (RR(MA[1], 4), R(UL), SR(sWS, 4), S(sMEMRD)))
        a("s_sleep %d" % opt.get('mstag', 2))
        a("buffer_load_dwordx4 %s, %s, %s, %s offen sc1" % (RR(MA[2], 4), R(UL), SR(sWS, 4), S(sMEMRD)))
        a("buffer_load_dwordx4 %s, %s, %s, %s offen offset:1024 sc1" % (RR(MA[3], 4), R(UL), SR(sWS, 4), S(sMEMRD)))
        a("s_waitcnt vmcnt(2)")
        poison_check(a, list(range(MA[0], MA[0] + 8)), Lb, Ld)
        stubB.append(('mem', Lb, Lp, Ld))
        a("s_branch %s" % Ld)
    a.label(Lp)
    a("buffer_load_dwordx4 %s, %s, %s, %s offen sc1" % (RR(MA[0], 4), R(UL), SR(sWS, 4), S(sMEMRD)))
    a("buffer_load_dwordx4 %s, %s, %s, %s offen offset:1024 sc1" % (RR(MA[1], 4), R(UL), SR(sWS, 4), S(sMEMRD)))
    a("s_waitcnt vmcnt(0)")
    poison_check(a, list(range(MA[0], MA[0] + 8)), Lr, Ld)
    stubs.append((Lr, Lp, Ld))
    a.label(Ld)
    tstamp(a, 0, timing); tp(a, 'top', timing)
    trace(a, 2, sL, sSTEP, [(sH, 0), (sW, 0)], T0, T1, sT0)
    a("ds_write_b128 %s, %s offset:%d" % (R(MXR), RR(MA[0], 4), MX_OFF))
    a("ds_write_b128 %s, %s offset:%d" % (R(MXR), RR(MA[1], 4), MX_OFF + 1024))
    weave(a, [S_smf(AQ[0], MA[0], WQ(0, 0)), S_smf(AQ[1], MA[0], WQ(1, 0)), S_smf(AK[0], MA[0], WK(0, 0)),
              S_smf(AK[1], MA[0], WK(1, 0)), S_smf(AQ[0], MA[1], WQ(0, 1)), S_smf(AQ[1], MA[1], WQ(1, 1))],
          [[],
           ["v_mov_b32 %s, 1" % R(T0)],
           [], [], [], []])
    a("s_waitcnt vmcnt(0) lgkmcnt(0)")
    a("s_barrier")
    mr = ["ds_read_b128 %s, %s offset:%d" % (RR(MA[i], 4), R(MXR + (i >> 1)), MX_OFF + (i & 1) * 1024) for i in range(2, 8)]
    a(mr[0]); a(mr[1])
    weave(a, [S_smf(AK[0], MA[1], WK(0, 1)), S_smf(AK[1], MA[1], WK(1, 1)), S_smf(AV[0], MA[0], WV(0, 0)),
              S_smf(AV[1], MA[0], WV(1, 0)), S_smf(AV[0], MA[1], WV(0, 1)), S_smf(AV[1], MA[1], WV(1, 1))],
          [[mr[2]], [mr[3]], [mr[4]], [mr[5]],
           ["buffer_load_dword %s, %s, %s, %s offen sc1" % (R(FLG), R(TBL + 3), SR(sWS, 4), S(sFLKV))],
           ["s_mov_b64 exec, %s" % SR(sW0, 2), "buffer_store_dword %s, %s, %s, %s offen sc1" % (R(T0), R(TBL + 3), SR(sWS, 4), S(sFLKM)), "s_mov_b64 exec, -1",
            "s_mov_b32 %s, %s" % (S(sFLKM), S(sFLKMN)), "s_add_u32 %s, %s, %d" % (S(sFLKMN), S(sFLKMN), JOBFLAG_BYTES)]])
    v70, v71 = vpref(7, 0), vpref(7, 1)
    kr = [("ds_read_b128 %s, %s offset:%d" % (RR(KX[f], 4), R(UL), KV_OFF + f * 1024)) for f in range(8)]
    vr = ["ds_read_b128 %s, %s offset:%d" % (RR(VX[0], 4), R(MXR), KV_OFF + 8192), "ds_read_b128 %s, %s offset:%d" % (RR(VX[1], 4), R(MXR), KV_OFF + 8192 + 1024)]
    a("s_waitcnt lgkmcnt(5)")
    smf(a, AQ[0], MA[2], WQ(0, 2)); smf(a, AQ[1], MA[2], WQ(1, 2))
    a("s_waitcnt lgkmcnt(4)")
    smf(a, AQ[0], MA[3], WQ(0, 3)); smf(a, AQ[1], MA[3], WQ(1, 3))
    a("s_waitcnt lgkmcnt(3)")
    smf(a, AQ[0], MA[4], WQ(0, 4)); smf(a, AQ[1], MA[4], WQ(1, 4))
    smf(a, AV[0], MA[4], F[(4, 0)]); smf(a, AV[1], MA[4], F[(4, 1)])
    a("s_waitcnt lgkmcnt(2)")
    weave(a, [S_smf(AQ[0], MA[5], WQ(0, 5)), S_smf(AQ[1], MA[5], WQ(1, 5)), S_smf(AV[0], MA[5], F[(5, 0)]), S_smf(AV[1], MA[5], F[(5, 1)])],
          [[v70[0]], [v70[1]], [v71[0]], [v71[1], "s_waitcnt lgkmcnt(4)"]])
    weave(a, [S_smf(AQ[0], MA[6], WQ(0, 6)), S_smf(AQ[1], MA[6], WQ(1, 6)), S_smf(AQ[0], MA[7], WQ(0, 7)), S_smf(AQ[1], MA[7], WQ(1, 7))],
          [[kr[0]], [kr[1]], [kr[2]], [kr[3]]])
    tstamp(a, 1, timing)
    qpost = ["v_add_f32 %s, %s, %s" % (R(AQ[0]), R(AQ[0]), R(AQ[0] + 2)),
             "v_add_f32 %s, %s, %s" % (R(AQ[0] + 1), R(AQ[0] + 1), R(AQ[0] + 3)),
             "v_add_f32 %s, %s, %s" % (R(AQ[1]), R(AQ[1]), R(AQ[1] + 2)),
             "v_add_f32 %s, %s, %s" % (R(AQ[1] + 1), R(AQ[1] + 1), R(AQ[1] + 3)),
             "v_cvt_pk_bf16_f32 %s, %s, %s" % (R(AQ[0]), R(AQ[0]), R(AQ[0] + 1)),
             "v_cvt_pk_bf16_f32 %s, %s, %s" % (R(AQ[1]), R(AQ[1]), R(AQ[1] + 1)),
             "ds_write2_b32 %s, %s, %s offset0:0 offset1:%d" % (R(QWQ), R(AQ[0]), R(AQ[1]), 16 * IST // 4)]
    km = []
    for i in range(2, 8): km += [S_smf(AK[0], MA[i], WK(0, i)), S_smf(AK[1], MA[i], WK(1, i))]
    a("s_waitcnt lgkmcnt(4)")
    weave(a, [S_smf(AV[0], MA[6], F[(6, 0)]), S_smf(AV[1], MA[6], F[(6, 1)]), S_smf(AV[0], MA[7], F[(7, 0)]), S_smf(AV[1], MA[7], F[(7, 1)])],
          [[kr[4]], [kr[5]], [kr[6]], [kr[7]]])
    qtr = []
    for ks in range(4):
        qtr += ["ds_read_b64_tr_b16 %s, %s offset:%d" % (RR(QF[ks], 2), R(QR), QI_OFF + ks * 32 * IST),
                "ds_read_b64_tr_b16 %s, %s offset:%d" % (RR(QF[ks] + 2, 2), R(QR), QI_OFF + ks * 32 * IST + 8 * IST)]
    weave(a, km[:8], [[qpost[0]], [qpost[1]], [qpost[2]], [qpost[3]], [qpost[4]], [qpost[5]], [qpost[6]], [vr[0]]])
    a(km[8])
    a("s_waitcnt lgkmcnt(1)")
    a("s_barrier")
    weave(a, km[9:], [qtr[0:3], qtr[3:6], qtr[6:8]])
    tp(a, 'kdone', timing); tstamp(a, 2, timing)
    kpost = ["v_add_f32 %s, %s, %s" % (R(AK[0]), R(AK[0]), R(AK[0] + 2)),
             "v_add_f32 %s, %s, %s" % (R(AK[0] + 1), R(AK[0] + 1), R(AK[0] + 3)),
             "v_add_f32 %s, %s, %s" % (R(AK[1]), R(AK[1]), R(AK[1] + 2)),
             "v_add_f32 %s, %s, %s" % (R(AK[1] + 1), R(AK[1] + 1), R(AK[1] + 3)),
             "v_cvt_pk_bf16_f32 %s, %s, %s" % (R(AK[0]), R(AK[0]), R(AK[0] + 1)),
             "v_cvt_pk_bf16_f32 %s, %s, %s" % (R(AK[1]), R(AK[1]), R(AK[1] + 1)),
             "ds_write2_b32 %s, %s, %s offset0:0 offset1:1" % (R(QWK), R(AK[0]), R(AK[0])),
             "ds_write2_b32 %s, %s, %s offset0:%d offset1:%d" % (R(QWK), R(AK[1]), R(AK[1]), 16 * IST // 4, 16 * IST // 4 + 1)]
    a("s_mul_i32 %s, %s, %d" % (S(sT0), S(sW), 32 * IST))
    weave(a, [S_smf(AV[0], MA[2], WV(0, 2)), S_smf(AV[1], MA[2], WV(1, 2)), S_smf(AV[0], MA[3], WV(0, 3)), S_smf(AV[1], MA[3], WV(1, 3))],
          [[vr[1]], ["v_add_u32 %s, %s, %s" % (R(T2), S(sT0), R(QR))], [], []])
    sx = []
    for ks in range(4):
        sx += [S_mf32(SX[0], KX[ks], QF[ks], None if ks == 0 else SX[0]), S_mf32(SX[1], KX[4 + ks], QF[ks], None if ks == 0 else SX[1])]
    a("s_waitcnt lgkmcnt(0)")
    weave(a, sx[:4], [kpost[0:2], kpost[2:4], kpost[4:6], kpost[6:8]])
    a("s_waitcnt vmcnt(1)")
    a("v_cmp_ne_u32 vcc, 0, %s" % R(FLG))
    dm = S_kv_dma(src=sT3)
    weave(a, sx[4:], [["s_cmp_eq_u64 vcc, -1", "s_cselect_b32 %s, 1, 0" % S(sRDY), "s_cselect_b32 %s, %s, %s" % (S(sT3), S(sKVSRC), S(sKVDUM))],
                      dm[0:3], dm[3:5] + [dm[6]], [dm[7]]])
    tp(a, 'vdone', timing)
    a("s_waitcnt lgkmcnt(0)")
    tp(a, 'b2w', timing)
    a("s_barrier")
    tp(a, 'b2', timing)
    for k2 in range(4):
        a("ds_read_b64_tr_b16 %s, %s offset:%d" % (RR(KMF[k2], 2), R(QR), MX_OFF + k2 * 32 * IST))
        a("ds_read_b64_tr_b16 %s, %s offset:%d" % (RR(KMF[k2] + 2, 2), R(QR), MX_OFF + k2 * 32 * IST + 8 * IST))
    a("ds_read_b64_tr_b16 %s, %s offset:%d" % (RR(PUB, 2), R(T2), MX_OFF))
    a("ds_read_b64_tr_b16 %s, %s offset:%d" % (RR(PUB + 2, 2), R(T2), MX_OFF + 8 * IST))
    def wpref(nt, j): return S_rdfrag(WOB[(nt, j)], wo_lds(nt, j))
    for x in wpref(4, 0) + wpref(4, 1): a(x)
    tp(a, 'dma', timing)
    a("v_cvt_pk_bf16_f32 %s, %s, %s" % (R(64), R(64), R(65)))
    a("v_cvt_pk_bf16_f32 %s, %s, %s" % (R(65), R(66), R(67)))
    a("v_cvt_pk_bf16_f32 %s, %s, %s" % (R(66), R(68), R(69)))
    a("v_cvt_pk_bf16_f32 %s, %s, %s" % (R(67), R(70), R(71)))
    a("s_add_u32 %s, %s, 4096" % (S(sT0), S(sKMJOB)))
    a("buffer_store_dwordx4 %s, %s, %s, %s offen sc1" % (RR(64, 4), R(UL), SR(sWS, 4), S(sT0)))
    for ks in range(4):
        a("s_waitcnt lgkmcnt(%d)" % (4 + 2 + 2 * (3 - ks)))
        mf32(a, SM, KMF[ks], QF[ks], None if ks == 0 else SM)
    tp(a, 'sissued', timing)
    a("v_max3_f32 %s, %s, %s, %s" % (R(TA), R(SX[0] + 1), R(SX[0] + 2), R(SX[0] + 3)))
    a("v_max3_f32 %s, %s, %s, %s" % (R(MXV), R(SX[0]), R(SX[1]), R(SX[1] + 1)))
    a("s_waitcnt lgkmcnt(4)")
    a("buffer_store_dwordx4 %s, %s, %s, %s offen sc1" % (RR(PUB, 4), R(UL), SR(sWS, 4), S(sKMJOB)))
    a("v_max3_f32 %s, %s, %s, %s" % (R(TA), R(TA), R(SX[1] + 2), R(SX[1] + 3)))
    a("s_cmp_eq_u32 %s, 63" % S(sSTEP))
    a("s_cbranch_scc1 L_chain_end")
    tstamp(a, 3, timing); tp(a, 'p3end', timing)
    a("v_max3_f32 %s, %s, %s, %s" % (R(MXV), R(MXV), R(SM), R(SM + 1)))
    a("v_max_f32 %s, %s, %s" % (R(MXV), R(MXV), R(TA)))
    a("v_mov_b32 %s, %s" % (R(TA), R(MXV)))
    for x in wpref(5, 0): a(x)
    a("v_permlane16_swap_b32 %s, %s" % (R(MXV), R(TA)))
    a("v_max_f32 %s, %s, %s" % (R(MXV), R(MXV), R(TA)))
    a("v_mov_b32 %s, %s" % (R(TA), R(MXV)))
    for x in wpref(5, 1): a(x)
    a("v_permlane32_swap_b32 %s, %s" % (R(MXV), R(TA)))
    a("v_max_f32 %s, %s, %s" % (R(MXV), R(MXV), R(TA)))
    a("v_mul_f32 %s, %s, %s" % (R(TA), S(sCEXP), R(MXV)))
    vals = [SM, SM + 1] + [SX[0] + i for i in range(4)] + [SX[1] + i for i in range(4)]
    for v_ in vals: a("v_fma_f32 %s, %s, %s, -%s" % (R(v_), R(v_), S(sCEXP), R(TA)))
    for x in wpref(6, 0): a(x)
    for v_ in vals[:4]: a("v_exp_f32 %s, %s" % (R(v_), R(v_)))
    for x in wpref(6, 1): a(x)
    for v_ in vals[4:]: a("v_exp_f32 %s, %s" % (R(v_), R(v_)))
    a("v_cvt_pk_bf16_f32 %s, %s, %s" % (R(PM), R(SM), R(SM + 1)))
    a("v_cvt_pk_bf16_f32 %s, %s, %s" % (R(PM + 1), R(SM), R(SM + 1)))
    a("v_cvt_pk_bf16_f32 %s, %s, %s" % (R(PX), R(SX[0]), R(SX[0] + 1)))
    a("v_cvt_pk_bf16_f32 %s, %s, %s" % (R(PX + 1), R(SX[0] + 2), R(SX[0] + 3)))
    mf16(a, OACC[0], 64, PM)
    a("v_cvt_pk_bf16_f32 %s, %s, %s" % (R(PX + 2), R(SX[1]), R(SX[1] + 1)))
    a("v_cvt_pk_bf16_f32 %s, %s, %s" % (R(PX + 3), R(SX[1] + 2), R(SX[1] + 3)))
    mf16(a, OACC[1], 66, PM)
    a("v_add_f32 %s, %s, %s" % (R(ZX), R(SM), R(SM + 1)))
    a("v_add_f32 %s, %s, %s" % (R(TA), R(SX[0]), R(SX[0] + 1)))
    mf32(a, OACC[0], VX[0], PX, OACC[0])
    a("v_add_f32 %s, %s, %s" % (R(RZ), R(SX[0] + 2), R(SX[0] + 3)))
    a("v_add_f32 %s, %s, %s" % (R(ZX), R(ZX), R(TA)))
    mf32(a, OACC[1], VX[1], PX, OACC[1])
    a("v_add_f32 %s, %s, %s" % (R(TA), R(SX[1]), R(SX[1] + 1)))
    a("v_add_f32 %s, %s, %s" % (R(ZX), R(ZX), R(RZ)))
    a("v_add_f32 %s, %s, %s" % (R(RZ), R(SX[1] + 2), R(SX[1] + 3)))
    a("v_add_f32 %s, %s, %s" % (R(ZX), R(ZX), R(TA)))
    a("v_add_f32 %s, %s, %s" % (R(ZX), R(ZX), R(RZ)))
    a("v_mov_b32 %s, %s" % (R(TA), R(ZX)))
    for x in wpref(7, 0): a(x)
    a("v_permlane16_swap_b32 %s, %s" % (R(ZX), R(TA)))
    a("v_add_f32 %s, %s, %s" % (R(ZX), R(ZX), R(TA)))
    a("v_mov_b32 %s, %s" % (R(TA), R(ZX)))
    for x in wpref(7, 1): a(x)
    a("v_permlane32_swap_b32 %s, %s" % (R(ZX), R(TA)))
    a("v_add_f32 %s, %s, %s" % (R(ZX), R(ZX), R(TA)))
    a("v_rcp_f32 %s, %s" % (R(RZ), R(ZX)))
    a("v_mov_b64 %s, 0" % RR(16, 2))
    for t in range(2):
        for i in range(4):
            a("v_mul_f32 %s, %s, %s" % (R(OACC[t] + i), R(OACC[t] + i), R(RZ)))
    a("v_cvt_pk_bf16_f32 %s, %s, %s" % (R(OC), R(OACC[0]), R(OACC[0] + 1)))
    a("v_cvt_pk_bf16_f32 %s, %s, %s" % (R(OC + 1), R(OACC[0] + 2), R(OACC[0] + 3)))
    a("v_cvt_pk_bf16_f32 %s, %s, %s" % (R(OC + 2), R(OACC[1]), R(OACC[1] + 1)))
    a("v_cvt_pk_bf16_f32 %s, %s, %s" % (R(OC + 3), R(OACC[1] + 2), R(OACC[1] + 3)))
    a("s_mov_b64 exec, %s" % SR(sO8, 2))
    a("ds_write_b128 %s, %s offset:%d" % (R(OW), RR(OC, 4), OX_OFF))
    a("s_mov_b64 exec, -1")
    tstamp(a, 4, timing)
    for r_ in range(18, 36, 2): a("v_mov_b64 %s, 0" % RR(r_, 2))
    a("s_waitcnt lgkmcnt(0)")
    a("s_barrier")
    a("ds_read_b128 %s, %s offset:%d" % (RR(OA[0], 4), R(OR_), OX_OFF))
    a("ds_read_b128 %s, %s offset:%d" % (RR(OA[1], 4), R(OR_), OX_OFF + 128))
    a("ds_read_b128 %s, %s offset:%d" % (RR(TBL, 4), R(UL), TB_OFF))
    a("ds_read_b128 %s, %s offset:%d" % (RR(SEL, 4), R(UL), SEL_OFF))
    for r_ in range(36, 48, 2): a("v_mov_b64 %s, 0" % RR(r_, 2))
    a("s_waitcnt lgkmcnt(2)")
    def wpost(nt, d):
        x = WA[nt]
        return ["v_add_f32 %s, %s, %s" % (R(x), R(x), R(x + 2)), "v_add_f32 %s, %s, %s" % (R(x + 1), R(x + 1), R(x + 3)),
                "v_cvt_pk_bf16_f32 %s, %s, %s" % (R(d), R(x), R(x + 1))]
    def WB(nt, j): return WO(nt, j) if nt < 4 else WOB[(nt, j)]
    order = [(0, 0), (1, 0), (0, 1), (1, 1), (2, 0), (3, 0), (2, 1), (3, 1), (4, 0), (5, 0), (4, 1), (5, 1), (6, 0), (7, 0), (6, 1), (7, 1)]
    wm = [S_smf(WA[nt], OA[j], WB(nt, j)) for nt, j in order]
    p = [wpost(nt, PK + nt) for nt in range(8)]
    st0 = "buffer_store_dwordx4 %s, %s, %s, %s offen" % (RR(PK, 4), R(UL), SR(sWS, 4), S(sPARTST))
    weave(a, wm, [[], [], [], [], [], [], [], [], [p[0][0]], [p[0][1]], [p[0][2], p[1][0]], [p[1][1], p[1][2]], [p[2][0], p[2][1]], [p[2][2], p[3][0]], [p[3][1], p[3][2]], [st0]])
    for nt in range(4, 8):
        for x in p[nt]: a(x)
    a("buffer_store_dwordx4 %s, %s, %s, %s offen offset:1024" % (RR(PK + 4, 4), R(UL), SR(sWS, 4), S(sPARTST)))
    tstamp(a, 5, timing)
    for r_ in range(48, 72, 2): a("v_mov_b64 %s, 0" % RR(r_, 2))
    a("s_add_u32 %s, %s, 0x20000" % (S(sT1), S(sPARTLD)))
    dly = opt.get('pdelay', 5)
    if dly: a("s_sleep %d" % dly)
    Lp = a.newlabel('ppoll'); Ld = a.newlabel('ppolld'); Lr = a.newlabel('pretry'); Lb = a.newlabel('ppollb')
    RD2 = 92
    if dbl:
        a("buffer_load_dwordx4 %s, %s, %s, %s offen sc1" % (RR(RD, 4), R(TBL + 1), SR(sWS, 4), S(sPARTLD)))
        a("buffer_load_dwordx4 %s, %s, %s, %s offen sc1" % (RR(RD + 4, 4), R(TBL + 1), SR(sWS, 4), S(sT1)))
        a("s_sleep %d" % opt.get('pstag', 2))
        a("buffer_load_dwordx4 %s, %s, %s, %s offen sc1" % (RR(RD2, 4), R(TBL + 1), SR(sWS, 4), S(sPARTLD)))
        a("buffer_load_dwordx4 %s, %s, %s, %s offen sc1" % (RR(RD2 + 4, 4), R(TBL + 1), SR(sWS, 4), S(sT1)))
        a("s_waitcnt vmcnt(2)")
        poison_check(a, list(range(RD, RD + 8)), Lb, Ld)
        stubB.append(('part', Lb, Lp, Ld))
        a("s_branch %s" % Ld)
    a.label(Lp)
    a("buffer_load_dwordx4 %s, %s, %s, %s offen sc1" % (RR(RD, 4), R(TBL + 1), SR(sWS, 4), S(sPARTLD)))
    a("buffer_load_dwordx4 %s, %s, %s, %s offen sc1" % (RR(RD + 4, 4), R(TBL + 1), SR(sWS, 4), S(sT1)))
    a("s_waitcnt vmcnt(0)")
    poison_check(a, list(range(RD, RD + 8)), Lr, Ld)
    stubs.append((Lr, Lp, Ld))
    a.label(Ld)
    tstamp(a, 6, timing)
    mf32(a, RS, SEL, RD); mf32(a, RS, SEL, RD + 4, RS)
    a("s_add_u32 %s, %s, 1" % (S(sSLOT), S(sSLOT)))
    a("s_cmp_eq_u32 %s, 3" % S(sSLOT))
    a("s_cselect_b32 %s, 0, %s" % (S(sSLOT), S(sSLOT)))
    a("s_lshl_b32 %s, %s, 13" % (S(sT0), S(sSLOT)))
    a("s_add_u32 %s, %s, %s" % (S(sMEMRD), S(sMEMRD0), S(sT0)))
    a("s_lshl_b32 %s, %s, 18" % (S(sT1), S(sSLOT)))
    a("v_mov_b64 %s, -1" % RR(POI, 2))
    a("v_mov_b64 %s, -1" % RR(POI + 2, 2))
    for i in range(4):
        a("v_add_f32_dpp %s, %s, %s row_ror:8 row_mask:0xf bank_mask:0xf" % (R(RS + i), R(RS + i), R(RS + i)))
    for i in range(4):
        a("v_add_f32_dpp %s, %s, %s row_ror:4 row_mask:0xf bank_mask:0xf" % (R(RS + i), R(RS + i), R(RS + i)))
    a("v_cndmask_b32 %s, %s, %s, %s" % (R(RS), R(RS), R(RS + 1), SR(sM2, 2)))
    a("v_cndmask_b32 %s, %s, %s, %s" % (R(RS + 2), R(RS + 2), R(RS + 3), SR(sM2, 2)))
    a("v_cvt_pk_bf16_f32 %s, %s, %s" % (R(RS), R(RS), R(RS + 2)))
    a("s_mov_b64 exec, %s" % SR(sEX, 2))
    a("buffer_store_dword %s, %s, %s, %s offen" % (R(RS), R(TBL + 2), SR(sWS, 4), S(sMEMST)))
    a("s_mov_b64 exec, -1")
    tstamp(a, 7, timing)
    a("s_add_u32 %s, %s, %s" % (S(sPARTST), S(sPARTST0), S(sT1)))
    a("s_add_u32 %s, %s, %s" % (S(sPARTLD), S(sPARTLD0), S(sT1)))
    a("s_add_u32 %s, %s, 1" % (S(sT2), S(sSLOT)))
    a("s_cmp_eq_u32 %s, 3" % S(sT2))
    a("s_cselect_b32 %s, 0, %s" % (S(sT2), S(sT2)))
    a("s_lshl_b32 %s, %s, 13" % (S(sT0), S(sT2)))
    a("s_add_u32 %s, %s, %s" % (S(sMEMST), S(sMEMST0), S(sT0)))
    a("s_lshl_b32 %s, %s, 18" % (S(sT0), S(sT2)))
    a("s_add_u32 %s, %s, %s" % (S(sT0), S(sPARTST0), S(sT0)))
    a("buffer_store_dwordx4 %s, %s, %s, %s offen" % (RR(POI, 4), R(UL), SR(sWS, 4), S(sT0)))
    a("buffer_store_dwordx4 %s, %s, %s, %s offen offset:1024" % (RR(POI, 4), R(UL), SR(sWS, 4), S(sT0)))
    a("s_mov_b64 exec, %s" % SR(sEX, 2))
    a("buffer_store_dword %s, %s, %s, %s offen" % (R(POI), R(TBL + 2), SR(sWS, 4), S(sMEMST)))
    a("s_mov_b64 exec, -1")
    a("s_waitcnt vmcnt(4)")
    for i in (4, 5, 6):
        for t in range(2):
            for x in vpref(i, t): a(x)
    Lok = a.newlabel('kvok')
    a("s_cmp_ge_u32 %s, 62" % S(sSTEP))
    a("s_cbranch_scc1 %s" % Lok)
    a("s_cmp_eq_u32 %s, 1" % S(sRDY))
    a("s_cbranch_scc1 %s" % Lok)
    poll(a, T1, TBL + 3, S(sFLKV))
    for t in S_kv_dma(): a(t)
    a.label(Lok)
    a("s_add_u32 %s, %s, 1" % (S(sSTEP), S(sSTEP)))
    a("s_add_u32 %s, %s, %d" % (S(sKVSRC), S(sKVSRC), QKV_JOB))
    a("s_add_u32 %s, %s, %d" % (S(sKMJOB), S(sKMJOB), KM_JOB))
    a("s_add_u32 %s, %s, %d" % (S(sFLKV), S(sFLKV), JOBFLAG_BYTES))
    if opt.get('mdelay', 2): a("s_sleep %d" % opt.get('mdelay', 2))
    if timing == 2:
        a("s_waitcnt lgkmcnt(0)")
        for k in range(7):
            a("s_sub_u32 %s, s%d, s%d" % (S(sT0), 74 + 2 * k, 72 + 2 * k))
            a("s_add_u32 s%d, s%d, %s" % (88 + k, 88 + k, S(sT0)))
    a("s_branch L_step")
    a.filt = None
    for st in stubs: retry_stub(a, *st)
    for kind, Lb, Lp, Ld in stubB:
        src, dst = ((MA[2], MA[0]) if kind == 'mem' else (92, RD))
        a.label(Lb)
        a("s_waitcnt vmcnt(0)")
        Lf = a.newlabel('bfail')
        poison_check(a, list(range(src, src + 8)), Lf, Ld)
        for k in range(0, 8, 2): a("v_mov_b64 %s, %s" % (RR(dst + k, 2), RR(src + k, 2)))
        a("s_branch %s" % Ld)
        a.label(Lf)
        a("s_add_u32 %s, %s, 1" % (S(sTMO), S(sTMO)))
        a("s_branch %s" % Lp)
    a.label("L_chain_end")
    a("s_waitcnt vmcnt(0)")
    a("s_barrier")
    a("v_mov_b32 %s, 1" % R(T0))
    a("v_mov_b32 %s, 0" % R(T1))
    a("s_mov_b64 exec, %s" % SR(sW0, 2))
    a("buffer_store_dword %s, %s, %s, %s offen sc1" % (R(T0), R(T1), SR(sWS, 4), S(sFLKM)))
    a("s_mov_b64 exec, -1")

def chain_role(a, init_target, timing=0, opt=None):
    trace_cu(a, 0, T1, T2, 3)
    a("s_mov_b32 %s, %s" % (S(sL), S(sXCC)))
    Lg = a.newlabel('go')
    a("s_cmp_eq_u32 %s, 0" % S(sL)); a("s_cbranch_scc1 %s" % Lg)
    if GATE: gate_wait(a, T1, T2, GATE)
    a.label(Lg)
    chain_pre(a)
    if timing:
        for k in range(88, 96): a("s_mov_b32 s%d, 0" % k)
        a("s_memtime s[96:97]")
    chain_load_weights(a, mid=chain_setup)
    trace_cu(a, 3, T1, T2, 3)
    a("s_waitcnt vmcnt(0)")
    a("s_barrier")
    a("s_lshl_b32 %s, %s, 2" % (S(sT0), S(sL)))
    a("s_add_u32 %s, %s, %d" % (S(sT0), S(sT0), DBG_W0))
    Lb = a.newlabel('cb')
    a("s_cmp_eq_u32 %s, 0" % S(sW)); a("s_cbranch_scc0 %s" % Lb)
    a("s_mov_b64 exec, 1")
    a("v_mov_b32 %s, 1" % R(T1))
    a("v_mov_b32 %s, %s" % (R(T2), S(sT0)))
    a("buffer_atomic_add %s, %s, %s, 0 offen" % (R(T1), R(T2), SR(sDBG, 4)))
    a("s_mov_b64 exec, -1")
    Lw = a.newlabel('cw'); Lwd = a.newlabel('cwd')
    a.label(Lw)
    a("buffer_load_dword %s, %s, %s, 0 offen sc1" % (R(T1), R(T2), SR(sDBG, 4)))
    a("s_waitcnt vmcnt(0)")
    a("v_readfirstlane_b32 %s, %s" % (S(sT1), R(T1)))
    a("s_cmp_ge_u32 %s, 32" % S(sT1))
    a("s_cbranch_scc1 %s" % Lwd)
    a("s_add_u32 %s, %s, 1" % (S(sTMO), S(sTMO)))
    a("s_cmp_gt_u32 %s, %d" % (S(sTMO), TIMEOUT))
    a("s_cbranch_scc1 %s" % Lwd)
    a("s_sleep 2")
    a("s_branch %s" % Lw)
    a.label(Lwd)
    a.label(Lb)
    wait_init(a, T1, T2, init_target)
    if timing:
        a("s_memtime s[98:99]")
    chain_loop(a, timing, opt)
    if timing:
        a("s_memtime s[100:101]")
        a("s_waitcnt lgkmcnt(0)")
        a("s_sub_u32 s95, s98, s96")
        a("s_sub_u32 s96, s100, s98")
        a("s_mov_b32 s97, %s" % S(sTMO))
        Lx = a.newlabel('tw')
        a("s_cmp_eq_u32 %s, 0" % S(sH)); a("s_cbranch_scc0 %s" % Lx)
        a("s_cmp_eq_u32 %s, 0" % S(sW)); a("s_cbranch_scc0 %s" % Lx)
        a("s_mov_b64 exec, 1")
        a("s_lshl_b32 %s, %s, 6" % (S(sT0), S(sL)))
        a("v_mov_b32 %s, %s" % (R(T1), S(sT0)))
        for k in range(10):
            a("v_mov_b32 %s, s%d" % (R(T0), 88 + k))
            a("s_mov_b32 %s, %d" % (S(sT1), WS_TRACE + 16384))
            a("buffer_store_dword %s, %s, %s, %s offen offset:%d" % (R(T0), R(T1), SR(sWS, 4), S(sT1), 4 * k))
        a("s_mov_b64 exec, -1")
        a.label(Lx)
    a("s_waitcnt vmcnt(0)")
    a("s_branch L_exit")
```

```python
from asmgen import *
from layout import *

sWS = 4
sDBG = 8
sA, sB, sC, sD = 12, 16, 20, 24
sXCC, sTICK, sW, sTMO = 28, 29, 30, 31
SRD3 = 0x00020000
TIMEOUT = 300000
KA = dict(x=0, mem0=8, Wq=16, Wk=24, Wv=32, Wo=40, seg=48, bx=56, Wg=64, Wu=72, Wd=80, out=88, dbg=96, ws=104)
SIZES = dict(x=S_*D_*2, mem0=M_*D_*2, Wq=D_*H_*E_*2, Wk=D_*H_*E_*2, Wv=D_*H_*E_*2, Wo=D_*H_*E_*2, Wg=D_*F_*2, Wu=D_*F_*2, Wd=D_*F_*2, out=S_*D_*2)
DBG_TICKET = 0
DBG_INIT = 16 * 4
DBG_W0 = 48 * 4

LDS_CNT = 163776
def pollge(a, vtmp, vzero, soff, target, sleep=2):
    L = a.newlabel('pg'); Dn = a.newlabel('pgd')
    a.label(L)
    a("buffer_load_dword %s, %s, %s, %s offen sc1" % (R(vtmp), R(vzero), SR(sWS, 4), soff))
    a("s_waitcnt vmcnt(0)")
    a("v_cmp_le_u32 vcc, %d, %s" % (target, R(vtmp)))
    a("s_cbranch_vccnz %s" % Dn)
    a("s_add_u32 %s, %s, 1" % (S(sTMO), S(sTMO)))
    a("s_cmp_gt_u32 %s, %d" % (S(sTMO), TIMEOUT))
    a("s_cbranch_scc1 %s" % Dn)
    if sleep: a("s_sleep %d" % sleep)
    a("s_branch %s" % L)
    a.label(Dn)

def cu_signal(a, vt0, vt1, s_addr, s_par, st):
    L = a.newlabel('sg')
    a("s_add_u32 %s, %s, %d" % (S(st), S(s_par), LDS_CNT))
    a("v_mov_b32 %s, %s" % (R(vt1), S(st)))
    a("v_mov_b32 %s, 1" % R(vt0))
    a("s_mov_b64 exec, 1")
    a("ds_add_rtn_u32 %s, %s, %s" % (R(vt1), R(vt1), R(vt0)))
    a("s_waitcnt lgkmcnt(0)")
    a("v_readfirstlane_b32 %s, %s" % (S(st), R(vt1)))
    a("s_and_b32 %s, %s, 3" % (S(st), S(st)))
    a("s_cmp_eq_u32 %s, 3" % S(st))
    a("s_cbranch_scc0 %s" % L)
    a("v_mov_b32 %s, 0" % R(vt1))
    a("buffer_atomic_add %s, %s, %s, %s offen" % (R(vt0), R(vt1), SR(sWS, 4), s_addr))
    a.label(L)
    a("s_mov_b64 exec, -1")

def load_srd(a, sreg, name):
    a("s_load_dwordx2 %s, s[0:1], %d" % (SR(sreg, 2), KA[name]))
def finish_srd(a, sreg, name):
    a("s_mov_b32 %s, 0x%x" % (S(sreg + 2), SIZES[name]))
    a("s_mov_b32 %s, 0x%x" % (S(sreg + 3), SRD3))

def poll(a, vtmp, voff, soff, srd=sWS, imm=0, sleep=1, label=None):
    L = a.newlabel('poll'); Dn = a.newlabel('polld')
    a.label(L)
    a("buffer_load_dword %s, %s, %s, %s offen offset:%d sc1" % (R(vtmp), R(voff), SR(srd, 4), soff, imm))
    a("s_waitcnt vmcnt(0)")
    a("v_cmp_ne_u32 vcc, 0, %s" % R(vtmp))
    a("s_cmp_eq_u64 vcc, -1")
    a("s_cbranch_scc1 %s" % Dn)
    a("s_add_u32 %s, %s, 1" % (S(sTMO), S(sTMO)))
    a("s_cmp_gt_u32 %s, %d" % (S(sTMO), TIMEOUT))
    a("s_cbranch_scc1 %s" % Dn)
    if sleep: a("s_sleep %d" % sleep)
    a("s_branch %s" % L)
    a.label(Dn)

def wait_init(a, vtmp, vzero_off, target):
    trace_cu(a, 1, vtmp, vzero_off, 3)
    Lb = a.newlabel('winitb')
    a("s_cmp_eq_u32 %s, 0" % S(sW)); a("s_cbranch_scc0 %s" % Lb)
    wait_dbg(a, vtmp, vzero_off, DBG_INIT, target, sleep=6)
    a.label(Lb)
    a("s_barrier")
    trace_cu(a, 2, vtmp, vzero_off, 3)

def signal_init(a, vt0, vt1):
    trace_cu(a, 0, vt0, vt1, 3)
    Dn = a.newlabel('sinit')
    a("s_waitcnt vmcnt(0)")
    a("s_barrier")
    a("s_cmp_eq_u32 %s, 0" % S(sW))
    a("s_cbranch_scc0 %s" % Dn)
    a("s_mov_b64 exec, 1")
    a("v_mov_b32 %s, 1" % R(vt0))
    a("v_mov_b32 %s, %d" % (R(vt1), DBG_INIT))
    a("buffer_atomic_add %s, %s, %s, 0 offen" % (R(vt0), R(vt1), SR(sDBG, 4)))
    a("s_mov_b64 exec, -1")
    a.label(Dn)

def prologue(a, zero_flags=True):
    a("s_cmp_ge_u32 s2, 256")
    a("s_cbranch_scc1 L_exit")
    a("s_load_dwordx2 %s, s[0:1], %d" % (SR(sWS, 2), KA['ws']))
    a("s_load_dwordx2 %s, s[0:1], %d" % (SR(sDBG, 2), KA['dbg']))
    a("s_getreg_b32 %s, hwreg(HW_REG_XCC_ID, 0, 3)" % S(sXCC))
    a("v_lshrrev_b32 v1, 6, v0")
    a("v_and_b32 v0, 63, v0")
    a("v_readfirstlane_b32 %s, v1" % S(sW))
    a("s_mov_b32 %s, 0" % S(sTMO))
    if CODE_PF:
        a("s_getpc_b64 s[12:13]")
        a.label("L_pc0")
        a("s_cmp_eq_u32 %s, 0" % S(sW))
        a("s_cbranch_scc1 L_nopf")
        a("s_sub_u32 s14, %s, 1" % S(sW))
        a("s_lshl_b32 s14, s14, 12")
        a("v_lshlrev_b32 v2, 6, v0")
        a("v_add_u32 v2, s14, v2")
        for k in range(CODE_PF):
            a("global_load_dword v3, v2, s[12:13]")
            if k + 1 < CODE_PF: a("v_add_u32 v2, 0x3000, v2")
        a.label("L_nopf")
    a("s_waitcnt lgkmcnt(0)")
    a("s_mov_b32 %s, 0x10000000" % S(sWS + 2))
    a("s_mov_b32 %s, 0x%x" % (S(sWS + 3), SRD3))
    a("s_mov_b32 %s, 256" % S(sDBG + 2))
    a("s_mov_b32 %s, 0x%x" % (S(sDBG + 3), SRD3))
    a("s_cmp_eq_u32 %s, 0" % S(sW))
    a("s_cbranch_scc0 L_tick1")
    a("s_mov_b64 exec, 1")
    a("v_mov_b32 v1, 1")
    a("s_lshl_b32 s3, %s, 2" % S(sXCC))
    a("v_mov_b32 v2, s3")
    a("buffer_atomic_add v1, v2, %s, 0 offen sc0" % SR(sDBG, 4))
    a("s_waitcnt vmcnt(0)")
    a("v_mov_b32 v2, 0")
    a("ds_write_b32 v2, v1")
    a("v_mov_b32 v3, %d" % LDS_CNT)
    a("v_mov_b32 v4, 0\nv_mov_b32 v5, 0")
    a("ds_write_b64 v3, v[4:5]")
    a("s_waitcnt lgkmcnt(0)")
    a("s_mov_b64 exec, -1")
    a.label("L_tick1")
    a("s_barrier")
    a("v_mov_b32 v2, 0")
    a("ds_read_b32 v1, v2")
    a("s_waitcnt lgkmcnt(0)")
    a("v_readfirstlane_b32 %s, v1" % S(sTICK))
    a("s_barrier")
    a("s_cmp_ge_u32 %s, 32" % S(sTICK))
    a("s_cbranch_scc1 L_exit")
    if zero_flags:
        a("s_cmp_eq_u32 %s, 0" % S(sW))
        a("s_cbranch_scc0 L_zf")
        a("s_cmp_lt_u32 %s, 4" % S(sXCC))
        a("s_cbranch_scc1 L_zf")
        a("s_sub_u32 s3, %s, 4" % S(sXCC))
        a("s_lshl_b32 s3, s3, 5")
        a("s_add_u32 s3, s3, %s" % S(sTICK))
        a("s_mul_i32 s3, s3, 6144")
        a("v_lshlrev_b32 v1, 4, v0")
        a("v_mov_b32 v4, 0\nv_mov_b32 v5, 0\nv_mov_b32 v6, 0\nv_mov_b32 v7, 0")
        for k in range(4):
            a("buffer_store_dwordx4 v[4:7], v1, %s, s3 offen offset:%d sc1" % (SR(sWS, 4), k * 1024))
        a("s_add_u32 s3, s3, 4096")
        for k in range(2):
            a("buffer_store_dwordx4 v[4:7], v1, %s, s3 offen offset:%d sc1" % (SR(sWS, 4), k * 1024))
        a.label("L_zf")

HEADER = """; @launch grid=(256,1,1) block=(256,1,1) lds=163840
.amdgcn_target "amdgcn-amd-amdhsa--gfx950"
.text
.globl {name}
.p2align 8
.type {name},@function
{name}:
"""
FOOTER = """
.section .rodata,"a"
.p2align 6
.amdhsa_kernel {name}
  .amdhsa_next_free_vgpr 512
  .amdhsa_next_free_sgpr 102
  .amdhsa_accum_offset 256
  .amdhsa_group_segment_fixed_size 0
  .amdhsa_kernarg_size 112
  .amdhsa_user_sgpr_count 2
  .amdhsa_user_sgpr_kernarg_segment_ptr 1
  .amdhsa_system_sgpr_workgroup_id_x 1
.end_amdhsa_kernel
"""
KNAME = "interleave_layers__memory_aug_recurrent_mem_tr__swiglu_ffn__prompt_kernel"

TRACE = False
PSLEEP = 1
CODE_PF = 0
ONLY = None
WS_TRACE = 3 * MB + 768 * KB
NSTAGE = 12
def trace(a, stage, sl, ss, conds, vt0, vt1, st0, st1=None, cyc=False):
    if not TRACE: return
    if ONLY is not None and stage not in ONLY: return
    L = a.newlabel('tr')
    for sg, val in conds:
        a("s_cmp_eq_u32 %s, %d" % (S(sg), val)); a("s_cbranch_scc0 %s" % L)
    a("s_memtime s[98:99]" if cyc else "s_memrealtime s[98:99]")
    a("s_lshl_b32 %s, %s, 6" % (S(st0), S(sl)))
    a("s_add_u32 %s, %s, %s" % (S(st0), S(st0), S(ss)))
    a("s_lshl_b32 %s, %s, 2" % (S(st0), S(st0)))
    a("s_add_u32 %s, %s, %d" % (S(st0), S(st0), WS_TRACE + stage * 512))
    a("s_waitcnt lgkmcnt(0)")
    a("v_mov_b32 %s, s98" % R(vt0))
    a("v_mov_b32 %s, 0" % R(vt1))
    a("s_mov_b64 exec, 1")
    a("buffer_store_dword %s, %s, %s, %s offen" % (R(vt0), R(vt1), SR(sWS, 4), S(st0)))
    a("s_mov_b64 exec, -1")
    a.label(L)

def trace_cu(a, slot, vt0, vt1, st0):
    if not TRACE: return
    L = a.newlabel('tc')
    a("s_cmp_eq_u32 %s, 0" % S(sW)); a("s_cbranch_scc0 %s" % L)
    a("s_memrealtime s[98:99]")
    a("s_lshl_b32 %s, %s, 5" % (S(st0), S(sXCC)))
    a("s_add_u32 %s, %s, %s" % (S(st0), S(st0), S(sTICK)))
    a("s_lshl_b32 %s, %s, 4" % (S(st0), S(st0)))
    a("s_add_u32 %s, %s, %d" % (S(st0), S(st0), WS_TRACE + 8192 + slot * 4))
    a("s_waitcnt lgkmcnt(0)")
    a("v_mov_b32 %s, s98" % R(vt0))
    a("v_mov_b32 %s, 0" % R(vt1))
    a("s_mov_b64 exec, 1")
    a("buffer_store_dword %s, %s, %s, %s offen" % (R(vt0), R(vt1), SR(sWS, 4), S(st0)))
    a("s_mov_b64 exec, -1")
    a.label(L)

def wait_dbg(a, vtmp, voff, byteoff, target, sleep=8):
    L = a.newlabel('wd'); Dn = a.newlabel('wdd')
    tgt = ("%d" % target) if target <= 64 else ("0x%x" % target)
    a("v_mov_b32 %s, %d" % (R(voff), byteoff))
    a.label(L)
    a("buffer_load_dword %s, %s, %s, 0 offen sc1" % (R(vtmp), R(voff), SR(sDBG, 4)))
    a("s_waitcnt vmcnt(0)")
    a("v_cmp_le_u32 vcc, %s, %s" % (tgt, R(vtmp)))
    a("s_cbranch_vccnz %s" % Dn)
    a("s_add_u32 %s, %s, 1" % (S(sTMO), S(sTMO)))
    a("s_cmp_gt_u32 %s, %d" % (S(sTMO), TIMEOUT))
    a("s_cbranch_scc1 %s" % Dn)
    a("s_sleep %d" % sleep)
    a("s_branch %s" % L)
    a.label(Dn)
def gate_wait(a, vtmp, voff, target):
    Lb = a.newlabel('gwb')
    a("s_cmp_eq_u32 %s, 0" % S(sW)); a("s_cbranch_scc0 %s" % Lb)
    wait_dbg(a, vtmp, voff, DBG_W0, target, sleep=16)
    a.label(Lb)
    a("s_barrier")
def add_dbg(a, vt0, vt1, byteoff):
    L = a.newlabel('ad')
    a("s_cmp_eq_u32 %s, 0" % S(sW)); a("s_cbranch_scc0 %s" % L)
    a("s_mov_b64 exec, 1")
    a("v_mov_b32 %s, 1" % R(vt0))
    a("v_mov_b32 %s, %d" % (R(vt1), byteoff))
    a("buffer_atomic_add %s, %s, %s, 0 offen" % (R(vt0), R(vt1), SR(sDBG, 4)))
    a("s_mov_b64 exec, -1")
    a.label(L)

def wg_signal(a, vt0, vt1, s_addr, val=1):
    L = a.newlabel('ws')
    a("s_barrier")
    a("s_cmp_eq_u32 %s, 0" % S(sW)); a("s_cbranch_scc0 %s" % L)
    a("s_mov_b64 exec, 1")
    a("v_mov_b32 %s, %d" % (R(vt0), val))
    a("v_mov_b32 %s, 0" % R(vt1))
    a("buffer_atomic_add %s, %s, %s, %s offen" % (R(vt0), R(vt1), SR(sWS, 4), s_addr))
    a("s_mov_b64 exec, -1")
    a.label(L)
```

```python
import sys
from common import *
import chain, bulk, misc
from bulk import sX0, sX1, sX2, sT0
def code_bytes(src):
    import subprocess, tempfile, os
    d = tempfile.mkdtemp()
    open(d + "/t.s", "w").write(src)
    subprocess.run(["clang", "-x", "assembler", "-target", "amdgcn-amd-amdhsa", "-mcpu=gfx950", "-c", d + "/t.s", "-o", d + "/t.o"], check=True)
    out = subprocess.run(["llvm-objdump", "-h", d + "/t.o"], capture_output=True, text=True).stdout
    for ln in out.split("\n"):
        if ".text" in ln: return int(ln.split()[2], 16)
def build(timing=0, opt=None, zero_flags=True):
    import common
    if opt and opt.get('nocodepf'):
        common.CODE_PF = 0
        return build1(timing, opt, zero_flags)
    if not (opt and opt.get('codepf')):
        common.CODE_PF = 0
        return build1(timing, opt, zero_flags)
    common.CODE_PF = 1
    src, n = build1(timing, opt, zero_flags)
    sz = code_bytes(src)
    common.CODE_PF = (sz - 1024) // 12288
    return build1(timing, opt, zero_flags)
def build1(timing=0, opt=None, zero_flags=True):
    a = Asm()
    prologue(a, zero_flags=zero_flags)
    INIT = 128
    a("s_cmp_lt_u32 %s, 2" % S(sXCC)); a("s_cbranch_scc1 L_chain")
    a("s_cmp_lt_u32 %s, 4" % S(sXCC)); a("s_cbranch_scc1 L_s1j")
    a("s_cmp_eq_u32 %s, 4" % S(sXCC)); a("s_cbranch_scc0 L_n4")
    a("s_mov_b32 %s, %s" % (S(sX0), S(sTICK)))
    a("s_branch L_miscj")
    a.label("L_n4")
    a("s_cmp_lt_u32 %s, 7" % S(sXCC)); a("s_cbranch_scc0 L_x7")
    a("s_sub_u32 %s, %s, 5" % (S(sX0), S(sXCC)))
    a("s_cmp_lt_u32 %s, 16" % S(sTICK)); a("s_cbranch_scc0 L_x56b")
    a("s_lshr_b32 %s, %s, 2" % (S(sX1), S(sTICK))); a("s_and_b32 %s, %s, 3" % (S(sX2), S(sTICK)))
    a("s_branch L_s3j")
    a.label("L_x56b")
    a("s_cmp_lt_u32 %s, 30" % S(sTICK)); a("s_cbranch_scc0 L_x56c")
    a("s_sub_u32 %s, %s, 16" % (S(sX1), S(sTICK)))
    a("s_branch L_s4j")
    a.label("L_x56c")
    a("s_lshl_b32 %s, %s, 1" % (S(sX0), S(sX0)))
    a("s_add_u32 %s, %s, %s" % (S(sX0), S(sX0), S(sTICK)))
    a("s_add_u32 %s, %s, 2" % (S(sX0), S(sX0)))
    a("s_branch L_miscj")
    a.label("L_x7")
    a("s_cmp_lt_u32 %s, 16" % S(sTICK)); a("s_cbranch_scc0 L_x7b")
    a("s_lshr_b32 %s, %s, 3" % (S(sX0), S(sTICK)))
    a("s_bfe_u32 %s, %s, 0x10002" % (S(sX1), S(sTICK)))
    a("s_and_b32 %s, %s, 3" % (S(sX2), S(sTICK)))
    a("s_branch L_s5j")
    a.label("L_x7b")
    a("s_add_u32 %s, %s, 20" % (S(sX0), S(sTICK)))
    a("s_branch L_miscj")
    a.label("L_chain"); chain.chain_role(a, INIT, timing, opt)
    a.label("L_s1j"); bulk.s1_role(a, INIT)
    a.label("L_s3j"); bulk.s35_role(a, 3, INIT)
    a.label("L_s5j"); bulk.s35_role(a, 5, INIT)
    a.label("L_s4j"); bulk.s4_role(a, INIT)
    a.label("L_miscj"); misc.misc_role(a, INIT)
    a.label("L_exit")
    a("s_endpgm")
    body = a.render()
    return HEADER.format(name=KNAME) + body + FOOTER.format(name=KNAME), a.nnops
if __name__ == "__main__":
    src, n = build()
    hdr = open("cdna_kernels/" + KNAME[:-7] + ".s.ref").read().split("; Override launch")[0]
    out = sys.argv[1] if len(sys.argv) > 1 else "full.s"
    open(out, "w").write(hdr + src)
    print("nops", n, "lines", src.count("\n"), "bytes", len(src))
```

```python
import common
from common import *
import struct
def f32(x): return struct.unpack('<I', struct.pack('<f', x))[0]

GATEB = 8
PF_S1 = False
AHEAD = 0
DEDICATED = False
CYC = []
D_S1 = 14
D_POST = 13
GATES1 = 0
sREP, sAUX, sC0, sC1, sJL, sJS, sN, sD0 = 32, 33, 34, 35, 36, 37, 38, 39
sT0, sT1, sT2, sT3, sT4 = 40, 41, 42, 43, 44
sAUX2, sAUX3 = 45, 46
sFLJ = 47
sIN, sOUT = 48, 49
sK = 50
sLDSW = 51
sX0, sX1, sX2, sX3 = 52, 53, 54, 55

def sched_init(a, nrep, d0, rep_sgpr):
    a("s_mov_b32 %s, %s" % (S(sREP), S(rep_sgpr)))
    a("s_mov_b32 %s, 0" % S(sC0)); a("s_mov_b32 %s, 0" % S(sC1))
    if 64 % nrep == 0:
        a("s_mov_b32 %s, %d" % (S(sN), 64 // nrep))
    else:
        assert nrep == 3
        a("s_cmp_eq_u32 %s, 0" % S(sREP))
        a("s_cselect_b32 %s, 22, 21" % S(sN))
    a("s_mov_b32 %s, %d" % (S(sD0), d0))

def sched_layer(a, s_layer):
    a("s_mov_b32 %s, 0" % S(sREP))
    a("s_mov_b32 %s, 64" % S(sN))
    a("s_cmp_eq_u32 %s, 0" % S(s_layer))
    a("s_cselect_b32 %s, 0, 64" % S(sC0))
    a("s_cselect_b32 %s, 64, 0" % S(sC1))

def sched_next(a, nrep, Ldone):
    L0 = a.newlabel('j0'); L1 = a.newlabel('j1'); Le = a.newlabel('je')
    a("s_cmp_lt_u32 %s, %s" % (S(sC0), S(sN)))
    a("s_cbranch_scc0 %s" % L1)
    a("s_cmp_lt_u32 %s, %s" % (S(sC0), S(sD0)))
    a("s_cbranch_scc1 %s" % L0)
    a("s_sub_u32 %s, %s, %s" % (S(sT0), S(sC0), S(sD0)))
    a("s_cmp_le_u32 %s, %s" % (S(sC1), S(sT0)))
    a("s_cbranch_scc1 %s" % L1)
    a.label(L0)
    a("s_mov_b32 %s, 0" % S(sJL))
    a("s_mul_i32 %s, %s, %d" % (S(sJS), S(sC0), nrep))
    a("s_add_u32 %s, %s, 1" % (S(sC0), S(sC0)))
    a("s_branch %s" % Le)
    a.label(L1)
    a("s_cmp_lt_u32 %s, %s" % (S(sC1), S(sN)))
    a("s_cbranch_scc0 %s" % Ldone)
    a("s_mov_b32 %s, 1" % S(sJL))
    a("s_mul_i32 %s, %s, %d" % (S(sJS), S(sC1), nrep))
    a("s_add_u32 %s, %s, 1" % (S(sC1), S(sC1)))
    a.label(Le)
    a("s_add_u32 %s, %s, %s" % (S(sJS), S(sJS), S(sREP)))
    a("s_lshl_b32 %s, %s, 6" % (S(sT0), S(sJL)))
    a("s_add_u32 %s, %s, %s" % (S(sT0), S(sT0), S(sJS)))
    a("s_mul_i32 %s, %s, %d" % (S(sFLJ), S(sT0), JOBFLAG_BYTES))

def job_off(a, sdst, base, lstride, job, extra_sgpr=None):
    a("s_mul_i32 %s, %s, %d" % (S(sdst), S(sJS), job))
    if lstride:
        a("s_mul_i32 %s, %s, %d" % (S(sT4), S(sJL), lstride))
        a("s_add_u32 %s, %s, %s" % (S(sdst), S(sdst), S(sT4)))
    a("s_add_u32 %s, %s, %d" % (S(sdst), S(sdst), base))
    if extra_sgpr is not None:
        a("s_add_u32 %s, %s, %s" % (S(sdst), S(sdst), S(extra_sgpr)))

def flag_store(a, vt0, vt1, soff):
    a("v_mov_b32 %s, 1" % R(vt0))
    a("v_mov_b32 %s, 0" % R(vt1))
    a("s_mov_b64 exec, 1")
    a("buffer_store_dword %s, %s, %s, %s offen sc1" % (R(vt0), R(vt1), SR(sWS, 4), soff))
    a("s_mov_b64 exec, -1")

def load_frags32(a, frags, vrow, vtr, ringslots=32, pre=None, hook=None):
    n = len(frags)
    def issue(c):
        srd, soff, _ = frags[c]
        soff(a, sK)
        a("s_add_u32 m0, %s, %d" % (S(sLDSW), (c % ringslots) * 1024))
        a("buffer_load_dwordx4 %s, %s, %s offen lds" % (R(vrow), SR(srd, 4), S(sK)))
    a("s_waitcnt vmcnt(0)")
    if pre: pre()
    for c in range(min(ringslots, n)): issue(c)
    G = 4
    for c0 in range(0, n, G):
        cs = list(range(c0, min(c0 + G, n)))
        issued = min(c0 + ringslots, n)
        a("s_waitcnt vmcnt(%d)" % (issued - cs[-1] - 1))
        for c in cs:
            d = frags[c][2]
            off = (c % ringslots) * 1024
            a("ds_read_b64_tr_b16 %s, %s offset:%d" % (RR(d, 2), R(vtr), off))
            a("ds_read_b64_tr_b16 %s, %s offset:%d" % (RR(d + 2, 2), R(vtr), off + 256))
        a("s_waitcnt lgkmcnt(0)")
        for c in cs:
            if c + ringslots < n: issue(c + ringslots)
        if hook: hook(c0)

def setup_tr32(a, lane, vtr, t1, t2):
    a("s_lshl_b32 %s, %s, 15" % (S(sLDSW), S(sW)))
    a("v_lshrrev_b32 %s, 5, %s" % (R(t1), R(lane)))
    a("v_lshlrev_b32 %s, 3, %s" % (R(t1), R(t1)))
    a("v_bfe_u32 %s, %s, 2, 2" % (R(t2), R(lane)))
    a("v_add_u32 %s, %s, %s" % (R(t1), R(t1), R(t2)))
    a("v_lshlrev_b32 %s, 6, %s" % (R(t1), R(t1)))
    a("v_bfe_u32 %s, %s, 4, 1" % (R(t2), R(lane)))
    a("v_lshl_add_u32 %s, %s, 5, %s" % (R(t1), R(t2), R(t1)))
    a("v_and_b32 %s, 3, %s" % (R(t2), R(lane)))
    a("v_lshl_add_u32 %s, %s, 3, %s" % (R(t1), R(t2), R(t1)))
    a("v_add_u32 %s, %s, %s" % (R(vtr), S(sLDSW), R(t1)))

def setup_rowtile(a, lane, AF, VD, t1, t2, t3):
    a("v_and_b32 %s, 31, %s" % (R(t1), R(lane)))
    a("v_lshrrev_b32 %s, 5, %s" % (R(t2), R(lane)))
    a("v_and_b32 %s, 15, %s" % (R(t3), R(lane)))
    for j in range(8):
        a("v_add_u32 %s, %d, %s" % (R(AF + j), 2 * j, R(t2)))
        a("v_xor_b32 %s, %s, %s" % (R(AF + j), R(AF + j), R(t3)))
        a("v_lshlrev_b32 %s, 4, %s" % (R(AF + j), R(AF + j)))
        a("v_lshl_add_u32 %s, %s, 8, %s" % (R(AF + j), R(t1), R(AF + j)))
    for t in range(2):
        a("v_lshrrev_b32 %s, 4, %s" % (R(t1), R(lane)))
        a("v_add_u32 %s, %d, %s" % (R(t1), 4 * t, R(t1)))
        a("s_lshl_b32 %s, %s, 3" % (S(sT0), S(sW)))
        a("v_add_u32 %s, %s, %s" % (R(t2), S(sT0), R(t1)))
        a("v_and_b32 %s, 15, %s" % (R(t2), R(t2)))
        a("v_xor_b32 %s, %s, %s" % (R(t2), R(t2), R(t3)))
        a("v_lshlrev_b32 %s, 4, %s" % (R(t2), R(t2)))
        a("v_lshl_add_u32 %s, %s, 10, %s" % (R(VD + t), R(t1), R(t2)))

def rowtile_dma(a, VD, s_src, buf):
    a("s_lshl_b32 %s, %s, 13" % (S(sT0), S(sW)))
    a("s_add_u32 %s, %s, %s" % (S(sT0), S(sT0), S(s_src)))
    a("s_lshl_b32 %s, %s, 11" % (S(sT1), S(sW)))
    for b in range(4):
        for t in range(2):
            a("s_add_u32 m0, %s, %d" % (S(sT1), buf + b * 8192 + t * 1024))
            a("buffer_load_dwordx4 %s, %s, %s offen sc1 lds" % (R(VD + t), SR(sWS, 4), S(sT0)))
        if b < 3: a("s_add_u32 %s, %s, 256" % (S(sT0), S(sT0)))

def S_mf32x(d, aa, b, c):
    return "v_mfma_f32_32x32x16_bf16 %s, %s, %s, %s" % (RR(d, 16), RR(aa, 4), RR(b, 4), '0' if c is None else RR(c, 16))
def rowtile_items(VD, ssrc, sbuf):
    out = [["s_lshl_b32 s77, %s, 13" % S(sW), "s_add_u32 s77, s77, %s" % S(ssrc), "s_lshl_b32 s76, %s, 11" % S(sW), "s_add_u32 s76, s76, %s" % S(sbuf)]]
    for b in range(4):
        for t in range(2):
            g = ["s_add_u32 m0, s76, %d" % (b * 8192 + t * 1024),
                 "buffer_load_dwordx4 %s, %s, s77 offen sc1 lds" % (R(VD + t), SR(sWS, 4))]
            if t == 1 and b < 3: g += ["s_add_u32 s77, s77, 256"]
            out.append(g)
    return out
def mf32x(a, d, aa, b, c):
    a("v_mfma_f32_32x32x16_bf16 %s, %s, %s, %s" % (RR(d, 16), RR(aa, 4), RR(b, 4), '0' if c is None else RR(c, 16)))


sNL, sNS, sNFL, sNV = 56, 57, 58, 59
sPEND, sBUF, sRDYN, sDUM = 60, 61, 62, 63
sCIN = 64
def next_job(a, nrep, tag):
    Ln = a.newlabel(tag + 'nn'); Le = a.newlabel(tag + 'ne')
    a("s_mov_b32 s65, %s\ns_mov_b32 s66, %s\ns_mov_b32 s67, %s" % (S(sJL), S(sJS), S(sFLJ)))
    sched_next(a, nrep, Ln)
    a("s_mov_b32 %s, %s\ns_mov_b32 %s, %s\ns_mov_b32 %s, %s\ns_mov_b32 %s, 1" % (S(sNL), S(sJL), S(sNS), S(sJS), S(sNFL), S(sFLJ), S(sNV)))
    a("s_branch %s" % Le)
    a.label(Ln)
    a("s_mov_b32 %s, 0" % S(sNV))
    a("s_mov_b32 %s, %s" % (S(sNFL), S(sFLJ)))
    a.label(Le)
    a("s_mov_b32 %s, s65\ns_mov_b32 %s, s66\ns_mov_b32 %s, s67" % (S(sJL), S(sJS), S(sFLJ)))

LDS_DEC = LDS_CNT + 16
sF0, sF1, sDEC = 65, 66, 67
def cand_addrs(a, nrep, in_flag_off):
    for c, f, lay in ((sC0, sF0, 0), (sC1, sF1, 1)):
        a("s_mul_i32 %s, %s, %d" % (S(sT0), S(c), nrep))
        a("s_add_u32 %s, %s, %s" % (S(sT0), S(sT0), S(sREP)))
        a("s_min_u32 %s, %s, 63" % (S(sT0), S(sT0)))
        if lay: a("s_add_u32 %s, %s, 64" % (S(sT0), S(sT0)))
        a("s_mul_i32 %s, %s, %d" % (S(sT0), S(sT0), JOBFLAG_BYTES))
        in_flag_off(a, f, sT0)

def decide(a, V0, V1, target, prio):
    a("v_readfirstlane_b32 %s, %s" % (S(sT0), R(V0)))
    a("v_readfirstlane_b32 %s, %s" % (S(sT1), R(V1)))
    a("s_cmp_ge_u32 %s, %d" % (S(sT0), target)); a("s_cselect_b32 %s, 1, 0" % S(sT0))
    a("s_cmp_lt_u32 %s, %s" % (S(sC0), S(sN))); a("s_cselect_b32 %s, %s, 0" % (S(sT0), S(sT0)))
    a("s_cmp_ge_u32 %s, %d" % (S(sT1), target)); a("s_cselect_b32 %s, 2, 0" % S(sT1))
    a("s_cmp_lt_u32 %s, %s" % (S(sC1), S(sN))); a("s_cselect_b32 %s, %s, 0" % (S(sT1), S(sT1)))
    if prio == 1 and AHEAD:
        a("s_add_u32 %s, %s, %d" % (S(sT2), S(sC1), AHEAD))
        a("s_cmp_lt_u32 %s, %s" % (S(sC0), S(sT2))); a("s_cselect_b32 %s, %s, 0" % (S(sT0), S(sT0)))
    first, second = (sT0, sT1) if prio == 0 else (sT1, sT0)
    a("s_cmp_lg_u32 %s, 0" % S(first))
    a("s_cselect_b32 %s, %s, %s" % (S(sDEC), S(first), S(second)))
    a("s_add_u32 %s, %s, %s" % (S(sT2), S(sC0), S(sC1)))
    a("s_lshl_b32 %s, %s, 1" % (S(sT3), S(sN)))
    a("s_cmp_ge_u32 %s, %s" % (S(sT2), S(sT3)))
    a("s_cselect_b32 %s, 3, %s" % (S(sDEC), S(sDEC)))

def take_job(a, nrep, sl, ss, sfl):
    a("s_sub_u32 %s, %s, 1" % (S(sl), S(sDEC)))
    a("s_cmp_eq_u32 %s, 0" % S(sl))
    a("s_cselect_b32 %s, %s, %s" % (S(sT0), S(sC0), S(sC1)))
    a("s_mul_i32 %s, %s, %d" % (S(ss), S(sT0), nrep))
    a("s_add_u32 %s, %s, %s" % (S(ss), S(ss), S(sREP)))
    a("s_xor_b32 %s, %s, 1" % (S(sT0), S(sl)))
    a("s_add_u32 %s, %s, %s" % (S(sC0), S(sC0), S(sT0)))
    a("s_add_u32 %s, %s, %s" % (S(sC1), S(sC1), S(sl)))
    a("s_lshl_b32 %s, %s, 6" % (S(sT0), S(sl)))
    a("s_add_u32 %s, %s, %s" % (S(sT0), S(sT0), S(ss)))
    a("s_mul_i32 %s, %s, %d" % (S(sfl), S(sT0), JOBFLAG_BYTES))

def bcast_write(a, T1, T2):
    a("v_mov_b32 %s, %d" % (R(T1), LDS_DEC))
    a("v_mov_b32 %s, %s" % (R(T2), S(sDEC)))
    a("ds_write_b32 %s, %s" % (R(T1), R(T2)))
    a("s_waitcnt lgkmcnt(0)")
def bcast_read(a, T1, T2):
    a("v_mov_b32 %s, %d" % (R(T1), LDS_DEC))
    a("ds_read_b32 %s, %s" % (R(T2), R(T1)))
    a("s_waitcnt lgkmcnt(0)")
    a("v_readfirstlane_b32 %s, %s" % (S(sDEC), R(T2)))

def blocking_pick(a, tag, nrep, VZ, V0, V1, T1, T2, in_flag_off, target, prio):
    Lb = a.newlabel(tag + 'bp'); Lp = a.newlabel(tag + 'bpl'); Ld = a.newlabel(tag + 'bpd')
    a("s_cmp_eq_u32 %s, 0" % S(sW)); a("s_cbranch_scc0 %s" % Lb)
    cand_addrs(a, nrep, in_flag_off)
    a.label(Lp)
    a("buffer_load_dword %s, %s, %s, %s offen sc1" % (R(V0), R(VZ), SR(sWS, 4), S(sF0)))
    a("buffer_load_dword %s, %s, %s, %s offen sc1" % (R(V1), R(VZ), SR(sWS, 4), S(sF1)))
    a("s_waitcnt vmcnt(0)")
    decide(a, V0, V1, target, prio)
    a("s_cmp_lg_u32 %s, 0" % S(sDEC)); a("s_cbranch_scc1 %s" % Ld)
    a("s_add_u32 %s, %s, 1" % (S(sTMO), S(sTMO)))
    a("s_cmp_gt_u32 %s, %d" % (S(sTMO), TIMEOUT))
    a("s_cselect_b32 %s, 3, 0" % S(sDEC))
    a("s_cbranch_scc1 %s" % Ld)
    a("s_sleep %d" % common.PSLEEP)
    a("s_branch %s" % Lp)
    a.label(Ld)
    bcast_write(a, T1, T2)
    a.label(Lb)
    a("s_barrier")
    bcast_read(a, T1, T2)

def wave0_signal(a, T1, T2, s_addr):
    L = a.newlabel('w0s')
    a("s_cmp_eq_u32 %s, 0" % S(sW)); a("s_cbranch_scc0 %s" % L)
    a("s_mov_b64 exec, 1")
    a("v_mov_b32 %s, 1" % R(T1))
    a("v_mov_b32 %s, 0" % R(T2))
    a("buffer_atomic_add %s, %s, %s, %s offen" % (R(T1), R(T2), SR(sWS, 4), s_addr))
    a("s_mov_b64 exec, -1")
    a.label(L)

def run_stream(a, L, steps, fill):
    names = {}
    slot = 0
    for need, mfs, pre in steps:
        if need is not None: L.wait(need())
        for k, m in enumerate(mfs):
            a(m)
            if k == 0 and pre is not None: pre()
            for it in fill.get(slot, []):
                if isinstance(it, str): a(it)
                elif it[0] == 'ds': names[it[2]] = L.ds(it[1])
                elif it[0] == 'wait': L.wait(names[it[1]])
            slot += 1
    return slot

sMODE = 83
sEOUT, sCOUT, sPEND2 = 78, 80, 81
def emit_items(a, L, items, names=None):
    names = {} if names is None else names
    for it in items:
        if isinstance(it, str): a(it)
        elif it[0] == 'ds': names[it[2]] = L.ds(it[1])
        elif it[0] == 'wait': L.wait(names[it[1]])

def gemm_loop(a, tag, nrep, VZ, VFV, T1, T2, in_flag_off, in_target, src_addr, dma_items, toggle, mk_steps, n_slots,
              out_addr, shadow, epi_items, epi_slots, out_flag, bufstride, nst=0, trc=None, prio=0, sig_at=None, defer_layer=1, defer_epi=True, dec_at=None):
    if not defer_epi: assert sig_at is not None
    Lj = a.newlabel(tag + 'job'); Lw = a.newlabel(tag + 'w'); Lw2 = a.newlabel(tag + 'w2')
    Lnx = a.newlabel(tag + 'nx'); Lfin = a.newlabel(tag + 'fin')
    V0, V1 = VFV, VFV + 1
    sSRC, sCSRC, sOB, sEXM = 64, 71, 68, 72
    sW0M = 74
    def lines(fn, *args):
        out = []
        class C:
            def __call__(self, t):
                for x in t.strip().split('\n'): out.append(x.strip())
        fn(C(), *args)
        return out
    def sig(saddr):
        return ["s_cmp_lg_u32 %s, 0" % S(saddr), "s_cselect_b32 %s, %s, 0" % (S(sEXM), S(sW0M)), "v_mov_b32 %s, 1" % R(T2),
                "s_mov_b64 exec, %s" % SR(sEXM, 2),
                "buffer_atomic_add %s, %s, %s, %s offen" % (R(T2), R(VZ), SR(sWS, 4), S(saddr)),
                "s_mov_b64 exec, -1", "s_mov_b32 %s, 0" % S(saddr)]
    def samples(a):
        cand_addrs(a, nrep, in_flag_off)
        a("buffer_load_dword %s, %s, %s, %s offen sc1" % (R(V0), R(VZ), SR(sWS, 4), S(sF0)))
        a("buffer_load_dword %s, %s, %s, %s offen sc1" % (R(V1), R(VZ), SR(sWS, 4), S(sF1)))
    a("s_mov_b32 %s, 0" % S(sPEND)); a("s_mov_b32 %s, 0" % S(sPEND2))
    a("s_mov_b32 %s, %d" % (S(sEOUT), WS_SCRATCH))
    a("s_mov_b64 s[86:87], 0")
    a("s_mov_b32 %s, 0" % S(sBUF))
    a("s_cmp_eq_u32 %s, 0" % S(sW)); a("s_cselect_b32 %s, 1, 0" % S(sW0M))
    a("s_mov_b32 %s, 0" % S(sEXM + 1))
    blocking_pick(a, tag, nrep, VZ, V0, V1, T1, T2, in_flag_off, in_target, prio)
    a("s_cmp_eq_u32 %s, 3" % S(sDEC)); a("s_cbranch_scc1 %s" % Lfin)
    take_job(a, nrep, sJL, sJS, sFLJ)
    src_addr(a, sCSRC, sJL, sJS)
    for g in dma_items(sCSRC, sBUF):
        for x in g: a(x)
    samples(a)
    a("s_mov_b32 %s, 0" % S(sMODE))
    a.label(Lj)
    a("s_cmp_eq_u32 %s, 2" % S(sMODE))
    a("s_cbranch_scc1 %s" % Lw2)
    a("s_cmp_eq_u32 %s, 0" % S(sMODE))
    a("s_cbranch_scc1 %s" % Lw)
    if dec_at is not None: a("s_waitcnt vmcnt(%d)" % (0 if defer_epi else nst))
    else: a("s_waitcnt vmcnt(%d)" % ((2 if sig_at is None else TOPW[tag]) + (0 if defer_epi else nst)))
    a("s_branch %s" % Lw2)
    a.label(Lw)
    a("s_waitcnt vmcnt(0)")
    a.label(Lw2)
    a("s_barrier")
    if sig_at is None:
        for x in sig(sPEND2): a(x)
    if trc: trace(a, trc[0], sJL, sJS, trc[2], T1, T2, sT0)
    if trc and tag in CYC: trace(a, 12, sJL, sJS, trc[2], T1, T2, sT0, cyc=True)
    L = LdsT(a)
    steps = mk_steps(L)
    def scc_groups(ls, maxlen=4):
        out, cur = [], []
        k = 0
        while k < len(ls):
            unit = [ls[k]]
            if ls[k].startswith('s_cmp'):
                k += 1
                while k < len(ls) and ls[k].startswith(('s_cselect', 's_cbranch')):
                    unit.append(ls[k]); k += 1
            else: k += 1
            if cur and len(cur) + len(unit) > maxlen:
                out.append(cur); cur = []
            cur += unit
        if cur: out.append(cur)
        return out
    def masked(g, m):
        out = []
        vm = [k for k, it in enumerate(g) if isinstance(it, str) and it.startswith('buffer_')]
        if not vm: return list(g)
        for k, it in enumerate(g):
            if k == vm[0]: out.append("s_mov_b64 exec, %s" % SR(m, 2))
            out.append(it)
            if k == vm[-1]: out.append("s_mov_b64 exec, -1")
        return out
    Lhs = a.newlabel(tag + 'hs')
    dec = lines(decide, V0, V1, in_target, prio)
    tj = ["s_sub_u32 %s, %s, 1" % (S(sT0), S(sDEC)),
          "s_cmp_lt_u32 %s, 2" % S(sT0),
          "s_cselect_b32 %s, 1, 0" % S(sRDYN),
          "s_cselect_b32 %s, %s, 0" % (S(sNL), S(sT0)),
          "s_cmp_eq_u32 %s, 0" % S(sNL),
          "s_cselect_b32 %s, %s, %s" % (S(sT0), S(sC0), S(sC1)),
          "s_mul_i32 %s, %s, %d" % (S(sNS), S(sT0), nrep),
          "s_add_u32 %s, %s, %s" % (S(sNS), S(sNS), S(sREP)),
          "s_min_u32 %s, %s, 63" % (S(sNS), S(sNS)),
          "s_xor_b32 %s, %s, 1" % (S(sT0), S(sNL)),
          "s_and_b32 %s, %s, %s" % (S(sT0), S(sT0), S(sRDYN)),
          "s_add_u32 %s, %s, %s" % (S(sC0), S(sC0), S(sT0)),
          "s_and_b32 %s, %s, %s" % (S(sT0), S(sNL), S(sRDYN)),
          "s_add_u32 %s, %s, %s" % (S(sC1), S(sC1), S(sT0)),
          "s_lshl_b32 %s, %s, 6" % (S(sT0), S(sNL)),
          "s_add_u32 %s, %s, %s" % (S(sT0), S(sT0), S(sNS)),
          "s_mul_i32 %s, %s, %d" % (S(sNFL), S(sT0), JOBFLAG_BYTES),
          "s_xor_b32 %s, %s, %d" % (S(sOB), S(sBUF), bufstride)]
    sa = lines(src_addr, sSRC, sNL, sNS) + ["s_cmp_eq_u32 %s, 1" % S(sRDYN), "s_cselect_b32 %s, %s, %s" % (S(sSRC), S(sSRC), S(sCSRC)),
                                            "s_cselect_b64 %s, -1, 0" % SR(84, 2), "s_mov_b32 %s, %s" % (S(75), S(sSRC))]
    di = dma_items(sSRC, sOB)
    ndma = sum(1 for g in di for it in g if isinstance(it, str) and it.startswith('buffer_'))
    A = [(["s_cmp_eq_u32 %s, 2" % S(sMODE), "s_cbranch_scc1 %s" % Lhs, "s_waitcnt vmcnt(%d)" % ((1 if sig_at is None else 0) + (0 if defer_epi else nst)), Lhs + ":", dec[0], dec[1]], 1)]
    A += [(g, 0) for g in scc_groups(dec[2:])]
    A += [(["s_lshl_b32 %s, %s, 2" % (S(sT0), S(sW)), "s_add_u32 %s, %s, %d" % (S(sT0), S(sT0), LDS_DEC),
            "v_mov_b32 %s, %s" % (R(T1), S(sT0)), "v_mov_b32 %s, %s" % (R(T2), S(sDEC))], 0),
          ([('ds', "ds_write_b32 %s, %s" % (R(T1), R(T2)), 'dw')], 0),
          ([('wait', 'dw'), "s_barrier", "v_mov_b32 %s, %d" % (R(T1), LDS_DEC)], 2),
          ([('ds', "ds_read_b32 %s, %s" % (R(V0), R(T1)), 'dr')], 0),
          ([('wait', 'dr'), "v_readfirstlane_b32 %s, %s" % (S(sDEC), R(V0))], 2)]
    A += [(g, (1 if k == 0 else 0)) for k, g in enumerate(scc_groups(tj))]
    A += [(g, 0) for g in scc_groups(sa)]
    A += [(masked(g, 84), 0) for g in di]
    E = [(masked(g, 86), 0) for g in epi_items(sEOUT)] if defer_epi else []
    Zl = scc_groups(lines(out_addr, sCOUT))
    Zs = [(g, 0) for g in scc_groups(lines(cand_addrs, nrep, in_flag_off))]
    Zs += [(["buffer_load_dword %s, %s, %s, %s offen sc1" % (R(V0), R(VZ), SR(sWS, 4), S(sF0)),
             "buffer_load_dword %s, %s, %s, %s offen sc1" % (R(V1), R(VZ), SR(sWS, 4), S(sF1))], 0)]
    fill = {}
    load = [0] * n_slots
    def place(thread, first, quota):
        sl = first
        pos = []
        for g, gap in thread:
            sl = sl + gap
            while sl < n_slots and load[sl] + len(g) > quota and load[sl] > 0: sl += 1
            assert sl < n_slots, (tag, 'thread overflow')
            fill.setdefault(sl, []).extend(g); load[sl] += len(g); pos.append(sl)
        return pos
    z0 = n_slots - 1 - len(Zl)
    for k, g in enumerate(Zl):
        fill.setdefault(z0 + k, []).extend(g); load[z0 + k] += len(g)
    if dec_at is not None:
        pe = place(E, 1, QUOTA)
        pz = place(Zs, max(pe[-1] + 1 if pe else 0, dec_at - 26), QUOTA)
        assert pz[-1] < dec_at - 10, (tag, pz, dec_at)
        A2 = [(["s_waitcnt vmcnt(0)", dec[0], dec[1]], 0)] + A[1:]
        kb = next(k for k, (g, gap) in enumerate(A2) if "s_barrier" in g)
        A2 = A2[:kb + 1] + [(sig(sPEND)[:3], 0), (sig(sPEND)[3:], 0)] + A2[kb + 1:]
        pa = place(A2, dec_at, QUOTA)
        assert pa[-1] < z0, (tag, pa[-1], z0)
    elif sig_at is not None:
        pa0 = place(A[:1], 0, QUOTA + 4)
        pe = place(E, pa0[0] + 1, QUOTA)
        pa = pa0 + place(A[1:], pa0[0] + 1, QUOTA)
        first_dma = pa[len(A) - len(di)]
        if pe: assert pe[-1] < first_dma, (tag, pe[-1], first_dma)
        ps = max(pa[-1] + 1, sig_at)
        ps_g = [(["s_waitcnt vmcnt(%d)" % ndma, "s_barrier"] + sig(sPEND)[:3], 0), (sig(sPEND)[3:], 0)]
        pp = place(ps_g, ps, QUOTA + 2)
        assert pp[-1] < z0, (tag, pp, z0)
        pz = place(Zs, max(pp[-1] + 1, n_slots - SAMP_BACK), QUOTA)
        assert pz[-1] < n_slots
    else:
        pa = place(A, 0, QUOTA)
        pe = place(E, 0, QUOTA)
        assert pe[-1] < z0 and pa[-1] < z0, (tag, pe[-1], pa[-1], z0)
    n = run_stream(a, L, steps, fill)
    assert n == n_slots, (n, n_slots)
    shadow(a)
    if trc: trace(a, trc[1], sJL, sJS, trc[2], T1, T2, sT0)
    if trc and tag in CYC: trace(a, 13, sJL, sJS, trc[2], T1, T2, sT0, cyc=True)
    if sig_at is None: a("s_mov_b32 %s, %s" % (S(sPEND2), S(sPEND)))
    out_flag(a, sT3)
    a("s_mov_b32 %s, %s" % (S(sPEND), S(sT3)))
    a("s_mov_b32 %s, %s" % (S(sEOUT), S(sCOUT)))
    a("s_mov_b64 s[86:87], -1")
    if defer_epi:
        a("s_cmp_eq_u32 %s, %d" % (S(sJL), defer_layer))
        a("s_cselect_b32 %s, %s, 0" % (S(sT0), S(sRDYN)))
        a("s_mov_b32 %s, 1" % S(sMODE))
        a("s_cmp_eq_u32 %s, 0" % S(sT0))
        a("s_cbranch_scc0 %s" % Lnx)
    else:
        L3 = LdsT(a); nm3 = {}
        for g in epi_items(sEOUT): emit_items(a, L3, g, nm3)
        a("s_mov_b32 %s, 1" % S(sMODE))
        a("s_cmp_eq_u32 %s, 0" % S(sRDYN))
        a("s_cbranch_scc0 %s" % Lnx)
    if defer_epi:
        L2 = LdsT(a); nm = {}
        for g in epi_items(sEOUT): emit_items(a, L2, g, nm)
    samples(a)
    a("s_waitcnt vmcnt(2)")
    a("s_barrier")
    if sig_at is None:
        for x in sig(sPEND2): a(x)
    for x in sig(sPEND): a(x)
    a("s_mov_b32 %s, %d" % (S(sEOUT), WS_SCRATCH))
    a("s_mov_b64 s[86:87], 0")
    a("s_mov_b32 %s, 2" % S(sMODE))
    a("s_cmp_eq_u32 %s, 0" % S(sRDYN))
    a("s_cbranch_scc0 %s" % Lnx)
    a("s_mov_b32 %s, 0" % S(sMODE))
    Lq = a.newlabel(tag + 'q'); Lq2 = a.newlabel(tag + 'q2')
    a("s_cmp_eq_u32 %s, 0" % S(sW)); a("s_cbranch_scc0 %s" % Lq)
    a("s_waitcnt vmcnt(%d)" % (1 if sig_at is not None else 2))
    decide(a, V0, V1, in_target, prio)
    bcast_write(a, T1, T2)
    a.label(Lq)
    a("s_barrier")
    bcast_read(a, T1, T2)
    a("s_cmp_lg_u32 %s, 0" % S(sDEC)); a("s_cbranch_scc1 %s" % Lq2)
    a("s_barrier")
    blocking_pick(a, tag, nrep, VZ, V0, V1, T1, T2, in_flag_off, in_target, prio)
    a.label(Lq2)
    a("s_cmp_eq_u32 %s, 3" % S(sDEC)); a("s_cbranch_scc1 %s" % Lfin)
    take_job(a, nrep, sNL, sNS, sNFL)
    a("s_xor_b32 %s, %s, %d" % (S(sOB), S(sBUF), bufstride))
    src_addr(a, 75, sNL, sNS)
    a("s_mov_b32 %s, %s" % (S(sSRC), S(75)))
    for g in dma_items(sSRC, sOB):
        for x in g: a(x)
    samples(a)
    a.label(Lnx)
    a("s_mov_b32 %s, %s\ns_mov_b32 %s, %s\ns_mov_b32 %s, %s" % (S(sJL), S(sNL), S(sJS), S(sNS), S(sFLJ), S(sNFL)))
    a("s_mov_b32 %s, %s" % (S(sBUF), S(sOB)))
    a("s_mov_b32 %s, %s" % (S(sCSRC), S(75)))
    toggle(a)
    a("s_branch %s" % Lj)
    a.label(Lfin)
    a("s_waitcnt vmcnt(0)")
    a("s_branch L_exit")
QUOTA = 4
DEC_S1 = 52
DEC_S35 = None
DEC_S4 = None
SAMP_BACK = 26
TOPW = {'s1': 3, 's3': 3, 's5': 3, 's4': 3}

def job_off2(a, sdst, base, lstride, job, sl, ss):
    a("s_mul_i32 %s, %s, %d" % (S(sdst), S(ss), job))
    if lstride:
        a("s_mul_i32 %s, %s, %d" % (S(sT4), S(sl), lstride))
        a("s_add_u32 %s, %s, %s" % (S(sdst), S(sdst), S(sT4)))
    a("s_add_u32 %s, %s, %d" % (S(sdst), S(sdst), base))

def rowtile_dma2(a, VD, s_src, sbuf):
    a("s_lshl_b32 %s, %s, 13" % (S(sT0), S(sW)))
    a("s_add_u32 %s, %s, %s" % (S(sT0), S(sT0), S(s_src)))
    a("s_lshl_b32 %s, %s, 11" % (S(sT1), S(sW)))
    a("s_add_u32 %s, %s, %s" % (S(sT1), S(sT1), S(sbuf)))
    for b in range(4):
        for t in range(2):
            a("s_add_u32 m0, %s, %d" % (S(sT1), b * 8192 + t * 1024))
            a("buffer_load_dwordx4 %s, %s, %s offen sc1 lds" % (R(VD + t), SR(sWS, 4), S(sT0)))
        if b < 3: a("s_add_u32 %s, %s, 256" % (S(sT0), S(sT0)))

def s1_role(a, init_target):
    a.comment("==== S1 role ====")
    lane, T1, T2, T3 = 0, 13, 14, 15
    AF, VD, VST, VSV, VFL, VFV = 2, 10, 12, 1, 104, 105
    ACC = {'q': 16, 'k': 32, 'v': 48}
    XF = [64 + 4 * i for i in range(4)]
    PKD = 80
    def W(x, ks): return {'q': 256, 'k': 384, 'v': 128}[x] + 4 * ks
    a("s_sub_u32 %s, %s, 2" % (S(sT0), S(sXCC)))
    sched_init(a, 2, D_S1, sT0)
    a("s_mov_b32 %s, %s" % (S(sAUX), S(sTICK)))
    load_srd(a, sA, 'Wq'); load_srd(a, sB, 'Wk'); load_srd(a, sC, 'Wv')
    trace_cu(a, 0, T1, T2, 3)
    a("s_waitcnt lgkmcnt(0)")
    finish_srd(a, sA, 'Wq'); finish_srd(a, sB, 'Wk'); finish_srd(a, sC, 'Wv')
    if GATES1: gate_wait(a, T1, T2, GATES1)
    VROW, VTR = 20, 21
    setup_tr32(a, lane, VTR, T1, T2)
    a("v_lshrrev_b32 %s, 2, %s" % (R(T1), R(lane)))
    a("v_and_b32 %s, 3, %s" % (R(T2), R(lane)))
    a("v_lshlrev_b32 %s, 4, %s" % (R(T2), R(T2)))
    a("v_lshl_add_u32 %s, %s, 13, %s" % (R(VROW), R(T1), R(T2)))
    a("s_lshl_b32 %s, %s, 8" % (S(sX0), S(sAUX)))
    a("s_lshl_b32 %s, %s, 6" % (S(sT0), S(sW)))
    a("s_add_u32 %s, %s, %s" % (S(sX0), S(sX0), S(sT0)))
    frags = []
    for x, srd in (('k', sB), ('v', sC), ('q', sA)):
        for ks in range(32):
            frags.append((srd, (lambda a_, d, ks=ks: a_("s_add_u32 %s, %s, %d" % (S(d), S(sX0), ks * 16 * 8192))), W(x, ks)))
    if PF_S1:
        a("v_lshlrev_b32 v23, 6, %s" % R(lane))
        a("s_lshl_b32 s75, %s, 2" % S(sAUX)); a("s_add_u32 s75, s75, %s" % S(sW)); a("s_lshl_b32 s75, s75, 15")
        def pf(srd, k0, k1):
            for k in range(k0, k1):
                a("s_add_u32 s76, s75, %d" % (k * 4096))
                a("buffer_load_dword v24, v23, %s, s76 offen" % SR(srd, 4))
        sched = {}
        for k in range(8): sched[4 * k] = (sC, k)
        for k in range(8): sched[32 + 4 * k] = (sA, k)
        load_frags32(a, frags, VROW, VTR, pre=lambda: pf(sB, 0, 8), hook=lambda c: pf(sched[c][0], sched[c][1], sched[c][1] + 1) if c in sched else None)
    else:
        load_frags32(a, frags, VROW, VTR)
    setup_rowtile(a, lane, AF, VD, T1, T2, T3)
    a("v_bfe_u32 %s, %s, 4, 1" % (R(T1), R(lane)))
    a("v_lshrrev_b32 %s, 5, %s" % (R(T2), R(lane)))
    a("v_and_b32 %s, 15, %s" % (R(T3), R(lane)))
    a("v_lshlrev_b32 %s, 4, %s" % (R(T3), R(T3)))
    a("v_lshl_add_u32 %s, %s, 8, %s" % (R(T3), R(T2), R(T3)))
    a("v_lshl_add_u32 %s, %s, 12, %s" % (R(VST), R(T1), R(T3)))
    a("v_lshl_add_u32 %s, %s, 10, %s" % (R(VSV), R(T1), R(T3)))
    a("v_mov_b32 %s, 0" % R(VFL))
    wait_init(a, T1, T2, init_target)
    a("s_barrier")
    def in_flag(a, sd, sf): a("s_add_u32 %s, %s, %d" % (S(sd), S(sf), WS_FLAGS + FL_H))
    def src_addr(a, sd, sl, ss): job_off2(a, sd, WS_HN, HN_L, HN_JOB, sl, ss)
    def dma_items(ssrc, sbuf): return rowtile_items(VD, ssrc, sbuf)
    def toggle(a):
        for j in range(8): a("v_xor_b32 %s, 0x8000, %s" % (R(AF + j), R(AF + j)))
    def rd(ks): return "ds_read_b128 %s, %s offset:%d" % (RR(XF[ks % 4], 4), R(AF + (ks & 7)), (ks >> 3) * 8192)
    def mk_steps(L):
        ids = {}
        for ks in range(3): ids[ks] = L.ds(rd(ks))
        steps = []
        for ks in range(32):
            x = XF[ks % 4]
            mfs = [S_mf32x(ACC['k'], W('k', ks), x, None if ks == 0 else ACC['k']),
                   S_mf32x(ACC['v'], x, W('v', ks), None if ks == 0 else ACC['v']),
                   S_mf32x(ACC['q'], W('q', ks), x, None if ks == 0 else ACC['q'])]
            def pre(ks=ks):
                if ks + 3 < 32: ids[ks + 3] = L.ds(rd(ks + 3))
            steps.append(((lambda ks=ks: ids[ks]), mfs, pre))
        return steps
    def out_addr(a, sd):
        job_off(a, sd, WS_QKV, QKV_L, QKV_JOB)
        a("s_mul_i32 %s, %s, %d" % (S(sT4), S(sAUX), 24 * KB))
        a("s_add_u32 %s, %s, %s" % (S(sd), S(sd), S(sT4)))
    def shadow(a):
        for xi, x in ((0, 'k'), (1, 'q')):
            base = PKD + 8 * xi
            for r_ in range(8):
                a("v_cvt_pk_bf16_f32 %s, %s, %s" % (R(base + r_), R(ACC[x] + 2 * r_), R(ACC[x] + 2 * r_ + 1)))
        base = PKD + 16
        for p in range(2):
            for q, b in enumerate((p, p + 2)):
                for hh in range(2):
                    a("v_cvt_pk_bf16_f32 %s, %s, %s" % (R(base + 4 * p + 2 * q + hh), R(ACC['v'] + 4 * b + 2 * hh), R(ACC['v'] + 4 * b + 2 * hh + 1)))
    def epi_items(so):
        st = lambda r_, v, off: "buffer_store_dwordx4 %s, %s, %s, s79 offen offset:%d sc1" % (RR(r_, 4), R(v), SR(sWS, 4), off)
        return [["s_lshl_b32 s82, %s, 10" % S(sW), "s_add_u32 s79, %s, s82" % S(so), "s_add_u32 s79, s79, 8192", st(PKD, VST, 0)],
                [st(PKD + 4, VST, 512)],
                ["s_add_u32 s79, s79, s82", "s_add_u32 s79, s79, 8192", st(PKD + 16, VSV, 0)],
                [st(PKD + 20, VSV, 512)],
                ["s_add_u32 s79, %s, s82" % S(so), st(PKD + 8, VST, 0)],
                [st(PKD + 12, VST, 512)]]
    def oflag(a, sd):
        a("s_lshl_b32 %s, %s, 7" % (S(sd), S(sAUX)))
        a("s_add_u32 %s, %s, %s" % (S(sd), S(sd), S(sFLJ)))
        a("s_add_u32 %s, %s, %d" % (S(sd), S(sd), WS_FLAGS + FL_KV))
    gemm_loop(a, 's1', 2, VFL, VFV, T1, T2, in_flag, 8, src_addr, dma_items, toggle, mk_steps, 96, out_addr, shadow, epi_items, (2, 2), oflag, 0x8000, trc=(0, 1, [(sAUX, 0), (sW, 0)]), prio=1, sig_at=36, defer_layer=0, dec_at=DEC_S1)

def s35_role(a, which, init_target):
    a.comment("==== S%d role ====" % which)
    tag = 's%d' % which
    NK = 64 if which == 3 else 56
    lane, T1, T2, T3 = 0, 13, 14, 15
    VL16, VTW, VTR_, VST, VFL, VFV, VRD = 1, 2, 3, 4, 5, 8, 7
    ACC = 16
    XF = [32 + 4 * i for i in range(8)]
    TRN = 64
    def W(ks): return 256 + 4 * ks
    if DEDICATED: sched_layer(a, sX0)
    else: sched_init(a, 2, 0, sX0)
    a("s_mov_b32 %s, %s" % (S(sAUX), S(sX1)))
    a("s_mov_b32 %s, %s" % (S(sAUX2), S(sX2)))
    wname = 'Wo' if which == 3 else 'Wd'
    load_srd(a, sA, wname)
    signal_init(a, T1, T2)
    a("s_waitcnt lgkmcnt(0)")
    finish_srd(a, sA, wname)
    if GATEB: gate_wait(a, T1, T2, GATEB)
    VROW, VTR = 20, 21
    setup_tr32(a, lane, VTR, T1, T2)
    a("v_bfe_u32 %s, %s, 4, 1" % (R(T1), R(lane)))
    a("v_lshlrev_b32 %s, %d, %s" % (R(T1), 4 if which == 3 else 3, R(T1)))
    a("v_bfe_u32 %s, %s, 5, 1" % (R(T2), R(lane)))
    a("v_lshl_add_u32 %s, %s, 2, %s" % (R(T1), R(T2), R(T1)))
    a("v_bfe_u32 %s, %s, 2, 2" % (R(T2), R(lane)))
    a("v_add_u32 %s, %s, %s" % (R(T1), R(T1), R(T2)))
    a("v_and_b32 %s, 3, %s" % (R(T2), R(lane)))
    a("v_lshlrev_b32 %s, 4, %s" % (R(T2), R(T2)))
    a("v_lshl_add_u32 %s, %s, 10, %s" % (R(VROW), R(T1), R(T2)))
    a("s_mul_i32 %s, %s, %d" % (S(sX0), S(sAUX), (1024 if which == 3 else 896) * 1024))
    a("s_lshl_b32 %s, %s, 8" % (S(sT0), S(sAUX2)))
    a("s_add_u32 %s, %s, %s" % (S(sX0), S(sX0), S(sT0)))
    a("s_lshl_b32 %s, %s, 6" % (S(sT0), S(sW)))
    a("s_add_u32 %s, %s, %s" % (S(sX0), S(sX0), S(sT0)))
    frags = []
    for ks in range(NK):
        m = ks & 7
        row = (ks >> 3) * 128 + (32 * (m >> 1) + (8 if which == 3 else 16) * (m & 1))
        frags.append((sA, (lambda a_, d, row=row: a_("s_add_u32 %s, %s, %d" % (S(d), S(sX0), row * 1024))), W(ks)))
    load_frags32(a, frags, VROW, VTR)
    a("v_lshlrev_b32 %s, 4, %s" % (R(VL16), R(lane)))
    a("v_mov_b32 %s, %s" % (R(VRD), R(VL16)))
    TB = 131072
    a("v_and_b32 %s, 31, %s" % (R(T1), R(lane)))
    a("v_lshrrev_b32 %s, 5, %s" % (R(T2), R(lane)))
    a("v_and_b32 %s, 7, %s" % (R(T3), R(lane)))
    a("v_xor_b32 %s, %s, %s" % (R(T2), R(T2), R(T3)))
    a("v_lshlrev_b32 %s, 4, %s" % (R(T2), R(T2)))
    a("v_lshl_add_u32 %s, %s, 7, %s" % (R(VTW), R(T1), R(T2)))
    a("s_lshl_b32 %s, %s, 12" % (S(sT0), S(sW)))
    a("s_add_u32 %s, %s, %d" % (S(sT0), S(sT0), TB))
    a("v_add_u32 %s, %s, %s" % (R(VTW), S(sT0), R(VTW)))
    a("v_lshrrev_b32 %s, 3, %s" % (R(T1), R(lane)))
    a("v_and_b32 %s, 7, %s" % (R(T2), R(lane)))
    a("v_xor_b32 %s, %s, %s" % (R(T3), R(T2), R(T1)))
    a("v_lshlrev_b32 %s, 4, %s" % (R(T3), R(T3)))
    a("v_lshl_add_u32 %s, %s, 7, %s" % (R(VTR_), R(T1), R(T3)))
    a("v_add_u32 %s, %s, %s" % (R(VTR_), S(sT0), R(VTR_)))
    a("v_lshlrev_b32 %s, 4, %s" % (R(T2), R(T2)))
    a("v_lshl_add_u32 %s, %s, 11, %s" % (R(VST), R(T1), R(T2)))
    a("v_mov_b32 %s, 0" % R(VFL))
    if which == 3:
        a("s_lshl_b32 %s, %s, 7" % (S(sX1), S(sAUX)))
        a("s_add_u32 %s, %s, %d" % (S(sX1), S(sX1), WS_FLAGS + FL_O))
        a("s_lshl_b32 %s, %s, 16" % (S(sX2), S(sAUX)))
    else:
        a("s_lshl_b32 %s, %s, 7" % (S(sX1), S(sAUX)))
        a("s_add_u32 %s, %s, %d" % (S(sX1), S(sX1), WS_FLAGS + FL_A))
        a("s_mul_i32 %s, %s, %d" % (S(sX2), S(sAUX), 7 * 8192))
    wait_init(a, T1, T2, init_target)
    a("s_barrier")
    def in_flag(a, sd, sf): a("s_add_u32 %s, %s, %s" % (S(sd), S(sf), S(sX1)))
    def src_addr(a, sd, sl, ss):
        if which == 3: job_off2(a, sd, WS_O, O_L, O_JOB, sl, ss)
        else: job_off2(a, sd, WS_ACT, ACT_L, ACT_JOB, sl, ss)
        a("s_add_u32 %s, %s, %s" % (S(sd), S(sd), S(sX2)))
    def dma_items(ssrc, sbuf):
        out = []
        per = NK // 4
        for i in range(0, per, 1):
            g = []
            if i == 0:
                g += ["s_mul_i32 s76, %s, %d" % (S(sW), per * 1024), "s_add_u32 s77, %s, s76" % S(ssrc), "s_add_u32 s76, s76, %s" % S(sbuf)]
                out.append(g); g = []
            if i % 4 == 0:
                g += ["s_add_u32 m0, s76, %d" % (i * 1024)]
                if i: g += ["s_add_u32 s77, s77, 4096"]
            for k in (i,):
                if k < per: g += ["buffer_load_dwordx4 %s, %s, s77 offen offset:%d sc1 lds" % (R(VL16), SR(sWS, 4), (k % 4) * 1024)]
            out.append(g)
        return out
    def toggle(a): a("v_xor_b32 %s, 0x10000, %s" % (R(VRD), R(VRD)))
    PF = 6
    def rd(ks): return "ds_read_b128 %s, %s offset:%d" % (RR(XF[ks % 8], 4), R(VRD), ks * 1024)
    def mk_steps(L):
        ids = {}
        for ks in range(PF): ids[ks] = L.ds(rd(ks))
        steps = []
        for ks in range(NK):
            mfs = [S_mf32x(ACC, W(ks), XF[ks % 8], None if ks == 0 else ACC)]
            def pre(ks=ks):
                if ks + PF < NK: ids[ks + PF] = L.ds(rd(ks + PF))
            steps.append(((lambda ks=ks: ids[ks]), mfs, pre))
        return steps
    SH = 80
    TX = 10
    def out_addr(a, sd):
        if which == 3: job_off(a, sd, WS_P3, P3_L, P3_JOB)
        else: job_off(a, sd, WS_P5, P5_L, P5_JOB)
        a("s_lshl_b32 %s, %s, 16" % (S(sT4), S(sAUX)))
        a("s_add_u32 %s, %s, %s" % (S(sd), S(sd), S(sT4)))
        a("s_lshl_b32 %s, %s, 9" % (S(sT4), S(sAUX2)))
        a("s_add_u32 %s, %s, %s" % (S(sd), S(sd), S(sT4)))
        a("s_lshl_b32 %s, %s, 7" % (S(sT4), S(sW)))
        a("s_add_u32 %s, %s, %s" % (S(sd), S(sd), S(sT4)))
    def shadow(a):
        for r_ in range(0, 16, 2): a("v_mov_b64 %s, %s" % (RR(SH + r_, 2), RR(ACC + r_, 2)))
    def epi_items(so):
        g = [[('ds', "ds_write_b128 %s, %s" % (R(VTW), RR(SH, 4)), 'w0'), "v_xor_b32 %s, 32, %s" % (R(TX), R(VTW))],
             [('ds', "ds_write_b128 %s, %s" % (R(TX), RR(SH + 4, 4)), 'w1')],
             ["v_xor_b32 %s, 64, %s" % (R(TX), R(VTW)), ('ds', "ds_write_b128 %s, %s" % (R(TX), RR(SH + 8, 4)), 'w2')],
             ["v_xor_b32 %s, 96, %s" % (R(TX), R(VTW)), ('ds', "ds_write_b128 %s, %s" % (R(TX), RR(SH + 12, 4)), 'w3')],
             [],
             [('wait', 'w3')] + [('ds', "ds_read_b128 %s, %s offset:%d" % (RR(TRN + 4 * t, 4), R(VTR_), t * 1024), 'r%d' % t) for t in range(4)],
             [],
             ["s_mov_b32 s79, %s" % S(so)]]
        for t in range(4):
            g.append([('wait', 'r%d' % t), "buffer_store_dwordx4 %s, %s, %s, s79 offen sc1" % (RR(TRN + 4 * t, 4), R(VST), SR(sWS, 4)), "s_add_u32 s79, s79, %d" % (8 * 2048)])
        return g
    def oflag(a, sd):
        a("s_add_u32 %s, %s, %d" % (S(sd), S(sFLJ), WS_FLAGS + (FL_P3 if which == 3 else FL_P5)))
    gemm_loop(a, tag, (1 if DEDICATED else 2), VFL, VFV, T1, T2, in_flag, (2 if which == 3 else 7), src_addr, dma_items, toggle, mk_steps, NK, out_addr, shadow, epi_items, (0, 1), oflag, 0x10000, nst=4, sig_at=26, defer_epi=False, dec_at=(DEC_S35 if which == 3 or DEC_S35 is None else DEC_S35 - 4), trc=((4, 5, [(sAUX, 0), (sAUX2, 0), (sW, 0)]) if which == 3 else (9, 10, [(sAUX, 0), (sAUX2, 0), (sW, 0)])))

def s4_role(a, init_target):
    a.comment("==== S4 role ====")
    lane, T1, T2, T3 = 0, 13, 14, 15
    AF, VD, VL16, VFL, VFV = 2, 10, 12, 1, 124
    AG, AU = 16, 32
    XF = [48 + 4 * i for i in range(4)]
    G, PKD = 64, 112
    def W(x, ks): return 256 + (0 if x == 'g' else 128) + 4 * ks
    if DEDICATED: sched_layer(a, sX0)
    else: sched_init(a, 2, 0, sX0)
    a("s_mov_b32 %s, %s" % (S(sAUX), S(sX1)))
    load_srd(a, sA, 'Wg'); load_srd(a, sB, 'Wu')
    signal_init(a, T1, T2)
    a("s_waitcnt lgkmcnt(0)")
    finish_srd(a, sA, 'Wg'); finish_srd(a, sB, 'Wu')
    if GATEB: gate_wait(a, T1, T2, GATEB)
    VROW, VTR = 20, 21
    setup_tr32(a, lane, VTR, T1, T2)
    a("v_lshrrev_b32 %s, 2, %s" % (R(T1), R(lane)))
    a("s_movk_i32 %s, 3584" % S(sT0))
    a("v_mul_lo_u32 %s, %s, %s" % (R(T1), S(sT0), R(T1)))
    a("v_and_b32 %s, 3, %s" % (R(T2), R(lane)))
    a("v_lshl_add_u32 %s, %s, 4, %s" % (R(VROW), R(T2), R(T1)))
    a("s_lshl_b32 %s, %s, 8" % (S(sX0), S(sAUX)))
    a("s_lshl_b32 %s, %s, 6" % (S(sT0), S(sW)))
    a("s_add_u32 %s, %s, %s" % (S(sX0), S(sX0), S(sT0)))
    frags = []
    for x, srd in (('g', sA), ('u', sB)):
        for ks in range(32):
            frags.append((srd, (lambda a_, d, ks=ks: a_("s_add_u32 %s, %s, %d" % (S(d), S(sX0), ks * 16 * 3584))), W(x, ks)))
    load_frags32(a, frags, VROW, VTR)
    setup_rowtile(a, lane, AF, VD, T1, T2, T3)
    a("v_lshlrev_b32 %s, 4, %s" % (R(VL16), R(lane)))
    a("v_mov_b32 %s, 0" % R(VFL))
    a("s_mov_b32 %s, 0x%x" % (S(sX3), f32(-1.4426950408889634)))
    wait_init(a, T1, T2, init_target)
    a("s_barrier")
    def in_flag(a, sd, sf): a("s_add_u32 %s, %s, %d" % (S(sd), S(sf), WS_FLAGS + FL_H2))
    def src_addr(a, sd, sl, ss): job_off2(a, sd, WS_H2, H2_L, H2_JOB, sl, ss)
    def dma_items(ssrc, sbuf): return rowtile_items(VD, ssrc, sbuf)
    def toggle(a):
        for j in range(8): a("v_xor_b32 %s, 0x8000, %s" % (R(AF + j), R(AF + j)))
    def rd(ks): return "ds_read_b128 %s, %s offset:%d" % (RR(XF[ks % 4], 4), R(AF + (ks & 7)), (ks >> 3) * 8192)
    def mk_steps(L):
        ids = {}
        for ks in range(3): ids[ks] = L.ds(rd(ks))
        steps = []
        for ks in range(32):
            x = XF[ks % 4]
            mfs = [S_mf32x(AG, W('g', ks), x, None if ks == 0 else AG), S_mf32x(AU, W('u', ks), x, None if ks == 0 else AU)]
            def pre(ks=ks):
                if ks + 3 < 32: ids[ks + 3] = L.ds(rd(ks + 3))
            steps.append(((lambda ks=ks: ids[ks]), mfs, pre))
        return steps
    SG, SU, WK_ = 64, 72, 80
    def out_addr(a, sd):
        job_off(a, sd, WS_ACT, ACT_L, ACT_JOB)
        a("s_lshl_b32 %s, %s, 13" % (S(sT4), S(sAUX)))
        a("s_add_u32 %s, %s, %s" % (S(sd), S(sd), S(sT4)))
        a("s_lshl_b32 %s, %s, 11" % (S(sT4), S(sW)))
        a("s_add_u32 %s, %s, %s" % (S(sd), S(sd), S(sT4)))
    def shadow(a):
        for r_ in range(8):
            a("v_cvt_pk_bf16_f32 %s, %s, %s" % (R(SG + r_), R(AG + 2 * r_), R(AG + 2 * r_ + 1)))
            a("v_cvt_pk_bf16_f32 %s, %s, %s" % (R(SU + r_), R(AU + 2 * r_), R(AU + 2 * r_ + 1)))
    def epi_items(so):
        ins = []
        for r_ in range(8):
            t = WK_ + (r_ % 2) * 8
            g0, g1, u0, u1, e0, e1, p = t, t + 1, t + 2, t + 3, t + 4, t + 5, t + 6
            ins += ["v_lshlrev_b32 %s, 16, %s" % (R(g0), R(SG + r_)),
                    "v_and_b32 %s, 0xffff0000, %s" % (R(g1), R(SG + r_)),
                    "v_mul_f32 %s, %s, %s" % (R(e0), S(sX3), R(g0)),
                    "v_mul_f32 %s, %s, %s" % (R(e1), S(sX3), R(g1)),
                    "v_exp_f32 %s, %s" % (R(e0), R(e0)),
                    "v_exp_f32 %s, %s" % (R(e1), R(e1)),
                    "v_lshlrev_b32 %s, 16, %s" % (R(u0), R(SU + r_)),
                    "v_and_b32 %s, 0xffff0000, %s" % (R(u1), R(SU + r_)),
                    "v_add_f32 %s, 1.0, %s" % (R(e0), R(e0)),
                    "v_add_f32 %s, 1.0, %s" % (R(e1), R(e1)),
                    "v_rcp_f32 %s, %s" % (R(e0), R(e0)),
                    "v_rcp_f32 %s, %s" % (R(e1), R(e1)),
                    "s_nop 0",
                    "v_mul_f32 %s, %s, %s" % (R(g0), R(g0), R(e0)),
                    "v_mul_f32 %s, %s, %s" % (R(g1), R(g1), R(e1)),
                    "v_cvt_pk_bf16_f32 %s, %s, %s" % (R(p), R(g0), R(g1)),
                    "v_lshlrev_b32 %s, 16, %s" % (R(g0), R(p)),
                    "v_and_b32 %s, 0xffff0000, %s" % (R(g1), R(p)),
                    "v_mul_f32 %s, %s, %s" % (R(g0), R(g0), R(u0)),
                    "v_mul_f32 %s, %s, %s" % (R(g1), R(g1), R(u1)),
                    "v_cvt_pk_bf16_f32 %s, %s, %s" % (R(PKD + r_), R(g0), R(g1))]
            if r_ in (3, 7):
                ins.append("buffer_store_dwordx4 %s, %s, %s, %s offen offset:%d sc1" % (RR(PKD + 4 * (r_ // 4), 4), R(VL16), SR(sWS, 4), S(so), (r_ // 4) * 1024))
        ins = [x for x in ins if x != "s_nop 0"]
        per = 3
        return [ins[k:k + per] for k in range(0, len(ins), per)]
    def oflag(a, sd):
        a("s_cmp_ge_u32 %s, 7" % S(sAUX))
        a("s_cselect_b32 %s, 128, 0" % S(sd))
        a("s_add_u32 %s, %s, %s" % (S(sd), S(sd), S(sFLJ)))
        a("s_add_u32 %s, %s, %d" % (S(sd), S(sd), WS_FLAGS + FL_A))
    gemm_loop(a, 's4', (1 if DEDICATED else 2), VFL, VFV, T1, T2, in_flag, 8, src_addr, dma_items, toggle, mk_steps, 64, out_addr, shadow, epi_items, (0, 1), oflag, 0x8000, nst=2, sig_at=26, defer_epi=False, dec_at=DEC_S4, trc=(7, 8, [(sAUX, 0), (sW, 0)]))
```

```python
import common
from bulk import *


LAM = 26
MDED = True
MIMIC = True
RPWS = {3: 2, 5: 2}
sPEND2 = 66
def pos_to_job(a, s_pos):
    La = a.newlabel('pa'); Lb = a.newlabel('pb'); Lc = a.newlabel('pc')
    a("s_mov_b32 %s, %s" % (S(sT0), S(s_pos)))
    a("s_cmp_lt_u32 %s, %d" % (S(sT0), LAM))
    a("s_cbranch_scc0 %s" % La)
    a("s_mov_b32 %s, 0" % S(sJL)); a("s_mov_b32 %s, %s" % (S(sJS), S(sT0)))
    a("s_branch %s" % Lc)
    a.label(La)
    a("s_sub_u32 %s, %s, %d" % (S(sT0), S(sT0), LAM))
    a("s_cmp_lt_u32 %s, %d" % (S(sT0), 2 * (64 - LAM)))
    a("s_cbranch_scc0 %s" % Lb)
    a("s_and_b32 %s, %s, 1" % (S(sT1), S(sT0)))
    a("s_xor_b32 %s, %s, 1" % (S(sJL), S(sT1)))
    a("s_lshr_b32 %s, %s, 1" % (S(sJS), S(sT0)))
    a("s_mul_i32 %s, %s, %d" % (S(sT1), S(sT1), LAM))
    a("s_add_u32 %s, %s, %s" % (S(sJS), S(sJS), S(sT1)))
    a("s_branch %s" % Lc)
    a.label(Lb)
    a("s_mov_b32 %s, 1" % S(sJL))
    a("s_sub_u32 %s, %s, %d" % (S(sJS), S(sT0), 64 - LAM))
    a.label(Lc)
    a("s_lshl_b32 %s, %s, 6" % (S(sT0), S(sJL)))
    a("s_add_u32 %s, %s, %s" % (S(sT0), S(sT0), S(sJS)))
    a("s_mul_i32 %s, %s, %d" % (S(sFLJ), S(sT0), JOBFLAG_BYTES))

sPAR2 = 70

sG0, sG1 = 68, 69
sML, sMS, sMFL, sMSUB = 74, 75, 76, 77
GEO = dict(gpj=8)
def NGRP(): return 64 * GEO['gpj']
def misc_cands(a, ncu, flag_of):
    for c, g in ((sC0, sG0), (sC1, sG1)):
        a("s_mul_i32 %s, %s, %d" % (S(g), S(c), ncu))
        a("s_add_u32 %s, %s, %s" % (S(g), S(g), S(sREP)))
    a("s_min_u32 %s, %s, %d" % (S(sT2), S(sG0), NGRP() - 1)); flag_of(a, sF0, sT2, 0)
    a("s_min_u32 %s, %s, %d" % (S(sT2), S(sG1), NGRP() - 1)); flag_of(a, sF1, sT2, 1)
def misc_sample(a, VOFF, V0, V1):
    a("buffer_load_dword %s, %s, %s, %s offen sc1" % (R(V0), R(VOFF), SR(sWS, 4), S(sF0)))
    a("buffer_load_dword %s, %s, %s, %s offen sc1" % (R(V1), R(VOFF), SR(sWS, 4), S(sF1)))
def misc_decide(a, V0, V1, target, prio=0):
    a("v_cmp_le_u32 vcc, %d, %s" % (target, R(V0)))
    a("s_cmp_eq_u64 vcc, -1"); a("s_cselect_b32 %s, 1, 0" % S(sT0))
    a("s_cmp_lt_u32 %s, %d" % (S(sG0), NGRP())); a("s_cselect_b32 %s, %s, 0" % (S(sT0), S(sT0)))
    a("v_cmp_le_u32 vcc, %d, %s" % (target, R(V1)))
    a("s_cmp_eq_u64 vcc, -1"); a("s_cselect_b32 %s, 2, 0" % S(sT1))
    a("s_cmp_lt_u32 %s, %d" % (S(sG1), NGRP())); a("s_cselect_b32 %s, %s, 0" % (S(sT1), S(sT1)))
    first, second = (sT0, sT1) if prio == 0 else (sT1, sT0)
    a("s_cmp_lg_u32 %s, 0" % S(first)); a("s_cselect_b32 %s, %s, %s" % (S(sDEC), S(first), S(second)))
    a("s_min_u32 %s, %s, %s" % (S(sT2), S(sG0), S(sG1)))
    a("s_cmp_ge_u32 %s, %d" % (S(sT2), NGRP())); a("s_cselect_b32 %s, 3, %s" % (S(sDEC), S(sDEC)))
TR_TAG = [None]
def misc_take(a):
    _take(a)
    if TR_TAG[0] == 's2': trace(a, 12, sML, sMS, [(sMSUB, 0)], 13, 14, sT0)
def _take(a):
    a("s_sub_u32 %s, %s, 1" % (S(sML), S(sDEC)))
    a("s_cmp_eq_u32 %s, 0" % S(sML))
    a("s_cselect_b32 %s, %s, %s" % (S(sT0), S(sG0), S(sG1)))
    sh = {8: 3, 4: 2}[GEO['gpj']]
    a("s_lshr_b32 %s, %s, %d" % (S(sMS), S(sT0), sh))
    a("s_and_b32 %s, %s, %d" % (S(sMSUB), S(sT0), GEO['gpj'] - 1))
    a("s_lshl_b32 %s, %s, %d" % (S(sMSUB), S(sMSUB), 5 - sh))
    a("s_add_u32 %s, %s, %s" % (S(sMSUB), S(sMSUB), S(sW)))
    a("s_xor_b32 %s, %s, 1" % (S(sT0), S(sML)))
    a("s_add_u32 %s, %s, %s" % (S(sC0), S(sC0), S(sT0)))
    a("s_add_u32 %s, %s, %s" % (S(sC1), S(sC1), S(sML)))
    a("s_lshl_b32 %s, %s, 6" % (S(sT0), S(sML)))
    a("s_add_u32 %s, %s, %s" % (S(sT0), S(sT0), S(sMS)))
    a("s_mul_i32 %s, %s, %d" % (S(sMFL), S(sT0), JOBFLAG_BYTES))
def misc_block_pick(a, tag, ncu, VOFF, V0, V1, T1, T2, flag_of, target):
    Lb = a.newlabel(tag + 'mp'); Lp = a.newlabel(tag + 'mpl'); Ld = a.newlabel(tag + 'mpd')
    misc_cands(a, ncu, flag_of)
    a("s_cmp_eq_u32 %s, 0" % S(sW)); a("s_cbranch_scc0 %s" % Lb)
    a.label(Lp)
    misc_sample(a, VOFF, V0, V1)
    a("s_waitcnt vmcnt(0)")
    misc_decide(a, V0, V1, target)
    a("s_cmp_lg_u32 %s, 0" % S(sDEC)); a("s_cbranch_scc1 %s" % Ld)
    a("s_add_u32 %s, %s, 1" % (S(sTMO), S(sTMO)))
    a("s_cmp_gt_u32 %s, %d" % (S(sTMO), TIMEOUT))
    a("s_cselect_b32 %s, 3, 0" % S(sDEC))
    a("s_cbranch_scc1 %s" % Ld)
    a("s_sleep %d" % common.PSLEEP)
    a("s_branch %s" % Lp)
    a.label(Ld)
    bcast_write(a, T1, T2)
    a.label(Lb)
    a("s_barrier")
    bcast_read(a, T1, T2)

def misc_loop(a, tag, ncu, VOFF, V0, V1, T1, T2, flag_of, target, loads, nloads, compute, trace_fn):
    TR_TAG[0] = tag
    Ld = a.newlabel(tag + 'done')
    Lj = [a.newlabel(tag + 'job0'), a.newlabel(tag + 'job1')]
    if MDED:
        ncu = ncu // 2
        a("s_cmp_lt_u32 %s, %d" % (S(sREP), ncu))
        a("s_cselect_b32 %s, 0, 512" % S(sC0))
        a("s_cselect_b32 %s, 512, 0" % S(sC1))
        a("s_cselect_b32 %s, 0, %d" % (S(sT0), ncu))
        a("s_sub_u32 %s, %s, %s" % (S(sREP), S(sREP), S(sT0)))
    else:
        a("s_mov_b32 %s, 0" % S(sC0)); a("s_mov_b32 %s, 0" % S(sC1))
    misc_block_pick(a, tag, ncu, VOFF, V0, V1, T1, T2, flag_of, target)
    a("s_cmp_eq_u32 %s, 3" % S(sDEC)); a("s_cbranch_scc1 %s" % Ld)
    misc_take(a)
    loads(a, 0)
    misc_cands(a, ncu, flag_of)
    misc_sample(a, VOFF, V0, V1)
    a("s_waitcnt vmcnt(0)")
    a("s_mov_b32 s78, 0")
    for p in range(2):
        Llate = a.newlabel(tag + 'late'); Lw = a.newlabel(tag + 'w0'); Lc = a.newlabel(tag + 'c'); Ls1 = a.newlabel(tag + 's1'); Lgo = a.newlabel(tag + 'go')
        a.label(Lj[p])
        a("s_mov_b32 %s, %s\ns_mov_b32 %s, %s\ns_mov_b32 %s, %s\ns_mov_b32 %s, %s" % (S(sJL), S(sML), S(sJS), S(sMS), S(sFLJ), S(sMFL), S(sX1), S(sMSUB)))
        Lv = a.newlabel(tag + 'v'); Lv2 = a.newlabel(tag + 'v2')
        a("s_cmp_eq_u32 s78, 0"); a("s_cbranch_scc1 %s" % Lv)
        a("s_waitcnt vmcnt(1)")
        a("s_branch %s" % Lv2)
        a.label(Lv)
        a("s_waitcnt vmcnt(0)")
        a.label(Lv2)
        a("s_cmp_eq_u32 %s, 0" % S(sW)); a("s_cbranch_scc0 %s" % Lw)
        misc_decide(a, V0, V1, target)
        bcast_write(a, T1, T2)
        a.label(Lw)
        a("s_barrier")
        bcast_read(a, T1, T2)
        a("s_mov_b32 s79, 0")
        a("s_sub_u32 %s, %s, 1" % (S(sT0), S(sDEC)))
        a("s_cmp_lt_u32 %s, 2" % S(sT0))
        a("s_cbranch_scc0 %s" % Lc)
        misc_take(a)
        loads(a, 1 - p)
        a("s_mov_b32 s79, 1")
        a.label(Lc)
        if tag == 's2': trace(a, 13, sJL, sJS, [(sX1, 0)], T1, T2, sT0)
        compute(a, p)
        misc_cands(a, ncu, flag_of)
        misc_sample(a, VOFF, V0, V1)
        a("s_waitcnt vmcnt(2)")
        a("s_cmp_eq_u32 s78, 0"); a("s_cbranch_scc1 %s" % Ls1)
        wg_signal(a, T1, T2, "s78", val=8 // GEO['gpj'])
        a.label(Ls1)
        trace_fn(a)
        a("s_cmp_eq_u32 s79, 1"); a("s_cbranch_scc1 %s" % Lgo)
        misc_block_pick(a, tag, ncu, VOFF, V0, V1, T1, T2, flag_of, target)
        a("s_cmp_eq_u32 %s, 3" % S(sDEC)); a("s_cbranch_scc1 %s" % Ld)
        misc_take(a)
        loads(a, 1 - p)
        misc_cands(a, ncu, flag_of)
        misc_sample(a, VOFF, V0, V1)
        a("s_waitcnt vmcnt(0)")
        a.label(Lgo)
        if p == 1: a("s_branch %s" % Lj[0])
    a.label(Ld)
    a("s_waitcnt vmcnt(0)")
    a("s_branch L_exit")

def wave_allsum(a, x, t):
    for rr in (8, 4, 2, 1):
        a("v_add_f32_dpp %s, %s, %s row_ror:%d row_mask:0xf bank_mask:0xf" % (R(x), R(x), R(x), rr))
    a("v_mov_b32 %s, %s" % (R(t), R(x)))
    a("v_permlane16_swap_b32 %s, %s" % (R(x), R(t)))
    a("v_add_f32 %s, %s, %s" % (R(x), R(x), R(t)))
    a("v_mov_b32 %s, %s" % (R(t), R(x)))
    a("v_permlane32_swap_b32 %s, %s" % (R(x), R(t)))
    a("v_add_f32 %s, %s, %s" % (R(x), R(x), R(t)))

def rnd_bf(a, x, t=None):
    a("v_cvt_pk_bf16_f32 %s, %s, %s" % (R(x), R(x), R(x)))
    a("v_and_b32 %s, 0xffff0000, %s" % (R(x), R(x)))

def unpack4(a, dst, src):
    a("v_lshlrev_b32 %s, 16, %s" % (R(dst), R(src)))
    a("v_and_b32 %s, 0xffff0000, %s" % (R(dst + 1), R(src)))
    a("v_lshlrev_b32 %s, 16, %s" % (R(dst + 2), R(src + 1)))
    a("v_and_b32 %s, 0xffff0000, %s" % (R(dst + 3), R(src + 1)))

def ln_row(a, X, PKH, M, V_, T):
    a("v_add_f32 %s, %s, %s" % (R(M), R(X), R(X + 1)))
    a("v_add_f32 %s, %s, %s" % (R(T), R(X + 2), R(X + 3)))
    a("v_add_f32 %s, %s, %s" % (R(V_), R(X + 4), R(X + 5)))
    a("v_add_f32 %s, %s, %s" % (R(M), R(M), R(T)))
    a("v_add_f32 %s, %s, %s" % (R(T), R(X + 6), R(X + 7)))
    a("v_add_f32 %s, %s, %s" % (R(V_), R(V_), R(T)))
    a("v_add_f32 %s, %s, %s" % (R(M), R(M), R(V_)))
    wave_allsum(a, M, T)
    a("v_mul_f32 %s, 0x%x, %s" % (R(M), f32(1.0 / 512), R(M)))
    D = PKH + 4
    for i in range(8): a("v_sub_f32 %s, %s, %s" % (R(D + i), R(X + i), R(M)))
    a("v_mul_f32 %s, %s, %s" % (R(V_), R(D), R(D)))
    for i in range(1, 8): a("v_fmac_f32 %s, %s, %s" % (R(V_), R(D + i), R(D + i)))
    wave_allsum(a, V_, T)
    a("v_mul_f32 %s, 0x%x, %s" % (R(V_), f32(1.0 / 512), R(V_)))
    rnd_bf(a, M); rnd_bf(a, V_)
    a("v_add_f32 %s, 0x%x, %s" % (R(V_), f32(1e-5), R(V_)))
    rnd_bf(a, V_)
    a("v_sqrt_f32 %s, %s" % (R(V_), R(V_)))
    rnd_bf(a, V_)
    a("v_rcp_f32 %s, %s" % (R(V_), R(V_)))
    for i in range(8): a("v_sub_f32 %s, %s, %s" % (R(D + i), R(X + i), R(M)))
    for i in range(0, 8, 2):
        a("v_cvt_pk_bf16_f32 %s, %s, %s" % (R(T), R(D + i), R(D + i + 1)))
        a("v_lshlrev_b32 %s, 16, %s" % (R(D + i), R(T)))
        a("v_and_b32 %s, 0xffff0000, %s" % (R(D + i + 1), R(T)))
    for i in range(8): a("v_mul_f32 %s, %s, %s" % (R(D + i), R(D + i), R(V_)))
    for i in range(4): a("v_cvt_pk_bf16_f32 %s, %s, %s" % (R(PKH + i), R(D + 2 * i), R(D + 2 * i + 1)))

RL, RV8, RV16, RT1, RT2, RFL = 0, 1, 2, 13, 14, 3
RP = 16
RX = 48
RXF = 52
RPK = 64
RM, RVv, RT = 80, 81, 82

def row_setup(a):
    a("v_lshlrev_b32 %s, 3, %s" % (R(RV8), R(RL)))
    a("v_lshlrev_b32 %s, 4, %s" % (R(RV16), R(RL)))

def r0_phase(a, nwaves, s_wid):
    Lj = a.newlabel('r0'); Ld = a.newlabel('r0d')
    a("s_mov_b32 %s, %s" % (S(sX0), S(s_wid)))
    a("s_mov_b32 %s, 0" % S(sPAR2))
    a.label(Lj)
    a("s_cmp_ge_u32 %s, 2048" % S(sX0))
    a("s_cbranch_scc1 %s" % Ld)
    a("s_lshl_b32 %s, %s, 10" % (S(sT0), S(sX0)))
    a("buffer_load_dwordx2 %s, %s, %s, %s offen" % (RR(RX, 2), R(RV8), SR(sB, 4), S(sT0)))
    a("buffer_load_dwordx2 %s, %s, %s, %s offen offset:512" % (RR(RX + 2, 2), R(RV8), SR(sB, 4), S(sT0)))
    a("s_waitcnt vmcnt(0)")
    unpack4(a, RXF, RX); unpack4(a, RXF + 4, RX + 2)
    ln_row(a, RXF, RPK, RM, RVv, RT)
    a("s_add_u32 %s, %s, %d" % (S(sT0), S(sT0), WS_HN))
    a("buffer_store_dwordx2 %s, %s, %s, %s offen sc1" % (RR(RPK, 2), R(RV8), SR(sWS, 4), S(sT0)))
    a("buffer_store_dwordx2 %s, %s, %s, %s offen offset:512 sc1" % (RR(RPK + 2, 2), R(RV8), SR(sWS, 4), S(sT0)))
    a("s_lshr_b32 %s, %s, 5" % (S(sT1), S(sX0)))
    a("s_mul_i32 %s, %s, %d" % (S(sT1), S(sT1), JOBFLAG_BYTES))
    a("s_add_u32 %s, %s, %d" % (S(sT1), S(sT1), WS_FLAGS + FL_H))
    a("s_waitcnt vmcnt(0)")
    wg_signal(a, RT1, RT2, S(sT1))
    a("s_add_u32 %s, %s, %d" % (S(sX0), S(sX0), nwaves))
    a("s_branch %s" % Lj)
    a.label(Ld)

def r_role(a, which, ncu):
    tag = 'r%d' % which
    NP = 4 if which == 3 else 2
    RT3 = 15
    RPW = RPWS[which]
    GEO['gpj'] = 8 // RPW
    RPs = [[16, 100], [132, 164]]
    RXNs = [[92, 96], [196, 200]]
    a("v_mov_b32 %s, 0" % R(RFL))
    a("s_mov_b32 %s, %s" % (S(sREP), S(sAUX)))
    def flag_of(a, sd, sg, lay):
        a("s_lshr_b32 %s, %s, %d" % (S(sd), S(sg), 4 - RPW))
        if lay: a("s_add_u32 %s, %s, 64" % (S(sd), S(sd)))
        a("s_mul_i32 %s, %s, %d" % (S(sd), S(sd), JOBFLAG_BYTES))
        a("s_add_u32 %s, %s, %d" % (S(sd), S(sd), WS_FLAGS + (FL_P3 if which == 3 else FL_P5)))
    def loads(a, pp):
        for rr in range(RPW):
            loads1(a, RPs[pp][rr], RXNs[pp][rr])
            if rr + 1 < RPW: a("s_add_u32 %s, %s, 4" % (S(sMSUB), S(sMSUB)))
        if RPW == 2: a("s_sub_u32 %s, %s, 4" % (S(sMSUB), S(sMSUB)))
    def loads1(a, RP, RXN):
        base, ls, jb = (WS_P3, P3_L, P3_JOB) if which == 3 else (WS_P5, P5_L, P5_JOB)
        job_off2(a, sIN, base, ls, jb, sML, sMS)
        a("s_lshl_b32 %s, %s, 11" % (S(sT0), S(sMSUB)))
        a("s_add_u32 %s, %s, %s" % (S(sIN), S(sIN), S(sT0)))
        for p in range(NP):
            a("buffer_load_dwordx4 %s, %s, %s, %s offen sc1" % (RR(RP + 8 * p, 4), R(RV16), SR(sWS, 4), S(sIN)))
            a("buffer_load_dwordx4 %s, %s, %s, %s offen offset:1024 sc1" % (RR(RP + 8 * p + 4, 4), R(RV16), SR(sWS, 4), S(sIN)))
            if p + 1 < NP: a("s_add_u32 %s, %s, 65536" % (S(sIN), S(sIN)))
        a("s_lshl_b32 %s, %s, 5" % (S(sT1), S(sMS)))
        a("s_add_u32 %s, %s, %s" % (S(sT1), S(sT1), S(sMSUB)))
        a("s_lshl_b32 %s, %s, 10" % (S(sT1), S(sT1)))
        if which == 3:
            La = a.newlabel('rin'); Lb = a.newlabel('rin')
            a("s_cmp_eq_u32 %s, 0" % S(sML))
            a("s_cbranch_scc0 %s" % La)
            a("buffer_load_dwordx2 %s, %s, %s, %s offen" % (RR(RXN, 2), R(RV8), SR(sB, 4), S(sT1)))
            a("buffer_load_dwordx2 %s, %s, %s, %s offen offset:512" % (RR(RXN + 2, 2), R(RV8), SR(sB, 4), S(sT1)))
            a("s_branch %s" % Lb)
            a.label(La)
            a("s_add_u32 %s, %s, %d" % (S(sT0), S(sT1), WS_X2))
            a("buffer_load_dwordx2 %s, %s, %s, %s offen sc1" % (RR(RXN, 2), R(RV8), SR(sWS, 4), S(sT0)))
            a("buffer_load_dwordx2 %s, %s, %s, %s offen offset:512 sc1" % (RR(RXN + 2, 2), R(RV8), SR(sWS, 4), S(sT0)))
            a.label(Lb)
        else:
            a("s_mul_i32 %s, %s, %d" % (S(sT0), S(sML), X1_L))
            a("s_add_u32 %s, %s, %s" % (S(sT0), S(sT0), S(sT1)))
            a("s_add_u32 %s, %s, %d" % (S(sT0), S(sT0), WS_X1))
            a("buffer_load_dwordx2 %s, %s, %s, %s offen sc1" % (RR(RXN, 2), R(RV8), SR(sWS, 4), S(sT0)))
            a("buffer_load_dwordx2 %s, %s, %s, %s offen offset:512 sc1" % (RR(RXN + 2, 2), R(RV8), SR(sWS, 4), S(sT0)))
    def compute(a, pp):
        for rr in range(RPW):
            compute1(a, RPs[pp][rr], RXNs[pp][rr], rr)
            if rr + 1 < RPW: a("s_add_u32 %s, %s, 4" % (S(sX1), S(sX1)))
        if RPW == 2: a("s_sub_u32 %s, %s, 4" % (S(sX1), S(sX1)))
    def compute1(a, RP, RXN, rr):
        RX = 48 + 36 * 0 + (0 if rr == 0 else 160)
        RPK = 64 if rr == 0 else 216
        Lfin = a.newlabel('rfin')
        a("s_lshl_b32 %s, %s, 5" % (S(sX2), S(sJS)))
        a("s_add_u32 %s, %s, %s" % (S(sX2), S(sX2), S(sX1)))
        a("s_lshl_b32 %s, %s, 10" % (S(sX2), S(sX2)))
        for p in range(1, NP):
            for i in range(8): a("v_add_f32 %s, %s, %s" % (R(RP + i), R(RP + i), R(RP + 8 * p + i)))
        unpack4(a, RXF, RXN); unpack4(a, RXF + 4, RXN + 2)
        for i in range(0, 8, 2):
            a("v_cvt_pk_bf16_f32 %s, %s, %s" % (R(RT), R(RP + i), R(RP + i + 1)))
            a("v_lshlrev_b32 %s, 16, %s" % (R(RP + i), R(RT)))
            a("v_and_b32 %s, 0xffff0000, %s" % (R(RP + i + 1), R(RT)))
        for i in range(8): a("v_add_f32 %s, %s, %s" % (R(RXF + i), R(RXF + i), R(RP + i)))
        for i in range(4): a("v_cvt_pk_bf16_f32 %s, %s, %s" % (R(RX + i), R(RXF + 2 * i), R(RXF + 2 * i + 1)))
        if which == 3:
            a("s_mul_i32 %s, %s, %d" % (S(sT0), S(sJL), X1_L))
            a("s_add_u32 %s, %s, %s" % (S(sT0), S(sT0), S(sX2)))
            a("s_add_u32 %s, %s, %d" % (S(sT0), S(sT0), WS_X1))
            a("buffer_store_dwordx2 %s, %s, %s, %s offen sc1" % (RR(RX, 2), R(RV8), SR(sWS, 4), S(sT0)))
            a("buffer_store_dwordx2 %s, %s, %s, %s offen offset:512 sc1" % (RR(RX + 2, 2), R(RV8), SR(sWS, 4), S(sT0)))
        else:
            L1 = a.newlabel('r5l1')
            a("s_cmp_eq_u32 %s, 0" % S(sJL))
            a("s_cbranch_scc1 %s" % L1)
            a("buffer_store_dwordx2 %s, %s, %s, %s offen" % (RR(RX, 2), R(RV8), SR(sC, 4), S(sX2)))
            a("buffer_store_dwordx2 %s, %s, %s, %s offen offset:512" % (RR(RX + 2, 2), R(RV8), SR(sC, 4), S(sX2)))
            a("s_mov_b32 s78, 0")
            a("s_branch %s" % Lfin)
            a.label(L1)
            a("s_add_u32 %s, %s, %d" % (S(sT0), S(sX2), WS_X2))
            a("buffer_store_dwordx2 %s, %s, %s, %s offen sc1" % (RR(RX, 2), R(RV8), SR(sWS, 4), S(sT0)))
            a("buffer_store_dwordx2 %s, %s, %s, %s offen offset:512 sc1" % (RR(RX + 2, 2), R(RV8), SR(sWS, 4), S(sT0)))
        unpack4(a, RXF, RX); unpack4(a, RXF + 4, RX + 2)
        ln_row(a, RXF, RPK, RM, RVv, RT)
        if which == 3:
            a("s_mul_i32 %s, %s, %d" % (S(sT0), S(sJL), H2_L))
            a("s_add_u32 %s, %s, %s" % (S(sT0), S(sT0), S(sX2)))
            a("s_add_u32 %s, %s, %d" % (S(sT0), S(sT0), WS_H2))
            a("s_add_u32 s78, %s, %d" % (S(sFLJ), WS_FLAGS + FL_H2))
        else:
            a("s_add_u32 %s, %s, %d" % (S(sT0), S(sX2), WS_HN + (HN_L if HN_L else 0)))
            a("s_add_u32 s78, %s, %d" % (S(sFLJ), WS_FLAGS + NSEG * JOBFLAG_BYTES + FL_H))
        a("buffer_store_dwordx2 %s, %s, %s, %s offen sc1" % (RR(RPK, 2), R(RV8), SR(sWS, 4), S(sT0)))
        a("buffer_store_dwordx2 %s, %s, %s, %s offen offset:512 sc1" % (RR(RPK + 2, 2), R(RV8), SR(sWS, 4), S(sT0)))
        a.label(Lfin)
    misc_loop(a, tag, ncu, RFL, 90, 91, RT1, RT2, flag_of, 16 if which == 3 else 8, loads, 2 * NP + 2, compute,
              lambda a: trace(a, 6 if which == 3 else 11, sJL, sJS, [(sX1, 0)], RT2, RT3, sT0))

def s2_role(a, nwaves):
    lane, T1, T2, T3 = 0, 13, 14, 15
    VL16, VFL, VO = 1, 2, 3
    SETB = [16, 256]
    cur = [0]
    QFr = lambda qt, ks: SETB[cur[0]] + 16 * qt + 4 * ks
    KFr = lambda kt, ks: SETB[cur[0]] + 32 + 16 * kt + 4 * ks
    VFr = lambda et: SETB[cur[0]] + 64 + 4 * et
    KMr = lambda ks: SETB[cur[0]] + 96 + 4 * ks
    VMr = lambda w: SETB[cur[0]] + 112 + 4 * w
    SM_ = lambda qt: 144 + 4 * qt
    SXr = lambda qt, kt: 152 + 8 * qt + 4 * kt
    PXr = lambda qt: 168 + 4 * qt
    PMr = lambda qt: 176 + 2 * qt
    OAc = lambda qt, et: 180 + 32 * qt + 4 * et
    MX_, Z_, TT = 244, 245, 246
    sMSK = 56
    sSCALE, sL2E = 72, 73
    a("v_lshlrev_b32 %s, 4, %s" % (R(VL16), R(lane)))
    a("v_mov_b32 %s, 0" % R(VFL))
    a("v_lshrrev_b32 %s, 4, %s" % (R(T1), R(lane)))
    a("v_and_b32 %s, 15, %s" % (R(T2), R(lane)))
    a("v_lshlrev_b32 %s, 4, %s" % (R(VO), R(T2)))
    a("v_lshl_add_u32 %s, %s, 9, %s" % (R(VO), R(T1), R(VO)))
    a("v_lshlrev_b32 %s, 2, %s" % (R(T1), R(T1)))
    for i in range(4):
        a("v_add_u32 %s, %d, %s" % (R(T3), i, R(T1)))
        a("v_cmp_le_u32 %s, %s, %s" % (SR(sMSK + 2 * i, 2), R(T3), R(T2)))
    a("s_mov_b32 %s, 0x%x" % (S(sSCALE), f32(128 ** -0.5)))
    a("s_mov_b32 %s, 0x%x" % (S(sL2E), f32(1.4426950408889634 * (1.0 if MIMIC else 128 ** -0.5))))
    a("s_mov_b32 %s, %s" % (S(sREP), S(sAUX)))
    a("v_bfe_u32 %s, %s, 3, 2" % (R(VFL), R(lane)))
    a("v_lshlrev_b32 %s, 7, %s" % (R(VFL), R(VFL)))
    a("v_and_b32 %s, 7, %s" % (R(T1), R(lane)))
    a("v_min_u32 %s, 1, %s" % (R(T1), R(T1)))
    a("v_lshl_add_u32 %s, %s, 2, %s" % (R(VFL), R(T1), R(VFL)))
    def flag_of(a, sd, sg, lay):
        a("s_lshr_b32 %s, %s, 3" % (S(sd), S(sg)))
        if lay: a("s_add_u32 %s, %s, 64" % (S(sd), S(sd)))
        a("s_mul_i32 %s, %s, %d" % (S(sd), S(sd), JOBFLAG_BYTES))
        a("s_and_b32 %s, %s, 7" % (S(sT3), S(sg)))
        a("s_lshl_b32 %s, %s, 9" % (S(sT3), S(sT3)))
        a("s_add_u32 %s, %s, %s" % (S(sd), S(sd), S(sT3)))
        a("s_add_u32 %s, %s, %d" % (S(sd), S(sd), WS_FLAGS + FL_KV))
    def ldlin(dst, n):
        for i in range(n):
            a("buffer_load_dwordx4 %s, %s, %s, %s offen offset:%d sc1" % (RR(dst(i), 4), R(VL16), SR(sWS, 4), S(sIN), (i % 4) * 1024))
            if i % 4 == 3: a("s_add_u32 %s, %s, 4096" % (S(sIN), S(sIN)))
    def loads_km(a):
        job_off2(a, sIN, WS_KM, KM_L, KM_JOB, sJL, sJS)
        a("s_lshl_b32 %s, %s, 13" % (S(sT0), S(sX1)))
        a("s_add_u32 %s, %s, %s" % (S(sIN), S(sIN), S(sT0)))
        ldlin(lambda i: KMr(i), 4)
        ldlin(lambda i: VMr(i), 4)
    def loads_qkv(a, sl, ss, sh):
        job_off2(a, sIN, WS_QKV, QKV_L, QKV_JOB, sl, ss)
        a("s_mul_i32 %s, %s, %d" % (S(sT0), S(sh), 24 * KB))
        a("s_add_u32 %s, %s, %s" % (S(sIN), S(sIN), S(sT0)))
        ldlin(lambda i: QFr(i >> 2, i & 3), 8)
        ldlin(lambda i: KFr(i >> 2, i & 3), 8)
        ldlin(lambda i: VFr(i), 8)
    def s2_compute(a):
        def mf(d, aa, b, c): a("v_mfma_f32_16x16x32_bf16 %s, %s, %s, %s" % (RR(d, 4), RR(aa, 4), RR(b, 4), '0' if c is None else RR(c, 4)))
        for ks in range(4):
            for qt in range(2):
                mf(SM_(qt), KMr(ks), QFr(qt, ks), None if ks == 0 else SM_(qt))
            mf(SXr(0, 0), KFr(0, ks), QFr(0, ks), None if ks == 0 else SXr(0, 0))
            mf(SXr(1, 0), KFr(0, ks), QFr(1, ks), None if ks == 0 else SXr(1, 0))
            mf(SXr(1, 1), KFr(1, ks), QFr(1, ks), None if ks == 0 else SXr(1, 1))
        for qt in range(2):
            tiles = [SM_(qt), SXr(qt, 0)] + ([SXr(1, 1)] if qt == 1 else [])
            vals = [t + i for t in tiles for i in range(4)]
            for k in (range(0, len(vals), 2) if MIMIC else []):
                x, y = vals[k], vals[k + 1]
                a("v_cvt_pk_bf16_f32 %s, %s, %s" % (R(TT), R(x), R(y)))
                a("v_lshlrev_b32 %s, 16, %s" % (R(x), R(TT)))
                a("v_and_b32 %s, 0xffff0000, %s" % (R(y), R(TT)))
                a("v_mul_f32 %s, %s, %s" % (R(x), S(sSCALE), R(x)))
                a("v_mul_f32 %s, %s, %s" % (R(y), S(sSCALE), R(y)))
                a("v_cvt_pk_bf16_f32 %s, %s, %s" % (R(TT), R(x), R(y)))
                a("v_lshlrev_b32 %s, 16, %s" % (R(x), R(TT)))
                a("v_and_b32 %s, 0xffff0000, %s" % (R(y), R(TT)))
            dg = SXr(qt, qt)
            a("v_mov_b32 %s, 0x%x" % (R(TT), f32(-1e9)))
            for i in range(4):
                a("v_cndmask_b32 %s, %s, %s, %s" % (R(dg + i), R(TT), R(dg + i), SR(sMSK + 2 * i, 2)))
            a("v_max_f32 %s, %s, %s" % (R(MX_), R(vals[0]), R(vals[1])))
            for k in range(2, len(vals), 2):
                a("v_max3_f32 %s, %s, %s, %s" % (R(MX_), R(MX_), R(vals[k]), R(vals[k + 1])))
            for sw in (16, 32):
                a("v_mov_b32 %s, %s" % (R(TT), R(MX_)))
                a("v_permlane%d_swap_b32 %s, %s" % (sw, R(MX_), R(TT)))
                a("v_max_f32 %s, %s, %s" % (R(MX_), R(MX_), R(TT)))
            a("v_mul_f32 %s, %s, %s" % (R(MX_), S(sL2E), R(MX_)))
            for v_ in vals:
                a("v_fma_f32 %s, %s, %s, -%s" % (R(v_), R(v_), S(sL2E), R(MX_)))
            for v_ in vals:
                a("v_exp_f32 %s, %s" % (R(v_), R(v_)))
            a("v_add_f32 %s, %s, %s" % (R(Z_), R(vals[0]), R(vals[1])))
            a("v_add_f32 %s, %s, %s" % (R(Z_), R(Z_), R(vals[2])))
            a("v_add_f32 %s, %s, %s" % (R(Z_), R(Z_), R(vals[3])))
            a("v_mul_f32 %s, 0.5, %s" % (R(Z_), R(Z_)))
            for v_ in vals[4:]: a("v_add_f32 %s, %s, %s" % (R(Z_), R(Z_), R(v_)))
            for sw in (16, 32):
                a("v_mov_b32 %s, %s" % (R(TT), R(Z_)))
                a("v_permlane%d_swap_b32 %s, %s" % (sw, R(Z_), R(TT)))
                a("v_add_f32 %s, %s, %s" % (R(Z_), R(Z_), R(TT)))
            a("v_rcp_f32 %s, %s" % (R(Z_), R(Z_)))
            for v_ in vals: a("v_mul_f32 %s, %s, %s" % (R(v_), R(v_), R(Z_)))
            a("v_cvt_pk_bf16_f32 %s, %s, %s" % (R(PMr(qt)), R(vals[0]), R(vals[1])))
            a("v_cvt_pk_bf16_f32 %s, %s, %s" % (R(PMr(qt) + 1), R(vals[2]), R(vals[3])))
            a("v_cvt_pk_bf16_f32 %s, %s, %s" % (R(PXr(qt)), R(vals[4]), R(vals[5])))
            a("v_cvt_pk_bf16_f32 %s, %s, %s" % (R(PXr(qt) + 1), R(vals[6]), R(vals[7])))
            if qt == 1:
                a("v_cvt_pk_bf16_f32 %s, %s, %s" % (R(PXr(qt) + 2), R(vals[8]), R(vals[9])))
                a("v_cvt_pk_bf16_f32 %s, %s, %s" % (R(PXr(qt) + 3), R(vals[10]), R(vals[11])))
            else:
                a("v_mov_b32 %s, 0" % R(PXr(qt) + 2)); a("v_mov_b32 %s, 0" % R(PXr(qt) + 3))
        for qt in range(2):
            for et in range(8):
                mf(OAc(qt, et), VFr(et), PXr(qt), None)
            for et in range(8):
                a("v_mfma_f32_16x16x16_bf16 %s, %s, %s, %s" % (RR(OAc(qt, et), 4), RR(VMr(et >> 1) + 2 * (et & 1), 2), RR(PMr(qt), 2), RR(OAc(qt, et), 4)))
        job_off(a, sOUT, WS_O, O_L, O_JOB)
        a("s_lshl_b32 %s, %s, 13" % (S(sT0), S(sX1)))
        a("s_add_u32 %s, %s, %s" % (S(sOUT), S(sOUT), S(sT0)))
        PK = 144
        for tp in range(4):
            for qt in range(2):
                d = PK + 8 * (tp & 1) + 4 * qt
                for t in range(2):
                    o = OAc(qt, 2 * tp + t)
                    a("v_cvt_pk_bf16_f32 %s, %s, %s" % (R(d + 2 * t), R(o), R(o + 1)))
                    a("v_cvt_pk_bf16_f32 %s, %s, %s" % (R(d + 2 * t + 1), R(o + 2), R(o + 3)))
                a("buffer_store_dwordx4 %s, %s, %s, %s offen offset:%d sc1" % (RR(d, 4), R(VO), SR(sWS, 4), S(sOUT), qt * 256))
            if tp < 3: a("s_add_u32 %s, %s, 2048" % (S(sOUT), S(sOUT)))
        a("s_lshr_b32 %s, %s, 3" % (S(sT1), S(sX1)))
        a("s_lshl_b32 %s, %s, 7" % (S(sT1), S(sT1)))
        a("s_add_u32 %s, %s, %s" % (S(sT1), S(sT1), S(sFLJ)))
        a("s_add_u32 s78, %s, %d" % (S(sT1), WS_FLAGS + FL_O))
    ncu = nwaves // 2
    sG, sGN, sKVF = 68, 69, 70
    VKV, VKMo = 250, 251
    a("v_bfe_u32 %s, %s, 3, 2" % (R(VKV), R(lane)))
    a("v_lshlrev_b32 %s, 7, %s" % (R(VKV), R(VKV)))
    a("v_add_u32 %s, 4, %s" % (R(VKMo), R(VKV)))
    a("s_cmp_lt_u32 %s, %d" % (S(sREP), ncu))
    a("s_cselect_b32 %s, 0, 1" % S(sJL))
    a("s_cselect_b32 %s, 0, %d" % (S(sT0), ncu))
    a("s_sub_u32 %s, %s, %s" % (S(sG), S(sREP), S(sT0)))
    def decode(sg, ss, sh, sfl):
        a("s_lshr_b32 %s, %s, 3" % (S(ss), S(sg)))
        a("s_and_b32 %s, %s, 7" % (S(sh), S(sg)))
        a("s_lshl_b32 %s, %s, 9" % (S(sfl), S(sh)))
        a("s_lshl_b32 %s, %s, 2" % (S(sh), S(sh)))
        a("s_add_u32 %s, %s, %s" % (S(sh), S(sh), S(sW)))
        a("s_lshl_b32 %s, %s, 6" % (S(sT0), S(sJL)))
        a("s_add_u32 %s, %s, %s" % (S(sT0), S(sT0), S(ss)))
        a("s_mul_i32 %s, %s, %d" % (S(sT0), S(sT0), JOBFLAG_BYTES))
        a("s_add_u32 %s, %s, %s" % (S(sfl), S(sfl), S(sT0)))
        a("s_add_u32 %s, %s, %d" % (S(sfl), S(sfl), WS_FLAGS))
    def wait_flags(voff, sfl):
        Lb = a.newlabel('s2wf')
        a("s_cmp_eq_u32 %s, 0" % S(sW)); a("s_cbranch_scc0 %s" % Lb)
        poll(a, T1, voff, S(sfl), sleep=common.PSLEEP)
        a.label(Lb)
        a("s_barrier")
    Lj = a.newlabel('s2job'); Ld = a.newlabel('s2done'); Lhave = a.newlabel('s2have'); Lnoq = a.newlabel('s2noq'); Lsg = a.newlabel('s2sg')
    a("s_mov_b32 s79, 0")
    a.label(Lj)
    a("s_cmp_ge_u32 %s, 512" % S(sG)); a("s_cbranch_scc1 %s" % Ld)
    decode(sG, sJS, sX1, sKVF)
    a("s_lshl_b32 %s, %s, 6" % (S(sT0), S(sJL)))
    a("s_add_u32 %s, %s, %s" % (S(sT0), S(sT0), S(sJS)))
    a("s_mul_i32 %s, %s, %d" % (S(sFLJ), S(sT0), JOBFLAG_BYTES))
    a("s_cmp_eq_u32 s79, 1"); a("s_cbranch_scc1 %s" % Lhave)
    wait_flags(VKV, sKVF)
    loads_qkv(a, sJL, sJS, sX1)
    a.label(Lhave)
    wait_flags(VKMo, sKVF)
    loads_km(a)
    a("s_add_u32 %s, %s, %d" % (S(sGN), S(sG), ncu))
    a("s_min_u32 %s, %s, 511" % (S(sT2), S(sGN)))
    decode(sT2, sML, sMSUB, sMFL)
    a("buffer_load_dword %s, %s, %s, %s offen sc1" % (R(T3), R(VKV), SR(sWS, 4), S(sMFL)))
    a("s_waitcnt vmcnt(0)")
    trace(a, 13, sJL, sJS, [(sX1, 0)], T1, T2, sT0)
    s2_compute(a)
    Lw = a.newlabel('s2w0')
    a("s_cmp_eq_u32 %s, 0" % S(sW)); a("s_cbranch_scc0 %s" % Lw)
    a("v_cmp_ne_u32 vcc, 0, %s" % R(T3))
    a("s_cmp_eq_u64 vcc, -1"); a("s_cselect_b32 %s, 1, 0" % S(sDEC))
    a("s_cmp_lt_u32 %s, 512" % S(sGN)); a("s_cselect_b32 %s, %s, 0" % (S(sDEC), S(sDEC)))
    bcast_write(a, T1, T2)
    a.label(Lw)
    a("s_barrier")
    bcast_read(a, T1, T2)
    a("s_mov_b32 s79, %s" % S(sDEC))
    a("s_cmp_eq_u32 s79, 1"); a("s_cbranch_scc0 %s" % Lnoq)
    loads_qkv(a, sJL, sML, sMSUB)
    a("s_waitcnt vmcnt(24)")
    a("s_branch %s" % Lsg)
    a.label(Lnoq)
    a("s_waitcnt vmcnt(0)")
    a.label(Lsg)
    wg_signal(a, T1, T2, "s78")
    trace(a, 3, sJL, sJS, [(sX1, 0)], T1, T2, sT0)
    a("s_mov_b32 %s, %s" % (S(sG), S(sGN)))
    a("s_branch %s" % Lj)
    a.label(Ld)
    a("s_waitcnt vmcnt(0)")
    a("s_branch L_exit")

NS2, NR3, NR5 = 28, 14, 10
RMAP = None
def misc_role(a, init_target):
    a.comment("==== misc role ====")
    a("s_mov_b32 %s, %s" % (S(sAUX3), S(sX0)))
    load_srd(a, sB, 'x'); load_srd(a, sC, 'out')
    signal_init(a, RT1, RT2)
    a("s_waitcnt lgkmcnt(0)")
    finish_srd(a, sB, 'x'); finish_srd(a, sC, 'out')
    row_setup(a)
    wait_init(a, RT1, RT2, init_target)
    a("s_lshl_b32 %s, %s, 2" % (S(sAUX2), S(sAUX3)))
    a("s_add_u32 %s, %s, %s" % (S(sAUX2), S(sAUX2), S(sW)))
    r0_phase(a, 4 * (NS2 + NR3 + NR5), sAUX2)
    rng = [(0, 14, 's2', 0), (14, 25, 'r3', 0), (25, 32, 'r5', 0), (32, 34, 'r3', 11), (34, 36, 'r5', 7), (36, 50, 's2', 14), (50, 51, 'r3', 13), (51, 52, 'r5', 9)]
    if RMAP: rng = RMAP
    for lo, hi, role, base in rng:
        Ln = a.newlabel('rm')
        a("s_cmp_lt_u32 %s, %d" % (S(sAUX3), hi))
        a("s_cbranch_scc0 %s" % Ln)
        a("s_sub_u32 %s, %s, %d" % (S(sAUX), S(sAUX3), lo))
        if base: a("s_add_u32 %s, %s, %d" % (S(sAUX), S(sAUX), base))
        a("s_branch L_%s" % role)
        a.label(Ln)
    a.label("L_r5")
    r_role(a, 5, NR5)
    a.label("L_r3")
    r_role(a, 3, NR3)
    a.label("L_s2")
    s2_role(a, NS2)
```
